```python
import torch

def _softmax(x, axis=-1):
    return torch.softmax(x, dim=axis)

def _gelu(x):
    return torch.nn.functional.gelu(x, approximate='tanh')

def _silu(x):
    return torch.nn.functional.silu(x)

def _sigmoid(x):
    return torch.sigmoid(x)

def _layernorm(x, axis=-1, eps=1e-05):
    m = x.mean(dim=axis, keepdim=True)
    v = x.var(dim=axis, keepdim=True, unbiased=False)
    return (x - m) / torch.sqrt(v + eps)

def _scatter_add(tgt, idx, src, axis=0):
    return tgt.clone().index_add_(axis, idx, src)

def _segment_sum(src, seg, n):
    out = torch.zeros((n,) + src.shape[1:], dtype=src.dtype)
    return out.index_add_(0, seg, src)

def _pad(x, pw):
    flat = tuple((v for pair in reversed(pw) for v in pair))
    return torch.nn.functional.pad(x, flat)
kernel_name = 'interleave_layers__memory_aug_recurrent_mem_tr__moe_arch_mod__prompt'

def setup_inputs():

    _w = lambda a: (lambda t: t.to(torch.bfloat16) if t.is_floating_point() else t)(torch.as_tensor(a))

    def _A_setup():
        B, S, Dm = (1, 2048, 512)
        H, Dh = (32, 128)
        M, seg = (8, 32)
        seg = min(seg, S)
        S = S // seg * seg
        return {'x': _w((lambda *s: torch.randn(*s, dtype=torch.bfloat16) * 0.05)(B, S, Dm)), 'mem0': _w((lambda *s: torch.randn(*s, dtype=torch.bfloat16) * 0.8)(B, M, Dm)), 'Wq': _w((lambda *s: torch.randn(*s, dtype=torch.bfloat16) * 0.8)(Dm, H, Dh) * Dm ** (-0.5)), 'Wk': _w((lambda *s: torch.randn(*s, dtype=torch.bfloat16) * 0.8)(Dm, H, Dh) * Dm ** (-0.5)), 'Wv': _w((lambda *s: torch.randn(*s, dtype=torch.bfloat16) * 0.8)(Dm, H, Dh) * Dm ** (-0.5)), 'Wo': _w((lambda *s: torch.randn(*s, dtype=torch.bfloat16) * 0.8)(H, Dh, Dm) * (H * Dh) ** (-0.5)), 'seg_len': seg}
    _A_in = _A_setup()

    def _B_setup():
        B, S, D, F, C = (1, 2048, 512, 1792, 1)
        return {'x': _w((lambda *s: torch.randn(*s, dtype=torch.bfloat16) * 0.05)(B, S, D)), 'w_r': _w((lambda *s: torch.randn(*s, dtype=torch.bfloat16) * 0.05)(D)), 'w_gate': _w((lambda *s: torch.randn(*s, dtype=torch.bfloat16) * 0.05)(D, F)), 'w_up': _w((lambda *s: torch.randn(*s, dtype=torch.bfloat16) * 0.05)(D, F)), 'w_down': _w((lambda *s: torch.randn(*s, dtype=torch.bfloat16) * 0.05)(F, D))}
    _B_in = _B_setup()
    return {'A_x': _A_in['x'], 'A_mem0': _A_in['mem0'], 'A_Wq': _A_in['Wq'], 'A_Wk': _A_in['Wk'], 'A_Wv': _A_in['Wv'], 'A_Wo': _A_in['Wo'], 'A_seg_len': _A_in['seg_len'], 'B_x': _B_in['x'], 'B_w_r': _B_in['w_r'], 'B_w_gate': _B_in['w_gate'], 'B_w_up': _B_in['w_up'], 'B_w_down': _B_in['w_down']}

def reference(A_x, A_mem0, A_Wq, A_Wk, A_Wv, A_Wo, A_seg_len, B_x, B_w_r, B_w_gate, B_w_up, B_w_down):

    def _A_ref(x, mem0, Wq, Wk, Wv, Wo, seg_len):
        B, S, Dm = x.shape
        H, Dh = (Wq.shape[1], Wq.shape[2])
        M = mem0.shape[1]
        scale = Dh ** (-0.5)
        n_seg = S // seg_len
        L = M + seg_len
        idx = torch.arange(L)
        mask = (idx[:, None] < M) | (idx[:, None] >= idx[None, :])
        mem = mem0
        outs = []
        for s in range(n_seg):
            xs = x[:, s * seg_len:(s + 1) * seg_len, :].clone()
            h = torch.concatenate([mem, xs], axis=1)
            q = torch.einsum('btd,dhe->bhte', h, Wq)
            k = torch.einsum('btd,dhe->bhte', h, Wk)
            v = torch.einsum('btd,dhe->bhte', h, Wv)
            scores = torch.einsum('bhqe,bhke->bhqk', q, k) * scale
            scores = torch.where(mask[None, None], scores, -1000000000.0)
            p = _softmax(scores, axis=-1)
            o = torch.einsum('bhqk,bhke->bhqe', p, v)
            o = torch.einsum('bhte,hed->btd', o, Wo)
            mem = o[:, :M, :].clone()
            outs.append(o[:, M:, :])
        return torch.concatenate(outs, axis=1)

    def _B_ref(x, w_r, w_gate, w_up, w_down):
        B, S, D = x.shape
        C = 1
        r = x @ w_r
        idx = torch.argsort(-r, axis=-1)[:, :C]
        idx_e = (lambda x, n, axis: torch.repeat_interleave(x, n, dim=axis))(idx.reshape(B, C, 1), D, axis=2)
        x_sel = (lambda x, i, axis: torch.take_along_dim(x, i, dim=axis))(x, idx_e, axis=1)
        g = _silu(x_sel @ w_gate)
        u = x_sel @ w_up
        y = g * u @ w_down
        r_sel = _sigmoid((lambda x, i, axis: torch.take_along_dim(x, i, dim=axis))(r, idx, axis=1))
        y = y * r_sel.reshape(B, C, 1)
        b_off = (torch.arange(B) * S).reshape(B, 1)
        flat_idx = (idx + b_off).reshape(B * C)
        zero = (x * 0.0).reshape(B * S, D)
        upd = _scatter_add(zero, flat_idx, y.reshape(B * C, D), axis=0)
        return x + upd.reshape(B, S, D)
    x = A_x
    x = x + _A_ref(_layernorm(x, axis=-1), A_mem0, A_Wq, A_Wk, A_Wv, A_Wo, A_seg_len)
    x = x + _B_ref(_layernorm(x, axis=-1), B_w_r, B_w_gate, B_w_up, B_w_down)
    x = x + _A_ref(_layernorm(x, axis=-1), A_mem0, A_Wq, A_Wk, A_Wv, A_Wo, A_seg_len)
    x = x + _B_ref(_layernorm(x, axis=-1), B_w_r, B_w_gate, B_w_up, B_w_down)
    return x
```

```python
import re

def v(a, n=1):
    return f"v{a}" if n == 1 else f"v[{a}:{a+n-1}]"
def ar(a, n=1):
    return f"a{a}" if n == 1 else f"a[{a}:{a+n-1}]"
def s(a, n=1):
    return f"s{a}" if n == 1 else f"s[{a}:{a+n-1}]"
def reg(r, n=1):
    if r < 256:
        assert r + n <= 256
        return v(r, n)
    return ar(r - 256, n)

_REG = re.compile(r"\b([vas])(?:(\d+)|\[(\d+):(\d+)\])(?![\w])")
def regs_of(op):
    out = set()
    op = op.strip()
    for m in _REG.finditer(op):
        k = m.group(1)
        if m.group(2) is not None:
            out.add((k, int(m.group(2))))
        else:
            for i in range(int(m.group(3)), int(m.group(4)) + 1):
                out.add((k, i))
    if re.search(r"\bvcc\b", op): out |= {("s", "vcc")}
    if re.search(r"\bvcc_lo\b|\bvcc_hi\b", op): out |= {("s", "vcc")}
    if re.search(r"\bexec(_lo|_hi)?\b", op): out |= {("s", "exec")}
    if re.search(r"\bm0\b", op): out |= {("s", "m0")}
    return out

TRANS = ("v_exp_f32", "v_log_f32", "v_rcp_f32", "v_rsq_f32", "v_sqrt_f32", "v_sin_f32", "v_cos_f32", "v_rcp_iflag_f32")

class Ins:
    __slots__ = ("text", "mn", "kind", "wr", "rd", "srcc", "ab", "passes", "dpp", "data", "wide", "lds_dma")
    def __init__(self, text):
        self.text = text
        t = text.split(";")[0].strip()
        parts = t.split(None, 1)
        mn = parts[0]
        for suf in ("_e32", "_e64", "_dpp", "_sdwa"):
            if mn.endswith(suf): mn = mn[: -len(suf)]
        self.mn = mn
        rest = parts[1] if len(parts) > 1 else ""
        ops = [o.strip() for o in re.split(r",(?![^\[]*\])", rest)] if rest else []
        self.dpp = bool(re.search(r"quad_perm|row_shr|row_shl|row_ror|row_bcast|row_mirror|row_half_mirror|row_newbcast|wave_", rest))
        self.wr = set(); self.rd = set(); self.srcc = set(); self.ab = set(); self.passes = 0
        self.data = set(); self.wide = False; self.lds_dma = False
        if ops:
            last = ops[-1].split()
            mods = " ".join(last[1:])
            ops[-1] = last[0] if last else ""
        else:
            mods = ""
        R = [regs_of(o) for o in ops]
        if mn.startswith("v_mfma") or mn.startswith("v_smfmac"):
            self.kind = "mfma"
            self.wr = R[0]
            if mn.startswith("v_smfmac"):
                self.ab = R[1] | R[2] | R[3]; self.srcc = R[0]
            else:
                self.ab = R[1] | R[2]; self.srcc = R[3]
            self.rd = self.ab | self.srcc
            if "32x32" in mn: self.passes = 8
            elif "16x16" in mn: self.passes = 4
            else: self.passes = 2
            if mn.endswith("_f32") and "bf16" not in mn and "f16" not in mn: raise ValueError("sgemm not modelled")
        elif mn.startswith("v_"):
            self.kind = "valu"
            if mn.startswith("v_cmpx"):
                self.wr = R[0] | {("s", "exec")}; self.rd = set().union(*R[1:])
            elif mn.startswith("v_permlane") and "swap" in mn:
                self.wr = R[0] | R[1]; self.rd = R[0] | R[1]
            elif mn in ("v_add_co_u32", "v_sub_co_u32", "v_addc_co_u32", "v_subb_co_u32", "v_subrev_co_u32", "v_mad_u64_u32", "v_div_scale_f32"):
                self.wr = R[0] | R[1]; self.rd = set().union(*R[2:])
            elif mn == "v_nop":
                pass
            else:
                self.wr = R[0]; self.rd = set().union(*R[1:]) if len(R) > 1 else set()
                if mn.startswith("v_fmac") or mn.startswith("v_dot2c") or mn.startswith("v_pk_fmac") or mn == "v_writelane_b32" or self.dpp or "d16" in mn:
                    self.rd |= R[0]
                if mn == "v_div_fmas_f32": self.rd |= {("s", "vcc")}
        elif mn.startswith("buffer_") or mn.startswith("global_") or mn.startswith("flat_"):
            self.kind = "vmem"
            is_lds = bool(re.search(r"\blds\b", mods)) or "load_lds" in mn
            if mn in ("buffer_inv", "buffer_wbl2"):
                pass
            elif is_lds:
                self.lds_dma = True; self.rd = set().union(*R) | {("s", "m0")}
            elif "load" in mn:
                self.wr = R[0]; self.rd = set().union(*R[1:])
                if "d16" in mn: self.rd |= R[0]
            elif "store" in mn:
                self.rd = set().union(*R)
                self.data = R[0] if mn.startswith("buffer_") else R[1]
                self.wide = mn.endswith("x3") or mn.endswith("x4")
            elif "atomic" in mn:
                ret = bool(re.search(r"\bsc0\b", mods))
                self.rd = set().union(*R)
                if ret: self.wr = R[0]
            else:
                raise ValueError(text)
        elif mn.startswith("ds_"):
            self.kind = "ds"
            if "read" in mn or "permute" in mn or "swizzle" in mn or "rtn" in mn:
                self.wr = R[0]; self.rd = set().union(*R[1:])
            else:
                self.rd = set().union(*R)
        elif mn.startswith("s_"):
            self.kind = "salu"
            if mn in ("s_nop", "s_waitcnt", "s_barrier", "s_endpgm", "s_sleep", "s_setprio", "s_branch") or mn.startswith("s_cbranch"):
                self.kind = "ctl"
            elif mn.startswith("s_cmp") or mn.startswith("s_bitcmp"):
                self.rd = set().union(*R) if R else set()
            else:
                self.wr = R[0] if R else set(); self.rd = set().union(*R[1:]) if len(R) > 1 else set()
                if "saveexec" in mn: self.wr |= {("s", "exec")}
        else:
            raise ValueError("unknown instruction: " + text)
    def states(self):
        if self.mn == "s_nop":
            return int(self.text.split(";")[0].split()[1], 0) + 1
        return 1

def _isv(rs): return {r for r in rs if r[0] in "va"}
def _iss(rs): return {r for r in rs if r[0] == "s"}

def need(p, c):
    n = 0
    if p.kind == "mfma":
        D = p.wr
        big = {2: 5, 4: 8, 8: 12, 16: 20}[p.passes]
        if c.kind == "mfma":
            if D & c.ab: n = max(n, big)
            if D & c.srcc:
                if not (c.srcc == D and c.mn == p.mn):
                    n = max(n, {2: 5, 4: 8, 8: 12, 16: 20}[p.passes])
                elif p.passes == 2: n = max(n, 2)
            elif D & c.wr: n = max(n, big)
        elif c.kind in ("valu", "vmem", "ds"):
            if D & (c.rd | c.wr): n = max(n, big)
        if c.kind == "valu" and (p.srcc & c.wr):
            n = max(n, {2: 1, 4: 3, 8: 7, 16: 15}[p.passes])
    if p.kind == "valu":
        W = _isv(p.wr); S = _iss(p.wr)
        if c.kind == "mfma":
            if W & c.rd: n = max(n, 2)
            if ("s", "exec") in S: n = max(n, 4)
        if c.kind == "valu":
            if c.dpp and (W & c.rd): n = max(n, 2)
            if c.dpp and ("s", "exec") in S: n = max(n, 5)
            if c.mn.startswith("v_permlane") and (W & c.rd): n = max(n, 2)
            if c.mn.startswith("v_permlane") and ("s", "exec") in S: n = max(n, 4)
            if c.mn in ("v_readlane_b32", "v_readfirstlane_b32") and (W & c.rd): n = max(n, 1)
            if c.mn in ("v_readlane_b32", "v_readfirstlane_b32", "v_writelane_b32") and ("s", "exec") in S: n = max(n, 4)
            if p.mn in TRANS and c.mn not in TRANS and (W & (c.rd | c.wr)): n = max(n, 1)
            if p.mn in TRANS and (W & c.rd): n = max(n, 1)
            if S & c.rd:
                n = max(n, 4 if c.mn in ("v_readlane_b32", "v_writelane_b32", "v_div_fmas_f32") else 2)
            if ("op_sel" in p.text or "sdwa" in p.text or "dst_sel" in p.text) and (W & (c.rd | c.wr)): n = max(n, 1)
            if p.mn.startswith("v_dot") and (W & (c.rd | c.wr)):
                n = max(n, 0 if (c.mn == p.mn and not (W & (c.rd - c.wr))) and p.mn.startswith("v_dot2c") else 3)
        if c.kind in ("vmem", "ds") and p.mn in TRANS and (W & c.rd): n = max(n, 1)
        if c.kind in ("vmem", "ds") and p.mn.startswith("v_dot") and (W & c.rd): n = max(n, 3)
        if c.kind == "vmem" and (S & c.rd): n = max(n, 5)
    if p.kind == "vmem" and p.wide:
        if c.kind == "valu" and (p.data & c.wr): n = max(n, 2)
        elif c.kind in ("vmem", "ds", "mfma") and (p.data & c.wr): n = max(n, 2)
    if p.kind == "salu" and ("s", "m0") in p.wr:
        if (c.kind == "vmem" and c.lds_dma) or "addtid" in c.mn or c.mn.startswith("s_movrel") or c.mn == "s_sendmsg": n = max(n, 1)
    return n

MAXW = 20
class Asm:
    def __init__(self):
        self.items = []
        self._lab = 0
    def __call__(self, txt):
        for ln in txt.split("\n"):
            ln = ln.strip()
            if ln: self.items.append(ln)
    def label(self, base="L"):
        self._lab += 1
        return f"{base}_{self._lab}"
    def raw_text(self):
        return "\n".join((x if x.endswith(":") else "  " + x) for x in self.items) + "\n"
    def text(self, fix=True, verbose=False):
        if not fix: return self.raw_text()
        P = []
        for x in self.items:
            if x.endswith(":") or x.startswith(".") or x.startswith(";"):
                P.append(x)
            else:
                P.append(Ins(x))
        total = 0
        i = 0
        labels = {x[:-1]: q for q, x in enumerate(P) if isinstance(x, str) and x.endswith(":")}
        while i < len(P):
            n = len(P)
            p = P[i]
            if (not isinstance(p, Ins) or p.kind in ("ctl", "ds") or (p.kind == "salu" and ("s", "m0") not in p.wr)
                    or (p.kind == "vmem" and not p.wide)):
                i += 1; continue
            lim = MAXW if p.kind == "mfma" else 5
            stack = [(i + 1, 0)]
            seen = {}
            fixat = None
            while stack and fixat is None:
                j, d = stack.pop()
                while j < n and d < lim:
                    if seen.get(j, 99) <= d: break
                    seen[j] = d
                    c = P[j]
                    if not isinstance(c, Ins):
                        j += 1; continue
                    k = need(p, c)
                    if k > d:
                        fixat = (j, k - d); break
                    if c.mn == "s_endpgm": break
                    d += c.states()
                    if c.mn == "s_branch" or c.mn.startswith("s_cbranch"):
                        tgt = c.text.split(";")[0].split()[1]
                        if tgt in labels: stack.append((labels[tgt], d))
                        if c.mn == "s_branch": break
                    if c.mn in ("s_setpc_b64", "s_swappc_b64"): break
                    j += 1
            if fixat:
                j, k = fixat
                if verbose: print(f"hazard: +{k} before '{P[j].text}' (producer '{p.text}')")
                total += k
                ins = []
                while k > 0:
                    m = min(k, 16); ins.append(Ins(f"s_nop {m-1}")); k -= m
                P[j:j] = ins
                for lb in labels:
                    if labels[lb] >= j: labels[lb] += len(ins)
                if j <= i: i += len(ins)
                continue
            i += 1
        self.nops_inserted = total
        return "\n".join((x if isinstance(x, str) and (x.endswith(":") or x.startswith(".")) else "  " + (x if isinstance(x, str) else x.text)) for x in P) + "\n"
```

```python
from asmlib import *
from layout import *
import math, struct
def f32bits(x): return struct.unpack("<I", struct.pack("<f", x))[0]

class Cnt:
    def __init__(self, A, name, mx):
        self.A, self.name, self.mx, self.q = A, name, mx, []
        self.n = 0
    def issue(self, txt):
        self.A(txt); self.n += 1; self.q.append(self.n); return self.n
    def wait(self, tok):
        if tok not in self.q: return
        after = len(self.q) - 1 - self.q.index(tok)
        self.A(f"s_waitcnt {self.name}({min(after, self.mx)})")
        self.q = self.q[self.q.index(tok) + 1:]
    def drain(self):
        self.A(f"s_waitcnt {self.name}(0)"); self.q = []
    def reset(self): self.q = []

def delay(A, cyc):
    n = cyc // 4
    while n > 0:
        k = min(n, 16); A(f"s_nop {k-1}"); n -= k

L_MEM, L_QK, L_PS, L_O, L_W = 0, 8192, 12288, 0, 16384
vL16, vLW, vCQ, vCR, vPS, vAGS, vIDX, T0 = range(8)
vW16 = 8
vCRW = 12
T1, T2, T3 = 17, 18, 19
MEMA = 16
LAMPOS = {0: 0, 4: 1, 1: 2, 2: 3, 3: 4, 5: 5, 6: 6, 7: 7}
def mema(lam): return MEMA + 4 * LAMPOS[lam]
QA, KA_, VA = 48, 56, 64
ST = [72 + 8 * i for i in range(7)]
KXR, VX, SOP = 72, 80, 88
OWN = [("q", 0, 0), ("q", 1, 0), ("k", 0, 0), ("k", 1, 0), ("q", 0, 4), ("q", 1, 4), ("k", 0, 4), ("k", 1, 4),
       ("v", 0, 0), ("v", 1, 0), ("v", 0, 4), ("v", 1, 4)]
NE = 10
ESLOT = [MEMA + 8, MEMA + 16, MEMA + 24] + ST
WO_ORDER = [(T, ko) for T in range(8) for ko in range(2)]
WSLOT = [104, 112, 120, MEMA, SOP, SOP + 8]
NO_REG = 10
LOC = {}
for i, k in enumerate(OWN[:NE]): LOC[k] = ("l", i)
for i, (T, ko) in enumerate(WO_ORDER[NO_REG:]): LOC[("o", T, ko)] = ("l", NE + i)
_r = 504
for (T, ko) in WO_ORDER[:NO_REG]:
    LOC[("o", T, ko)] = ("r", _r); _r -= 8
for m in "qkv":
    for tau in range(2):
        for lam in range(8):
            if (m, tau, lam) not in LOC:
                LOC[(m, tau, lam)] = ("r", _r); _r -= 8
assert _r == 120
sWS = 4
sT = 8
sJ, sW = 16, 17
sHALF = 18
sONE = 14
sStep = 22
sKV = 23
sC = 24
sKM = 25
sTmp = 26
sIn = 40
sAG = 42
sLo, sHi = 44, 45
sCnt = 46
sBox = 38
sPar = 3
sChain, sLayer, sAgr, sFkv, sFkm, sRdy = 60, 61, 62, 63, 64, 65
sSt = 66
sAcc = 48

def lane_consts(A):
    A(f"""
    v_lshrrev_b32 v{T2}, 6, v0
    v_and_b32 v{T3}, 63, v0
    v_readfirstlane_b32 s{sW}, v{T2}
    v_and_b32 v{T0}, 15, v{T3}
    v_lshrrev_b32 v{T1}, 4, v{T3}
    v_lshlrev_b32 v{vL16}, 4, v{T3}
    """)

def put(A, dst_loc, regidx, src_txt, tmp):
    raise NotImplementedError

def chain_prologue(A):
    n, g = T0, T1
    A(f"""
    s_mov_b32 s{sLo}, 0x05040100
    s_mov_b32 s{sHi}, 0x07060302
    s_mov_b32 s{sHALF}, 0xcccccccc
    s_mov_b32 s{sHALF+1}, 0xcccccccc
    s_mov_b32 s{sC}, {hex(f32bits(128 ** -0.5 * math.log2(math.e)))}
    s_lshl_b32 s{sTmp}, s{sW}, 10
    v_add_u32 v{vW16}, s{sTmp}, v{vL16}
    v_xor_b32 v{vW16+1}, 1024, v{vW16}
    v_xor_b32 v{vW16+2}, 2048, v{vW16}
    v_xor_b32 v{vW16+3}, 3072, v{vW16}
    s_mov_b32 s{sONE}, 0x3f803f80
    s_mov_b32 s{sONE+1}, 0x3f803f80
    s_mul_i32 s{sTmp+1}, s{sW}, 36864
    s_add_u32 s{sTmp+1}, s{sTmp+1}, {L_W}
    s_add_u32 m0, s{sTmp+1}, 32768
    v_add_u32 v{vLW}, s{sTmp+1}, v{vL16}
    v_lshrrev_b32 v20, 2, v{n}
    v_xor_b32 v21, v{g}, v20
    v_lshlrev_b32 v22, 5, v{n}
    v_add_u32 v22, s{sTmp}, v22
    v_lshl_add_u32 v{vCQ}, v21, 3, v22
    v_and_b32 v21, 3, v{n}
    v_xor_b32 v21, v21, v{g}
    v_lshl_add_u32 v22, v{g}, 2, v20
    v_lshlrev_b32 v22, 5, v22
    v_lshl_add_u32 v{vCR}, v21, 3, v22
    v_add_u32 v{vCRW}, s{sTmp}, v{vCR}
    v_xor_b32 v{vCRW+1}, 1024, v{vCRW}
    v_xor_b32 v{vCRW+2}, 2048, v{vCRW}
    v_xor_b32 v{vCRW+3}, 3072, v{vCRW}
    ; partial store offset: consumer (8w + n/4)*8192 + j*256 + (4g + n%4)*16
    v_lshlrev_b32 v21, 13, v20
    v_and_b32 v22, 3, v{n}
    v_lshl_add_u32 v22, v{g}, 2, v22
    v_lshl_add_u32 v21, v22, 4, v21
    s_lshl_b32 s{sTmp+1}, s{sW}, 16
    s_lshl_b32 s{sTmp+2}, s{sJ}, 8
    s_add_u32 s{sTmp+1}, s{sTmp+1}, s{sTmp+2}
    v_add_u32 v{vPS}, s{sTmp+1}, v21
    v_and_b32 v21, 1, v{n}
    v_lshl_add_u32 v21, v{g}, 2, v21
    v_bfe_u32 v22, v{n}, 2, 1
    v_lshl_add_u32 v21, v22, 1, v21
    v_lshlrev_b32 v21, 4, v21
    v_bfe_u32 v22, v{n}, 1, 1
    v_lshl_add_u32 v21, v22, 3, v21
    v_add_u32 v{vAGS}, s{sTmp+2}, v21
    v_cmp_lt_u32 vcc, 7, v{n}
    v_mov_b32 v22, 0x7ff00000
    v_cndmask_b32 v{vAGS}, v{vAGS}, v22, vcc
    v_mov_b32 v21, 0x4444
    v_mov_b32 v22, 0xeeee
    v_cndmask_b32 v{vIDX}, v21, v22, s[{sHALF}:{sHALF+1}]
    """)
    A(f"s_lshl_b32 s{sIn}, s{sChain}, 20\ns_add_u32 s{sIn}, s{sIn}, {INBOX}\ns_add_u32 s{sIn+1}, s{sIn}, 32768")
    A(f"s_lshl_b32 s{sAgr}, s{sChain}, 16\ns_add_u32 s{sAgr}, s{sAgr}, {AGR}")
    A("v_mov_b32 v24, -1\nv_mov_b32 v25, -1\nv_mov_b32 v26, -1\nv_mov_b32 v27, -1")
    for st in range(2):
        A(f"buffer_store_dwordx4 v[24:27], v{vPS}, s[{sWS}:{sWS+3}], s{sIn+st} offen sc1")
    for slot in range(1, 3):
        A(f"s_add_u32 s{sTmp+1}, s{sAgr}, {slot * 8192}\nbuffer_store_dwordx2 v[24:25], v{vAGS}, s[{sWS}:{sWS+3}], s{sTmp+1} offen sc1")
    A(f"""
    s_load_dwordx2 s[{sT}:{sT+1}], s[0:1], {KA['mem0']}
    s_mov_b32 s{sT+2}, 8192
    s_mov_b32 s{sT+3}, 0x20000
    v_and_b32 v21, 1, v{n}
    v_lshl_add_u32 v21, v{g}, 1, v21
    v_lshlrev_b32 v21, 10, v21
    v_bfe_u32 v22, v{n}, 1, 2
    v_lshl_add_u32 v21, v22, 1, v21
    s_lshr_b32 s{sTmp+1}, s{sJ}, 3
    s_lshl_b32 s{sTmp+1}, s{sTmp+1}, 8
    s_and_b32 s{sTmp+2}, s{sJ}, 3
    s_lshl_b32 s{sTmp+2}, s{sTmp+2}, 6
    s_add_u32 s{sTmp+1}, s{sTmp+1}, s{sTmp+2}
    s_and_b32 s{sTmp+2}, s{sJ}, 4
    s_lshl_b32 s{sTmp+2}, s{sTmp+2}, 1
    s_add_u32 s{sTmp+1}, s{sTmp+1}, s{sTmp+2}
    s_waitcnt lgkmcnt(0)
    buffer_load_ushort v28, v21, s[{sT}:{sT+3}], s{sTmp+1} offen
    buffer_load_ushort v29, v21, s[{sT}:{sT+3}], s{sTmp+1} offen offset:16
    buffer_load_ushort v30, v21, s[{sT}:{sT+3}], s{sTmp+1} offen offset:32
    buffer_load_ushort v31, v21, s[{sT}:{sT+3}], s{sTmp+1} offen offset:48
    s_waitcnt vmcnt(0)
    v_lshl_or_b32 v28, v29, 16, v28
    v_lshl_or_b32 v29, v31, 16, v30
    v_min_u32 v28, -2, v28
    v_min_u32 v29, -2, v29
    buffer_store_dwordx2 v[28:29], v{vAGS}, s[{sWS}:{sWS+3}], s{sAgr} offen sc1
    s_waitcnt vmcnt(0)
    s_barrier
    """)

def emit_quad(A, loc, u, perms, tmp):
    kind, x = loc
    for rho, (s1, s0, sel) in enumerate(perms):
        if kind == "r" and x < 256:
            A(f"v_perm_b32 v{x+u*4+rho}, v{s1}, v{s0}, s{sel}")
        else:
            A(f"v_perm_b32 v{tmp+rho}, v{s1}, v{s0}, s{sel}")
    if kind == "r" and x >= 256:
        for rho in range(4): A(f"v_accvgpr_write_b32 a{x-256+u*4+rho}, v{tmp+rho}")
    if kind == "l":
        A(f"ds_write_b128 v{vLW}, v[{tmp}:{tmp+3}] offset:{x*2048+u*1024}\ns_waitcnt lgkmcnt(0)")

def chain_load_weights(A):
    n, g = T0, T1
    A(f"""
    s_load_dwordx2 s[{sT}:{sT+1}], s[0:1], {KA['wo']}
    s_mov_b32 s{sT+2}, {4*MB}
    s_mov_b32 s{sT+3}, 0x20000
    v_and_b32 v20, 1, v{g}
    v_lshlrev_b32 v20, 5, v20
    v_lshrrev_b32 v21, 1, v{g}
    v_lshl_add_u32 v20, v21, 3, v20        ; 32*(g%2) + 8*(g/2)
    v_lshlrev_b32 v20, 10, v20
    v_lshl_add_u32 v20, v{n}, 4, v20
    s_lshl_b32 s{sTmp}, s{sJ}, 17
    s_lshl_b32 s{sTmp+1}, s{sW}, 8
    s_add_u32 s{sTmp}, s{sTmp}, s{sTmp+1}
    v_lshlrev_b32 v22, 5, v21
    v_and_b32 v21, 1, v{g}
    v_add_u32 v21, v21, v22
    v_lshlrev_b32 v21, 13, v21
    v_lshl_add_u32 v21, v{n}, 2, v21
    s_waitcnt lgkmcnt(0)
    """)
    vm = Cnt(A, "vmcnt", 63)
    toks = []
    for ko in range(2):
        for u in range(2):
            for sg in range(8):
                e = 64 * ko + 16 * u + 2 * (2 * (sg // 4) + sg % 2) + (sg % 4) // 2
                r = 128 + ((ko * 2 + u) * 8 + sg) * 4
                A(f"s_add_u32 s{sTmp+1}, s{sTmp}, {e * 1024}")
                tk = vm.issue(f"buffer_load_dwordx4 v[{r}:{r+3}], v20, s[{sT}:{sT+3}], s{sTmp+1} offen")
            toks.append(tk)
    sF = sTmp + 4
    A(f"s_lshl_b32 s{sTmp}, s{sJ}, 8\ns_lshl_b32 s{sTmp+1}, s{sW}, 6\ns_add_u32 s{sTmp}, s{sTmp}, s{sTmp+1}")
    for x in range(4):
        A(f"""
        s_xor_b32 s{sTmp+1}, s{sW}, {x}
        s_lshr_b32 s{sTmp+2}, s{sTmp+1}, 1
        s_lshl_b32 s{sTmp+2}, s{sTmp+2}, 20
        s_and_b32 s{sTmp+1}, s{sTmp+1}, 1
        s_lshl_b32 s{sTmp+1}, s{sTmp+1}, 15
        s_add_u32 s{sF+x}, s{sTmp+1}, s{sTmp+2}
        s_add_u32 s{sF+x}, s{sF+x}, s{sTmp}
        """)
    POOL, NP = 24, 6
    jobs = [(m, lam) for m in "qkv" for lam in range(8)]
    jt = {}
    def issue(i):
        m, lam = jobs[i]
        if lam == 0:
            A(f"s_load_dwordx2 s[{sT}:{sT+1}], s[0:1], {KA['w'+m]}\ns_waitcnt lgkmcnt(0)")
        for u in range(2):
            for sg in range(8):
                r = POOL + (i % NP) * 16 + u * 8 + sg
                d = 256 * (lam // 4) + 64 * u + 8 * (2 * (sg // 4) + sg % 2) + 2 * ((sg % 4) // 2)
                A(f"s_add_u32 s{sTmp+1}, s{sF + lam % 4}, {d * 8192}")
                jt[i] = vm.issue(f"buffer_load_dword v{r}, v21, s[{sT}:{sT+3}], s{sTmp+1} offen")
    def consume(i):
        m, lam = jobs[i]
        vm.wait(jt[i])
        for u in range(2):
            for tau in range(2):
                l0 = POOL + (i % NP) * 16 + u * 8
                emit_quad(A, LOC[(m, tau, lam)], u, [(l0 + 2 * rho + 1, l0 + 2 * rho, sHi if tau else sLo) for rho in range(4)], 120 + 4 * tau)
    issue(0)
    for ko in range(2):
        for u in range(2):
            vm.wait(toks[ko * 2 + u])
            if ko * 2 + u in (1, 3): issue(1 + (ko * 2 + u) // 2)
            for T in range(8):
                assert LOC[("o", T, ko)][0] == "l" or LOC[("o", T, ko)][1] >= 256
                b = 128 + (ko * 2 + u) * 32 + T // 2
                emit_quad(A, LOC[("o", T, ko)], u, [(b + 8 * rho + 4, b + 8 * rho, sHi if T % 2 else sLo) for rho in range(4)], 120 + 4 * (T % 2))
    AHEAD = 3
    for i in range(3, len(jobs) + AHEAD):
        if i < len(jobs): issue(i)
        consume(i - AHEAD)

def smf(acc, a, b, abid=False):
    return f"v_smfmac_f32_16x16x64_bf16 {v(acc,4)}, {v(a,4)}, {reg(b,8)}, v{vIDX}" + (" abid:1" if abid else "")
def mf(acc, a, b, c=None):
    return f"v_mfma_f32_16x16x32_bf16 {v(acc,4)}, {v(a,4)}, {v(b,4)}, {v(c,4) if c is not None else '0'}"

def xlane(A, op, r, t):
    A(f"{op}_dpp v{r}, v{r}, v{r} quad_perm:[2,3,0,1] row_mask:0xf bank_mask:0xf")
    A(f"v_mov_b32 v{t}, v{r}\nv_permlane16_swap_b32 v{r}, v{t}\n{op} v{r}, v{r}, v{t}")
    A(f"v_mov_b32 v{t}, v{r}\nv_permlane32_swap_b32 v{r}, v{t}\n{op} v{r}, v{r}, v{t}")

NOP16 = [""]
def mf16(acc, a, b, c):
    return NOP16[0] + f"v_mfma_f32_16x16x16_bf16 {v(acc,4)}, {v(a,2)}, {v(b,2)}, {v(c,4)}"
def z64(r): return f"v_mov_b64 v[{r}:{r+1}], 0"

def chain_loop(A, P):
    STF = P.get("st", "")
    stamps = P.get("stamps", False)
    NOP16[0] = P.get("nop16", "")
    W = f"s[{sWS}:{sWS+3}]"
    H = f"s[{sHALF}:{sHALF+1}]"
    LOOP, RETRY, GOT, HOP2, FB, FBR, FAIL = [A.label(x) for x in ("c_loop", "c_retry", "c_got", "c_hop2", "c_fb", "c_fbr", "c_fail")]
    def snap(i):
        if P.get("snap"): A(f"s_memrealtime s[{sSt+2*i}:{sSt+2*i+1}]")
    LAST = A.label("c_last")
    acc = dict(q=QA, k=KA_, v=VA)
    def M(m, tau, lam):
        kind, x = LOC[(m, tau, lam)]
        A(smf(acc[m] + 4 * tau, mema(lam), x if kind == "r" else ESLOT[x]))
    ld = Cnt(A, "lgkmcnt", 15); vm = Cnt(A, "vmcnt", 63)
    def stage(lo, hi):
        for i in range(lo, hi):
            A(f"ds_read_b128 v[{ESLOT[i]}:{ESLOT[i]+3}], v{vLW} offset:{i*2048}")
            A(f"ds_read_b128 v[{ESLOT[i]+4}:{ESLOT[i]+7}], v{vLW} offset:{i*2048+1024}")
    wo_tok = {}
    def wof(i, h):
        r = WSLOT[i] + 4 * h
        wo_tok[i] = ld.issue(f"ds_read_b128 v[{r}:{r+3}], v{vLW} offset:{(NE+i)*2048+h*1024}")
    A(f"""
    s_mov_b32 s{sStep}, 0
    s_mov_b32 s{sAG}, s{sAgr}
    s_add_u32 s{sAG+1}, s{sAgr}, 4096
    s_mov_b32 s{sCnt}, 0
    s_mov_b32 s{sCnt+1}, 0
    s_lshl_b32 s{sTmp}, s{sJ}, 2
    s_add_u32 s{sTmp}, s{sTmp}, s{sW}
    s_lshl_b32 s{sTmp+1}, s{sChain}, 13
    s_add_u32 s{sTmp+1}, s{sTmp+1}, s{sTmp}
    s_lshl_b32 s{sKM}, s{sTmp+1}, 11
    s_add_u32 s{sKM}, s{sKM}, {KM}
    s_lshl_b32 s{sFkm}, s{sChain}, 14
    s_add_u32 s{sFkm}, s{sFkm}, s{sTmp}
    s_lshl_b32 s{sFkm}, s{sFkm}, 2
    s_add_u32 s{sFkm}, s{sFkm}, {F_KM - 512}
    s_lshl_b32 s{sTmp+1}, s{sLayer}, 13
    s_add_u32 s{sTmp+1}, s{sTmp+1}, s{sTmp}
    s_lshl_b32 s{sKV}, s{sTmp+1}, 12
    s_add_u32 s{sKV}, s{sKV}, {KV}
    s_lshl_b32 s{sFkv}, s{sTmp+1}, 2
    s_add_u32 s{sFkv}, s{sFkv}, {F_KV}
    """)
    FL = P.get("flags", 1)
    def kv_wait():
        L = A.label("c_kvw")
        A(f"s_mov_b32 s{sTmp+3}, 0\n{L}:\ns_buffer_load_dword s{sRdy}, {W}, s{sFkv} glc")
        A(f"s_add_u32 s{sTmp+3}, s{sTmp+3}, 1\ns_cmp_gt_u32 s{sTmp+3}, {SPIN_MAX}\ns_cbranch_scc1 {FAIL}")
        A(f"s_waitcnt lgkmcnt(0)\ns_cmp_eq_u32 s{sRdy}, 0\ns_cbranch_scc1 {L}")
    if FL: kv_wait()
    if stamps:
        for i in range(12): A(f"s_mov_b32 s{sAcc+i}, 0")
    def kv_dma(p):
        vm.issue(f"buffer_load_dwordx4 v{vL16}, {W}, s{sKV} offen offset:{p*1024} {P.get('kvf','')} lds")
    for p in range(4): kv_dma(p)
    A(f"s_add_u32 s{sKV}, s{sKV}, {32*16384}\ns_add_u32 s{sFkv}, s{sFkv}, 512\ns_mov_b32 s{sRdy}, 0")
    vm.reset()
    stage(3, 10)
    for r in range(QA, QA + 24, 2): A(z64(r))
    A(f"s_lshl_b32 s{sBox}, s{sJ}, 13\ns_add_u32 s{sBox}, s{sBox}, s{sIn}\ns_add_u32 s{sBox+1}, s{sBox}, 4096")
    stage(0, 3)
    A("s_waitcnt lgkmcnt(0)")
    A(f"{LOOP}:")
    m0, m4 = mema(0), mema(4)
    def ag_loads():
        A(f"buffer_load_dwordx4 v[{m0}:{m0+3}], v{vW16}, {W}, s{sAG} offen sc1")
        A(f"buffer_load_dwordx4 v[{m4}:{m4+3}], v{vW16}, {W}, s{sAG+1} offen sc1")
    NSH = P.get("nsh", 2)
    W0A, W0B = A.label("c_w0a"), A.label("c_w0b")
    ag_loads()
    snap(0)
    if stamps and P.get("ref", 0) == 0: A(f"s_memtime s[{sSt}:{sSt+1}]")
    A(f"s_mov_b32 s{sTmp+2}, 0")
    A(f"s_cmp_eq_u32 s{sW}, 0\ns_cbranch_scc1 {W0A}")
    for k in range(1, NSH):
        delay(A, P.get("g2", 100)); ag_loads()
    A(f"{W0B}:")
    npo = 2 * (NSH - 2)
    A("s_waitcnt lgkmcnt(0)")
    A(f"s_waitcnt vmcnt({3+npo})")
    snap(1)
    A(f"v_max3_u32 v{T0}, v{m0}, v{m0+1}, v{m0+2}")
    A(f"v_max_u32 v{T0}, v{T0}, v{m0+3}")
    A(f"ds_write_b128 v{vW16}, v[{m0}:{m0+3}] offset:{L_MEM}")
    M(*OWN[0])
    A(f"s_waitcnt vmcnt({2+npo})")
    A(f"{GOT}:")
    A(f"v_max3_u32 v{T0}, v{m4}, v{m4+1}, v{T0}")
    A(f"v_max3_u32 v{T0}, v{m4+2}, v{m4+3}, v{T0}")
    A(f"ds_write_b128 v{vW16}, v[{m4}:{m4+3}] offset:{L_MEM+4096}")
    M(*OWN[1])
    A(f"v_cmp_eq_u32 vcc, -1, v{T0}")
    M(*OWN[2])
    A(f"s_cbranch_vccnz {RETRY}")
    NB = P.get("nb", 7)
    KVW, KVR = A.label("c_kvs"), A.label("c_kvr")
    for i in range(3, NB):
        M(*OWN[i])
        if i == 3 and FL: A(f"s_cmp_eq_u32 s{sRdy}, 0\ns_cbranch_scc1 {KVW}\n{KVR}:")
        if i == 4 and FL: A(f"v_mov_b32 v{T0}, 1")
    A("s_waitcnt lgkmcnt(0)\ns_barrier")
    if stamps and P.get("ref", 0) == 1: A(f"s_memtime s[{sSt}:{sSt+1}]")
    snap(2)
    order = [1, 2, 3, 5, 6, 7]
    tm = {}
    own = OWN[NB:]
    NA = P.get("na", 4)
    def rdm(lam): tm[lam] = ld.issue(f"ds_read_b128 v[{mema(lam)}:{mema(lam)+3}], v{vW16+lam%4} offset:{L_MEM+(lam//4)*4096}")
    rdm(order[0])
    for i in range(NA):
        rdm(order[1 + i]); M(*own.pop(0))
    assert all(LOC[o][0] == "r" for o in own)
    def half_sum(a): return [f"v_add_f32 v{a}, v{a}, v{a+2}", f"v_add_f32 v{a+1}, v{a+1}, v{a+3}"]
    def qpost(a): return half_sum(a) + [f"v_cvt_pk_bf16_f32 v{a+2}, v{a}, v{a+1}", f"v_cvt_pk_bf16_f32 v{a+3}, v{a}, v{a+1}"]
    def kpost(a): return half_sum(a) + [f"v_cvt_pk_bf16_f32 v{a+2}, v{a}, v{a+1}"]
    tkv = {}
    def rdkv(p): tkv[p] = ld.issue(f"ds_read_b128 v[{KXR+4*p}:{KXR+4*p+3}], v{vLW} offset:{32768+p*1024}")
    def dma(p):
        ld.wait(tkv[p]); kv_dma(p)
    f = [(lambda l=l: rdm(l)) for l in order[1 + NA:]] + [lambda: rdkv(0), lambda: rdkv(1), lambda: rdkv(2), lambda: rdkv(3), lambda: wof(0, 0), lambda: wof(0, 1)]
    if len(order[1 + NA:]): f.pop(0)()
    for i, lam in enumerate(order):
        ld.wait(tm[lam]); M("q", 0, lam); f.pop(0)()
    qp = qpost(QA)
    M("q", 1, order[0]); dma(0)
    if FL: A(f"s_mov_b64 exec, 1\nbuffer_store_dword v{T0}, off, {W}, s{sFkm} sc1\ns_mov_b64 exec, -1")
    M("q", 1, order[1])
    if f: f.pop(0)()
    ld.wait(tkv[3]); A("s_nop 0")
    for i in range(2, 6):
        M("q", 1, order[i]); A(qp.pop(0))
    M("k", 0, order[0]); ld.issue(f"ds_write_b64 v{vCQ}, v[{QA+2}:{QA+3}] offset:{L_QK}")
    M("k", 0, order[1]); ld.issue(f"ds_read_b64_tr_b16 v[{SOP}:{SOP+1}], v{vCRW} offset:{L_QK}"); A("s_nop 0")
    M("k", 0, order[2])
    for x in qpost(QA + 4): A(x)
    ld.issue(f"ds_write_b64 v{vCQ}, v[{QA+6}:{QA+7}] offset:{L_QK+512}")
    M("k", 0, order[3]); tq = ld.issue(f"ds_read_b64_tr_b16 v[{SOP+2}:{SOP+3}], v{vCRW} offset:{L_QK+512}")
    M("k", 0, order[4]); kv_dma(1)
    M("k", 0, order[5]); wof(1, 0)
    M("k", 1, order[0]); kv_dma(2)
    M("k", 1, order[1]); ld.wait(tq)
    kp = kpost(KA_)
    A(mf(SOP + 4, KXR, SOP)); kv_dma(3)
    A(mf(SOP + 8, KXR + 4, SOP)); A(kp.pop(0)); A(kp.pop(0))
    M("k", 1, order[2]); A(kp.pop(0))
    M("k", 1, order[3]); ld.issue(f"ds_write_b32 v{vCQ}, v{KA_+2} offset:{L_QK}")
    X = QA
    sel = [f"v_cndmask_b32 v{X+i}, v{SOP+4+i}, v{SOP+8+i}, {H}" for i in range(4)]
    M("k", 1, order[4]); A("s_nop 0"); A(sel[0])
    M("k", 1, order[5]); A(sel[1]); A(sel[2]); A(sel[3])
    Vq = own + [("v", 0, lam) for lam in order] + [("v", 1, lam) for lam in order]
    def vq(n=1):
        for _ in range(n): M(*Vq.pop(0))
    PX, PM = KXR, KXR + 4
    ld.issue(f"ds_write_b128 v{vW16}, v[{X}:{X+3}] offset:{L_PS}")
    vq(); A("s_nop 1")
    for x in kpost(KA_ + 4): A(x)
    tk = ld.issue(f"ds_write_b32 v{vCQ}, v{KA_+6} offset:{L_QK+512}")
    vq(); A(f"v_mov_b32 v{PM}, 0")
    vq(); A(f"v_mov_b32 v{PM+3}, 0"); A(f"s_waitcnt vmcnt({5 if FL else 4})")
    vq(); wof(1, 1)
    for _ in range(P.get("vq1", 1)): vq()
    ld.wait(tk)
    A("s_barrier")
    ts = []; tp = []
    def rd_s(c, h):
        t = ld.issue(f"ds_read_b64_tr_b16 v[{SOP+4*c+2*h}:{SOP+4*c+2*h+1}], v{vCRW+c} offset:{L_QK+h*512}")
        if h: ts.append(t)
    def rd_p(x): tp.append(ld.issue(f"ds_read_b128 v[{X+4*x}:{X+4*x+3}], v{vW16+x} offset:{L_PS}"))
    rd_p(1); rd_p(2); vq(); rd_p(3)
    for c in range(4):
        vq(); rd_s(c, 0); rd_s(c, 1)
    vp0 = half_sum(VA) + [f"v_cvt_pk_bf16_f32 v{VA+2}, v{VA}, v{VA+1}"]
    vp1 = half_sum(VA + 4) + [f"v_cvt_pk_bf16_f32 v{VA+3}, v{VA+4}, v{VA+5}"]
    SM, ONES = MEMA, MEMA + 4
    E = MEMA + 8; CK = T0
    adds = [f"v_add_f32 v{X+i}, v{X+i}, v{X+4+i}" for i in range(4)] + [f"v_add_f32 v{X+8+i}, v{X+8+i}, v{X+12+i}" for i in range(4)] + \
           [f"v_add_f32 v{X+i}, v{X+i}, v{X+8+i}" for i in range(4)]
    ld.wait(tp[2])
    while Vq:
        vq(); A(adds.pop(0))
    ld.wait(ts[1])
    A(mf(SM, SOP, SOP)); A(adds.pop(0)); A(adds.pop(0))
    A(mf(SM, SOP + 4, SOP + 4, SM)); A(adds.pop(0)); ld.wait(ts[3]); A(adds.pop(0))
    A(mf(SM, SOP + 8, SOP + 8, SM)); A(adds.pop(0)); A(adds.pop(0))
    A(mf(SM, SOP + 12, SOP + 12, SM))
    while adds: A(adds.pop(0))
    PVA, ZA = X + 4, X + 12
    PUB = P.get("pub", "sc1")
    def pub(txt):
        if PUB != "none": vm.issue(txt + " " + PUB)
    for i in range(4): A(f"v_exp_f32 v{E+i}, v{X+i}")
    A(f"v_mov_b64 v[{ONES}:{ONES+1}], s[{sONE}:{sONE+1}]")
    A(f"v_cvt_pk_bf16_f32 v{E}, v{E}, v{E+1}\nv_cvt_pk_bf16_f32 v{E+1}, v{E+2}, v{E+3}")
    def selp():
        A(f"v_cndmask_b32 v{PX}, v{E}, 0, {H}\nv_cndmask_b32 v{PX+1}, v{E+1}, 0, {H}")
        A(f"v_cndmask_b32 v{PX+2}, 0, v{E}, {H}\nv_cndmask_b32 v{PX+3}, 0, v{E+1}, {H}")
    selp()
    A(f"v_mul_f32 v{SM}, s{sC}, v{SM}\nv_mul_f32 v{SM+1}, s{sC}, v{SM+1}")
    A(mf(PVA, PX, VX))
    if P.get("pubpos") == "early": pub(f"buffer_store_dwordx4 v[{SOP}:{SOP+3}], v{vL16}, {W}, s{sKM} offen")
    A(f"v_exp_f32 v{E+4}, v{SM}")
    A(f"v_mov_b64 v[{ONES+2}:{ONES+3}], s[{sONE}:{sONE+1}]")
    A(mf(PVA + 4, PX, VX + 4))
    A(f"v_exp_f32 v{E+5}, v{SM+1}")
    A(mf(ZA, PX, ONES))
    for x in vp0[:2]: A(x)
    A(f"v_cvt_pk_bf16_f32 v{E+4}, v{E+4}, v{E+5}")
    A(vp0[2])
    A(f"v_cndmask_b32 v{PM+1}, 0, v{E+4}, {H}\nv_cndmask_b32 v{PM+2}, 0, v{E+4}, {H}")
    for x in vp1: A(x)
    A(mf16(ZA, PM, ONES, ZA))
    A(f"v_max3_f32 v{CK}, |v{X}|, |v{X+1}|, |v{X+2}|")
    A(f"v_max_f32 v{E+2}, |v{SM}|, |v{SM+1}|")
    A(mf16(PVA, PM + 2, VA + 2, PVA))
    A(f"v_cndmask_b32 v{E+2}, 0, v{E+2}, {H}")
    A(f"v_max3_f32 v{CK}, |v{X+3}|, v{E+2}, v{CK}")
    A(mf16(PVA + 4, PM, VA + 2, PVA + 4))
    A(f"v_cmp_lt_f32 vcc, 0x42700000, v{CK}")
    WA = [MEMA + 8 + 4 * i for i in range(6)][::-1] + [VX, VX + 4]
    zl = [r for a in WA for r in (a, a + 2)]
    A(z64(zl.pop(0)))
    for x in half_sum(ZA): A(x)
    A(f"s_cbranch_vccnz {FB}")
    A(f"{FBR}:")
    A(f"v_rcp_f32 v{ZA}, v{ZA}\nv_rcp_f32 v{ZA+1}, v{ZA+1}")
    A(f"v_pk_add_f32 v[{PVA}:{PVA+1}], v[{PVA}:{PVA+1}], v[{PVA+2}:{PVA+3}]")
    A(f"v_pk_add_f32 v[{PVA+4}:{PVA+5}], v[{PVA+4}:{PVA+5}], v[{PVA+6}:{PVA+7}]")
    A(f"v_pk_mul_f32 v[{PVA}:{PVA+1}], v[{PVA}:{PVA+1}], v[{ZA}:{ZA+1}]")
    A(f"v_pk_mul_f32 v[{PVA+4}:{PVA+5}], v[{PVA+4}:{PVA+5}], v[{ZA}:{ZA+1}]")
    A(f"v_cvt_pk_bf16_f32 v{PVA+2}, v{PVA}, v{PVA+1}")
    A(f"v_cvt_pk_bf16_f32 v{PVA+3}, v{PVA+4}, v{PVA+5}")
    two = ld.issue(f"ds_write_b64 v{vCQ}, v[{PVA+2}:{PVA+3}] offset:{L_O}")
    for _ in range(P.get("z1", 12)): A(z64(zl.pop(0)))
    A(f"v_lshrrev_b32 v{T0}, 1, v{vL16}")
    ld.wait(two)
    A("s_barrier")
    OOP = KXR
    to = [ld.issue(f"ds_read_b64_tr_b16 v[{OOP+2*i}:{OOP+2*i+1}], v{vCR} offset:{L_O+i*1024}") for i in range(4)]
    pubs = [f"buffer_store_dwordx4 v[{SOP}:{SOP+3}], v{vL16}, {W}, s{sKM} offen",
            f"buffer_store_dwordx2 v[{VA+2}:{VA+3}], v{T0}, {W}, s{sKM} offen offset:1024"]
    if P.get("pubpos") != "early": pub(pubs[0])
    OUT = QA
    def post(T):
        a = WA[T]
        return half_sum(a) + [f"v_cvt_pk_bf16_f32 v{OUT+T}, v{a}, v{a+1}"] + ([f"v_and_or_b32 v{OUT+T}, v{OUT+T}, -2, s{sPar}"] if T % 4 == 0 else [])
    pend = [z64(r) for r in zl]
    fq = [(2, 0), (2, 1), (3, 0), (3, 1), None, (4, 0), None, (4, 1), None, (5, 0), None, (5, 1)]
    sal = [f"s_and_b32 s{sPar}, s{sStep}, 1",
           f"s_add_u32 s{sStep}, s{sStep}, 1", f"s_and_b32 s{sAG}, s{sStep}, 3", f"s_lshl_b32 s{sAG}, s{sAG}, 13"]
    done_st0 = False
    for i, (T, ko) in enumerate(WO_ORDER):
        kind, x = LOC[("o", T, ko)]
        if i < 2: ld.wait(to[2 * i + 1])
        if kind == "l": ld.wait(wo_tok[x - NE])
        A(smf(WA[T], OOP + 4 * ko, x if kind == "r" else WSLOT[x - NE]))
        if i >= 3 and i % 2 == 1: pend += post((i - 3) // 2)
        q = fq.pop(0) if fq else None
        if q:
            wof(*q)
            if sal: A(sal.pop(0))
            if sal: A(sal.pop(0))
        else:
            n = 0
            while pend and n < 3: A(pend.pop(0)); n += 1
        if i == 0:
            pub(pubs[1])
        if i == 1: A(f"s_cmp_eq_u32 s{sStep}, {NSEG}\ns_cbranch_scc1 {LAST}")
        if not done_st0 and i >= 9 and not any(f"v{OUT+3}," in p for p in pend):
            vm.issue(f"buffer_store_dwordx4 v[{OUT}:{OUT+3}], v{vPS}, {W}, s{sIn} offen {STF}"); done_st0 = True
    for x in pend: A(x)
    assert done_st0
    RA, SEL = VA, VA + 4
    a = WA[7]
    A(f"v_pk_add_f32 v[{a}:{a+1}], v[{a}:{a+1}], v[{a+2}:{a+3}]\nv_cvt_pk_bf16_f32 v{OUT+7}, v{a}, v{a+1}")
    vm.issue(f"buffer_store_dwordx4 v[{OUT+4}:{OUT+7}], v{vPS}, {W}, s{sIn+1} offen {STF}")
    snap(3)
    A(f"""
    s_add_u32 s{sAG}, s{sAG}, s{sAgr}
    s_add_u32 s{sAG+1}, s{sAG}, 4096
    s_add_u32 s{sKV}, s{sKV}, {0 if P.get("samekv") else 32*16384}
    s_add_u32 s{sKM}, s{sKM}, {0 if P.get("samekm") else 32*8192}
    s_add_u32 s{sFkv}, s{sFkv}, 512
    s_add_u32 s{sFkm}, s{sFkm}, 512
    """)
    if FL: A(f"s_buffer_load_dword s{sRdy}, {W}, s{sFkv} glc")
    for r in range(QA + 8, QA + 16, 2): A(z64(r))
    for r in range(QA, QA + 8, 2): A(z64(r))
    SETS = [MEMA, ST[0]]
    def inbox_load(b, it):
        r = SETS[b] + 4 * it
        A(f"buffer_load_dwordx4 v[{r}:{r+3}], v{vL16}, {W}, s{sBox + it // 4} offen offset:{(it % 4) * 1024} sc1")
    OTH, P1R = A.label("c_oth"), A.label("c_p1r")
    A(f"s_cmp_lg_u32 s{sW}, 0\ns_cbranch_scc1 {OTH}")
    A(f"s_mov_b32 s{sTmp+2}, 0\ns_add_u32 s{sCnt}, s{sCnt}, 1")
    PZ = ST[6]
    A(f"v_mov_b64 v[{PZ}:{PZ+1}], -1\ns_xor_b32 s{sTmp+8}, s{sAG}, {2 << 13}")
    A(f"buffer_store_dwordx2 v[{PZ}:{PZ+1}], v{vAGS}, {W}, s{sTmp+8} offen {STF}")
    A(f"s_mov_b32 vcc_lo, 0xaaaaaaaa\ns_mov_b32 vcc_hi, 0xaaaaaaaa\nv_mov_b32 v{T0}, 0x3f80\nv_cndmask_b32 v{T0}, v{T0}, 1.0, vcc")
    for r in range(4):
        A(f"s_mov_b32 vcc_lo, {hex(0x00030003 << (2*r))}\ns_mov_b32 vcc_hi, {hex(0x00030003 << (2*r))}\nv_cndmask_b32 v{SEL+r}, 0, v{T0}, vcc")
    delay(A, P.get("d1", 0))
    snap(4)
    for it in range(8): inbox_load(0, it)
    snap(5)
    delay(A, P.get("g1", 60))
    for it in range(8): inbox_load(1, it)
    def rpass(b, fail, first=False):
        for it in range(8):
            r = SETS[b] + 4 * it
            A(f"s_waitcnt vmcnt({15-it})")
            if first and it == 0: snap(6)
            if first and it == 7: snap(7)
            A(mf(RA, r, SEL, RA if it else None))
            if it == 0: A(f"v_xor_b32 v{T0}, s{sPar}, v{r}")
            else: A(f"v_bitop3_b32 v{T0}, v{T0}, v{r}, s{sPar} bitop3:0xf6")
        A(f"v_and_b32 v{T0}, 1, v{T0}\nv_cmp_ne_u32 vcc, 0, v{T0}")
        A(f"v_mov_b32 v{T0}, 0\nv_mov_b32 v{T0}, 0")
        A(f"s_cbranch_vccnz {fail}")
    rpass(0, P1R, True)
    PUBL = A.label("c_publ")
    A(f"{PUBL}:")
    A(f"v_cvt_pk_bf16_f32 v{RA}, v{RA}, v{RA+1}\nv_cvt_pk_bf16_f32 v{RA+1}, v{RA+2}, v{RA+3}")
    A(f"v_min_u32 v{RA}, -2, v{RA}\nv_min_u32 v{RA+1}, -2, v{RA+1}")
    A(f"buffer_store_dwordx2 v[{RA}:{RA+1}], v{vAGS}, {W}, s{sAG} offen {STF}")
    A(f"{HOP2}:")
    snap(8)
    A("s_barrier")
    if P.get("snap"):
        SN = A.label("c_sn")
        A(f"s_cmp_lg_u32 s{sStep}, {P['snap']}\ns_cbranch_scc1 {SN}\ns_waitcnt lgkmcnt(0)")
        for i in range(9): A(f"s_mov_b32 s{sAcc+1+i}, s{sSt+2*i}")
        A(f"{SN}:")
    if stamps:
        A("s_waitcnt lgkmcnt(0)")
        A(f"s_cmp_gt_u32 s{sStep}, 16")
        i = 11
        A(f"s_cselect_b32 s{sTmp}, s{sSt+2*i}, s{sSt}\ns_sub_u32 s{sTmp}, s{sTmp}, s{sSt}\ns_add_u32 s{sAcc+i}, s{sAcc+i}, s{sTmp}")
    if P.get("steady", 1):
        SK = A.label("c_sk")
        A(f"s_cmp_lg_u32 s{sStep}, 16\ns_cbranch_scc1 {SK}\ns_memtime s[20:21]\ns_mov_b32 s{sCnt}, 0\ns_mov_b32 s{sCnt+1}, 0\n{SK}:")
    delay(A, P.get("d2", 0))
    A(f"s_branch {LOOP}")
    A(f"{KVW}:")
    A(f"s_cmp_ge_u32 s{sStep}, {NSEG-1}\ns_cbranch_scc1 {KVR}")
    kv_wait()
    A(f"s_branch {KVR}")
    A(f"{LAST}:")
    if FL: A(f"s_add_u32 s{sFkm}, s{sFkm}, 512\nv_mov_b32 v{T0}, 1\ns_waitcnt vmcnt(0)\ns_mov_b64 exec, 1\nbuffer_store_dword v{T0}, off, {W}, s{sFkm} sc1\ns_mov_b64 exec, -1")
    A(f"s_branch {FAIL}")
    A(f"{OTH}:")
    stage(0, 10)
    for r in range(VA, VA + 8, 2): A(z64(r))
    A(f"s_branch {HOP2}")
    A(f"{W0A}:")
    A("s_waitcnt vmcnt(3)")
    stage(0, 5)
    if NSH > 1: ag_loads()
    stage(5, 10)
    for k in range(2, NSH): ag_loads()
    for r in range(VA, VA + 8, 2): A(z64(r))
    A(f"s_branch {W0B}")
    P1S = A.label("c_p1s")
    A(f"{P1R}:")
    for it in range(8): inbox_load(0, it)
    A(f"s_add_u32 s{sCnt}, s{sCnt}, 1")
    rpass(1, P1S)
    A(f"s_branch {PUBL}")
    A(f"{P1S}:")
    for it in range(8): inbox_load(1, it)
    A(f"s_add_u32 s{sTmp+2}, s{sTmp+2}, 1\ns_add_u32 s{sCnt}, s{sCnt}, 1\ns_cmp_gt_u32 s{sTmp+2}, {SPIN_MAX}\ns_cbranch_scc1 {FAIL}")
    rpass(0, P1R)
    A(f"s_branch {PUBL}")
    A(f"{RETRY}:")
    ag_loads()
    A(f"s_add_u32 s{sTmp+2}, s{sTmp+2}, 1\ns_add_u32 s{sCnt+1}, s{sCnt+1}, 1\ns_cmp_gt_u32 s{sTmp+2}, {SPIN_MAX}\ns_cbranch_scc1 {FAIL}")
    for r in range(QA, QA + 12, 2): A(z64(r))
    A(f"s_waitcnt vmcnt({2+npo})")
    A(f"v_max3_u32 v{T0}, v{m0}, v{m0+1}, v{m0+2}")
    A(f"v_max_u32 v{T0}, v{T0}, v{m0+3}")
    A(f"ds_write_b128 v{vW16}, v[{m0}:{m0+3}] offset:{L_MEM}")
    M(*OWN[0])
    A(f"s_branch {GOT}")
    A(f"{FB}:")
    A(f"v_max3_f32 v{CK}, v{X}, v{X+1}, v{X+2}\nv_max_f32 v{CK}, v{X+3}, v{CK}")
    A(f"s_mov_b64 exec, {H}\nv_max3_f32 v{CK}, v{SM}, v{SM+1}, v{CK}\ns_mov_b64 exec, -1")
    xlane(A, "v_max_f32", CK, E)
    for i in range(4): A(f"v_sub_f32 v{E+i}, v{X+i}, v{CK}")
    for i in range(2): A(f"v_sub_f32 v{E+4+i}, v{SM+i}, v{CK}")
    for i in range(6): A(f"v_exp_f32 v{E+i}, v{E+i}")
    A(f"v_cvt_pk_bf16_f32 v{E}, v{E}, v{E+1}\nv_cvt_pk_bf16_f32 v{E+1}, v{E+2}, v{E+3}\nv_cvt_pk_bf16_f32 v{E+4}, v{E+4}, v{E+5}")
    selp()
    A(f"v_cndmask_b32 v{PM+1}, 0, v{E+4}, {H}\nv_cndmask_b32 v{PM+2}, 0, v{E+4}, {H}")
    A(mf(ZA, PX, ONES)); A(mf(PVA, PX, VX)); A(mf(PVA + 4, PX, VX + 4))
    A(mf16(ZA, PM, ONES, ZA)); A(mf16(PVA, PM + 2, VA + 2, PVA)); A(mf16(PVA + 4, PM, VA + 2, PVA + 4))
    A("s_nop 7")
    for x in half_sum(ZA): A(x)
    A(f"s_branch {FBR}")
    A(f"{FAIL}:")
```

```python
MB = 1 << 20
KB = 1 << 10
NSEG = 64
INBOX = 0
AGR   = 4 * MB
FLAGS = 5 * MB
F_XN  = FLAGS
F_R2  = FLAGS + 16 * KB
F_OB  = FLAGS + 32 * KB
F_ML  = FLAGS + 36 * KB
F_MISC = FLAGS + 40 * KB
F_KV  = FLAGS + 64 * KB
F_Q   = FLAGS + 128 * KB
F_KM  = FLAGS + 200 * KB
FLAG_BYTES = 512 * KB
XN    = 6 * MB
X2    = 10 * MB
OBOX  = 12 * MB
KV    = 16 * MB
QX    = 80 * MB
KM    = 112 * MB
XA    = 160 * MB
XB_   = 168 * MB
OUTA  = 176 * MB
MLPY  = 180 * MB
WS_BYTES = 256 * MB
KA = dict(x=0, mem0=8, wq=16, wk=24, wv=32, wo=40, seg=48, bx=56, wr=64, wg=72, wu=80, wd=88, out=96, dbg=104, ws=112)
SPIN_MAX = 0x100000
```

```python
from asmlib import *
from layout import *
from chain import Cnt, f32bits, sWS, sT, sJ, sW, sC, sTmp, sLo, sHi
import math

oL16, oL8, oL4, oTH, oPS, oRL, oWR0 = 0, 1, 2, 3, 4, 5, 8
oOW = 6
oT = 7
SELA, SELB = 16, 20
oOR = 200
QR, KR, MR, VR, VMR = 24, 40, 72, 88, 120
SX, SMM = 128, 136
PXR, PMR = 140, 144
OA = 148
OP = 180
ACC = 24
XO = 88
PKO = 120
RB = 24
sRep, sU = 60, 61
sTask = 62
sSeg, sLay, sChn, sKind = 63, 64, 65, 66
sSpin = 67
sOut = 68
sX = 72
sBox = 76
sRow = 77
def wo_op(hh, c, T): return 256 + ((hh * 4 + c) * 8 + T) * 4

def allsum(A, regs, t):
    for rot in (8, 4, 2, 1):
        for r in regs: A(f"v_add_f32_dpp v{r}, v{r}, v{r} row_ror:{rot} row_mask:0xf bank_mask:0xf")
    for sw in ("16", "32"):
        for i, r in enumerate(regs): A(f"v_mov_b32 v{t+i}, v{r}")
        for i, r in enumerate(regs): A(f"v_permlane{sw}_swap_b32 v{r}, v{t+i}")
        for i, r in enumerate(regs): A(f"v_add_f32 v{r}, v{r}, v{t+i}")

def rnd(A, r):
    A(f"v_cvt_pk_bf16_f32 v{r}, v{r}, v{r}\nv_and_b32 v{r}, 0xffff0000, v{r}")

def unpack(A, pk, f):
    for i in range(4):
        A(f"v_lshlrev_b32 v{f+2*i}, 16, v{pk+i}\nv_and_b32 v{f+2*i+1}, 0xffff0000, v{pk+i}")
def pack(A, f, pk):
    for i in range(4): A(f"v_cvt_pk_bf16_f32 v{pk+i}, v{f+2*i}, v{f+2*i+1}")

def layernorm(A, x, y, pk, t, extra=None):
    s_, d = t, t + 4
    A(f"v_add_f32 v{s_}, v{x}, v{x+1}\nv_add_f32 v{s_+1}, v{x+2}, v{x+3}\nv_add_f32 v{s_+2}, v{x+4}, v{x+5}\nv_add_f32 v{s_+3}, v{x+6}, v{x+7}")
    A(f"v_add_f32 v{s_}, v{s_}, v{s_+1}\nv_add_f32 v{s_+2}, v{s_+2}, v{s_+3}\nv_add_f32 v{s_}, v{s_}, v{s_+2}")
    allsum(A, [s_] + ([extra] if extra is not None else []), s_ + 2)
    A(f"v_mul_f32 v{s_}, {hex(f32bits(1/512))}, v{s_}")
    for i in range(8): A(f"v_sub_f32 v{d+i}, v{x+i}, v{s_}")
    A(f"v_mul_f32 v{s_+1}, v{d}, v{d}\nv_mul_f32 v{s_+2}, v{d+1}, v{d+1}")
    for i in range(2, 8): A(f"v_fmac_f32 v{s_+1+i%2}, v{d+i}, v{d+i}")
    A(f"v_add_f32 v{s_+1}, v{s_+1}, v{s_+2}")
    rnd(A, s_)
    allsum(A, [s_ + 1], s_ + 2)
    for i in range(8): A(f"v_sub_f32 v{d+i}, v{x+i}, v{s_}")
    A(f"v_mul_f32 v{s_+1}, {hex(f32bits(1/512))}, v{s_+1}")
    rnd(A, s_ + 1)
    A(f"v_add_f32 v{s_+1}, {hex(f32bits(1e-5))}, v{s_+1}")
    rnd(A, s_ + 1)
    A(f"v_sqrt_f32 v{s_+1}, v{s_+1}")
    pack(A, d, pk)
    rnd(A, s_ + 1)
    A(f"v_rcp_f32 v{s_+1}, v{s_+1}")
    unpack(A, pk, d)
    for i in range(8): A(f"v_mul_f32 v{d+i}, v{d+i}, v{s_+1}")
    pack(A, d, pk)
    if y is not None: unpack(A, pk, y)

def o_consts(A):
    n, g = 24, 25
    A(f"""
    v_and_b32 v26, 63, v0
    v_and_b32 v{n}, 15, v26
    v_lshrrev_b32 v{g}, 4, v26
    v_lshlrev_b32 v{oL8}, 3, v26
    v_lshlrev_b32 v{oL4}, 2, v26
    v_lshlrev_b32 v{oL16}, 4, v26
    s_mov_b32 s{sC}, {hex(f32bits(128 ** -0.5 * math.log2(math.e)))}
    s_mov_b32 s{sLo}, 0x05040100
    s_mov_b32 s{sHi}, 0x07060302
    s_and_b32 s{sTmp}, s{sW}, 1
    s_lshl_b32 s{sTmp}, s{sTmp}, 4
    v_lshlrev_b32 v27, 2, v{g}
    v_sub_u32 v{oTH}, v{n}, v27
    v_add_u32 v{oTH}, s{sTmp}, v{oTH}
    v_lshlrev_b32 v27, 16, v{g}
    v_lshl_add_u32 v27, v{n}, 4, v27
    s_lshl_b32 s{sTmp}, s{sU}, 10
    s_lshl_b32 s{sTmp+1}, s{sW}, 8
    s_add_u32 s{sTmp}, s{sTmp}, s{sTmp+1}
    v_add_u32 v{oPS}, s{sTmp}, v27
    v_lshlrev_b32 v27, 10, v{g}
    v_lshl_add_u32 v{oRL}, v{n}, 4, v27
    s_lshl_b32 s{sTmp}, s{sW}, 12
    v_add_u32 v{oOW}, s{sTmp}, v{oL16}
    """)
    A(f"s_mov_b32 vcc_lo, 0xaaaaaaaa\ns_mov_b32 vcc_hi, 0xaaaaaaaa\nv_mov_b32 v27, 0x3f80\nv_cndmask_b32 v27, v27, 1.0, vcc")
    for r in range(8):
        A(f"s_mov_b32 vcc_lo, {hex(0x00030003 << (2*r))}\ns_mov_b32 vcc_hi, {hex(0x00030003 << (2*r))}\nv_cndmask_b32 v{SELA+r}, 0, v27, vcc")
    A(f"""
    s_load_dwordx2 s[{sOut}:{sOut+1}], s[0:1], {KA['out']}
    s_load_dwordx2 s[{sX}:{sX+1}], s[0:1], {KA['x']}
    s_load_dwordx2 s[{sT}:{sT+1}], s[0:1], {KA['wr']}
    s_mov_b32 s{sOut+2}, {2*MB}
    s_mov_b32 s{sOut+3}, 0x20000
    s_mov_b32 s{sX+2}, {2*MB}
    s_mov_b32 s{sX+3}, 0x20000
    s_mov_b32 s{sT+2}, 1024
    s_mov_b32 s{sT+3}, 0x20000
    s_waitcnt lgkmcnt(0)
    buffer_load_dwordx4 v[28:31], v{oL16}, s[{sT}:{sT+3}], 0 offen
    s_waitcnt vmcnt(0)
    """)
    unpack(A, 28, oWR0)

def o_ln0(A):
    W = f"s[{sWS}:{sWS+3}]"
    A(f"""
    s_lshl_b32 s{sRow}, s{sRep}, 4
    s_add_u32 s{sRow}, s{sRow}, s{sU}
    s_lshl_b32 s{sRow}, s{sRow}, 2
    s_add_u32 s{sRow}, s{sRow}, s{sW}
    s_lshl_b32 s{sTmp}, s{sRow}, 10
    """)
    for k in range(8):
        A(f"buffer_load_dwordx4 v[{64+4*k}:{67+4*k}], v{oL16}, s[{sX}:{sX+3}], s{sTmp} offen\ns_add_u32 s{sTmp}, s{sTmp}, {256*1024}")
    return W

def o_ln0_compute(A):
    W = f"s[{sWS}:{sWS+3}]"
    A(f"s_lshl_b32 s{sTmp}, s{sRow}, 10\ns_add_u32 s{sTmp}, s{sTmp}, {XN}")
    A(f"s_lshl_b32 s{sTmp+1}, s{sRow}, 2\ns_add_u32 s{sTmp+1}, s{sTmp+1}, {F_XN}")
    A("v_mov_b32 v60, 1\nv_mov_b32 v61, 0\ns_waitcnt vmcnt(0)")
    for k in range(8):
        unpack(A, 64 + 4 * k, 32)
        layernorm(A, 32, None, 64 + 4 * k, 40)
        if k:
            A(f"s_waitcnt vmcnt(0)\ns_mov_b64 exec, 1\nbuffer_store_dword v60, v61, {W}, s{sTmp+1} offen sc1\ns_mov_b64 exec, -1\ns_add_u32 s{sTmp+1}, s{sTmp+1}, 1024")
        A(f"buffer_store_dwordx4 v[{64+4*k}:{67+4*k}], v{oL16}, {W}, s{sTmp} offen sc1\ns_add_u32 s{sTmp}, s{sTmp}, {256*1024}")
    A(f"s_waitcnt vmcnt(0)\ns_mov_b64 exec, 1\nbuffer_store_dword v60, v61, {W}, s{sTmp+1} offen sc1\ns_mov_b64 exec, -1")

def o_load_weights(A):
    n, g = 24, 25
    A(f"""
    s_load_dwordx2 s[{sT}:{sT+1}], s[0:1], {KA['wo']}
    s_mov_b32 s{sT+2}, {4*MB}
    v_lshlrev_b32 v26, 13, v{g}
    v_lshl_add_u32 v26, v{n}, 4, v26
    s_lshl_b32 s{sTmp}, s{sU}, 18
    s_lshl_b32 s{sTmp+1}, s{sW}, 8
    s_add_u32 s{sTmp}, s{sTmp}, s{sTmp+1}
    s_waitcnt lgkmcnt(0)
    """)
    vm = Cnt(A, "vmcnt", 63)
    tk = {}
    POOL = 64
    def issue(i):
        for j in range(8):
            e = 32 * i + 2 * (j % 4) + j // 4
            r = POOL + (i % 6) * 32 + j * 4
            A(f"s_add_u32 s{sTmp+1}, s{sTmp}, {e * 1024}")
            tk[i] = vm.issue(f"buffer_load_dwordx4 v[{r}:{r+3}], v26, s[{sT}:{sT+3}], s{sTmp+1} offen")
    def consume(i):
        vm.wait(tk[i])
        for T in range(8):
            b = POOL + (i % 6) * 32 + T // 2
            x = wo_op(i // 4, i % 4, T) - 256
            for rho in range(4): A(f"v_perm_b32 v{32+4*(T%2)+rho}, v{b+8*rho+4}, v{b+8*rho}, s{sHi if T % 2 else sLo}")
            for rho in range(4): A(f"v_accvgpr_write_b32 a{x+rho}, v{32+4*(T%2)+rho}")
    for i in range(6): issue(i)
    for i in range(8):
        consume(i)
        if i + 6 < 8: issue(i + 6)

def spin(A, fail):
    A(f"s_add_u32 s{sSpin}, s{sSpin}, 1\ns_cmp_gt_u32 s{sSpin}, {SPIN_MAX}\ns_cbranch_scc1 {fail}")

def o_task(A, P, FAIL):
    W = f"s[{sWS}:{sWS+3}]"
    STF = P.get("st", "")
    sLS, sCS = sTmp + 8, sTmp + 9
    A(f"""
    s_add_u32 s{sTask}, s{sTask}, 1
    s_lshr_b32 s{sTmp}, s{sW}, 1
    s_lshl_b32 s{sTmp+1}, s{sU}, 1
    s_add_u32 s{sTmp}, s{sTmp}, s{sTmp+1}          ; head
    s_lshl_b32 s{sTmp+1}, s{sSeg}, 5
    s_add_u32 s{sTmp}, s{sTmp}, s{sTmp+1}
    s_lshl_b32 s{sLS}, s{sLay}, 11
    s_add_u32 s{sLS}, s{sLS}, s{sTmp}
    s_lshl_b32 s{sCS}, s{sChn}, 11
    s_add_u32 s{sCS}, s{sCS}, s{sTmp}
    s_lshl_b32 s{sTmp}, s{sLS}, 4
    s_add_u32 s{sTmp+1}, s{sTmp}, {F_Q}
    s_add_u32 s{sTmp}, s{sTmp}, {F_KV}
    s_mov_b32 s{sSpin}, 0
    v_mov_b32 v{oT}, 0
    v_xor_b32 v{oOW}, 16384, v{oOW}
    v_and_b32 v{oOR}, 16384, v{oOW}
    v_add_u32 v{oOR}, v{oOR}, v{oL16}
    """)
    L1, L2 = A.label("o_w1"), A.label("o_w2")
    A(f"{L1}:")
    A(f"buffer_load_dwordx4 v[{SX}:{SX+3}], v{oT}, {W}, s{sTmp} offen sc1\nbuffer_load_dwordx4 v[{SX+4}:{SX+7}], v{oT}, {W}, s{sTmp+1} offen sc1")
    spin(A, FAIL)
    A(f"s_waitcnt vmcnt(0)\nv_min3_u32 v{SX}, v{SX}, v{SX+1}, v{SX+2}\nv_min3_u32 v{SX}, v{SX}, v{SX+3}, v{SX+4}\nv_min3_u32 v{SX}, v{SX}, v{SX+5}, v{SX+6}\nv_min_u32 v{SX}, v{SX}, v{SX+7}")
    A(f"v_cmp_eq_u32 vcc, 0, v{SX}\ns_cbranch_vccnz {L1}")
    A(f"s_lshl_b32 s{sTmp}, s{sLS}, 13\ns_and_b32 s{sTmp+1}, s{sW}, 1\ns_lshl_b32 s{sTmp+1}, s{sTmp+1}, 10\ns_add_u32 s{sTmp}, s{sTmp}, s{sTmp+1}\ns_add_u32 s{sTmp}, s{sTmp}, {QX}")
    A(f"s_lshl_b32 s{sTmp+1}, s{sLS}, 14\ns_add_u32 s{sTmp+1}, s{sTmp+1}, {KV}")
    for c in range(4):
        A(f"buffer_load_dwordx4 v[{QR+4*c}:{QR+4*c+3}], v{oL16}, {W}, s{sTmp} offen offset:{(c%2)*2048} sc1")
        if c == 1: A(f"s_add_u32 s{sTmp}, s{sTmp}, 4096")
        for tt in range(2):
            r = KR + (tt * 4 + c) * 4
            A(f"buffer_load_dwordx4 v[{r}:{r+3}], v{oL16}, {W}, s{sTmp+1} offen offset:{tt*1024} sc1")
        for tau in range(2):
            r = VR + (c * 2 + tau) * 4
            A(f"buffer_load_dwordx4 v[{r}:{r+3}], v{oL16}, {W}, s{sTmp+1} offen offset:{2048+tau*1024} sc1")
        A(f"s_add_u32 s{sTmp+1}, s{sTmp+1}, 4096")
    A(f"s_lshl_b32 s{sTmp}, s{sCS}, 4\ns_lshl_b32 s{sTmp+1}, s{sChn}, 15\ns_add_u32 s{sTmp}, s{sTmp}, s{sTmp+1}\ns_add_u32 s{sTmp}, s{sTmp}, {F_KM}")
    A(f"{L2}:")
    A(f"buffer_load_dwordx4 v[{SX}:{SX+3}], v{oT}, {W}, s{sTmp} offen sc1")
    spin(A, FAIL)
    A(f"s_waitcnt vmcnt(0)\nv_min3_u32 v{SX}, v{SX}, v{SX+1}, v{SX+2}\nv_min_u32 v{SX}, v{SX}, v{SX+3}")
    A(f"v_cmp_eq_u32 vcc, 0, v{SX}\ns_cbranch_vccnz {L2}")
    A(f"s_lshl_b32 s{sTmp}, s{sCS}, 13\ns_add_u32 s{sTmp}, s{sTmp}, {KM}\ns_add_u32 s{sTmp+1}, s{sTmp}, 4096")
    for c in range(4):
        A(f"buffer_load_dwordx4 v[{MR+4*c}:{MR+4*c+3}], v{oL16}, {W}, s{sTmp+c//2} offen offset:{(c%2)*2048} sc1")
    for c in range(4):
        A(f"buffer_load_dwordx2 v[{VMR+2*c}:{VMR+2*c+1}], v{oL8}, {W}, s{sTmp+c//2} offen offset:{(c%2)*2048+1024} sc1")
    def mf(d, a, b, c): return f"v_mfma_f32_16x16x32_bf16 {v(d,4)}, {reg(a,4)}, {reg(b,4)}, {v(c,4) if c is not None else '0'}"
    for c in range(4):
        for tt in range(2): A(mf(SX + 4 * tt, KR + (tt * 4 + c) * 4, QR + 4 * c, SX + 4 * tt if c else None))
    A(f"v_mov_b32 v{PMR}, 0\nv_mov_b32 v{PMR+3}, 0\nv_mov_b32 v{oT}, 0xff000000")
    for i in range(8):
        pair = sTmp + 2 + 2 * (i % 2)
        A(f"v_cmp_le_i32 s[{pair}:{pair+1}], {16*(i//4) + i%4}, v{oTH}")
        A(f"v_cndmask_b32 v{SX+i}, v{oT}, v{SX+i}, s[{pair}:{pair+1}]")
    M, T1 = PXR, PXR + 1
    A(f"v_max3_f32 v{M}, v{SX}, v{SX+1}, v{SX+2}\nv_max3_f32 v{M}, v{SX+3}, v{SX+4}, v{M}\nv_max3_f32 v{M}, v{SX+5}, v{SX+6}, v{M}")
    for c in range(4):
        A(f"s_waitcnt vmcnt({7-c})")
        A(mf(SMM, MR + 4 * c, QR + 4 * c, SMM if c else None))
    A(f"v_mul_f32 v{SMM}, s{sC}, v{SMM}\nv_mul_f32 v{SMM+1}, s{sC}, v{SMM+1}")
    A(f"v_max_f32 v{M}, v{SX+7}, v{M}\nv_max3_f32 v{M}, v{SMM}, v{SMM+1}, v{M}")
    for sw in ("16", "32"):
        A(f"v_mov_b32 v{T1}, v{M}\nv_permlane{sw}_swap_b32 v{M}, v{T1}\nv_max_f32 v{M}, v{M}, v{T1}")
    for i in range(10): A(f"v_sub_f32 v{SX+i}, v{SX+i}, v{M}")
    for i in range(10): A(f"v_exp_f32 v{SX+i}, v{SX+i}")
    A(f"v_add_f32 v{M}, v{SX}, v{SX+1}\nv_add_f32 v{T1}, v{SX+2}, v{SX+3}")
    for i in range(4, 10): A(f"v_add_f32 v{M+i%2}, v{M+i%2}, v{SX+i}")
    A(f"v_add_f32 v{M}, v{M}, v{T1}")
    for sw in ("16", "32"):
        A(f"v_mov_b32 v{T1}, v{M}\nv_permlane{sw}_swap_b32 v{M}, v{T1}\nv_add_f32 v{M}, v{M}, v{T1}")
    A(f"v_rcp_f32 v{M}, v{M}")
    for i in range(10): A(f"v_mul_f32 v{SX+i}, v{SX+i}, v{M}")
    pack(A, SX, PXR)
    A(f"v_cvt_pk_bf16_f32 v{PMR+1}, v{SMM}, v{SMM+1}\nv_cvt_pk_bf16_f32 v{PMR+2}, v{SMM}, v{SMM+1}")
    for i in range(8): A(mf(OA + 4 * i, VR + 4 * i, PXR, None))
    A("s_waitcnt vmcnt(0)")
    for i in range(8):
        A(f"v_mfma_f32_16x16x16_bf16 {v(OA+4*i,4)}, {v(VMR+2*(i//2),2)}, {v(PMR + (0 if i % 2 else 2),2)}, {v(OA+4*i,4)}")
    for c in range(4):
        pack(A, OA + 8 * c, OP + 4 * c)
        A(f"ds_write_b128 v{oOW}, v[{OP+4*c}:{OP+4*c+3}] offset:{c*1024}")
    A("s_waitcnt lgkmcnt(0)\ns_barrier")
    ld = Cnt(A, "lgkmcnt", 15)
    steps = [(tt, hh, c) for tt in range(2) for hh in range(2) for c in range(4)]
    tok = {}
    def rd(i):
        tt, hh, c = steps[i]
        tok[i] = ld.issue(f"ds_read_b128 v[{XO+(i%8)*4}:{XO+(i%8)*4+3}], v{oOR} offset:{((hh*2+tt)*4+c)*1024}")
    for i in range(4): rd(i)
    A(f"s_and_b32 s{sBox}, s{sTask}, 1\ns_lshl_b32 s{sBox}, s{sBox}, 19\ns_lshl_b32 s{sTmp}, s{sRep}, 20\ns_add_u32 s{sBox}, s{sBox}, s{sTmp}\ns_add_u32 s{sBox}, s{sBox}, {OBOX}")
    def epi(tt):
        out = []
        for r in range(4):
            pk = PKO + (tt * 4 + r) * 4
            for i in range(4):
                out.append(f"v_cvt_pk_bf16_f32 v{pk+i}, v{ACC+(tt*8+2*i)*4+r}, v{ACC+(tt*8+2*i+1)*4+r}")
            out.append(f"s_add_u32 s{sTmp}, s{sBox}, {(16*tt+r)*16384}\nbuffer_store_dwordx4 v[{pk}:{pk+3}], v{oPS}, {W}, s{sTmp} offen {STF}")
        return out
    pend = []
    for i, (tt, hh, c) in enumerate(steps):
        ld.wait(tok[i])
        if i == 9: pend = epi(0)
        for T in range(8):
            a = ACC + (tt * 8 + T) * 4
            A(mf(a, XO + (i % 8) * 4, wo_op(hh, c, T), a if (hh or c) else None))
            if T == 0 and i + 4 < len(steps): rd(i + 4)
            elif pend and T % 2: A(pend.pop(0))
    assert not pend
    for x in epi(1): A(x)
    A(f"""
    s_lshl_b32 s{sTmp}, s{sRep}, 10
    s_add_u32 s{sTmp}, s{sTmp}, {F_OB}
    s_lshl_b32 s{sTmp+1}, s{sU}, 4
    s_lshl_b32 s{sTmp+2}, s{sW}, 2
    s_add_u32 s{sTmp+1}, s{sTmp+1}, s{sTmp+2}
    v_mov_b32 v{RB}, s{sTask}
    v_mov_b32 v{RB+1}, s{sTmp+1}
    s_waitcnt vmcnt(0)
    s_mov_b64 exec, 1
    buffer_store_dword v{RB}, v{RB+1}, {W}, s{sTmp} offen {STF}
    s_mov_b64 exec, -1
    """)
    DONE, L3, LAY2, JOIN = A.label("o_done"), A.label("o_w3"), A.label("o_l2"), A.label("o_join")
    A(f"s_cmp_ge_u32 s{sW}, 2\ns_cbranch_scc1 {DONE}")
    XR = 96
    A(f"""
    s_lshl_b32 s{sRow}, s{sU}, 1
    s_add_u32 s{sRow}, s{sRow}, s{sW}
    s_lshl_b32 s{sTmp+3}, s{sRow}, 14
    s_add_u32 s{sBox}, s{sBox}, s{sTmp+3}
    s_lshl_b32 s{sTmp+3}, s{sSeg}, 5
    s_add_u32 s{sRow}, s{sRow}, s{sTmp+3}
    s_lshl_b32 s{sTmp+3}, s{sRow}, 10
    s_cmp_lg_u32 s{sLay}, 0
    s_cbranch_scc1 {LAY2}
    buffer_load_dwordx4 v[{XR}:{XR+3}], v{oL16}, s[{sX}:{sX+3}], s{sTmp+3} offen
    s_branch {JOIN}
    {LAY2}:
    s_add_u32 s{sTmp+4}, s{sTmp+3}, {X2}
    buffer_load_dwordx4 v[{XR}:{XR+3}], v{oL16}, {W}, s{sTmp+4} offen sc1
    {JOIN}:
    s_mov_b32 s{sSpin}, 0
    {L3}:
    buffer_load_dword v{RB}, v{oL4}, {W}, s{sTmp} offen sc1
    """)
    spin(A, FAIL)
    A(f"s_waitcnt vmcnt(0)\nv_cmp_gt_u32 vcc, s{sTask}, v{RB}\ns_cbranch_vccnz {L3}")
    for pg in range(4):
        for cg in range(4):
            A(f"buffer_load_dwordx4 v[{RB+(pg*4+cg)*4}:{RB+(pg*4+cg)*4+3}], v{oRL}, {W}, s{sBox} offen offset:{cg*256} sc1")
        A(f"s_add_u32 s{sBox}, s{sBox}, 4096")
    S0, XF, YF, PK1, PK2, TM = 100, 108, 116, 124, 128, 132
    unpack(A, XR, XF)
    for i in range(16):
        cg = i % 4
        A(f"s_waitcnt vmcnt({15-i})")
        d = S0 + 4 * (cg % 2)
        A(mf(d, SELB if cg // 2 else SELA, RB + 4 * i, d if i >= 2 else None))
    for r in range(4): A(f"v_permlane16_swap_b32 v{S0+r}, v{S0+4+r}")
    pack(A, S0, PK1); unpack(A, PK1, S0)
    for i in range(8): A(f"v_add_f32 v{XF+i}, v{XF+i}, v{S0+i}")
    pack(A, XF, PK1); unpack(A, PK1, XF)
    A(f"s_lshl_b32 s{sTmp+4}, s{sKind}, 21\ns_add_u32 s{sTmp+4}, s{sTmp+4}, s{sTmp+3}\ns_add_u32 s{sTmp+5}, s{sTmp+4}, {XA}\ns_add_u32 s{sTmp+4}, s{sTmp+4}, {XB_}")
    A(f"buffer_store_dwordx4 v[{PK1}:{PK1+3}], v{oL16}, {W}, s{sTmp+5} offen sc1")
    layernorm(A, XF, YF, PK2, TM)
    A(f"buffer_store_dwordx4 v[{PK2}:{PK2+3}], v{oL16}, {W}, s{sTmp+4} offen sc1")
    RR = S0
    A(f"v_mul_f32 v{RR}, v{YF}, v{oWR0}\nv_mul_f32 v{RR+1}, v{YF+1}, v{oWR0+1}")
    for i in range(2, 8): A(f"v_fmac_f32 v{RR+i%2}, v{YF+i}, v{oWR0+i}")
    A(f"v_add_f32 v{RR}, v{RR}, v{RR+1}")
    for i in range(8): A(f"v_add_f32 v{XF+i}, v{XF+i}, v{YF+i}")
    PK3 = XR
    pack(A, XF, PK3)
    K1, K2, KEY = A.label("o_k1"), A.label("o_k2"), A.label("o_key")
    A(f"s_cmp_lg_u32 s{sKind}, 0\ns_cbranch_scc1 {K1}")
    A(f"s_add_u32 s{sTmp+4}, s{sTmp+3}, {X2}\nbuffer_store_dwordx4 v[{PK3}:{PK3+3}], v{oL16}, {W}, s{sTmp+4} offen sc1")
    unpack(A, PK3, XF)
    layernorm(A, XF, None, PK1, TM, extra=RR)
    A(f"s_add_u32 s{sTmp+4}, s{sTmp+3}, {XN + 2*MB}\nbuffer_store_dwordx4 v[{PK1}:{PK1+3}], v{oL16}, {W}, s{sTmp+4} offen sc1")
    A(f"s_branch {KEY}")
    A(f"{K1}:")
    allsum(A, [RR], RR + 1)
    A(f"s_cmp_eq_u32 s{sKind}, 2\ns_cbranch_scc1 {K2}")
    A(f"s_add_u32 s{sTmp+4}, s{sTmp+3}, {OUTA}\nbuffer_store_dwordx4 v[{PK3}:{PK3+3}], v{oL16}, {W}, s{sTmp+4} offen sc1\ns_branch {KEY}")
    A(f"{K2}:")
    A(f"buffer_store_dwordx4 v[{PK3}:{PK3+3}], v{oL16}, s[{sOut}:{sOut+3}], s{sTmp+3} offen sc1")
    A(f"{KEY}:")
    rnd(A, RR)
    A(f"""
    v_ashrrev_i32 v{RR+1}, 31, v{RR}
    v_or_b32 v{RR+1}, 0x80000000, v{RR+1}
    v_xor_b32 v{RR}, v{RR}, v{RR+1}
    v_and_b32 v{RR}, 0xffff0000, v{RR}
    s_sub_u32 s{sTmp+4}, 4095, s{sRow}
    v_or_b32 v{RR}, s{sTmp+4}, v{RR}
    s_add_u32 s{sTmp+4}, s{sKind}, 1
    s_lshl_b32 s{sTmp+4}, s{sTmp+4}, 13
    s_lshl_b32 s{sTmp+5}, s{sRow}, 2
    s_add_u32 s{sTmp+4}, s{sTmp+4}, s{sTmp+5}
    s_add_u32 s{sTmp+4}, s{sTmp+4}, {F_XN}
    v_mov_b32 v{RR+1}, 0
    s_waitcnt vmcnt(0)
    s_mov_b64 exec, 1
    buffer_store_dword v{RR}, v{RR+1}, {W}, s{sTmp+4} offen sc1
    s_mov_b64 exec, -1
    {DONE}:
    """)

sKey, sMl = 78, 79
sG, sUp = 80, 84
L_PS, L_H = 32768, 40960

def mlp_task(A, P, FAIL, finish):
    W = f"s[{sWS}:{sWS+3}]"
    STF = P.get("st", "")
    n, g = 24, 25
    XP, AOP, MSK, DG, DY, VG, VD, HS = 28, 44, 52, 56, 64, 26, 27, 28
    RING, NR = 72, 46
    A(f"""
    s_add_u32 s{sMl}, s{sMl}, 1
    s_load_dwordx2 s[{sG}:{sG+1}], s[0:1], {KA['wg']}
    s_load_dwordx2 s[{sUp}:{sUp+1}], s[0:1], {KA['wu']}
    s_load_dwordx2 s[{sT}:{sT+1}], s[0:1], {KA['wd']}
    s_mov_b32 s{sG+2}, {512*1792*2}
    s_mov_b32 s{sG+3}, 0x20000
    s_mov_b32 s{sUp+2}, {512*1792*2}
    s_mov_b32 s{sUp+3}, 0x20000
    s_mov_b32 s{sT+2}, {512*1792*2}
    s_and_b32 s{sRow}, s{sKey}, 0xfff
    s_sub_u32 s{sRow}, 4095, s{sRow}
    v_lshrrev_b32 v{g}, 8, v{oL16}
    v_and_b32 v{n}, 0xf0, v{oL16}                 ; n*16
    s_mov_b32 s{sTmp}, {32*3584}
    v_mul_lo_u32 v{VG}, v{g}, s{sTmp}
    v_add_u32 v{VG}, v{VG}, v{n}
    v_mul_u32_u24 v{VD}, {28*1024}, v{g}
    v_add_u32 v{VD}, v{VD}, v{n}
    v_lshlrev_b32 v{oT}, 6, v{g}
    s_lshl_b32 s{sTmp}, s{sKind}, 21
    s_lshl_b32 s{sTmp+1}, s{sRow}, 10
    s_add_u32 s{sTmp+6}, s{sTmp}, s{sTmp+1}
    s_lshl_b32 s{sTmp+1}, s{sW}, 8
    s_add_u32 s{sTmp}, s{sTmp+6}, s{sTmp+1}
    s_add_u32 s{sTmp}, s{sTmp}, {XB_}
    """)
    vm = Cnt(A, "vmcnt", 63)
    for i in range(4): tx = vm.issue(f"buffer_load_dwordx4 v[{XP+4*i}:{XP+4*i+3}], v{oT}, {W}, s{sTmp} offen offset:{16*i} sc1")
    A(f"""
    s_mul_i32 s{sTmp}, s{sW}, {128*3584}
    s_mul_i32 s{sTmp+1}, s{sU}, 224
    s_add_u32 s{sTmp}, s{sTmp}, s{sTmp+1}
    s_mul_i32 s{sTmp+2}, s{sU}, {112*1024}
    s_lshl_b32 s{sTmp+1}, s{sW}, 8
    s_add_u32 s{sTmp+2}, s{sTmp+2}, s{sTmp+1}
    s_mov_b32 s{sTmp+4}, 0x01000100
    s_mov_b32 s{sTmp+5}, 0x03020302
    s_waitcnt lgkmcnt(0)
    """)
    loads = [("g", j) if m == 0 else ("u", j) for j in range(32) for m in range(2)] + [("d", j) for j in range(28)]
    tok = {}
    def issue(i):
        m, j = loads[i]
        r = RING + (i % NR) * 4
        if m == "d":
            tok[i] = vm.issue(f"buffer_load_dwordx4 v[{r}:{r+3}], v{VD}, s[{sT}:{sT+3}], s{sTmp+2} offen offset:{(j%4)*1024}")
            if j % 4 == 3: A(f"s_add_u32 s{sTmp+2}, s{sTmp+2}, 4096")
        else:
            srd = sG if m == "g" else sUp
            tok[i] = vm.issue(f"buffer_load_dwordx4 v[{r}:{r+3}], v{VG}, s[{srd}:{srd+3}], s{sTmp} offen")
            if m == "u": A(f"s_add_u32 s{sTmp}, s{sTmp}, 3584")
    for i in range(NR): issue(i)
    A(f"s_mov_b32 vcc_lo, 0xaaaaaaaa\ns_mov_b32 vcc_hi, 0xaaaaaaaa\nv_mov_b32 v{oT}, 0xffff\nv_mov_b32 v{MSK}, 0xffff0000\nv_cndmask_b32 v{oT}, v{oT}, v{MSK}, vcc")
    for r in range(4):
        A(f"s_mov_b32 vcc_lo, {hex(0x00030003 << (2*r))}\ns_mov_b32 vcc_hi, {hex(0x00030003 << (2*r))}\nv_cndmask_b32 v{MSK+r}, 0, v{oT}, vcc")
    def mf(d, a, b, c): return f"v_mfma_f32_16x16x32_bf16 {v(d,4)}, {v(a,4)}, {v(b,4)}, {v(c,4) if c is not None else '0'}"
    nxt = NR
    vm.wait(tx)
    for j in range(32):
        a = AOP + (j % 2) * 4
        A(f"v_perm_b32 v{oT}, v{XP+j//2}, v{XP+j//2}, s{sTmp+4+j%2}")
        for r in range(4): A(f"v_and_b32 v{a+r}, v{MSK+r}, v{oT}")
        for m in range(2):
            i = 2 * j + m
            vm.wait(tok[i])
            A(mf(DG + 4 * m, a, RING + (i % NR) * 4, DG + 4 * m if j else None))
            if nxt < len(loads): issue(nxt); nxt += 1
    A(f"s_lshl_b32 s{sTmp}, s{sW}, 11\nv_lshlrev_b32 v{oT}, 1, v{n}\nv_lshl_add_u32 v{oT}, v{g}, 4, v{oT}")
    A(f"v_cmp_gt_u32 vcc, 2, v{g}\nv_mov_b32 v{XP}, 512\nv_cndmask_b32 v{oT}, v{XP}, v{oT}, vcc\nv_add_u32 v{oT}, s{sTmp}, v{oT}")
    A(f"ds_write_b128 v{oT}, v[{DG}:{DG+3}] offset:{L_PS}\nds_write_b128 v{oT}, v[{DG+4}:{DG+7}] offset:{L_PS+1024}")
    A("s_waitcnt lgkmcnt(0)\ns_barrier")
    for w in range(4):
        for m in range(2): A(f"ds_read_b64 v[{XP+(w*2+m)*2}:{XP+(w*2+m)*2+1}], v{oL8} offset:{L_PS+w*2048+m*1024}")
    A("s_waitcnt lgkmcnt(0)")
    for q in range(4):
        A(f"v_add_f32 v{XP+q}, v{XP+q}, v{XP+4+q}\nv_add_f32 v{XP+8+q}, v{XP+8+q}, v{XP+12+q}\nv_add_f32 v{XP+q}, v{XP+q}, v{XP+8+q}")
        rnd(A, XP + q)
    for q in range(2):
        A(f"v_mul_f32 v{XP+4+q}, {hex(f32bits(-math.log2(math.e)))}, v{XP+q}\nv_exp_f32 v{XP+4+q}, v{XP+4+q}\nv_add_f32 v{XP+4+q}, 1.0, v{XP+4+q}\nv_rcp_f32 v{XP+4+q}, v{XP+4+q}")
        A(f"v_mul_f32 v{XP+q}, v{XP+q}, v{XP+4+q}")
        rnd(A, XP + q)
        A(f"v_mul_f32 v{XP+q}, v{XP+q}, v{XP+2+q}\nv_cvt_pk_bf16_f32 v{XP+q}, v{XP+q}, v{XP+q}")
    A(f"s_lshl_b32 s{sTmp}, s{sW}, 9\nv_add_u32 v{oT}, s{sTmp}, v{oL8}\nds_write_b64 v{oT}, v[{XP}:{XP+1}] offset:{L_H}")
    A(f"v_mul_u32_u24 v{oT}, 112, v{g}\nv_add_u32 v{oT}, s{sTmp}, v{oT}")
    HR = [28, 32, 36, 40, 56, 60, 68]
    for q in range(7): A(f"ds_read_b128 v[{HR[q]}:{HR[q]+3}], v{oT} offset:{L_H+16*q}")
    A("s_waitcnt lgkmcnt(0)")
    for j in range(28):
        a = AOP + (j % 2) * 4
        for r in range(4): A(f"v_and_b32 v{a+r}, v{MSK+r}, v{HR[j//4]+j%4}")
        i = 64 + j
        vm.wait(tok[i])
        A(mf(DY, a, RING + (i % NR) * 4, DY if j else None))
    A(f"""
    v_lshlrev_b32 v{oT}, 1, v{n}
    v_lshl_add_u32 v{oT}, v{g}, 4, v{oT}
    s_lshl_b32 s{sTmp}, s{sRep}, 4
    s_add_u32 s{sTmp}, s{sTmp}, s{sU}
    s_lshl_b32 s{sTmp}, s{sTmp}, 11
    s_lshl_b32 s{sTmp+1}, s{sW}, 9
    s_add_u32 s{sTmp}, s{sTmp}, s{sTmp+1}
    s_add_u32 s{sTmp}, s{sTmp}, {MLPY}
    s_mov_b32 exec_hi, 0
    buffer_store_dwordx4 v[{DY}:{DY+3}], v{oT}, {W}, s{sTmp} offen {STF}
    s_mov_b64 exec, -1
    s_lshl_b32 s{sTmp}, s{sRep}, 10
    s_add_u32 s{sTmp}, s{sTmp}, {F_ML}
    s_lshl_b32 s{sTmp+1}, s{sU}, 4
    s_lshl_b32 s{sTmp+2}, s{sW}, 2
    s_add_u32 s{sTmp+1}, s{sTmp+1}, s{sTmp+2}
    v_mov_b32 v28, s{sMl}
    v_mov_b32 v29, s{sTmp+1}
    s_waitcnt vmcnt(0)
    s_mov_b64 exec, 1
    buffer_store_dword v28, v29, {W}, s{sTmp} offen {STF}
    s_mov_b64 exec, -1
    """)
    DONE, L1 = A.label("m_done"), A.label("m_w")
    A(f"s_cmp_lg_u32 s{sTmp+1}, 0\ns_cbranch_scc1 {DONE}")
    XR, YR, XF, YF, PK, TM = 24, 28, 32, 40, 48, 52
    A(f"s_add_u32 s{sTmp+1}, s{sTmp+6}, {XA}\ns_add_u32 s{sTmp+2}, s{sTmp+6}, {XB_}")
    A(f"buffer_load_dwordx4 v[{XR}:{XR+3}], v{oL16}, {W}, s{sTmp+1} offen sc1\nbuffer_load_dwordx4 v[{YR}:{YR+3}], v{oL16}, {W}, s{sTmp+2} offen sc1")
    A(f"s_mov_b32 s{sSpin}, 0\n{L1}:\nbuffer_load_dword v{XF}, v{oL4}, {W}, s{sTmp} offen sc1")
    spin(A, FAIL)
    A(f"s_waitcnt vmcnt(0)\nv_cmp_gt_u32 vcc, s{sMl}, v{XF}\ns_cbranch_vccnz {L1}")
    A(f"s_lshl_b32 s{sTmp}, s{sRep}, 15\ns_add_u32 s{sTmp}, s{sTmp}, {MLPY}\nv_lshlrev_b32 v{oT}, 1, v{oL16}")
    for p in range(16):
        for hf in range(2): A(f"buffer_load_dwordx4 v[{72+p*8+hf*4}:{75+p*8+hf*4}], v{oT}, {W}, s{sTmp} offen offset:{(p%2)*2048+hf*16} sc1")
        if p % 2: A(f"s_add_u32 s{sTmp}, s{sTmp}, 4096")
    unpack(A, XR, XF); unpack(A, YR, YF)
    A(f"""
    s_and_b32 s{sTmp}, s{sKey}, 0xffff0000
    s_xor_b32 s{sTmp+1}, s{sTmp}, 0x80000000
    s_xor_b32 s{sTmp+2}, s{sTmp}, 0xffff0000
    s_bitcmp1_b32 s{sTmp}, 31
    s_cselect_b32 s{sTmp}, s{sTmp+1}, s{sTmp+2}
    v_mov_b32 v{TM}, s{sTmp}
    v_mul_f32 v{TM}, {hex(f32bits(-math.log2(math.e)))}, v{TM}
    v_exp_f32 v{TM}, v{TM}
    v_add_f32 v{TM}, 1.0, v{TM}
    v_rcp_f32 v{TM}, v{TM}
    """)
    rnd(A, TM)
    for p in range(1, 16):
        A(f"s_waitcnt vmcnt({30-2*p})")
        for i in range(0, 8, 2): A(f"v_pk_add_f32 v[{72+i}:{73+i}], v[{72+i}:{73+i}], v[{72+p*8+i}:{73+p*8+i}]")
    pack(A, 72, PK); unpack(A, PK, 72)
    for i in range(8): A(f"v_mul_f32 v{72+i}, v{72+i}, v{TM}")
    pack(A, 72, PK); unpack(A, PK, 72)
    for i in range(8): A(f"v_add_f32 v{72+i}, v{72+i}, v{YF+i}")
    pack(A, 72, PK); unpack(A, PK, 72)
    for i in range(8): A(f"v_add_f32 v{XF+i}, v{XF+i}, v{72+i}")
    pack(A, XF, PK); unpack(A, PK, XF)
    finish(A, XF, PK, TM)
    A(f"{DONE}:")

def wait_all_keys(A, off, FAIL):
    W = f"s[{sWS}:{sWS+3}]"
    L = A.label("k_w")
    A(f"s_mov_b32 s{sSpin}, 0\ns_mov_b32 s{sTmp}, {off}\ns_mov_b32 s{sTmp+1}, {off+4096}\n{L}:")
    for i in range(8): A(f"buffer_load_dwordx4 v[{24+4*i}:{27+4*i}], v{oL16}, {W}, s{sTmp+i//4} offen offset:{(i%4)*1024} sc1")
    spin(A, FAIL)
    A("s_sleep 2\ns_waitcnt vmcnt(0)")
    A("v_min_u32 v56, v24, v25\nv_max_u32 v57, v24, v25")
    for i in range(26, 56, 2): A(f"v_min3_u32 v56, v{i}, v{i+1}, v56\nv_max3_u32 v57, v{i}, v{i+1}, v57")
    A(f"v_cmp_eq_u32 vcc, 0, v56\ns_cbranch_vccnz {L}")
    for rot in (8, 4, 2, 1): A(f"v_max_u32_dpp v57, v57, v57 row_ror:{rot} row_mask:0xf bank_mask:0xf")
    for sw in ("16", "32"): A(f"v_mov_b32 v56, v57\nv_permlane{sw}_swap_b32 v57, v56\nv_max_u32 v57, v57, v56")
    A(f"v_readfirstlane_b32 s{sKey}, v57")
```

```python
from asmlib import *
from layout import *
from chain import Cnt, f32bits, sWS, sT, sJ, sW, sC, sTmp, sLo, sHi
import math

qL16, qFL, qT0, qT1, qONE, qZ = range(6)
qRD = 88
qSRC = 92
ACC = 8
XB = 40
PK = 72
WB = dict(k=128, v=256, q=384)
def wop(m, tau, c): return WB[m] + (tau * 16 + c) * 4
sTab = 40
sCur, sNxt, sPre, sPend, sPar, sXN, sOut, sSpin = 46, 47, 48, 49, 50, 51, 52, 53
sDm = 54

def task_lists(simple=True):
    if simple:
        return [[(ly, s_, t) for ly in range(2) for s_ in range(r, NSEG, 3) for t in ("kv", "q")] for r in range(3)]
    S0 = 27
    lists = [[], [], []]
    for s_ in range(S0):
        lists[s_ % 3] += [(0, s_, "kv"), (0, s_, "q")]
    for s_ in range(NSEG): lists[2].append((1, s_, "kv"))
    rest = list(range(S0, NSEG))
    for r in range(2):
        l1 = rest[r::2]
        l2 = list(range(r, NSEG, 2))
        while l1 or l2:
            if l1:
                a = l1.pop(0); lists[r] += [(0, a, "kv"), (0, a, "q")]
            if l2: lists[r].append((1, l2.pop(0), "q"))
    return lists

def encode(lst):
    out = []
    for i, (ly, sg, ty) in enumerate(lst):
        new = 0 if (i and lst[i-1][:2] == (ly, sg)) else 1
        e = sg | ly << 6 | (ty == "q") << 7 | new << 8 | 1 << 9
        j = i + 1
        while j < len(lst) and lst[j][:2] == (ly, sg): j += 1
        if j < len(lst): e |= (lst[j][1] | lst[j][0] << 6 | 1 << 7) << 16
        out.append(e)
    return out + [0, 0]

def qkv_load_weights(A, n, g):
    A(f"""
    s_mov_b32 s{sLo}, 0x05040100
    s_mov_b32 s{sHi}, 0x07060302
    s_mov_b32 s{sT+2}, {4*MB}
    s_mov_b32 s{sT+3}, 0x20000
    v_lshlrev_b32 v21, 16, v{g}
    v_lshl_add_u32 v21, v{n}, 2, v21
    s_lshl_b32 s{sTmp}, s{sJ}, 8
    s_lshl_b32 s{sTmp+1}, s{sW}, 6
    s_add_u32 s{sTmp}, s{sTmp}, s{sTmp+1}
    """)
    vm = Cnt(A, "vmcnt", 63)
    POOL, NP = 24, 6
    jobs = [(m, c2) for m in "kvq" for c2 in range(8)]
    jt = {}
    def issue(i):
        m, c2 = jobs[i]
        if c2 == 0:
            A(f"s_load_dwordx2 s[{sT}:{sT+1}], s[0:1], {KA['w'+m]}\ns_waitcnt lgkmcnt(0)")
        for u in range(2):
            for j in range(8):
                r = POOL + (i % NP) * 16 + u * 8 + j
                d = 64 * c2 + 32 * u + j
                A(f"s_add_u32 s{sTmp+1}, s{sTmp}, {d * 8192}")
                jt[i] = vm.issue(f"buffer_load_dword v{r}, v21, s[{sT}:{sT+3}], s{sTmp+1} offen")
    def consume(i):
        m, c2 = jobs[i]
        vm.wait(jt[i])
        for u in range(2):
            for tau in range(2):
                l0 = POOL + (i % NP) * 16 + u * 8
                x = wop(m, tau, 2 * c2 + u)
                for rho in range(4):
                    sel = sHi if tau else sLo
                    if x < 256: A(f"v_perm_b32 v{x+rho}, v{l0+2*rho+1}, v{l0+2*rho}, s{sel}")
                    else: A(f"v_perm_b32 v{120+4*tau+rho}, v{l0+2*rho+1}, v{l0+2*rho}, s{sel}")
                if x >= 256:
                    for rho in range(4): A(f"v_accvgpr_write_b32 a{x-256+rho}, v{120+4*tau+rho}")
    for i in range(len(jobs) + 3):
        if i < len(jobs): issue(i)
        if i >= 3: consume(i - 3)

def qkv_role(A, sRep, table_label, stride, P, after_weights=None):
    W = f"s[{sWS}:{sWS+3}]"
    n, g = 17, 18
    A(f"""
    v_and_b32 v19, 63, v0
    v_and_b32 v{n}, 15, v19
    v_lshrrev_b32 v{g}, 4, v19
    v_lshlrev_b32 v{qFL}, 2, v19
    v_and_b32 v{qFL}, 127, v{qFL}
    v_lshlrev_b32 v{qL16}, 4, v19
    v_mov_b32 v{qONE}, 1
    v_mov_b32 v{qZ}, 0
    s_mov_b32 s{sC}, {hex(f32bits(128 ** -0.5 * math.log2(math.e)))}
    """)
    qkv_load_weights(A, n, g)
    if after_weights: after_weights()
    A(f"v_xor_b32 v20, v{g}, v{n}\nv_lshlrev_b32 v20, 4, v20\nv_lshl_add_u32 v20, v{n}, 10, v20\nv_add_u32 v20, 32768, v20")
    for cl in range(4): A(f"v_xor_b32 v{qRD+cl}, {cl*64}, v20")
    A(f"s_and_b32 s{sTmp}, s{sW}, 1\ns_lshl_b32 s{sTmp}, s{sTmp}, 7\nv_xor_b32 v20, s{sTmp}, v{qL16}")
    for i in range(8): A(f"v_xor_b32 v{qSRC+i}, {i*16}, v20")
    here = A.label("q_pc")
    A(f"""
    s_getpc_b64 s[{sTab}:{sTab+1}]
    {here}:
    s_mul_i32 s{sTmp}, s{sRep}, {stride}
    s_add_u32 s{sTmp}, s{sTmp}, {table_label}-{here}
    s_add_u32 s{sTab}, s{sTab}, s{sTmp}
    s_addc_u32 s{sTab+1}, s{sTab+1}, 0
    s_load_dword s{sNxt}, s[{sTab}:{sTab+1}], 0
    s_mov_b32 s{sPre}, 0
    s_mov_b64 s[80:81], 0
    s_mov_b64 s[82:83], 0
    s_mov_b32 s{sPend}, 0
    s_mov_b32 s{sPar}, 32768
    s_lshl_b32 s{sDm}, s{sW}, 13
    s_waitcnt lgkmcnt(0)
    """)
    TOP, END, HAVE, QBLK, POLL, FAIL = [A.label(x) for x in ("q_top", "q_end", "q_have", "q_qblk", "q_poll", "q_fail")]
    def post_pending():
        L = A.label("q_np")
        A(f"""
        s_cmp_eq_u32 s{sPend}, 0
        s_cbranch_scc1 {L}
        s_mov_b64 exec, 1
        buffer_store_dword v{qONE}, v{qZ}, {W}, s{sPend} offen sc1
        s_mov_b64 exec, -1
        s_mov_b32 s{sPend}, 0
        {L}:
        """)
    def flag_load(sid):
        A(f"s_and_b32 s{sTmp}, s{sid}, 127\ns_lshl_b32 s{sTmp}, s{sTmp}, 7\ns_add_u32 s{sTmp}, s{sTmp}, {F_XN}")
        if P.get("gate"): A(f"s_bitcmp1_b32 s{sid}, 6\ns_cselect_b32 s{sTmp}, {F_MISC}, s{sTmp}")
        A(f"buffer_load_dword v{qT0}, v{qFL}, {W}, s{sTmp} offen sc1")
    def dma(sid):
        A(f"""
        s_and_b32 s{sTmp}, s{sid}, 127
        s_lshl_b32 s{sTmp}, s{sTmp}, 15
        s_xor_b32 s{sTmp+1}, s{sPar}, 32768
        s_add_u32 m0, s{sTmp+1}, s{sDm}
        s_add_u32 s{sTmp}, s{sTmp}, s{sDm}
        s_add_u32 s{sTmp}, s{sTmp}, {XN}
        """)
        for i in range(8):
            if i == 4: A(f"s_add_u32 m0, m0, 4096\ns_add_u32 s{sTmp}, s{sTmp}, 4096")
            A(f"buffer_load_dwordx4 v{qSRC+i}, {W}, s{sTmp} offen offset:{(i%4)*1024} sc1 lds")
    A(f"{TOP}:")
    A(f"""
    s_mov_b32 s{sCur}, s{sNxt}
    s_bitcmp1_b32 s{sCur}, 9
    s_cbranch_scc0 {END}
    s_add_u32 s{sTab}, s{sTab}, 4
    s_addc_u32 s{sTab+1}, s{sTab+1}, 0
    s_load_dword s{sNxt}, s[{sTab}:{sTab+1}], 0
    s_bitcmp1_b32 s{sCur}, 8
    s_cbranch_scc0 {HAVE}x
    s_cmp_lg_u32 s{sPre}, 0
    s_cbranch_scc1 {HAVE}
    s_mov_b32 s{sSpin}, 0
    s_add_u32 s83, s83, 1
    """)
    A(f"{POLL}:")
    flag_load(sCur)
    A(f"s_add_u32 s{sSpin}, s{sSpin}, 1\ns_cmp_gt_u32 s{sSpin}, {SPIN_MAX}\ns_cbranch_scc1 {FAIL}")
    A("s_waitcnt vmcnt(0)")
    post_pending()
    A(f"v_cmp_eq_u32 vcc, 0, v{qT0}\ns_cbranch_vccnz {POLL}")
    dma(sCur)
    A("s_waitcnt vmcnt(0)")
    A(f"{HAVE}:")
    A(f"s_mov_b32 s{sPre}, 0\ns_xor_b32 s{sPar}, s{sPar}, 32768")
    for cl in range(4): A(f"v_xor_b32 v{qRD+cl}, 32768, v{qRD+cl}")
    A("s_barrier")
    A(f"{HAVE}x:")
    A(f"""
    s_and_b32 s{sOut}, s{sCur}, 127
    s_lshl_b32 s{sOut}, s{sOut}, 5
    s_add_u32 s{sOut}, s{sOut}, s{sJ}
    s_lshl_b32 s{sOut}, s{sOut}, 2
    s_add_u32 s{sOut}, s{sOut}, s{sW}
    s_lshr_b32 s{sXN}, s{sCur}, 16
    s_waitcnt lgkmcnt(0)
    """)
    flag_load(sXN)
    A(f"s_bitcmp1_b32 s{sCur}, 7\ns_cbranch_scc1 {QBLK}")
    def timed(txt, acc):
        if P.get("prof"):
            A(f"s_memtime s[70:71]\n{txt}\ns_memtime s[72:73]\ns_waitcnt lgkmcnt(0)\ns_sub_u32 s72, s72, s70\ns_add_u32 s{acc}, s{acc}, s72")
        else: A(txt)
    def mid():
        L = A.label("q_mid")
        timed("s_waitcnt vmcnt(0)", 80)
        if not P.get("late"): post_pending()
        A(f"""
        v_cmp_eq_u32 vcc, 0, v{qT0}
        s_bitcmp1_b32 s{sXN}, 7
        s_cbranch_scc0 {L}
        s_cmp_lg_u32 s{sPre}, 0
        s_cbranch_scc1 {L}
        s_cbranch_vccnz {L}
        """)
        dma(sXN)
        A(f"s_mov_b32 s{sPre}, 1\n{L}:")
        if P.get("late"): post_pending()
    def block(mats, midat):
        ld = Cnt(A, "lgkmcnt", 15)
        steps = [(c, tt) for c in range(16) for tt in range(2)]
        tok = {}
        def rd(i):
            c, tt = steps[i]
            r = XB + (i % 8) * 4
            tok[i] = ld.issue(f"ds_read_b128 v[{r}:{r+3}], v{qRD+c%4} offset:{tt*16384+(c//4)*256}")
        AH = 6
        for i in range(AH): rd(i)
        for i, (c, tt) in enumerate(steps):
            if i == midat: mid()
            ld.wait(tok[i])
            x = XB + (i % 8) * 4
            first = True
            for mi, m in enumerate(mats):
                for tau in range(2):
                    a = ACC + ((mi * 2 + tt) * 2 + tau) * 4
                    w = reg(wop(m, tau, c), 4)
                    cc = "0" if c == 0 else v(a, 4)
                    if m == "v": A(f"v_mfma_f32_16x16x32_bf16 {v(a,4)}, {v(x,4)}, {w}, {cc}")
                    else: A(f"v_mfma_f32_16x16x32_bf16 {v(a,4)}, {w}, {v(x,4)}, {cc}")
                    if first and i + AH < len(steps): rd(i + AH)
                    first = False
    block("kv", P.get("midkv", 16))
    A(f"s_lshl_b32 s{sTmp}, s{sOut}, 12\ns_add_u32 s{sTmp}, s{sTmp}, {KV}")
    for tt in range(2):
        a = ACC + tt * 8
        for r in range(0, 8, 2): A(f"v_pk_mul_f32 v[{a+r}:{a+r+1}], v[{a+r}:{a+r+1}], s[{sC}:{sC+1}] op_sel_hi:[1,0]")
        for r in range(4): A(f"v_cvt_pk_bf16_f32 v{PK+tt*4+r}, v{a+2*r}, v{a+2*r+1}")
        A(f"buffer_store_dwordx4 v[{PK+tt*4}:{PK+tt*4+3}], v{qL16}, {W}, s{sTmp} offen offset:{tt*1024} sc1")
    for tau in range(2):
        for tt in range(2):
            a = ACC + 16 + (tt * 2 + tau) * 4
            for r in range(2): A(f"v_cvt_pk_bf16_f32 v{PK+8+tau*4+tt*2+r}, v{a+2*r}, v{a+2*r+1}")
        A(f"buffer_store_dwordx4 v[{PK+8+tau*4}:{PK+8+tau*4+3}], v{qL16}, {W}, s{sTmp} offen offset:{2048+tau*1024} sc1")
    A(f"s_lshl_b32 s{sPend}, s{sOut}, 2\ns_add_u32 s{sPend}, s{sPend}, {F_KV}")
    timed("s_waitcnt vmcnt(%d)" % (5 if P.get("late") else 4), 81)
    A(f"s_branch {TOP}")
    A(f"{QBLK}:")
    block("q", P.get("midq", 26))
    A(f"s_lshl_b32 s{sTmp}, s{sOut}, 11\ns_add_u32 s{sTmp}, s{sTmp}, {QX}")
    for tt in range(2):
        a = ACC + tt * 8
        for r in range(4): A(f"v_cvt_pk_bf16_f32 v{PK+tt*4+r}, v{a+2*r}, v{a+2*r+1}")
        A(f"buffer_store_dwordx4 v[{PK+tt*4}:{PK+tt*4+3}], v{qL16}, {W}, s{sTmp} offen offset:{tt*1024} sc1")
    A(f"s_lshl_b32 s{sPend}, s{sOut}, 2\ns_add_u32 s{sPend}, s{sPend}, {F_Q}")
    timed("s_waitcnt vmcnt(%d)" % (3 if P.get("late") else 2), 82)
    A(f"s_branch {TOP}")
    A(f"{END}:")
    A("s_waitcnt vmcnt(0)")
    post_pending()
    A(f"{FAIL}:")

def qkv_table(label):
    L = [encode(l) for l in task_lists()]
    n = max(len(x) for x in L)
    txt = f".p2align 2\n{label}:\n"
    for l in L:
        txt += ".long " + ", ".join(hex(x) for x in l + [0] * (n - len(l))) + "\n"
    return txt, n * 4
```

```python
import sys
from asmlib import *
from layout import *
import chain as C, qkv as Q, orole as O
from chain import sWS, sT, sJ, sW, sTmp

NAME = "interleave_layers__memory_aug_recurrent_mem_tr__moe_arch_mod__prompt"
KN = NAME + "_kernel"
sDbg = 12
sSlot = 90
sXcd = 91
D_OVF, D_INIT, D_TEAM = 128, 160, 192

def wait_counter(A, off, target, fail, vt=20):
    L = A.label("g_wc")
    A(f"s_mov_b32 s{sTmp}, 0\nv_mov_b32 v{vt}, {off}\n{L}:\nglobal_load_dword v{vt+1}, v{vt}, s[{sDbg}:{sDbg+1}] sc1")
    A(f"s_add_u32 s{sTmp}, s{sTmp}, 1\ns_cmp_gt_u32 s{sTmp}, {SPIN_MAX}\ns_cbranch_scc1 {fail}")
    A(f"s_waitcnt vmcnt(0)\nv_readfirstlane_b32 s{sTmp+1}, v{vt+1}\ns_cmp_lt_u32 s{sTmp+1}, {target}\ns_cbranch_scc1 {L}")

def load_counts(A, vt, lane16):
    A(f"v_and_b32 v{vt}, 0x70, v{lane16}\nglobal_load_dword v{vt+1}, v{vt}, s[{sDbg}:{sDbg+1}] sc1\ns_waitcnt vmcnt(0)")
    for x in range(8): A(f"v_readlane_b32 s{sTmp+2+x}, v{vt+1}, {x}")
    A(f"s_add_u32 s{sTmp+1}, s{sTmp+2}, s{sTmp+3}")
    for x in range(2, 8): A(f"s_add_u32 s{sTmp+1}, s{sTmp+1}, s{sTmp+2+x}")

def purity(A, impure, fail, vt, lane16):
    L, OK = A.label("g_pu"), A.label("g_pure")
    A(f"s_mov_b32 s{sTmp}, 0\n{L}:")
    load_counts(A, vt, lane16)
    A(f"v_readlane_b32 s{sTmp+10}, v{vt+1}, s{sXcd}")
    A(f"s_cmp_ge_u32 s{sTmp+10}, 32\ns_cbranch_scc1 {OK}\ns_cmp_ge_u32 s{sTmp+1}, 256\ns_cbranch_scc1 {impure}")
    A(f"s_add_u32 s{sTmp}, s{sTmp}, 1\ns_cmp_gt_u32 s{sTmp}, {SPIN_MAX}\ns_cbranch_scc1 {fail}\ns_branch {L}\n{OK}:")

def arrive(A, off_sgpr_or_imm, vt=20):
    L = A.label("g_ar")
    A(f"s_cmp_lg_u32 s{sW}, 0\ns_cbranch_scc1 {L}\nv_mov_b32 v{vt}, {off_sgpr_or_imm}\nv_mov_b32 v{vt+1}, 1\ns_mov_b64 exec, 1")
    A(f"global_atomic_add v{vt}, v{vt+1}, s[{sDbg}:{sDbg+1}]\ns_mov_b64 exec, -1\n{L}:")

def entry(A, P):
    A(f"""
    s_cmp_ge_u32 s2, 256
    s_cbranch_scc1 L_end
    s_load_dwordx2 s[{sWS}:{sWS+1}], s[0:1], {KA['ws']}
    s_load_dwordx2 s[{sDbg}:{sDbg+1}], s[0:1], {KA['dbg']}
    s_mov_b32 s{sWS+2}, {WS_BYTES}
    s_mov_b32 s{sWS+3}, 0x20000
    s_mov_b32 s{sT+3}, 0x20000
    s_getreg_b32 s{sXcd}, hwreg(HW_REG_XCC_ID)
    s_and_b32 s{sXcd}, s{sXcd}, 7
    v_lshrrev_b32 v1, 6, v0
    v_mov_b32 v2, 0
    v_readfirstlane_b32 s{sW}, v1
    """)
    if P.get("fake_xcc"): A(P["fake_xcc"])
    A(f"""
    s_waitcnt lgkmcnt(0)
    s_cmp_lg_u32 s{sW}, 0
    s_cbranch_scc1 L_got
    s_lshl_b32 s{sTmp}, s{sXcd}, 4
    v_mov_b32 v3, s{sTmp}
    v_mov_b32 v4, 1
    s_mov_b64 exec, 1
    global_atomic_add v5, v3, v4, s[{sDbg}:{sDbg+1}] sc0
    s_mov_b64 exec, -1
    s_waitcnt vmcnt(0)
    v_readfirstlane_b32 s{sSlot}, v5
    s_cmp_ge_u32 s{sSlot}, 32
    s_cbranch_scc1 L_ovf
    s_lshl_b32 s{sTmp}, s{sXcd}, 5
    s_add_u32 s{sSlot}, s{sSlot}, s{sTmp}
L_pub:
    v_mov_b32 v3, s{sSlot}
    ds_write_b32 v2, v3
    s_waitcnt lgkmcnt(0)
L_got:
    s_barrier
    ds_read_b32 v3, v2
    s_waitcnt lgkmcnt(0)
    v_readfirstlane_b32 s{sSlot}, v3
    s_barrier
    s_cmp_ge_u32 s{sSlot}, 256
    s_cbranch_scc1 L_end
    s_lshr_b32 s{sXcd}, s{sSlot}, 5
    s_cmp_lt_u32 s{sXcd}, 3
    s_cbranch_scc1 L_chain
    s_cmp_lt_u32 s{sXcd}, 6
    s_cbranch_scc1 L_qkv
    s_branch L_o
L_ovf:
    v_mov_b32 v3, {D_OVF}
    s_mov_b64 exec, 1
    global_atomic_add v5, v3, v4, s[{sDbg}:{sDbg+1}] sc0
    s_mov_b64 exec, -1
    s_waitcnt vmcnt(0)
    v_readfirstlane_b32 s{sTmp+11}, v5
    v_lshlrev_b32 v6, 4, v0
    s_mov_b32 s{sTmp}, 0
    s_mov_b32 s{sSlot}, 256
L_ovw:
    """)
    load_counts(A, 7, 6)
    A(f"s_add_u32 s{sTmp}, s{sTmp}, 1\ns_cmp_gt_u32 s{sTmp}, {SPIN_MAX}\ns_cbranch_scc1 L_pub\ns_cmp_lt_u32 s{sTmp+1}, 256\ns_cbranch_scc1 L_ovw")
    for x in range(8):
        A(f"""
        s_min_u32 s{sTmp+2+x}, s{sTmp+2+x}, 32
        s_add_u32 s{sTmp+11}, s{sTmp+11}, s{sTmp+2+x}
        s_add_u32 s{sSlot}, s{sTmp+11}, {32*x}
        s_cmp_lt_u32 s{sTmp+11}, 32
        s_cbranch_scc1 L_pub
        s_sub_u32 s{sTmp+11}, s{sTmp+11}, 32
        """)
    A(f"s_mov_b32 s{sSlot}, 256\ns_branch L_pub")

def chain_role(A, P):
    A("L_chain:")
    A(f"s_cmp_eq_u32 s{sXcd}, 1\ns_cbranch_scc1 L_end")
    A(f"s_and_b32 s{sJ}, s{sSlot}, 31\ns_mov_b32 s{C.sChain}, s{sXcd}\ns_min_u32 s{C.sLayer}, s{sXcd}, 1")
    C.lane_consts(A)
    C.chain_prologue(A)
    A(f"s_lshl_b32 s{sTmp+12}, s{sXcd}, 2\ns_add_u32 s{sTmp+12}, s{sTmp+12}, {D_TEAM}")
    arrive(A, f"s{sTmp+12}")
    C.chain_load_weights(A)
    wait_counter(A, f"s{sTmp+12}", 32, "L_end")
    wait_counter(A, D_INIT, 64, "L_end")
    purity(A, "L_chain_x", "L_end", 20, C.vL16)
    CP = dict(P.get("chain", {}), steady=0)
    C.chain_loop(A, CP)
    A("s_endpgm\nL_chain_x:")
    C.chain_loop(A, dict(CP, st="sc1"))
    A("s_endpgm")

def qkv_role(A, P, stride):
    A("L_qkv:")
    A(f"""
    s_sub_u32 s{sTmp}, s{sSlot}, 96
    s_mul_i32 s{sJ}, s{sTmp}, 171
    s_lshr_b32 s{sJ}, s{sJ}, 9
    s_mul_i32 s{sTmp+1}, s{sJ}, 3
    s_sub_u32 s60, s{sTmp}, s{sTmp+1}
    """)
    Q.qkv_role(A, 60, "qkv_tab", stride, P.get("qkv", {}), after_weights=lambda: wait_counter(A, D_INIT, 64, "L_end"))
    A("s_endpgm")

def o_body(A, P):
    W = f"s[{sWS}:{sWS+3}]"
    LP, L2, FIN = A.label("o_loop"), A.label("o_nomlp"), A.label("o_fin")
    A(f"s_mov_b32 s{O.sTask}, 0\ns_mov_b32 s{O.sMl}, 0\ns_mov_b32 s{O.sLay}, 0\ns_mov_b32 s{O.sChn}, 0\ns_mov_b32 s{O.sKind}, 0\ns_mov_b32 s{O.sSeg}, s{O.sRep}\n{LP}:")
    O.o_task(A, P, "L_end")
    A(f"s_add_u32 s{O.sSeg}, s{O.sSeg}, 4\ns_cmp_lt_u32 s{O.sSeg}, 64\ns_cbranch_scc1 {LP}")
    A(f"s_cmp_lg_u32 s{O.sRep}, 0\ns_cbranch_scc1 {L2}")
    K2, K3 = A.label("o_k2"), A.label("o_k3")
    A(f"s_cmp_lg_u32 s{O.sLay}, 0\ns_cbranch_scc1 {K2}")
    O.wait_all_keys(A, F_XN + 8192, "L_end")
    A(f"s_branch {K3}\n{K2}:")
    O.wait_all_keys(A, F_XN + 3 * 8192, "L_end")
    A(f"{K3}:")
    def finish(A, XF, PK, TM):
        F2, F3 = A.label("m_f2"), A.label("m_f3")
        A(f"s_lshl_b32 s{sTmp}, s{O.sRow}, 10\ns_cmp_lg_u32 s{O.sLay}, 0\ns_cbranch_scc1 {F2}")
        A(f"s_add_u32 s{sTmp+1}, s{sTmp}, {X2}\nbuffer_store_dwordx4 v[{PK}:{PK+3}], v{O.oL16}, {W}, s{sTmp+1} offen sc1")
        O.layernorm(A, XF, None, 72, TM)
        A(f"s_add_u32 s{sTmp+1}, s{sTmp}, {XN+2*MB}\nbuffer_store_dwordx4 v[72:75], v{O.oL16}, {W}, s{sTmp+1} offen sc1")
        A(f"v_mov_b32 v76, 1\ns_mov_b32 s{sTmp+1}, {F_MISC}\ns_waitcnt vmcnt(0)\nbuffer_store_dword v76, v{O.oL4}, {W}, s{sTmp+1} offen sc1\ns_branch {F3}")
        A(f"{F2}:\nbuffer_store_dwordx4 v[{PK}:{PK+3}], v{O.oL16}, s[{O.sOut}:{O.sOut+3}], s{sTmp} offen sc1\n{F3}:")
    O.mlp_task(A, P, "L_end", finish)
    A(f"{L2}:")
    A(f"s_cmp_lg_u32 s{O.sLay}, 0\ns_cbranch_scc1 {FIN}")
    A(f"s_mov_b32 s{O.sLay}, 1\ns_mov_b32 s{O.sChn}, 2\ns_mov_b32 s{O.sKind}, 2\ns_mov_b32 s{O.sSeg}, s{O.sRep}\ns_branch {LP}\n{FIN}:")
    A("s_endpgm")

def o_role(A, P):
    W = f"s[{sWS}:{sWS+3}]"
    A("L_o:")
    A(f"s_sub_u32 s{sTmp}, s{sSlot}, 192\ns_lshr_b32 s{O.sRep}, s{sTmp}, 4\ns_and_b32 s{O.sU}, s{sTmp}, 15")
    A(f"s_lshl_b32 s{sTmp}, s{sTmp}, 13\ns_add_u32 s{sTmp}, s{sTmp}, {FLAGS}\nv_lshlrev_b32 v1, 4, v0\nv_mov_b64 v[4:5], 0\nv_mov_b64 v[6:7], 0")
    A(f"buffer_store_dwordx4 v[4:7], v1, {W}, s{sTmp} offen sc1\ns_add_u32 s{sTmp}, s{sTmp}, 4096\nbuffer_store_dwordx4 v[4:7], v1, {W}, s{sTmp} offen sc1")
    O.o_consts(A)
    A("s_barrier")
    arrive(A, D_INIT, 60)
    O.o_ln0(A)
    wait_counter(A, D_INIT, 64, "L_end", 60)
    O.o_ln0_compute(A)
    O.o_load_weights(A)
    purity(A, "L_o_x", "L_end", 60, O.oL16)
    OP = P.get("o", {})
    o_body(A, OP)
    A("L_o_x:")
    o_body(A, dict(OP, st="sc1"))

HEAD = open("/code/" + NAME + ".s.ref").read().split("; Override launch")[0] if True else ""

def generate(P):
    A = Asm()
    tab, stride = Q.qkv_table("qkv_tab")
    entry(A, P)
    A("L_end:\ns_endpgm")
    chain_role(A, P); qkv_role(A, P, stride); o_role(A, P)
    body = A.text(verbose=P.get("verbose", False))
    return (HEAD + "; @launch grid=(256,1,1) block=(256,1,1) lds=163840\n"
            + f'.amdgcn_target "amdgcn-amd-amdhsa--gfx950"\n.text\n.globl {KN}\n.p2align 8\n.type {KN},@function\n{KN}:\n'
            + body + tab + f"""
.section .rodata,"a"
.p2align 6
.amdhsa_kernel {KN}
  .amdhsa_next_free_vgpr 512
  .amdhsa_next_free_sgpr 102
  .amdhsa_accum_offset 256
  .amdhsa_group_segment_fixed_size 0
  .amdhsa_kernarg_size 120
  .amdhsa_user_sgpr_count 2
  .amdhsa_user_sgpr_kernarg_segment_ptr 1
  .amdhsa_system_sgpr_workgroup_id_x 1
  .amdhsa_float_denorm_mode_32 3
.end_amdhsa_kernel
""")

DEFAULT = dict(chain=dict(pubpos="early", d1=280, d2=120, nsh=3, g1=60), qkv=dict(midkv=10, midq=16, gate=1))
if __name__ == "__main__":
    P = dict(DEFAULT)
    if len(sys.argv) > 2: P.update(eval(sys.argv[2]))
    out = sys.argv[1] if len(sys.argv) > 1 else "/code/" + NAME + ".s"
    txt = generate(P)
    open(out, "w").write(txt)
    print("wrote", out, len(txt), "bytes", txt.count("\n"), "lines")
```

```python
from asmlib import *
from layout import *
from common import trace
import math, struct
def f32bits(x): return struct.unpack("<I", struct.pack("<f", x))[0]

class Cnt:
    def __init__(self, A, name, mx):
        self.A, self.name, self.mx, self.q = A, name, mx, []
        self.n = 0
    def issue(self, txt):
        self.A(txt); self.n += 1; self.q.append(self.n); return self.n
    def wait(self, tok):
        if tok not in self.q: return
        after = len(self.q) - 1 - self.q.index(tok)
        self.A(f"s_waitcnt {self.name}({min(after, self.mx)})")
        self.q = self.q[self.q.index(tok) + 1:]
    def drain(self):
        self.A(f"s_waitcnt {self.name}(0)"); self.q = []
    def reset(self): self.q = []

def delay(A, cyc):
    n = cyc // 4
    while n > 0:
        k = min(n, 16); A(f"s_nop {k-1}"); n -= k

L_MEM, L_QK, L_PS, L_O, L_W = 0, 8192, 12288, 0, 16384
vL16, vLW, vCQ, vCR, vPS, vAGS, vIDX, T0 = range(8)
vW16 = 8
vCRW = 12
T1, T2, T3 = 17, 18, 19
MEMA = 16
LAMPOS = {0: 0, 4: 1, 1: 2, 2: 3, 3: 4, 5: 5, 6: 6, 7: 7}
def mema(lam): return MEMA + 4 * LAMPOS[lam]
QA, KA_, VA = 48, 56, 64
ST = [72 + 8 * i for i in range(7)]
KXR, VX, SOP = 72, 80, 88
OWN = [("q", 0, 0), ("q", 1, 0), ("k", 0, 0), ("k", 1, 0), ("q", 0, 4), ("q", 1, 4), ("k", 0, 4), ("k", 1, 4),
       ("v", 0, 0), ("v", 1, 0), ("v", 0, 4), ("v", 1, 4)]
NE = 10
ESLOT = [MEMA + 8, MEMA + 16, MEMA + 24] + ST
WO_ORDER = [(T, ko) for T in range(8) for ko in range(2)]
WSLOT = [104, 112, 120, MEMA, SOP, SOP + 8]
NO_REG = 10
LOC = {}
for i, k in enumerate(OWN[:NE]): LOC[k] = ("l", i)
for i, (T, ko) in enumerate(WO_ORDER[NO_REG:]): LOC[("o", T, ko)] = ("l", NE + i)
_r = 504
for (T, ko) in WO_ORDER[:NO_REG]:
    LOC[("o", T, ko)] = ("r", _r); _r -= 8
for m in "qkv":
    for tau in range(2):
        for lam in range(8):
            if (m, tau, lam) not in LOC:
                LOC[(m, tau, lam)] = ("r", _r); _r -= 8
assert _r == 120
sWS = 4
sT = 8
sJ, sW = 16, 17
sHALF = 18
sONE = 14
sStep = 22
sKV = 23
sC = 24
sKM = 25
sTmp = 26
sIn = 40
sAG = 42
sLo, sHi = 44, 45
sCnt = 46
sBox = 38
sPar = 3
sChain, sLayer, sAgr, sFkv, sFkm, sRdy = 60, 61, 62, 63, 64, 65
sFg, sFgS, sG, sFork, sKVd, sMH = 92, 93, 94, 95, 96, 97
sSt = 66
sAcc = 48

def lane_consts(A):
    A(f"""
    v_lshrrev_b32 v{T2}, 6, v0
    v_and_b32 v{T3}, 63, v0
    v_readfirstlane_b32 s{sW}, v{T2}
    v_and_b32 v{T0}, 15, v{T3}
    v_lshrrev_b32 v{T1}, 4, v{T3}
    v_lshlrev_b32 v{vL16}, 4, v{T3}
    """)

def put(A, dst_loc, regidx, src_txt, tmp):
    raise NotImplementedError

def chain_prologue(A):
    n, g = T0, T1
    A(f"""
    s_mov_b32 s{sLo}, 0x05040100
    s_mov_b32 s{sHi}, 0x07060302
    s_mov_b32 s{sHALF}, 0xcccccccc
    s_mov_b32 s{sHALF+1}, 0xcccccccc
    s_mov_b32 s{sC}, {hex(f32bits(128 ** -0.5 * math.log2(math.e)))}
    s_lshl_b32 s{sTmp}, s{sW}, 10
    v_add_u32 v{vW16}, s{sTmp}, v{vL16}
    v_xor_b32 v{vW16+1}, 1024, v{vW16}
    v_xor_b32 v{vW16+2}, 2048, v{vW16}
    v_xor_b32 v{vW16+3}, 3072, v{vW16}
    s_mov_b32 s{sONE}, 0x3f803f80
    s_mov_b32 s{sONE+1}, 0x3f803f80
    s_mul_i32 s{sTmp+1}, s{sW}, 36864
    s_add_u32 s{sTmp+1}, s{sTmp+1}, {L_W}
    s_add_u32 m0, s{sTmp+1}, 32768
    v_add_u32 v{vLW}, s{sTmp+1}, v{vL16}
    v_lshrrev_b32 v20, 2, v{n}
    v_xor_b32 v21, v{g}, v20
    v_lshlrev_b32 v22, 5, v{n}
    v_add_u32 v22, s{sTmp}, v22
    v_lshl_add_u32 v{vCQ}, v21, 3, v22
    v_and_b32 v21, 3, v{n}
    v_xor_b32 v21, v21, v{g}
    v_lshl_add_u32 v22, v{g}, 2, v20
    v_lshlrev_b32 v22, 5, v22
    v_lshl_add_u32 v{vCR}, v21, 3, v22
    v_add_u32 v{vCRW}, s{sTmp}, v{vCR}
    v_xor_b32 v{vCRW+1}, 1024, v{vCRW}
    v_xor_b32 v{vCRW+2}, 2048, v{vCRW}
    v_xor_b32 v{vCRW+3}, 3072, v{vCRW}
    ; partial store offset: consumer (8w + n/4)*8192 + j*256 + (4g + n%4)*16
    v_lshlrev_b32 v21, 13, v20
    v_and_b32 v22, 3, v{n}
    v_lshl_add_u32 v22, v{g}, 2, v22
    v_lshl_add_u32 v21, v22, 4, v21
    s_lshl_b32 s{sTmp+1}, s{sW}, 16
    s_lshl_b32 s{sTmp+2}, s{sJ}, 8
    s_add_u32 s{sTmp+1}, s{sTmp+1}, s{sTmp+2}
    v_add_u32 v{vPS}, s{sTmp+1}, v21
    v_and_b32 v21, 1, v{n}
    v_lshl_add_u32 v21, v{g}, 2, v21
    v_bfe_u32 v22, v{n}, 2, 1
    v_lshl_add_u32 v21, v22, 1, v21
    v_lshlrev_b32 v21, 4, v21
    v_bfe_u32 v22, v{n}, 1, 1
    v_lshl_add_u32 v21, v22, 3, v21
    v_add_u32 v{vAGS}, s{sTmp+2}, v21
    v_cmp_lt_u32 vcc, 7, v{n}
    v_mov_b32 v22, 0x7ff00000
    v_cndmask_b32 v{vAGS}, v{vAGS}, v22, vcc
    v_mov_b32 v21, 0x4444
    v_mov_b32 v22, 0xeeee
    v_cndmask_b32 v{vIDX}, v21, v22, s[{sHALF}:{sHALF+1}]
    """)
    A(f"s_lshl_b32 s{sIn}, s{sChain}, 20\ns_add_u32 s{sIn}, s{sIn}, {INBOX}\ns_add_u32 s{sIn+1}, s{sIn}, 32768")
    A(f"s_lshl_b32 s{sAgr}, s{sChain}, 16\ns_add_u32 s{sAgr}, s{sAgr}, {AGR}")
    A("v_mov_b32 v24, -1\nv_mov_b32 v25, -1\nv_mov_b32 v26, -1\nv_mov_b32 v27, -1")
    for st in range(2):
        A(f"buffer_store_dwordx4 v[24:27], v{vPS}, s[{sWS}:{sWS+3}], s{sIn+st} offen sc1")
    for slot in range(1, 3):
        A(f"s_add_u32 s{sTmp+1}, s{sAgr}, {slot * 8192}\nbuffer_store_dwordx2 v[24:25], v{vAGS}, s[{sWS}:{sWS+3}], s{sTmp+1} offen sc1")
    A(f"""
    s_load_dwordx2 s[{sT}:{sT+1}], s[0:1], {KA['mem0']}
    s_mov_b32 s{sT+2}, 8192
    s_mov_b32 s{sT+3}, 0x20000
    v_and_b32 v21, 1, v{n}
    v_lshl_add_u32 v21, v{g}, 1, v21
    v_lshlrev_b32 v21, 10, v21
    v_bfe_u32 v22, v{n}, 1, 2
    v_lshl_add_u32 v21, v22, 1, v21
    s_lshr_b32 s{sTmp+1}, s{sJ}, 3
    s_lshl_b32 s{sTmp+1}, s{sTmp+1}, 8
    s_and_b32 s{sTmp+2}, s{sJ}, 3
    s_lshl_b32 s{sTmp+2}, s{sTmp+2}, 6
    s_add_u32 s{sTmp+1}, s{sTmp+1}, s{sTmp+2}
    s_and_b32 s{sTmp+2}, s{sJ}, 4
    s_lshl_b32 s{sTmp+2}, s{sTmp+2}, 1
    s_add_u32 s{sTmp+1}, s{sTmp+1}, s{sTmp+2}
    s_waitcnt lgkmcnt(0)
    buffer_load_ushort v28, v21, s[{sT}:{sT+3}], s{sTmp+1} offen
    buffer_load_ushort v29, v21, s[{sT}:{sT+3}], s{sTmp+1} offen offset:16
    buffer_load_ushort v30, v21, s[{sT}:{sT+3}], s{sTmp+1} offen offset:32
    buffer_load_ushort v31, v21, s[{sT}:{sT+3}], s{sTmp+1} offen offset:48
    s_waitcnt vmcnt(0)
    v_lshl_or_b32 v28, v29, 16, v28
    v_lshl_or_b32 v29, v31, 16, v30
    v_min_u32 v28, -2, v28
    v_min_u32 v29, -2, v29
    buffer_store_dwordx2 v[28:29], v{vAGS}, s[{sWS}:{sWS+3}], s{sAgr} offen sc1
    s_waitcnt vmcnt(0)
    s_barrier
    """)

def emit_quad(A, loc, u, perms, tmp):
    kind, x = loc
    for rho, (s1, s0, sel) in enumerate(perms):
        if kind == "r" and x < 256:
            A(f"v_perm_b32 v{x+u*4+rho}, v{s1}, v{s0}, s{sel}")
        else:
            A(f"v_perm_b32 v{tmp+rho}, v{s1}, v{s0}, s{sel}")
    if kind == "r" and x >= 256:
        for rho in range(4): A(f"v_accvgpr_write_b32 a{x-256+u*4+rho}, v{tmp+rho}")
    if kind == "l":
        A(f"ds_write_b128 v{vLW}, v[{tmp}:{tmp+3}] offset:{x*2048+u*1024}\ns_waitcnt lgkmcnt(0)")

def chain_load_weights(A):
    n, g = T0, T1
    A(f"""
    s_load_dwordx2 s[{sT}:{sT+1}], s[0:1], {KA['wo']}
    s_mov_b32 s{sT+2}, {4*MB}
    s_mov_b32 s{sT+3}, 0x20000
    v_and_b32 v20, 1, v{g}
    v_lshlrev_b32 v20, 5, v20
    v_lshrrev_b32 v21, 1, v{g}
    v_lshl_add_u32 v20, v21, 3, v20        ; 32*(g%2) + 8*(g/2)
    v_lshlrev_b32 v20, 10, v20
    v_lshl_add_u32 v20, v{n}, 4, v20
    s_lshl_b32 s{sTmp}, s{sJ}, 17
    s_lshl_b32 s{sTmp+1}, s{sW}, 8
    s_add_u32 s{sTmp}, s{sTmp}, s{sTmp+1}
    v_lshlrev_b32 v22, 5, v21
    v_and_b32 v21, 1, v{g}
    v_add_u32 v21, v21, v22
    v_lshlrev_b32 v21, 13, v21
    v_lshl_add_u32 v21, v{n}, 2, v21
    s_waitcnt lgkmcnt(0)
    """)
    vm = Cnt(A, "vmcnt", 63)
    toks = []
    for ko in range(2):
        for u in range(2):
            for sg in range(8):
                e = 64 * ko + 16 * u + 2 * (2 * (sg // 4) + sg % 2) + (sg % 4) // 2
                r = 128 + ((ko * 2 + u) * 8 + sg) * 4
                A(f"s_add_u32 s{sTmp+1}, s{sTmp}, {e * 1024}")
                tk = vm.issue(f"buffer_load_dwordx4 v[{r}:{r+3}], v20, s[{sT}:{sT+3}], s{sTmp+1} offen")
            toks.append(tk)
    sF = sTmp + 4
    A(f"s_lshl_b32 s{sTmp}, s{sJ}, 8\ns_lshl_b32 s{sTmp+1}, s{sW}, 6\ns_add_u32 s{sTmp}, s{sTmp}, s{sTmp+1}")
    for x in range(4):
        A(f"""
        s_xor_b32 s{sTmp+1}, s{sW}, {x}
        s_lshr_b32 s{sTmp+2}, s{sTmp+1}, 1
        s_lshl_b32 s{sTmp+2}, s{sTmp+2}, 20
        s_and_b32 s{sTmp+1}, s{sTmp+1}, 1
        s_lshl_b32 s{sTmp+1}, s{sTmp+1}, 15
        s_add_u32 s{sF+x}, s{sTmp+1}, s{sTmp+2}
        s_add_u32 s{sF+x}, s{sF+x}, s{sTmp}
        """)
    POOL, NP = 24, 6
    jobs = [(m, lam) for m in "qkv" for lam in range(8)]
    jt = {}
    def issue(i):
        m, lam = jobs[i]
        if lam == 0:
            A(f"s_load_dwordx2 s[{sT}:{sT+1}], s[0:1], {KA['w'+m]}\ns_waitcnt lgkmcnt(0)")
        for u in range(2):
            for sg in range(8):
                r = POOL + (i % NP) * 16 + u * 8 + sg
                d = 256 * (lam // 4) + 64 * u + 8 * (2 * (sg // 4) + sg % 2) + 2 * ((sg % 4) // 2)
                A(f"s_add_u32 s{sTmp+1}, s{sF + lam % 4}, {d * 8192}")
                jt[i] = vm.issue(f"buffer_load_dword v{r}, v21, s[{sT}:{sT+3}], s{sTmp+1} offen")
    def consume(i):
        m, lam = jobs[i]
        vm.wait(jt[i])
        for u in range(2):
            for tau in range(2):
                l0 = POOL + (i % NP) * 16 + u * 8
                emit_quad(A, LOC[(m, tau, lam)], u, [(l0 + 2 * rho + 1, l0 + 2 * rho, sHi if tau else sLo) for rho in range(4)], 120 + 4 * tau)
    issue(0)
    for ko in range(2):
        for u in range(2):
            vm.wait(toks[ko * 2 + u])
            if ko * 2 + u in (1, 3): issue(1 + (ko * 2 + u) // 2)
            for T in range(8):
                assert LOC[("o", T, ko)][0] == "l" or LOC[("o", T, ko)][1] >= 256
                b = 128 + (ko * 2 + u) * 32 + T // 2
                emit_quad(A, LOC[("o", T, ko)], u, [(b + 8 * rho + 4, b + 8 * rho, sHi if T % 2 else sLo) for rho in range(4)], 120 + 4 * (T % 2))
    AHEAD = 3
    for i in range(3, len(jobs) + AHEAD):
        if i < len(jobs): issue(i)
        consume(i - AHEAD)

def smf(acc, a, b, abid=False):
    return f"v_smfmac_f32_16x16x64_bf16 {v(acc,4)}, {v(a,4)}, {reg(b,8)}, v{vIDX}" + (" abid:1" if abid else "")
def mf(acc, a, b, c=None):
    return f"v_mfma_f32_16x16x32_bf16 {v(acc,4)}, {v(a,4)}, {v(b,4)}, {v(c,4) if c is not None else '0'}"

def xlane(A, op, r, t):
    A(f"{op}_dpp v{r}, v{r}, v{r} quad_perm:[2,3,0,1] row_mask:0xf bank_mask:0xf")
    A(f"v_mov_b32 v{t}, v{r}\nv_permlane16_swap_b32 v{r}, v{t}\n{op} v{r}, v{r}, v{t}")
    A(f"v_mov_b32 v{t}, v{r}\nv_permlane32_swap_b32 v{r}, v{t}\n{op} v{r}, v{r}, v{t}")

NOP16 = [""]
def mf16(acc, a, b, c):
    return NOP16[0] + f"v_mfma_f32_16x16x16_bf16 {v(acc,4)}, {v(a,2)}, {v(b,2)}, {v(c,4)}"
def z64(r): return f"v_mov_b64 v[{r}:{r+1}], 0"

def chain_loop(A, P):
    STF = P.get("st", "")
    stamps = P.get("stamps", False)
    NOP16[0] = P.get("nop16", "")
    W = f"s[{sWS}:{sWS+3}]"
    H = f"s[{sHALF}:{sHALF+1}]"
    LOOP, RETRY, GOT, HOP2, FB, FBR, FAIL = [A.label(x) for x in ("c_loop", "c_retry", "c_got", "c_hop2", "c_fb", "c_fbr", "c_fail")]
    def snap(i):
        if P.get("snap"): A(f"s_memrealtime s[{sSt+2*i}:{sSt+2*i+1}]")
    LAST = A.label("c_last")
    acc = dict(q=QA, k=KA_, v=VA)
    def M(m, tau, lam):
        kind, x = LOC[(m, tau, lam)]
        A(smf(acc[m] + 4 * tau, mema(lam), x if kind == "r" else ESLOT[x]))
    ld = Cnt(A, "lgkmcnt", 15); vm = Cnt(A, "vmcnt", 63)
    def stage(lo, hi):
        for i in range(lo, hi):
            A(f"ds_read_b128 v[{ESLOT[i]}:{ESLOT[i]+3}], v{vLW} offset:{i*2048}")
            A(f"ds_read_b128 v[{ESLOT[i]+4}:{ESLOT[i]+7}], v{vLW} offset:{i*2048+1024}")
    wo_tok = {}
    def wof(i, h):
        r = WSLOT[i] + 4 * h
        wo_tok[i] = ld.issue(f"ds_read_b128 v[{r}:{r+3}], v{vLW} offset:{(NE+i)*2048+h*1024}")
    A(f"""
    s_mov_b32 s{sStep}, 0
    s_mov_b32 s{sAG}, s{sAgr}
    s_add_u32 s{sAG+1}, s{sAgr}, 4096
    s_mov_b32 s{sCnt}, 0
    s_mov_b32 s{sCnt+1}, 0
    s_lshl_b32 s{sTmp}, s{sJ}, 2
    s_add_u32 s{sTmp}, s{sTmp}, s{sW}
    s_lshl_b32 s{sTmp+1}, s{sChain}, 13
    s_add_u32 s{sTmp+1}, s{sTmp+1}, s{sTmp}
    s_lshl_b32 s{sKM}, s{sTmp+1}, 11
    s_add_u32 s{sKM}, s{sKM}, {KM}
    s_lshl_b32 s{sFkm}, s{sChain}, 14
    s_add_u32 s{sFkm}, s{sFkm}, s{sTmp}
    s_lshl_b32 s{sFkm}, s{sFkm}, 2
    s_add_u32 s{sFkm}, s{sFkm}, {F_KM - 512}
    s_lshl_b32 s{sTmp+1}, s{sLayer}, 13
    s_add_u32 s{sTmp+1}, s{sTmp+1}, s{sTmp}
    s_lshl_b32 s{sKV}, s{sTmp+1}, 12
    s_add_u32 s{sKV}, s{sKV}, {KV}
    s_lshl_b32 s{sFkv}, s{sTmp+1}, 2
    s_add_u32 s{sFkv}, s{sFkv}, {F_KV}
    """)
    A(f"""
    s_mov_b32 s{sMH}, {WS_BYTES}
    s_cmp_eq_u32 s{sChain}, 2
    s_cselect_b32 s{sFg}, 32768, 0
    s_cselect_b32 s{sFgS}, 2, 1
    s_add_u32 s{sFg}, s{sFg}, s{sFkv}
    s_lshl_b32 s{sTmp}, s{sW}, 2
    s_add_u32 s{sTmp}, s{sTmp}, s{sChain}
    s_cmp_eq_u32 s{sTmp}, 1
    s_cselect_b32 s{sMH}, {MEMH}, s{sMH}
    s_mov_b32 s{sFork}, 0
    s_mov_b32 s{sKVd}, s{sKV}
    """)
    FL = P.get("flags", 1)
    def kv_wait():
        L0, L, LX = A.label("c_gw"), A.label("c_kvw"), A.label("c_kvx")
        def poll(lab, off, dst):
            A(f"{lab}:\nbuffer_load_dword v{T0}, off, {W}, s{off} sc1")
            A(f"s_add_u32 s{sTmp+3}, s{sTmp+3}, 1\ns_cmp_gt_u32 s{sTmp+3}, {SPIN_MAX}\ns_cbranch_scc1 {FAIL}")
            A(f"s_waitcnt vmcnt(0)\nv_readfirstlane_b32 s{dst}, v{T0}\ns_cmp_eq_u32 s{dst}, 0\ns_cbranch_scc1 {lab}")
        A(f"s_mov_b32 s{sTmp+3}, 0")
        poll(L0, sFg, sG)
        A(f"s_cmp_lg_u32 s{sG}, s{sFgS}\ns_cselect_b32 s{sFork}, 1, 0\ns_lshl_b32 s{sTmp+4}, s{sFork}, 25\ns_add_u32 s{sKVd}, s{sKV}, s{sTmp+4}")
        A(f"s_cmp_lg_u32 s{sFork}, 0\ns_cbranch_scc1 {LX}")
        poll(L, sFkv, sRdy)
        A(f"{LX}:")
    trace(A, 2, MEMA)
    if FL: kv_wait()
    trace(A, 3, MEMA)
    if stamps:
        for i in range(12): A(f"s_mov_b32 s{sAcc+i}, 0")
    def kv_dma(p):
        vm.issue(f"buffer_load_dwordx4 v{vL16}, {W}, s{sKVd} offen offset:{p*1024} {P.get('kvf','')} lds")
    for p in range(4): kv_dma(p)
    A(f"s_add_u32 s{sKV}, s{sKV}, {32*16384}\ns_add_u32 s{sFkv}, s{sFkv}, 512\ns_mov_b32 s{sRdy}, 0")
    A(f"s_add_u32 s{sFg}, s{sFg}, 512\ns_mov_b32 s{sG}, 0\ns_mov_b32 s{sFork}, 0\ns_mov_b32 s{sKVd}, s{sKV}")
    vm.reset()
    stage(3, 10)
    for r in range(QA, QA + 24, 2): A(z64(r))
    A(f"s_lshl_b32 s{sBox}, s{sJ}, 13\ns_add_u32 s{sBox}, s{sBox}, s{sIn}\ns_add_u32 s{sBox+1}, s{sBox}, 4096")
    stage(0, 3)
    A("s_waitcnt lgkmcnt(0)")
    A(f"{LOOP}:")
    m0, m4 = mema(0), mema(4)
    def ag_loads():
        A(f"buffer_load_dwordx4 v[{m0}:{m0+3}], v{vW16}, {W}, s{sAG} offen sc1")
        A(f"buffer_load_dwordx4 v[{m4}:{m4+3}], v{vW16}, {W}, s{sAG+1} offen sc1")
    NSH = P.get("nsh", 2)
    W0A, W0B = A.label("c_w0a"), A.label("c_w0b")
    ag_loads()
    snap(0)
    if stamps and P.get("ref", 0) == 0: A(f"s_memtime s[{sSt}:{sSt+1}]")
    A(f"s_mov_b32 s{sTmp+2}, 0")
    A(f"s_cmp_eq_u32 s{sW}, 0\ns_cbranch_scc1 {W0A}")
    for k in range(1, NSH):
        delay(A, P.get("g2", 100)); ag_loads()
    A(f"{W0B}:")
    npo = 2 * (NSH - 2)
    A("s_waitcnt lgkmcnt(0)")
    A(f"s_waitcnt vmcnt({3+npo})")
    snap(1)
    A(f"v_max3_u32 v{T0}, v{m0}, v{m0+1}, v{m0+2}")
    A(f"v_max_u32 v{T0}, v{T0}, v{m0+3}")
    A(f"ds_write_b128 v{vW16}, v[{m0}:{m0+3}] offset:{L_MEM}")
    M(*OWN[0])
    A(f"s_waitcnt vmcnt({2+npo})")
    A(f"{GOT}:")
    A(f"v_max3_u32 v{T0}, v{m4}, v{m4+1}, v{T0}")
    A(f"v_max3_u32 v{T0}, v{m4+2}, v{m4+3}, v{T0}")
    A(f"ds_write_b128 v{vW16}, v[{m4}:{m4+3}] offset:{L_MEM+4096}")
    M(*OWN[1])
    A(f"v_cmp_eq_u32 vcc, -1, v{T0}")
    M(*OWN[2])
    A(f"s_cbranch_vccnz {RETRY}")
    NB = P.get("nb", 7)
    KVW, KVR = A.label("c_kvs"), A.label("c_kvr")
    for i in range(3, NB):
        M(*OWN[i])
        if i == 3 and FL: A(f"s_mul_i32 s{sRdy}, s{sRdy}, s{sG}\ns_cmp_lg_u32 s{sRdy}, s{sFgS}\ns_cbranch_scc1 {KVW}\n{KVR}:")
        if i == 4 and FL: A(f"v_mov_b32 v{T0}, 1")
    A("s_waitcnt lgkmcnt(0)\ns_barrier")
    if stamps and P.get("ref", 0) == 1: A(f"s_memtime s[{sSt}:{sSt+1}]")
    snap(2)
    order = [1, 2, 3, 5, 6, 7]
    tm = {}
    own = OWN[NB:]
    NA = P.get("na", 4)
    def rdm(lam): tm[lam] = ld.issue(f"ds_read_b128 v[{mema(lam)}:{mema(lam)+3}], v{vW16+lam%4} offset:{L_MEM+(lam//4)*4096}")
    rdm(order[0])
    for i in range(NA):
        rdm(order[1 + i]); M(*own.pop(0))
    assert all(LOC[o][0] == "r" for o in own)
    def half_sum(a): return [f"v_add_f32 v{a}, v{a}, v{a+2}", f"v_add_f32 v{a+1}, v{a+1}, v{a+3}"]
    def qpost(a): return half_sum(a) + [f"v_cvt_pk_bf16_f32 v{a+2}, v{a}, v{a+1}", f"v_cvt_pk_bf16_f32 v{a+3}, v{a}, v{a+1}"]
    def kpost(a): return half_sum(a) + [f"v_cvt_pk_bf16_f32 v{a+2}, v{a}, v{a+1}"]
    tkv = {}
    def rdkv(p): tkv[p] = ld.issue(f"ds_read_b128 v[{KXR+4*p}:{KXR+4*p+3}], v{vLW} offset:{32768+p*1024}")
    def dma(p):
        ld.wait(tkv[p]); kv_dma(p)
    f = [(lambda l=l: rdm(l)) for l in order[1 + NA:]] + [lambda: rdkv(0), lambda: rdkv(1), lambda: rdkv(2), lambda: rdkv(3), lambda: wof(0, 0), lambda: wof(0, 1)]
    if len(order[1 + NA:]): f.pop(0)()
    for i, lam in enumerate(order):
        ld.wait(tm[lam]); M("q", 0, lam); f.pop(0)()
    qp = qpost(QA)
    M("q", 1, order[0]); dma(0)
    if FL: A(f"s_mov_b64 exec, 1\nbuffer_store_dword v{T0}, off, {W}, s{sFkm} sc1\ns_mov_b64 exec, -1")
    M("q", 1, order[1])
    if f: f.pop(0)()
    ld.wait(tkv[3])
    tmh = ld.issue(f"ds_read_b64 v[{SOP+12}:{SOP+13}], v{vAGS} offset:{L_MEM}")
    for i in range(2, 6):
        M("q", 1, order[i]); A(qp.pop(0))
    M("k", 0, order[0]); ld.issue(f"ds_write_b64 v{vCQ}, v[{QA+2}:{QA+3}] offset:{L_QK}")
    M("k", 0, order[1]); ld.issue(f"ds_read_b64_tr_b16 v[{SOP}:{SOP+1}], v{vCRW} offset:{L_QK}"); A("s_nop 0")
    M("k", 0, order[2])
    for x in qpost(QA + 4): A(x)
    ld.issue(f"ds_write_b64 v{vCQ}, v[{QA+6}:{QA+7}] offset:{L_QK+512}")
    M("k", 0, order[3]); tq = ld.issue(f"ds_read_b64_tr_b16 v[{SOP+2}:{SOP+3}], v{vCRW} offset:{L_QK+512}")
    M("k", 0, order[4]); kv_dma(1)
    M("k", 0, order[5]); wof(1, 0)
    MH = SOP + 12
    M("k", 1, order[0]); kv_dma(2)
    M("k", 1, order[1]); ld.wait(tq)
    kp = kpost(KA_)
    A(mf(SOP + 4, KXR, SOP)); kv_dma(3)
    A(mf(SOP + 8, KXR + 4, SOP)); A(kp.pop(0)); A(kp.pop(0))
    M("k", 1, order[2]); A(kp.pop(0))
    M("k", 1, order[3]); ld.issue(f"ds_write_b32 v{vCQ}, v{KA_+2} offset:{L_QK}")
    X = QA
    sel = [f"v_cndmask_b32 v{X+i}, v{SOP+4+i}, v{SOP+8+i}, {H}" for i in range(4)]
    M("k", 1, order[4]); A("s_nop 0"); A(sel[0])
    M("k", 1, order[5]); A(sel[1]); A(sel[2]); A(sel[3])
    Vq = own + [("v", 0, lam) for lam in order] + [("v", 1, lam) for lam in order]
    def vq(n=1):
        for _ in range(n): M(*Vq.pop(0))
    PX, PM = KXR, KXR + 4
    ld.issue(f"ds_write_b128 v{vW16}, v[{X}:{X+3}] offset:{L_PS}")
    vq(); A("s_nop 1")
    for x in kpost(KA_ + 4): A(x)
    tk = ld.issue(f"ds_write_b32 v{vCQ}, v{KA_+6} offset:{L_QK+512}")
    vq(); A(f"v_mov_b32 v{PM}, 0")
    A(f"buffer_store_dwordx2 v[{SOP+12}:{SOP+13}], v{vAGS}, {W}, s{sMH} offen sc1")
    vq(); A(f"v_mov_b32 v{PM+3}, 0"); A(f"s_waitcnt vmcnt({6 if FL else 5})")
    vq(); wof(1, 1)
    for _ in range(P.get("vq1", 1)): vq()
    ld.wait(tk)
    A("s_barrier")
    ts = []; tp = []
    def rd_s(c, h):
        t = ld.issue(f"ds_read_b64_tr_b16 v[{SOP+4*c+2*h}:{SOP+4*c+2*h+1}], v{vCRW+c} offset:{L_QK+h*512}")
        if h: ts.append(t)
    def rd_p(x): tp.append(ld.issue(f"ds_read_b128 v[{X+4*x}:{X+4*x+3}], v{vW16+x} offset:{L_PS}"))
    rd_p(1); rd_p(2); vq(); rd_p(3)
    for c in range(4):
        vq(); rd_s(c, 0); rd_s(c, 1)
    vp0 = half_sum(VA) + [f"v_cvt_pk_bf16_f32 v{VA+2}, v{VA}, v{VA+1}"]
    vp1 = half_sum(VA + 4) + [f"v_cvt_pk_bf16_f32 v{VA+3}, v{VA+4}, v{VA+5}"]
    SM, ONES = MEMA, MEMA + 4
    E = MEMA + 8; CK = T0
    adds = [f"v_add_f32 v{X+i}, v{X+i}, v{X+4+i}" for i in range(4)] + [f"v_add_f32 v{X+8+i}, v{X+8+i}, v{X+12+i}" for i in range(4)] + \
           [f"v_add_f32 v{X+i}, v{X+i}, v{X+8+i}" for i in range(4)]
    ld.wait(tp[2])
    while Vq:
        vq(); A(adds.pop(0))
    ld.wait(ts[1])
    A(mf(SM, SOP, SOP)); A(adds.pop(0)); A(adds.pop(0))
    A(mf(SM, SOP + 4, SOP + 4, SM)); A(adds.pop(0)); ld.wait(ts[3]); A(adds.pop(0))
    A(mf(SM, SOP + 8, SOP + 8, SM)); A(adds.pop(0)); A(adds.pop(0))
    A(mf(SM, SOP + 12, SOP + 12, SM))
    while adds: A(adds.pop(0))
    PVA, ZA = X + 4, X + 12
    PUB = P.get("pub", "sc1")
    def pub(txt):
        if PUB != "none": vm.issue(txt + " " + PUB)
    for i in range(4): A(f"v_exp_f32 v{E+i}, v{X+i}")
    A(f"v_mov_b64 v[{ONES}:{ONES+1}], s[{sONE}:{sONE+1}]")
    A(f"v_cvt_pk_bf16_f32 v{E}, v{E}, v{E+1}\nv_cvt_pk_bf16_f32 v{E+1}, v{E+2}, v{E+3}")
    def selp():
        A(f"v_cndmask_b32 v{PX}, v{E}, 0, {H}\nv_cndmask_b32 v{PX+1}, v{E+1}, 0, {H}")
        A(f"v_cndmask_b32 v{PX+2}, 0, v{E}, {H}\nv_cndmask_b32 v{PX+3}, 0, v{E+1}, {H}")
    selp()
    A(f"v_mul_f32 v{SM}, s{sC}, v{SM}\nv_mul_f32 v{SM+1}, s{sC}, v{SM+1}")
    A(mf(PVA, PX, VX))
    if P.get("pubpos") == "early": pub(f"buffer_store_dwordx4 v[{SOP}:{SOP+3}], v{vL16}, {W}, s{sKM} offen")
    A(f"v_exp_f32 v{E+4}, v{SM}")
    A(f"v_mov_b64 v[{ONES+2}:{ONES+3}], s[{sONE}:{sONE+1}]")
    A(mf(PVA + 4, PX, VX + 4))
    A(f"v_exp_f32 v{E+5}, v{SM+1}")
    A(mf(ZA, PX, ONES))
    for x in vp0[:2]: A(x)
    A(f"v_cvt_pk_bf16_f32 v{E+4}, v{E+4}, v{E+5}")
    A(vp0[2])
    A(f"v_cndmask_b32 v{PM+1}, 0, v{E+4}, {H}\nv_cndmask_b32 v{PM+2}, 0, v{E+4}, {H}")
    for x in vp1: A(x)
    A(mf16(ZA, PM, ONES, ZA))
    A(f"v_max3_f32 v{CK}, |v{X}|, |v{X+1}|, |v{X+2}|")
    A(f"v_max_f32 v{E+2}, |v{SM}|, |v{SM+1}|")
    A(mf16(PVA, PM + 2, VA + 2, PVA))
    A(f"v_cndmask_b32 v{E+2}, 0, v{E+2}, {H}")
    A(f"v_max3_f32 v{CK}, |v{X+3}|, v{E+2}, v{CK}")
    A(mf16(PVA + 4, PM, VA + 2, PVA + 4))
    A(f"v_cmp_lt_f32 vcc, 0x42700000, v{CK}")
    WA = [MEMA + 8 + 4 * i for i in range(6)][::-1] + [VX, VX + 4]
    zl = [r for a in WA for r in (a, a + 2)]
    A(z64(zl.pop(0)))
    for x in half_sum(ZA): A(x)
    A(f"s_cbranch_vccnz {FB}")
    A(f"{FBR}:")
    A(f"v_rcp_f32 v{ZA}, v{ZA}\nv_rcp_f32 v{ZA+1}, v{ZA+1}")
    A(f"v_pk_add_f32 v[{PVA}:{PVA+1}], v[{PVA}:{PVA+1}], v[{PVA+2}:{PVA+3}]")
    A(f"v_pk_add_f32 v[{PVA+4}:{PVA+5}], v[{PVA+4}:{PVA+5}], v[{PVA+6}:{PVA+7}]")
    A(f"v_pk_mul_f32 v[{PVA}:{PVA+1}], v[{PVA}:{PVA+1}], v[{ZA}:{ZA+1}]")
    A(f"v_pk_mul_f32 v[{PVA+4}:{PVA+5}], v[{PVA+4}:{PVA+5}], v[{ZA}:{ZA+1}]")
    A(f"v_cvt_pk_bf16_f32 v{PVA+2}, v{PVA}, v{PVA+1}")
    A(f"v_cvt_pk_bf16_f32 v{PVA+3}, v{PVA+4}, v{PVA+5}")
    two = ld.issue(f"ds_write_b64 v{vCQ}, v[{PVA+2}:{PVA+3}] offset:{L_O}")
    for _ in range(P.get("z1", 12)): A(z64(zl.pop(0)))
    A(f"v_lshrrev_b32 v{T0}, 1, v{vL16}")
    ld.wait(two)
    A("s_barrier")
    OOP = KXR
    to = [ld.issue(f"ds_read_b64_tr_b16 v[{OOP+2*i}:{OOP+2*i+1}], v{vCR} offset:{L_O+i*1024}") for i in range(4)]
    pubs = [f"buffer_store_dwordx4 v[{SOP}:{SOP+3}], v{vL16}, {W}, s{sKM} offen",
            f"buffer_store_dwordx2 v[{VA+2}:{VA+3}], v{T0}, {W}, s{sKM} offen offset:1024"]
    if P.get("pubpos") != "early": pub(pubs[0])
    OUT = QA
    def post(T):
        a = WA[T]
        return half_sum(a) + [f"v_cvt_pk_bf16_f32 v{OUT+T}, v{a}, v{a+1}"] + ([f"v_and_or_b32 v{OUT+T}, v{OUT+T}, -2, s{sPar}"] if T % 4 == 0 else [])
    pend = [z64(r) for r in zl]
    fq = [(2, 0), (2, 1), (3, 0), (3, 1), None, (4, 0), None, (4, 1), None, (5, 0), None, (5, 1)]
    sal = [f"s_and_b32 s{sPar}, s{sStep}, 1",
           f"s_add_u32 s{sStep}, s{sStep}, 1", f"s_and_b32 s{sAG}, s{sStep}, 3", f"s_lshl_b32 s{sAG}, s{sAG}, 13"]
    done_st0 = False
    for i, (T, ko) in enumerate(WO_ORDER):
        kind, x = LOC[("o", T, ko)]
        if i < 2: ld.wait(to[2 * i + 1])
        if kind == "l": ld.wait(wo_tok[x - NE])
        A(smf(WA[T], OOP + 4 * ko, x if kind == "r" else WSLOT[x - NE]))
        if i >= 3 and i % 2 == 1: pend += post((i - 3) // 2)
        q = fq.pop(0) if fq else None
        if q:
            wof(*q)
            if sal: A(sal.pop(0))
            if sal: A(sal.pop(0))
        else:
            n = 0
            while pend and n < 3: A(pend.pop(0)); n += 1
        if i == 0:
            pub(pubs[1])
        if i == 1: A(f"s_cmp_eq_u32 s{sStep}, {NSEG}\ns_cbranch_scc1 {LAST}")
        if not done_st0 and i >= 9 and not any(f"v{OUT+3}," in p for p in pend):
            vm.issue(f"buffer_store_dwordx4 v[{OUT}:{OUT+3}], v{vPS}, {W}, s{sIn} offen {STF}"); done_st0 = True
    for x in pend: A(x)
    assert done_st0
    RA, SEL = VA, VA + 4
    a = WA[7]
    A(f"v_pk_add_f32 v[{a}:{a+1}], v[{a}:{a+1}], v[{a+2}:{a+3}]\nv_cvt_pk_bf16_f32 v{OUT+7}, v{a}, v{a+1}")
    vm.issue(f"buffer_store_dwordx4 v[{OUT+4}:{OUT+7}], v{vPS}, {W}, s{sIn+1} offen {STF}")
    snap(3)
    A(f"""
    s_add_u32 s{sAG}, s{sAG}, s{sAgr}
    s_add_u32 s{sAG+1}, s{sAG}, 4096
    s_add_u32 s{sKV}, s{sKV}, {0 if P.get("samekv") else 32*16384}
    s_add_u32 s{sKM}, s{sKM}, {0 if P.get("samekm") else 32*8192}
    s_add_u32 s{sFkv}, s{sFkv}, 512
    s_add_u32 s{sFkm}, s{sFkm}, 512
    """)
    A(f"s_add_u32 s{sFg}, s{sFg}, 512\ns_mov_b32 s{sKVd}, s{sKV}\ns_add_u32 s{sMH}, s{sMH}, 8192")
    if FL: A(f"s_buffer_load_dword s{sRdy}, {W}, s{sFkv}\ns_buffer_load_dword s{sG}, {W}, s{sFg}")
    for r in range(QA + 8, QA + 16, 2): A(z64(r))
    for r in range(QA, QA + 8, 2): A(z64(r))
    SETS = [MEMA, ST[0]]
    def inbox_load(b, it):
        r = SETS[b] + 4 * it
        A(f"buffer_load_dwordx4 v[{r}:{r+3}], v{vL16}, {W}, s{sBox + it // 4} offen offset:{(it % 4) * 1024} sc1")
    OTH, P1R = A.label("c_oth"), A.label("c_p1r")
    A(f"s_cmp_lg_u32 s{sW}, 0\ns_cbranch_scc1 {OTH}")
    A(f"s_mov_b32 s{sTmp+2}, 0\ns_add_u32 s{sCnt}, s{sCnt}, 1")
    PZ = ST[6]
    A(f"v_mov_b64 v[{PZ}:{PZ+1}], -1\ns_xor_b32 s{sTmp+8}, s{sAG}, {2 << 13}")
    A(f"buffer_store_dwordx2 v[{PZ}:{PZ+1}], v{vAGS}, {W}, s{sTmp+8} offen {STF}")
    A(f"s_mov_b32 vcc_lo, 0xaaaaaaaa\ns_mov_b32 vcc_hi, 0xaaaaaaaa\nv_mov_b32 v{T0}, 0x3f80\nv_cndmask_b32 v{T0}, v{T0}, 1.0, vcc")
    for r in range(4):
        A(f"s_mov_b32 vcc_lo, {hex(0x00030003 << (2*r))}\ns_mov_b32 vcc_hi, {hex(0x00030003 << (2*r))}\nv_cndmask_b32 v{SEL+r}, 0, v{T0}, vcc")
    delay(A, P.get("d1", 0))
    snap(4)
    for it in range(8): inbox_load(0, it)
    snap(5)
    delay(A, P.get("g1", 60))
    for it in range(8): inbox_load(1, it)
    def rpass(b, fail, first=False):
        for it in range(8):
            r = SETS[b] + 4 * it
            A(f"s_waitcnt vmcnt({15-it})")
            if first and it == 0: snap(6)
            if first and it == 7: snap(7)
            A(mf(RA, r, SEL, RA if it else None))
            if it == 0: A(f"v_xor_b32 v{T0}, s{sPar}, v{r}")
            else: A(f"v_bitop3_b32 v{T0}, v{T0}, v{r}, s{sPar} bitop3:0xf6")
        A(f"v_and_b32 v{T0}, 1, v{T0}\nv_cmp_ne_u32 vcc, 0, v{T0}")
        A(f"v_mov_b32 v{T0}, 0\nv_mov_b32 v{T0}, 0")
        A(f"s_cbranch_vccnz {fail}")
    rpass(0, P1R, True)
    PUBL = A.label("c_publ")
    A(f"{PUBL}:")
    A(f"v_cvt_pk_bf16_f32 v{RA}, v{RA}, v{RA+1}\nv_cvt_pk_bf16_f32 v{RA+1}, v{RA+2}, v{RA+3}")
    A(f"v_min_u32 v{RA}, -2, v{RA}\nv_min_u32 v{RA+1}, -2, v{RA+1}")
    A(f"buffer_store_dwordx2 v[{RA}:{RA+1}], v{vAGS}, {W}, s{sAG} offen {STF}")
    A(f"{HOP2}:")
    snap(8)
    A("s_barrier")
    if P.get("snap"):
        SN = A.label("c_sn")
        A(f"s_cmp_lg_u32 s{sStep}, {P['snap']}\ns_cbranch_scc1 {SN}\ns_waitcnt lgkmcnt(0)")
        for i in range(9): A(f"s_mov_b32 s{sAcc+1+i}, s{sSt+2*i}")
        A(f"{SN}:")
    if stamps:
        A("s_waitcnt lgkmcnt(0)")
        A(f"s_cmp_gt_u32 s{sStep}, 16")
        i = 11
        A(f"s_cselect_b32 s{sTmp}, s{sSt+2*i}, s{sSt}\ns_sub_u32 s{sTmp}, s{sTmp}, s{sSt}\ns_add_u32 s{sAcc+i}, s{sAcc+i}, s{sTmp}")
    if P.get("steady", 1):
        SK = A.label("c_sk")
        A(f"s_cmp_lg_u32 s{sStep}, 16\ns_cbranch_scc1 {SK}\ns_memtime s[20:21]\ns_mov_b32 s{sCnt}, 0\ns_mov_b32 s{sCnt+1}, 0\n{SK}:")
    delay(A, P.get("d2", 0))
    A(f"s_cmp_eq_u32 s{sFork}, 0\ns_cbranch_scc1 {LOOP}")
    FK = A.label("c_fk")
    A(f"s_mov_b32 s{sTmp+3}, 0\n{FK}:")
    ag_loads()
    A(f"s_add_u32 s{sTmp+3}, s{sTmp+3}, 1\ns_cmp_gt_u32 s{sTmp+3}, {SPIN_MAX}\ns_cbranch_scc1 {FAIL}")
    A(f"s_waitcnt vmcnt(0)\nv_max3_u32 v{T0}, v{m0}, v{m0+1}, v{m0+2}\nv_max3_u32 v{T0}, v{m0+3}, v{m4}, v{T0}\nv_max3_u32 v{T0}, v{m4+1}, v{m4+2}, v{T0}\nv_max_u32 v{T0}, v{T0}, v{m4+3}")
    A(f"v_cmp_eq_u32 vcc, -1, v{T0}\ns_cbranch_vccnz {FK}")
    A(f"s_lshl_b32 s{sAG}, s{sStep}, 13\ns_add_u32 s{sAG}, s{sAG}, {MEMH}\ns_add_u32 s{sAG+1}, s{sAG}, 4096\ns_mov_b32 s{sFork}, 0")
    A(f"s_branch {LOOP}")
    A(f"{KVW}:")
    A(f"s_cmp_ge_u32 s{sStep}, {NSEG-1}\ns_cbranch_scc1 {KVR}")
    kv_wait()
    A(f"s_branch {KVR}")
    A(f"{LAST}:")
    if FL: A(f"s_add_u32 s{sFkm}, s{sFkm}, 512\nv_mov_b32 v{T0}, 1\ns_waitcnt vmcnt(0)\ns_mov_b64 exec, 1\nbuffer_store_dword v{T0}, off, {W}, s{sFkm} sc1\ns_mov_b64 exec, -1")
    A(f"s_branch {FAIL}")
    A(f"{OTH}:")
    trace(A, 1, MEMA, sStep)
    stage(0, 10)
    for r in range(VA, VA + 8, 2): A(z64(r))
    A(f"s_branch {HOP2}")
    A(f"{W0A}:")
    A("s_waitcnt vmcnt(3)")
    stage(0, 5)
    if NSH > 1: ag_loads()
    stage(5, 10)
    for k in range(2, NSH): ag_loads()
    for r in range(VA, VA + 8, 2): A(z64(r))
    A(f"s_branch {W0B}")
    P1S = A.label("c_p1s")
    A(f"{P1R}:")
    for it in range(8): inbox_load(0, it)
    A(f"s_add_u32 s{sCnt}, s{sCnt}, 1")
    rpass(1, P1S)
    A(f"s_branch {PUBL}")
    A(f"{P1S}:")
    for it in range(8): inbox_load(1, it)
    A(f"s_add_u32 s{sTmp+2}, s{sTmp+2}, 1\ns_add_u32 s{sCnt}, s{sCnt}, 1\ns_cmp_gt_u32 s{sTmp+2}, {SPIN_MAX}\ns_cbranch_scc1 {FAIL}")
    rpass(0, P1R)
    A(f"s_branch {PUBL}")
    A(f"{RETRY}:")
    ag_loads()
    A(f"s_add_u32 s{sTmp+2}, s{sTmp+2}, 1\ns_add_u32 s{sCnt+1}, s{sCnt+1}, 1\ns_cmp_gt_u32 s{sTmp+2}, {SPIN_MAX}\ns_cbranch_scc1 {FAIL}")
    for r in range(QA, QA + 12, 2): A(z64(r))
    A(f"s_waitcnt vmcnt({2+npo})")
    A(f"v_max3_u32 v{T0}, v{m0}, v{m0+1}, v{m0+2}")
    A(f"v_max_u32 v{T0}, v{T0}, v{m0+3}")
    A(f"ds_write_b128 v{vW16}, v[{m0}:{m0+3}] offset:{L_MEM}")
    M(*OWN[0])
    A(f"s_branch {GOT}")
    A(f"{FB}:")
    A(f"v_max3_f32 v{CK}, v{X}, v{X+1}, v{X+2}\nv_max_f32 v{CK}, v{X+3}, v{CK}")
    A(f"s_mov_b64 exec, {H}\nv_max3_f32 v{CK}, v{SM}, v{SM+1}, v{CK}\ns_mov_b64 exec, -1")
    xlane(A, "v_max_f32", CK, E)
    for i in range(4): A(f"v_sub_f32 v{E+i}, v{X+i}, v{CK}")
    for i in range(2): A(f"v_sub_f32 v{E+4+i}, v{SM+i}, v{CK}")
    for i in range(6): A(f"v_exp_f32 v{E+i}, v{E+i}")
    A(f"v_cvt_pk_bf16_f32 v{E}, v{E}, v{E+1}\nv_cvt_pk_bf16_f32 v{E+1}, v{E+2}, v{E+3}\nv_cvt_pk_bf16_f32 v{E+4}, v{E+4}, v{E+5}")
    selp()
    A(f"v_cndmask_b32 v{PM+1}, 0, v{E+4}, {H}\nv_cndmask_b32 v{PM+2}, 0, v{E+4}, {H}")
    A(mf(ZA, PX, ONES)); A(mf(PVA, PX, VX)); A(mf(PVA + 4, PX, VX + 4))
    A(mf16(ZA, PM, ONES, ZA)); A(mf16(PVA, PM + 2, VA + 2, PVA)); A(mf16(PVA + 4, PM, VA + 2, PVA + 4))
    A("s_nop 7")
    for x in half_sum(ZA): A(x)
    A(f"s_branch {FBR}")
    A(f"{FAIL}:")
```

```python
from asmlib import *
import struct, math
def f32bits(x): return struct.unpack("<I", struct.pack("<f", x))[0]

class L(list):
    def __call__(self, txt):
        for ln in txt.split("\n"):
            ln = ln.strip()
            if ln: self.append(ln)

def allsum(A, regs, t):
    for rot in (8, 4, 2, 1):
        for r in regs: A(f"v_add_f32_dpp v{r}, v{r}, v{r} row_ror:{rot} row_mask:0xf bank_mask:0xf")
    for sw in ("16", "32"):
        for i, r in enumerate(regs): A(f"v_mov_b32 v{t+i}, v{r}")
        for i, r in enumerate(regs): A(f"v_permlane{sw}_swap_b32 v{r}, v{t+i}")
        for i, r in enumerate(regs): A(f"v_add_f32 v{r}, v{r}, v{t+i}")

def rnd(A, r):
    A(f"v_cvt_pk_bf16_f32 v{r}, 0, v{r}")

def unpack(A, pk, f):
    for i in range(4):
        A(f"v_lshlrev_b32 v{f+2*i}, 16, v{pk+i}\nv_and_b32 v{f+2*i+1}, 0xffff0000, v{pk+i}")
def pack(A, f, pk):
    for i in range(4): A(f"v_cvt_pk_bf16_f32 v{pk+i}, v{f+2*i}, v{f+2*i+1}")

def layernorm(A, x, y, pk, t, extra=None):
    s_, d = t, t + 4
    A(f"v_add_f32 v{s_}, v{x}, v{x+1}\nv_add_f32 v{s_+1}, v{x+2}, v{x+3}\nv_add_f32 v{s_+2}, v{x+4}, v{x+5}\nv_add_f32 v{s_+3}, v{x+6}, v{x+7}")
    A(f"v_add_f32 v{s_}, v{s_}, v{s_+1}\nv_add_f32 v{s_+2}, v{s_+2}, v{s_+3}\nv_add_f32 v{s_}, v{s_}, v{s_+2}")
    allsum(A, [s_] + ([extra] if extra is not None else []), s_ + 2)
    A(f"v_mul_f32 v{s_}, {hex(f32bits(1/512))}, v{s_}")
    for i in range(8): A(f"v_sub_f32 v{d+i}, v{x+i}, v{s_}")
    A(f"v_mul_f32 v{s_+1}, v{d}, v{d}\nv_mul_f32 v{s_+2}, v{d+1}, v{d+1}")
    for i in range(2, 8): A(f"v_fmac_f32 v{s_+1+i%2}, v{d+i}, v{d+i}")
    A(f"v_add_f32 v{s_+1}, v{s_+1}, v{s_+2}")
    rnd(A, s_)
    red = L(); allsum(red, [s_ + 1], s_ + 2)
    oth = L()
    for i in range(8): oth(f"v_sub_f32 v{d+i}, v{x+i}, v{s_}")
    for i in range(8): rnd(oth, d + i)
    while red or oth:
        if red: A(red.pop(0))
        for _ in range(2):
            if oth: A(oth.pop(0))
    A(f"v_mul_f32 v{s_+1}, {hex(f32bits(1/512))}, v{s_+1}")
    rnd(A, s_ + 1)
    A(f"v_add_f32 v{s_+1}, {hex(f32bits(1e-5))}, v{s_+1}")
    rnd(A, s_ + 1)
    A(f"v_sqrt_f32 v{s_+1}, v{s_+1}")
    rnd(A, s_ + 1)
    A(f"v_rcp_f32 v{s_+1}, v{s_+1}")
    for i in range(8): A(f"v_mul_f32 v{d+i}, v{d+i}, v{s_+1}")
    pack(A, d, pk)
    if y is not None: unpack(A, pk, y)

def selmats(A, dst, n, tmp, lo="0x3f80", hi="1.0"):
    A(f"s_mov_b32 vcc_lo, 0xaaaaaaaa\ns_mov_b32 vcc_hi, 0xaaaaaaaa\nv_mov_b32 v{tmp}, {lo}\nv_mov_b32 v{dst}, {hi}\nv_cndmask_b32 v{tmp}, v{tmp}, v{dst}, vcc")
    for r in range(n):
        A(f"s_mov_b32 vcc_lo, {hex(0x00030003 << (2*r))}\ns_mov_b32 vcc_hi, {hex(0x00030003 << (2*r))}\nv_cndmask_b32 v{dst+r}, 0, v{tmp}, vcc")

def mfd(d, a, b, c): return f"v_mfma_f32_16x16x32_bf16 {v(d,4)}, {reg(a,4)}, {reg(b,4)}, {v(c,4) if c is not None else '0'}"

sTr = 100
TRACE_ON = [False]
def trace(A, code, vt, sreg=None):
    if not TRACE_ON[0]: return
    A(f"s_memrealtime s[98:99]\ns_waitcnt lgkmcnt(0)\nv_mov_b32 v{vt}, s98")
    if sreg is None: A(f"v_mov_b32 v{vt+1}, {code}")
    else: A(f"s_lshl_b32 s99, s{sreg}, 8\ns_or_b32 s99, s99, {code}\nv_mov_b32 v{vt+1}, s99")
    A(f"s_mov_b64 exec, 1\nbuffer_store_dwordx2 v[{vt}:{vt+1}], off, s[4:7], s{sTr}\ns_mov_b64 exec, -1\ns_add_u32 s{sTr}, s{sTr}, 8")
```

```python
MB = 1 << 20
KB = 1 << 10
NSEG = 64
INBOX = 0
AGR   = 4 * MB
FLAGS = 5 * MB
F_XN  = FLAGS
F_OB  = FLAGS + 40 * KB
F_ML  = FLAGS + 44 * KB
F_G   = FLAGS + 48 * KB
F_KV  = FLAGS + 64 * KB
F_Q   = FLAGS + 160 * KB
F_KM  = FLAGS + 264 * KB
FLAG_BYTES = 512 * KB
MEMH  = FLAGS + 512 * KB
XN    = 6 * MB
X2    = 10 * MB
OBOX  = 12 * MB
XA    = 20 * MB
XB_   = 26 * MB
OUTA  = 32 * MB
MLPY  = 34 * MB
XM    = 35 * MB
TRACE = 36 * MB
KV    = 40 * MB
QX    = 136 * MB
KM    = 184 * MB
WS_BYTES = 256 * MB
KA = dict(x=0, mem0=8, wq=16, wk=24, wv=32, wo=40, seg=48, bx=56, wr=64, wg=72, wu=80, wd=88, out=96, dbg=104, ws=112)
SPIN_MAX = 0x100000
```

```python
from asmlib import *
from layout import *
from common import *
from chain import Cnt, sWS, sT, sJ, sW, sC, sTmp, sLo, sHi

oL16, oL8, oL4, oTH, oPS, oRL, oOW, oT = range(8)
oWR0 = 8
SELA, SELB = 16, 20
MR, VMR = 24, 40
oOR, oSK, oSQ, oFL = 48, 49, 50, 52
QR, KR, VR = 60, 76, 108
SX, SMM = 140, 148
PXR, PMR = 152, 156
OA, OP = 160, 192
ACC, XO, PKO = 60, 124, 140
RB = 156
XR, S0, XF, YF = 220, 224, 232, 240
L_ST = (32768, 81920)
L_VOTE = 131072
sRep, sU = 60, 61
sTask = 62
sCur, sNxt, sPrev = 63, 64, 65
sPre, sSpin = 66, 67
sOut = 68
sX = 72
sPreK, sRow, sKey, sPend = 76, 77, 78, 79
sD_ = 80
sStg, sHd, sBox, sPq, sPk = 84, 85, 86, 87, 88
sR = 90
sRun, sD, sBoth, sS, sFin, sRet = 46, 47, 48, 49, 50, 51
B_SET, B_KIND, B_DST, B_KA, B_VALID, B_SAME, B_ROW = 6, 8, 10, 11, 14, 15, 16
def desc(set_, kind, dst, ka, same=0): return set_ << B_SET | kind << B_KIND | dst << B_DST | ka << B_KA | 1 << B_VALID | same << B_SAME
def wo_op(hh, c, T): return 256 + ((hh * 4 + c) * 8 + T) * 4

def o_consts(A):
    n, g = 24, 25
    A(f"""
    v_and_b32 v26, 63, v0
    v_and_b32 v{n}, 15, v26
    v_lshrrev_b32 v{g}, 4, v26
    v_lshlrev_b32 v{oL8}, 3, v26
    v_lshlrev_b32 v{oL4}, 2, v26
    v_lshlrev_b32 v{oL16}, 4, v26
    s_mov_b32 s{sC}, {hex(f32bits(128 ** -0.5 * math.log2(math.e)))}
    s_mov_b32 s{sLo}, 0x05040100
    s_mov_b32 s{sHi}, 0x07060302
    s_and_b32 s{sTmp}, s{sW}, 1
    s_lshl_b32 s{sTmp}, s{sTmp}, 4
    v_lshlrev_b32 v27, 2, v{g}
    v_sub_u32 v{oTH}, v{n}, v27
    v_add_u32 v{oTH}, s{sTmp}, v{oTH}
    v_lshlrev_b32 v27, 16, v{g}
    v_lshl_add_u32 v27, v{n}, 4, v27
    s_lshl_b32 s{sTmp}, s{sU}, 10
    s_lshl_b32 s{sTmp+1}, s{sW}, 8
    s_add_u32 s{sTmp}, s{sTmp}, s{sTmp+1}
    v_add_u32 v{oPS}, s{sTmp}, v27
    v_lshlrev_b32 v27, 10, v{g}
    v_lshl_add_u32 v{oRL}, v{n}, 4, v27
    s_lshl_b32 s{sTmp}, s{sW}, 12
    v_add_u32 v{oOW}, s{sTmp}, v{oL16}
    """)
    selmats(A, SELA, 8, 27)
    A(f"""
    s_load_dwordx2 s[{sOut}:{sOut+1}], s[0:1], {KA['out']}
    s_load_dwordx2 s[{sX}:{sX+1}], s[0:1], {KA['x']}
    s_load_dwordx2 s[{sT}:{sT+1}], s[0:1], {KA['wr']}
    s_mov_b32 s{sOut+2}, {2*MB}
    s_mov_b32 s{sOut+3}, 0x20000
    s_mov_b32 s{sX+2}, {2*MB}
    s_mov_b32 s{sX+3}, 0x20000
    s_mov_b32 s{sT+2}, 1024
    s_mov_b32 s{sD_+3}, 0x20000
    s_lshr_b32 s{sHd}, s{sW}, 1
    s_lshl_b32 s{sTmp}, s{sU}, 1
    s_add_u32 s{sHd}, s{sHd}, s{sTmp}
    s_mov_b32 s{sT+3}, 0x20000
    s_waitcnt lgkmcnt(0)
    buffer_load_dwordx4 v[28:31], v{oL16}, s[{sT}:{sT+3}], 0 offen
    s_waitcnt vmcnt(0)
    """)
    unpack(A, 28, oWR0)

def o_ln0(A):
    W = f"s[{sWS}:{sWS+3}]"
    A(f"""
    s_lshl_b32 s{sRow}, s{sRep}, 4
    s_add_u32 s{sRow}, s{sRow}, s{sU}
    s_lshl_b32 s{sRow}, s{sRow}, 2
    s_add_u32 s{sRow}, s{sRow}, s{sW}
    s_lshl_b32 s{sTmp}, s{sRow}, 10
    """)
    for k in range(8):
        A(f"buffer_load_dwordx4 v[{64+4*k}:{67+4*k}], v{oL16}, s[{sX}:{sX+3}], s{sTmp} offen\ns_add_u32 s{sTmp}, s{sTmp}, {256*1024}")
    return W

def o_ln0_compute(A):
    W = f"s[{sWS}:{sWS+3}]"
    A(f"s_lshl_b32 s{sTmp}, s{sRow}, 10\ns_add_u32 s{sTmp}, s{sTmp}, {XN}")
    A(f"s_lshl_b32 s{sTmp+1}, s{sRow}, 2\ns_add_u32 s{sTmp+1}, s{sTmp+1}, {F_XN}")
    A("v_mov_b32 v60, 1\nv_mov_b32 v61, 0\ns_waitcnt vmcnt(0)")
    for k in range(8):
        unpack(A, 64 + 4 * k, 32)
        layernorm(A, 32, None, 64 + 4 * k, 40)
        if k:
            A(f"s_waitcnt vmcnt(0)\ns_mov_b64 exec, 1\nbuffer_store_dword v60, v61, {W}, s{sTmp+1} offen sc1\ns_mov_b64 exec, -1\ns_add_u32 s{sTmp+1}, s{sTmp+1}, 1024")
        A(f"buffer_store_dwordx4 v[{64+4*k}:{67+4*k}], v{oL16}, {W}, s{sTmp} offen sc1\ns_add_u32 s{sTmp}, s{sTmp}, {256*1024}")
    A(f"s_waitcnt vmcnt(0)\ns_mov_b64 exec, 1\nbuffer_store_dword v60, v61, {W}, s{sTmp+1} offen sc1\ns_mov_b64 exec, -1")

def o_load_weights(A):
    n, g = 24, 25
    A(f"""
    s_load_dwordx2 s[{sT}:{sT+1}], s[0:1], {KA['wo']}
    s_mov_b32 s{sT+2}, {4*MB}
    v_lshlrev_b32 v26, 13, v{g}
    v_lshl_add_u32 v26, v{n}, 4, v26
    s_lshl_b32 s{sTmp}, s{sU}, 18
    s_lshl_b32 s{sTmp+1}, s{sW}, 8
    s_add_u32 s{sTmp}, s{sTmp}, s{sTmp+1}
    s_waitcnt lgkmcnt(0)
    """)
    vm = Cnt(A, "vmcnt", 63)
    tk = {}
    POOL = 64
    def issue(i):
        for j in range(8):
            e = 32 * i + 2 * (j % 4) + j // 4
            r = POOL + (i % 6) * 32 + j * 4
            A(f"s_add_u32 s{sTmp+1}, s{sTmp}, {e * 1024}")
            tk[i] = vm.issue(f"buffer_load_dwordx4 v[{r}:{r+3}], v26, s[{sT}:{sT+3}], s{sTmp+1} offen")
    def consume(i):
        vm.wait(tk[i])
        for T in range(8):
            b = POOL + (i % 6) * 32 + T // 2
            x = wo_op(i // 4, i % 4, T) - 256
            for rho in range(4): A(f"v_perm_b32 v{32+4*(T%2)+rho}, v{b+8*rho+4}, v{b+8*rho}, s{sHi if T % 2 else sLo}")
            for rho in range(4): A(f"v_accvgpr_write_b32 a{x+rho}, v{32+4*(T%2)+rho}")
    for i in range(6): issue(i)
    for i in range(8):
        consume(i)
        if i + 6 < 8: issue(i + 6)

def spin(A, fail):
    A(f"s_add_u32 s{sSpin}, s{sSpin}, 1\ns_cmp_gt_u32 s{sSpin}, {SPIN_MAX}\ns_cbranch_scc1 {fail}")

def post_ob(A, STF):
    W = f"s[{sWS}:{sWS+3}]"
    A(f"v_mov_b32 v{oT}, s{sTask}\ns_mov_b64 exec, 1\nbuffer_store_dword v{oT}, off, {W}, s{sPend} {STF}\ns_mov_b64 exec, -1\ns_mov_b32 s{sPend}, {WS_BYTES}")

def wait_ob(A, FAIL):
    W = f"s[{sWS}:{sWS+3}]"
    Lb = A.label("o_wob")
    A(f"s_lshl_b32 s{sTmp}, s{sRep}, 10\ns_add_u32 s{sTmp}, s{sTmp}, {F_OB}\ns_mov_b32 s{sSpin}, 0\n{Lb}:")
    A(f"buffer_load_dword v{oT}, v{oL4}, {W}, s{sTmp} offen sc1")
    spin(A, FAIL)
    A(f"s_waitcnt vmcnt(0)\nv_cmp_gt_u32 vcc, s{sTask}, v{oT}\ns_cbranch_vccnz {Lb}")

def r_stream(first, slot_of):
    W = f"s[{sWS}:{sWS+3}]"
    R = L()
    sTk, sOf, sA, sB2, sBx = sR, sR + 1, sR + 2, sR + 3, sR + 4
    R(f"""
    s_lshl_b32 s{sTk}, s{sU}, 1
    s_add_u32 s{sTk}, s{sTk}, s{sW}
    s_and_b32 s{sBx}, s{slot_of}, 1
    s_lshl_b32 s{sBx}, s{sBx}, 5
    s_add_u32 s{sBx}, s{sBx}, s{sTk}
    s_lshl_b32 s{sBx}, s{sBx}, 14
    s_lshl_b32 s{sA}, s{sRep}, 21
    s_add_u32 s{sBx}, s{sBx}, s{sA}
    s_add_u32 s{sBx}, s{sBx}, {OBOX}
    """)
    for pg in range(4):
        for cg in range(4):
            R.append(("vm", f"buffer_load_dwordx4 v[{RB+(pg*4+cg)*4}:{RB+(pg*4+cg)*4+3}], v{oRL}, {W}, s{sBx} offen offset:{cg*256} sc1", f"rb{pg*4+cg}"))
        if pg < 3: R(f"s_add_u32 s{sBx}, s{sBx}, 4096")
    if not first:
        R(f"s_lshr_b32 s{sA}, s{sPrev}, {B_ROW}\ns_xor_b32 s{sB2}, s{sTk}, 32")
    R(f"s_and_b32 s{sOf}, s{sPrev}, 63\ns_lshl_b32 s{sBx}, s{sOf}, 11\ns_lshl_b32 s{sOf}, s{sOf}, 5\ns_add_u32 s{sTk}, s{sTk}, s{sOf}\ns_lshl_b32 s{sOf}, s{sTk}, 10")
    if first:
        R.append(("vm", f"buffer_load_dwordx4 v[{XR}:{XR+3}], v{oL16}, s[{sX}:{sX+3}], s{sOf} offen", "x"))
    else:
        R.append(f"s_add_u32 s{sBx}, s{sBx}, {XM - X2}")
        R.append(("grp", [f"s_cmp_eq_u32 s{sA}, s{sB2}", f"s_cselect_b32 s{sA}, s{sBx}, s{sOf}"]))
        R(f"s_add_u32 s{sA}, s{sA}, {X2}")
        R.append(("vm", f"buffer_load_dwordx4 v[{XR}:{XR+3}], v{oL16}, {W}, s{sA} offen sc1", "x"))
    R.append(("gap", 8))
    for i in range(16):
        cg = i % 4
        d = S0 + 4 * (cg % 2)
        R.append(("wait", f"rb{i}"))
        R(mfd(d, SELB if cg // 2 else SELA, RB + 4 * i, d if i >= 2 else None))
    R(f"s_bfe_u32 s{sA}, s{sPrev}, {(2 << 16) | B_KIND}\ns_lshl_b32 s{sA}, s{sA}, 21\ns_add_u32 s{sA}, s{sA}, s{sOf}\ns_add_u32 s{sB2}, s{sA}, {XB_}\ns_add_u32 s{sA}, s{sA}, {XA}")
    R.append(("wait", "x"))
    unpack(R, XR, XF)
    for r in range(4): R(f"v_permlane16_swap_b32 v{S0+r}, v{S0+4+r}")
    for i in range(8): rnd(R, S0 + i)
    for i in range(8): R(f"v_add_f32 v{XF+i}, v{XF+i}, v{S0+i}")
    PK1, PK2, PK3, PK4, TM = RB, RB + 4, RB + 8, RB + 12, RB + 16
    pack(R, XF, PK1); unpack(R, PK1, XF)
    R.append(("vm", f"buffer_store_dwordx4 v[{PK1}:{PK1+3}], v{oL16}, {W}, s{sA} offen sc1", "s1"))
    layernorm(R, XF, YF, PK2, TM)
    R.append(("vm", f"buffer_store_dwordx4 v[{PK2}:{PK2+3}], v{oL16}, {W}, s{sB2} offen sc1", "s2"))
    RR = S0
    for i in range(8): R(f"v_add_f32 v{XF+i}, v{XF+i}, v{YF+i}")
    pack(R, XF, PK3)
    R(f"v_mul_f32 v{RR}, v{YF}, v{oWR0}\nv_mul_f32 v{RR+1}, v{YF+1}, v{oWR0+1}")
    for i in range(2, 8): R(f"v_fmac_f32 v{RR+i%2}, v{YF+i}, v{oWR0+i}")
    R(f"v_add_f32 v{RR}, v{RR}, v{RR+1}")
    if first:
        R(f"s_add_u32 s{sA}, s{sOf}, {X2}\ns_add_u32 s{sB2}, s{sOf}, {XN + 2*MB}")
        R.append(("vm", f"buffer_store_dwordx4 v[{PK3}:{PK3+3}], v{oL16}, {W}, s{sA} offen sc1", "s3"))
        unpack(R, PK3, XF)
        layernorm(R, XF, None, PK4, TM, extra=RR)
        R.append(("vm", f"buffer_store_dwordx4 v[{PK4}:{PK4+3}], v{oL16}, {W}, s{sB2} offen sc1", "last"))
    else:
        R.append(f"s_add_u32 s{sA}, s{sOf}, {OUTA}")
        R.append(("grp", [f"s_bitcmp1_b32 s{sPrev}, {B_DST}", f"s_cselect_b64 s[{sD_}:{sD_+1}], s[{sOut}:{sOut+1}], s[{sWS}:{sWS+1}]",
                          f"s_cselect_b32 s{sD_+2}, s{sOut+2}, s{sWS+2}", f"s_cselect_b32 s{sA}, s{sOf}, s{sA}"]))
        R.append(("vm", f"buffer_store_dwordx4 v[{PK3}:{PK3+3}], v{oL16}, s[{sD_}:{sD_+3}], s{sA} offen sc1", "last"))
        allsum(R, [RR], RR + 1)
    rnd(R, RR)
    R(f"""
    v_ashrrev_i32 v{RR+1}, 31, v{RR}
    v_or_b32 v{RR+1}, 0x80000000, v{RR+1}
    v_xor_b32 v{RR}, v{RR}, v{RR+1}
    s_sub_u32 s{sA}, 4095, s{sTk}
    v_and_b32 v{RR}, 0xffff0000, v{RR}
    v_or_b32 v{RR}, s{sA}, v{RR}
    s_bfe_u32 s{sA}, s{sPrev}, {(3 << 16) | B_KA}
    s_lshl_b32 s{sA}, s{sA}, 13
    s_lshl_b32 s{sB2}, s{sTk}, 2
    s_add_u32 s{sA}, s{sA}, s{sB2}
    s_add_u32 s{sA}, s{sA}, {F_XN}
    """)
    fin = [("wait", "last"), ("grp", ["s_mov_b64 exec, 1", f"buffer_store_dword v{RR}, off, {W}, s{sA} sc1", "s_mov_b64 exec, -1"])]
    return R, fin

def emit_item(A, vm, toks, x):
    if isinstance(x, str): A(x)
    elif x[0] == "vm": toks[x[2]] = vm.issue(x[1])
    elif x[0] == "wait": vm.wait(toks[x[1]])
    elif x[0] == "grp":
        for y in x[1]:
            if y.startswith("buffer_"): vm.issue(y)
            else: A(y)

def r_flush(A, P, FAIL):
    STF = P.get("st", "")
    DONE, K2 = A.label("o_fd"), A.label("o_f2")
    A("s_waitcnt vmcnt(0)")
    post_ob(A, STF)
    A(f"s_cmp_ge_u32 s{sW}, 2\ns_cbranch_scc1 {DONE}\ns_cmp_eq_u32 s{sPrev}, 0\ns_cbranch_scc1 {DONE}")
    wait_ob(A, FAIL)
    A(f"s_and_b32 s{sTmp}, s{sPrev}, {3 << B_KIND}\ns_cbranch_scc1 {K2}")
    for first in (True, False):
        vm = Cnt(A, "vmcnt", 63); toks = {}
        R, fin = r_stream(first, sTask)
        for x in list(R) + fin: emit_item(A, vm, toks, x)
        if first: A(f"s_branch {DONE}\n{K2}:")
    A(f"{DONE}:\ns_mov_b32 s{sPrev}, 0")
    trace(A, 7, 250)

def o_task(A, P, FAIL):
    W = f"s[{sWS}:{sWS+3}]"
    STF = P.get("st", "")
    def idx_q(A, dst, d):
        A(f"s_and_b32 s{dst}, s{d}, 0xff\ns_lshl_b32 s{dst}, s{dst}, 5\ns_add_u32 s{dst}, s{dst}, s{sHd}")
    def idx_k(A, dst, d, t):
        A(f"s_and_b32 s{dst}, s{d}, 63\ns_lshl_b32 s{dst}, s{dst}, 5\ns_add_u32 s{dst}, s{dst}, s{sHd}\ns_bfe_u32 s{t}, s{d}, {(2 << 16) | B_KIND}")
    def qflags(d):
        idx_q(A, sTmp, d)
        A(f"s_lshl_b32 s{sTmp}, s{sTmp}, 4\ns_and_b32 s{sTmp+1}, s{sW}, 1\ns_lshl_b32 s{sTmp+1}, s{sTmp+1}, 3\ns_add_u32 s{sTmp}, s{sTmp}, s{sTmp+1}")
        A(f"s_add_u32 s{sTmp+1}, s{sTmp}, {F_Q}\ns_add_u32 s{sTmp}, s{sTmp}, {F_KV}")
        A(f"buffer_load_dwordx2 v[{oFL}:{oFL+1}], off, {W}, s{sTmp} sc1\nbuffer_load_dwordx2 v[{oFL+2}:{oFL+3}], off, {W}, s{sTmp+1} sc1")
    def kflags(d):
        idx_k(A, sTmp, d, sTmp + 1)
        A(f"s_lshl_b32 s{sTmp}, s{sTmp}, 4\ns_lshl_b32 s{sTmp+1}, s{sTmp+1}, 16\ns_add_u32 s{sTmp}, s{sTmp}, s{sTmp+1}\ns_add_u32 s{sTmp}, s{sTmp}, {F_KM}")
        A(f"buffer_load_dwordx4 v[{oFL+4}:{oFL+7}], off, {W}, s{sTmp} sc1")
    def chk(r): A(f"v_min3_u32 v{r}, v{r}, v{r+1}, v{r+2}\nv_min_u32 v{r}, v{r}, v{r+3}\nv_cmp_ne_u32 vcc, 0, v{r}")
    sA, sB2 = sTmp + 6, sTmp + 7
    def dma_items(d, off=None):
        D = L()
        D(f"s_and_b32 s{sA}, s{d}, 0xff\ns_lshl_b32 s{sA}, s{sA}, 4\ns_add_u32 s{sA}, s{sA}, s{sU}\ns_lshl_b32 s{sA}, s{sA}, 2\ns_add_u32 s{sA}, s{sA}, s{sW}")
        D(f"s_lshl_b32 s{sB2}, s{sA}, 12\ns_add_u32 s{sB2}, s{sB2}, {QX}\ns_lshl_b32 s{sA}, s{sA}, 13\ns_add_u32 s{sA}, s{sA}, {KV}")
        if off: D(f"s_add_u32 s{sA}, s{sA}, s{off}\ns_add_u32 s{sB2}, s{sB2}, s{off}")
        D(f"s_xor_b32 s{sTmp+8}, s{sStg}, {L_ST[0] ^ L_ST[1]}\ns_lshl_b32 s{sTmp+9}, s{sW}, 12\ns_add_u32 s{sTmp+8}, s{sTmp+8}, s{sTmp+9}")
        D(f"s_add_u32 m0, s{sTmp+8}, 32768\ns_add_u32 s{sTmp+8}, s{sTmp+8}, s{sTmp+9}")
        for i in range(4): D.append(("vm", f"buffer_load_dwordx4 v{oL16}, {W}, s{sB2} offen offset:{i*1024} sc1 lds", "dma"))
        for h in range(2):
            D(f"s_add_u32 m0, s{sTmp+8}, {h*4096}")
            if h: D(f"s_add_u32 s{sA}, s{sA}, 4096")
            else: D("s_nop 0")
            for i in range(4): D.append(("vm", f"buffer_load_dwordx4 v{oL16}, {W}, s{sA} offen offset:{i*1024} sc1 lds", "dma"))
        return D
    def km_items(d, off=None):
        D = L()
        idx_k(D, sA, d, sB2)
        D(f"s_lshl_b32 s{sB2}, s{sB2}, 11\ns_add_u32 s{sA}, s{sA}, s{sB2}\ns_lshl_b32 s{sA}, s{sA}, 13\ns_add_u32 s{sA}, s{sA}, {KM}")
        if off: D(f"s_add_u32 s{sA}, s{sA}, s{off}")
        D(f"s_add_u32 s{sB2}, s{sA}, 4096")
        for c in range(4): D.append(("vm", f"buffer_load_dwordx4 v[{MR+4*c}:{MR+4*c+3}], v{oL16}, {W}, s{sA+c//2} offen offset:{(c%2)*2048} sc1", f"km{c}"))
        for c in range(4): D.append(("vm", f"buffer_load_dwordx2 v[{VMR+2*c}:{VMR+2*c+1}], v{oL8}, {W}, s{sA+c//2} offen offset:{(c%2)*2048+1024} sc1", "vm"))
        return D
    L1, HAVE, SAME, L2, HAVEK, NOOB = [A.label("o_" + x) for x in ("w1", "have", "same", "w2", "havek", "noob")]
    dummy = (Cnt(A, "vmcnt", 63), {})
    trace(A, 1, 250, sCur)
    A(f"s_bitcmp1_b32 s{sCur}, {B_SAME}\ns_cbranch_scc1 {SAME}\ns_cmp_lg_u32 s{sPre}, 0\ns_cbranch_scc1 {HAVE}\ns_mov_b32 s{sSpin}, 0\n{L1}:")
    qflags(sCur)
    spin(A, FAIL)
    A("s_waitcnt vmcnt(0)")
    post_ob(A, STF)
    chk(oFL)
    A(f"s_cbranch_vccz {L1}")
    for x in dma_items(sCur): emit_item(A, *dummy, x)
    A("s_waitcnt vmcnt(0)")
    A(f"{HAVE}:\ns_xor_b32 s{sStg}, s{sStg}, {L_ST[0] ^ L_ST[1]}\ns_mov_b32 s{sPre}, 0")
    A(f"s_lshr_b32 s{sTmp}, s{sW}, 1\ns_lshl_b32 s{sTmp+1}, s{sTmp}, 14\ns_add_u32 s{sTmp+1}, s{sTmp+1}, s{sStg}\nv_add_u32 v{oSK}, s{sTmp+1}, v{oL16}")
    A(f"s_lshl_b32 s{sTmp}, s{sTmp}, 13\ns_and_b32 s{sTmp+1}, s{sW}, 1\ns_lshl_b32 s{sTmp+1}, s{sTmp+1}, 10\ns_add_u32 s{sTmp}, s{sTmp}, s{sTmp+1}\ns_add_u32 s{sTmp}, s{sTmp}, s{sStg}\nv_add_u32 v{oSQ}, s{sTmp}, v{oL16}")
    A(f"s_barrier\n{SAME}:")
    trace(A, 2, 250)
    ld = Cnt(A, "lgkmcnt", 15)
    tq = []
    for c in range(4):
        ld.issue(f"ds_read_b128 v[{QR+4*c}:{QR+4*c+3}], v{oSQ} offset:{32768+c*2048}")
        for tt in range(2): t = ld.issue(f"ds_read_b128 v[{KR+(tt*4+c)*4}:{KR+(tt*4+c)*4+3}], v{oSK} offset:{c*4096+tt*1024}")
        tq.append(t)
    qflags(sNxt); kflags(sNxt)
    A(f"v_xor_b32 v{oOW}, 16384, v{oOW}\nv_and_b32 v{oOR}, 16384, v{oOW}\nv_add_u32 v{oOR}, v{oOR}, v{oL16}")
    for c in range(4):
        ld.wait(tq[c])
        for tt in range(2):
            A(mfd(SX + 4 * tt, KR + (tt * 4 + c) * 4, QR + 4 * c, SX + 4 * tt if c else None))
            ld.issue(f"ds_read_b128 v[{VR+(c*2+tt)*4}:{VR+(c*2+tt)*4+3}], v{oSK} offset:{c*4096+2048+tt*1024}")
    NEG = PMR + 1
    A(f"v_mov_b32 v{PMR}, 0\nv_mov_b32 v{PMR+3}, 0\nv_mov_b32 v{NEG}, 0xff000000")
    for i in range(4): A(f"v_cmp_le_i32 s[{sR+2*i}:{sR+2*i+1}], {i}, v{oTH}")
    for i in range(4): A(f"v_cndmask_b32 v{SX+i}, v{NEG}, v{SX+i}, s[{sR+2*i}:{sR+2*i+1}]")
    for i in range(4): A(f"v_cmp_le_i32 s[{sR+2*i}:{sR+2*i+1}], {16+i}, v{oTH}")
    for i in range(4): A(f"v_cndmask_b32 v{SX+4+i}, v{NEG}, v{SX+4+i}, s[{sR+2*i}:{sR+2*i+1}]")
    M, T1 = PXR, PXR + 1
    A(f"v_max3_f32 v{M}, v{SX}, v{SX+1}, v{SX+2}\nv_max3_f32 v{M}, v{SX+3}, v{SX+4}, v{M}\nv_max3_f32 v{M}, v{SX+5}, v{SX+6}, v{M}")
    A("s_waitcnt vmcnt(3)")
    post_ob(A, STF)
    A(f"s_cmp_lg_u32 s{sPreK}, 0\ns_cbranch_scc1 {HAVEK}")
    A(f"s_mov_b32 s{sSpin}, 0")
    idx_k(A, sTmp, sCur, sTmp + 1)
    A(f"s_lshl_b32 s{sTmp}, s{sTmp}, 4\ns_lshl_b32 s{sTmp+1}, s{sTmp+1}, 16\ns_add_u32 s{sTmp}, s{sTmp}, s{sTmp+1}\ns_add_u32 s{sTmp}, s{sTmp}, {F_KM}\n{L2}:")
    A(f"buffer_load_dwordx4 v[{OA}:{OA+3}], off, {W}, s{sTmp} sc1")
    spin(A, FAIL)
    A("s_waitcnt vmcnt(0)")
    chk(OA)
    A(f"s_cbranch_vccz {L2}")
    for x in km_items(sCur): emit_item(A, *dummy, x)
    A("s_waitcnt vmcnt(4)")
    A(f"{HAVEK}:")
    trace(A, 3, 250)
    for c in range(4): A(mfd(SMM, MR + 4 * c, QR + 4 * c, SMM if c else None))
    A(f"v_max_f32 v{M}, v{SX+7}, v{M}")
    A(f"v_mul_f32 v{SMM}, s{sC}, v{SMM}\nv_mul_f32 v{SMM+1}, s{sC}, v{SMM+1}")
    A(f"v_max3_f32 v{M}, v{SMM}, v{SMM+1}, v{M}")
    for sw in ("16", "32"):
        A(f"v_mov_b32 v{T1}, v{M}\nv_permlane{sw}_swap_b32 v{M}, v{T1}\nv_max_f32 v{M}, v{M}, v{T1}")
    for i in range(10): A(f"v_sub_f32 v{SX+i}, v{SX+i}, v{M}")
    for i in range(10): A(f"v_exp_f32 v{SX+i}, v{SX+i}")
    A(f"v_add_f32 v{M}, v{SX}, v{SX+1}\nv_add_f32 v{T1}, v{SX+2}, v{SX+3}")
    for i in range(4, 10): A(f"v_add_f32 v{M+i%2}, v{M+i%2}, v{SX+i}")
    A(f"v_add_f32 v{M}, v{M}, v{T1}")
    for sw in ("16", "32"):
        A(f"v_mov_b32 v{T1}, v{M}\nv_permlane{sw}_swap_b32 v{M}, v{T1}\nv_add_f32 v{M}, v{M}, v{T1}")
    A(f"v_rcp_f32 v{M}, v{M}")
    for i in range(10): A(f"v_mul_f32 v{SX+i}, v{SX+i}, v{M}")
    pack(A, SX, PXR)
    A(f"v_cvt_pk_bf16_f32 v{PMR+1}, v{SMM}, v{SMM+1}\nv_cvt_pk_bf16_f32 v{PMR+2}, v{SMM}, v{SMM+1}")
    A("s_waitcnt lgkmcnt(0) vmcnt(0)")
    for i in range(8): A(mfd(OA + 4 * i, VR + 4 * i, PXR, None))
    A(f"v_min3_u32 v{oFL}, v{oFL}, v{oFL+1}, v{oFL+2}\nv_min3_u32 v{oFL+4}, v{oFL+4}, v{oFL+5}, v{oFL+6}")
    A(f"v_min_u32 v{oFL}, v{oFL}, v{oFL+3}\nv_min_u32 v{oFL+4}, v{oFL+4}, v{oFL+7}\nv_lshl_or_b32 v{oFL}, v{oFL+4}, 1, v{oFL}")
    A(f"s_and_b32 s{sTmp+1}, s{sTask}, 1\ns_lshl_b32 s{sTmp+1}, s{sTmp+1}, 4\ns_add_u32 s{sTmp+1}, s{sTmp+1}, {L_VOTE}\nv_mov_b32 v{oFL+2}, s{sTmp+1}")
    A(f"s_lshl_b32 s{sTmp}, s{sW}, 2\nv_add_u32 v{oFL+1}, s{sTmp}, v{oFL+2}\nds_write_b32 v{oFL+1}, v{oFL}")
    for i in range(8):
        A(f"v_mfma_f32_16x16x16_bf16 {v(OA+4*i,4)}, {v(VMR+2*(i//2),2)}, {v(PMR + (0 if i % 2 else 2),2)}, {v(OA+4*i,4)}")
    for c in range(4):
        pack(A, OA + 8 * c, OP + 4 * c)
        A(f"ds_write_b128 v{oOW}, v[{OP+4*c}:{OP+4*c+3}] offset:{c*1024}")
    trace(A, 4, 250)
    A(f"s_cmp_ge_u32 s{sW}, 2\ns_cselect_b32 s{sPrev}, 0, s{sPrev}\ns_cmp_eq_u32 s{sPrev}, 0\ns_cbranch_scc1 {NOOB}")
    wait_ob(A, FAIL)
    A(f"{NOOB}:")
    A(f"s_mov_b32 s{sR+5}, s{sTask}\ns_add_u32 s{sTask}, s{sTask}, 1")
    A(f"s_and_b32 s{sBox}, s{sTask}, 1\ns_lshl_b32 s{sBox}, s{sBox}, 19\ns_lshl_b32 s{sTmp}, s{sRep}, 21\ns_add_u32 s{sBox}, s{sBox}, s{sTmp}\ns_add_u32 s{sBox}, s{sBox}, {OBOX}")
    A("s_waitcnt lgkmcnt(0)\ns_barrier")
    def epi(tt):
        out = L()
        for r in range(4):
            pk = PKO + r * 4
            for i in range(4): out(f"v_cvt_pk_bf16_f32 v{pk+i}, v{ACC+(tt*8+2*i)*4+r}, v{ACC+(tt*8+2*i+1)*4+r}")
            out(f"s_add_u32 s{sTmp}, s{sBox}, {(16*tt+r)*16384}")
            out.append(("vm", f"buffer_store_dwordx4 v[{pk}:{pk+3}], v{oPS}, {W}, s{sTmp} offen {STF}", "ps"))
        return out
    def stage_w(R, fin, rate):
        ld = Cnt(A, "lgkmcnt", 15); vm = Cnt(A, "vmcnt", 63); toks = {}
        steps = [(tt, hh, c) for tt in range(2) for hh in range(2) for c in range(4)]
        tok = {}
        def rd(i):
            tt, hh, c = steps[i]
            tok[i] = ld.issue(f"ds_read_b128 v[{XO+(i%4)*4}:{XO+(i%4)*4+3}], v{oOR} offset:{((hh*2+tt)*4+c)*1024}")
        ld.issue(f"ds_read_b128 v[{oFL+4}:{oFL+7}], v{oFL+2}")
        for i in range(3): rd(i)
        R = list(R)
        own = L()
        own(f"v_and_b32 v{oFL+4}, v{oFL+4}, v{oFL+5}\nv_and_b32 v{oFL+6}, v{oFL+6}, v{oFL+7}\nv_and_b32 v{oFL+4}, v{oFL+4}, v{oFL+6}")
        own(f"s_bfe_u32 s{sTmp}, s{sNxt}, {(2 << 16) | B_VALID}\nv_readfirstlane_b32 s{sTmp+1}, v{oFL+4}")
        own.append(("grp", [f"s_cmp_eq_u32 s{sTmp}, 1", f"s_cselect_b32 s{sPre}, s{sTmp+1}, 0", f"s_and_b32 s{sPre}, s{sPre}, 1", f"s_cselect_b32 s{sPq}, 0, {WS_BYTES}"]))
        own.append(("grp", [f"s_cmp_lg_u32 s{sTmp}, 0", f"s_cselect_b32 s{sPreK}, s{sTmp+1}, 0", f"s_and_b32 s{sPreK}, s{sPreK}, 2", f"s_cselect_b32 s{sPk}, 0, {WS_BYTES}"]))
        gap = [0]
        def cost(x):
            if isinstance(x, str): return 0.4 if x.startswith("s_") else (2 if x.startswith("v_mfma") else 1)
            return {"vm": 2, "wait": 0.4, "grp": 1.5}[x[0]]
        def drain(q, budget):
            while q and budget > 0:
                x = q[0]
                if x[0] == "gap" and not isinstance(x, str):
                    gap[0] = x[1]; q.pop(0); return 0
                q.pop(0); emit_item(A, vm, toks, x); budget -= cost(x)
            return budget
        while R and not (not isinstance(R[0], str) and R[0][0] == "gap"): emit_item(A, vm, toks, R.pop(0))
        n = 0
        for i, (tt, hh, c) in enumerate(steps):
            ld.wait(tok[i])
            if i == P.get("dmaat", 3): own += list(dma_items(sNxt, sPq)) + list(km_items(sNxt, sPk))
            if i == 9: own += list(epi(0))
            for T in range(8):
                a = ACC + (tt * 8 + T) * 4
                A(mfd(a, XO + (i % 4) * 4, wo_op(hh, c, T), a if (hh or c) else None))
                n += 1
                if T == 1 and i + 3 < len(steps): rd(i + 3); continue
                b = rate
                if own and n % 2 == 0: b = rate - 2 + drain(own, 2)
                if gap[0] > 0: gap[0] -= 1
                elif b > 0: drain(R, b)
        for x in own + R: emit_item(A, vm, toks, x)
        e1 = epi(1)
        for x in e1: emit_item(A, vm, toks, x)
        for x in fin: emit_item(A, vm, toks, x)
        vm.wait(toks["vm"])
    trace(A, 5, 250)
    W1, W2, WE = A.label("o_wr1"), A.label("o_wr2"), A.label("o_we")
    A(f"s_cmp_lg_u32 s{sPrev}, 0\ns_cbranch_scc1 {W1}")
    stage_w([], [], 2)
    A(f"s_branch {WE}\n{W1}:\ns_and_b32 s{sTmp}, s{sPrev}, {3 << B_KIND}\ns_cbranch_scc1 {W2}")
    stage_w(*r_stream(True, sR + 5), P.get("rate1", 3))
    A(f"s_branch {WE}\n{W2}:")
    stage_w(*r_stream(False, sR + 5), P.get("rate2", 2))
    A(f"{WE}:")
    trace(A, 6, 250)
    A(f"""
    s_mov_b32 s{sPrev}, s{sCur}
    s_lshl_b32 s{sPend}, s{sRep}, 6
    s_add_u32 s{sPend}, s{sPend}, s{sU}
    s_lshl_b32 s{sPend}, s{sPend}, 2
    s_add_u32 s{sPend}, s{sPend}, s{sW}
    s_lshl_b32 s{sPend}, s{sPend}, 2
    s_add_u32 s{sPend}, s{sPend}, {F_OB}
    """)

def wait_all_keys(A, off, FAIL):
    W = f"s[{sWS}:{sWS+3}]"
    L = A.label("k_w")
    A(f"s_mov_b32 s{sSpin}, 0\ns_mov_b32 s{sTmp}, {off}\ns_mov_b32 s{sTmp+1}, {off+4096}\n{L}:")
    for i in range(8): A(f"buffer_load_dwordx4 v[{160+4*i}:{163+4*i}], v{oL16}, {W}, s{sTmp+i//4} offen offset:{(i%4)*1024} sc1")
    spin(A, FAIL)
    A("s_sleep 2\ns_waitcnt vmcnt(0)")
    A("v_min_u32 v192, v160, v161\nv_max_u32 v193, v160, v161")
    for i in range(162, 192, 2): A(f"v_min3_u32 v192, v{i}, v{i+1}, v192\nv_max3_u32 v193, v{i}, v{i+1}, v193")
    A(f"v_cmp_eq_u32 vcc, 0, v192\ns_cbranch_vccnz {L}")
    for rot in (8, 4, 2, 1): A(f"v_max_u32_dpp v193, v193, v193 row_ror:{rot} row_mask:0xf bank_mask:0xf")
    for sw in ("16", "32"): A(f"v_mov_b32 v192, v193\nv_permlane{sw}_swap_b32 v193, v192\nv_max_u32 v193, v193, v192")
    A(f"v_readfirstlane_b32 s{sKey}, v193")

def decide(A, FAIL):
    W = f"s[{sWS}:{sWS+3}]"
    L = A.label("d_w")
    A(f"s_mov_b32 s{sSpin}, 0\ns_lshl_b32 s{sTmp}, s{sS}, 7\ns_add_u32 s{sTmp}, s{sTmp}, {F_XN + 8192 - 11*128}\n{L}:")
    A(f"buffer_load_dwordx2 v[160:161], v{oL8}, {W}, s{sTmp} offen sc1")
    spin(A, FAIL)
    A("s_waitcnt vmcnt(0)\nv_min_u32 v162, v160, v161\nv_max_u32 v163, v160, v161")
    A(f"v_cmp_eq_u32 vcc, 0, v162\ns_cbranch_vccnz {L}")
    for rot in (8, 4, 2, 1): A(f"v_max_u32_dpp v163, v163, v163 row_ror:{rot} row_mask:0xf bank_mask:0xf")
    for g in range(4): A(f"v_readlane_b32 s{sTmp+2+g}, v163, {16*g}")
    A(f"s_max_u32 s{sTmp+2}, s{sTmp+2}, s{sTmp+3}\ns_max_u32 s{sTmp+4}, s{sTmp+4}, s{sTmp+5}\ns_max_u32 s{sRun}, s{sRun}, s{sTmp+2}\ns_max_u32 s{sRun}, s{sRun}, s{sTmp+4}")

def fixup(A):
    W = f"s[{sWS}:{sWS+3}]"
    DONE = A.label("f_done")
    sP, sOff, sBig = sTmp + 2, sTmp + 3, sTmp + 4
    A(f"""
    s_cmp_ge_u32 s{sW}, 2
    s_cbranch_scc1 {DONE}
    s_andn2_b32 s{sP}, 0xfff, s{sRun}
    s_lshr_b32 s{sP}, s{sP}, 5                     ; s*
    s_lshl_b32 s{sRow}, s{sRep}, 5
    s_lshl_b32 s{sTmp}, s{sU}, 1
    s_add_u32 s{sRow}, s{sRow}, s{sTmp}
    s_add_u32 s{sRow}, s{sRow}, s{sW}
    s_add_u32 s{sTmp}, s{sP}, 3
    s_sub_u32 s{sTmp}, s{sTmp}, s{sRep}
    s_lshr_b32 s{sTmp}, s{sTmp}, 2
    s_lshl_b32 s{sTmp}, 1, s{sTmp}
    s_sub_u32 s{sTmp}, s{sTmp}, 1
    s_and_b32 s{sTmp+1}, s{sTmp}, s{sBoth}
    s_mov_b32 s{sBig}, {WS_BYTES}
    s_lshl_b32 s{sOff}, s{sRow}, 10
    """)
    for j in range(16):
        A(f"s_add_u32 s{sTmp+5}, s{sOff}, {OUTA + j*128*1024}\ns_bitcmp1_b32 s{sTmp+1}, {j}\ns_cselect_b32 s{sTmp+5}, s{sTmp+5}, s{sBig}")
        A(f"buffer_load_dwordx4 v[{168+4*j}:{171+4*j}], v{oL16}, {W}, s{sTmp+5} offen sc1")
    A(f"""
    v_lshlrev_b32 v160, 5, v{oL16}
    s_mov_b32 vcc_lo, s{sTmp}
    s_mov_b32 vcc_hi, 0
    v_mov_b32 v161, 8192
    v_cndmask_b32 v161, v161, 0, vcc
    v_add_u32 v161, v161, v160
    s_lshl_b32 s{sTmp+5}, s{sRow}, 2
    s_add_u32 s{sTmp+6}, s{sTmp+5}, {F_XN + 4*8192}
    s_add_u32 s{sTmp+5}, s{sTmp+5}, {F_XN + 2*8192}
    buffer_load_dword v162, v161, {W}, s{sTmp+5} offen sc1
    """)
    for j in range(16):
        A(f"s_add_u32 s{sTmp+5}, s{sOff}, {j*128*1024}\ns_bitcmp1_b32 s{sTmp+1}, {j}\ns_cselect_b32 s{sTmp+5}, s{sTmp+5}, s{sBig}")
        A(f"s_waitcnt vmcnt(16)")
        A(f"buffer_store_dwordx4 v[{168+4*j}:{171+4*j}], v{oL16}, s[{sOut}:{sOut+3}], s{sTmp+5} offen sc1")
    A(f"""
    s_mov_b32 vcc_lo, s{sBoth}
    v_mov_b32 v161, 0x7ff00000
    v_cndmask_b32 v160, v161, v160, vcc
    s_waitcnt vmcnt(0)
    buffer_store_dword v162, v160, {W}, s{sTmp+6} offen sc1
    {DONE}:
    """)
```

```python
from asmlib import *
from layout import *
from common import *
from chain import Cnt, sWS, sT, sJ, sW, sC, sTmp, sLo, sHi

qL16, qL4, qT0, qT1, qONE, qT2 = range(6)
qRD = 8
qSRC = 12
ACC = 20
XB = 52
PK = 84
WB = dict(k=128, v=256, q=384)
def wop(m, tau, c): return WB[m] + (tau * 16 + c) * 4
sTab = 40
sCur, sNxt, sPre, sPend, sPar, sXN, sOut, sSpin, sDm, sFk, sRun, sMl, sKey, sRow = range(46, 60)
sRep, sKind, sFin, sSrc = 60, 61, 62, 63
sG, sUp, sO = 64, 68, 72
T_Q, T_NEW, T_VALID, T_CKV, T_CQ, T_DEC = 7, 8, 9, 10, 11, 12
L_PS, L_H = 65536, 73728

def task_lists(S0=27):
    lists = [[], [], []]
    for s_ in range(S0):
        lists[s_ % 3] += [(0, s_, "kv"), (0, s_, "q")]
    for s_ in range(NSEG): lists[2].append((1, s_, "kv"))
    rest = list(range(S0, NSEG))
    for r in range(2):
        l1 = rest[r::2]
        l2 = list(range(r, NSEG, 2))
        while l1 or l2:
            if l2:
                b = l2.pop(0); lists[r] += [(1, b, "dq"), (1, b, "ckv"), (1, b, "cq")]
            if l1:
                a = l1.pop(0); lists[r] += [(0, a, "kv"), (0, a, "q")]
    return lists

def encode(lst):
    out = []
    for i, (ly, sg, ty) in enumerate(lst):
        new = 0 if (i and lst[i-1][:2] == (ly, sg)) else 1
        e = sg | ly << 6 | (ty in ("q", "cq", "dq")) << T_Q | new << T_NEW | 1 << T_VALID | (ty == "ckv") << T_CKV | (ty == "cq") << T_CQ | (ty == "dq") << T_DEC
        j = i + 1
        while j < len(lst) and lst[j][:2] == (ly, sg): j += 1
        if j < len(lst): e |= (lst[j][1] | lst[j][0] << 6 | 1 << 7) << 16
        out.append(e)
    return out + [0, 0]

def qkv_load_weights(A, n, g):
    A(f"""
    s_mov_b32 s{sLo}, 0x05040100
    s_mov_b32 s{sHi}, 0x07060302
    s_mov_b32 s{sT+2}, {4*MB}
    s_mov_b32 s{sT+3}, 0x20000
    v_lshlrev_b32 v21, 16, v{g}
    v_lshl_add_u32 v21, v{n}, 2, v21
    s_lshl_b32 s{sTmp}, s{sJ}, 8
    s_lshl_b32 s{sTmp+1}, s{sW}, 6
    s_add_u32 s{sTmp}, s{sTmp}, s{sTmp+1}
    """)
    vm = Cnt(A, "vmcnt", 63)
    POOL, NP = 24, 6
    jobs = [(m, c2) for m in "kvq" for c2 in range(8)]
    jt = {}
    def issue(i):
        m, c2 = jobs[i]
        if c2 == 0:
            A(f"s_load_dwordx2 s[{sT}:{sT+1}], s[0:1], {KA['w'+m]}\ns_waitcnt lgkmcnt(0)")
        for u in range(2):
            for j in range(8):
                r = POOL + (i % NP) * 16 + u * 8 + j
                d = 64 * c2 + 32 * u + j
                A(f"s_add_u32 s{sTmp+1}, s{sTmp}, {d * 8192}")
                jt[i] = vm.issue(f"buffer_load_dword v{r}, v21, s[{sT}:{sT+3}], s{sTmp+1} offen")
    def consume(i):
        m, c2 = jobs[i]
        vm.wait(jt[i])
        for u in range(2):
            for tau in range(2):
                l0 = POOL + (i % NP) * 16 + u * 8
                x = wop(m, tau, 2 * c2 + u)
                for rho in range(4):
                    sel = sHi if tau else sLo
                    if x < 256: A(f"v_perm_b32 v{x+rho}, v{l0+2*rho+1}, v{l0+2*rho}, s{sel}")
                    else: A(f"v_perm_b32 v{120+4*tau+rho}, v{l0+2*rho+1}, v{l0+2*rho}, s{sel}")
                if x >= 256:
                    for rho in range(4): A(f"v_accvgpr_write_b32 a{x-256+rho}, v{120+4*tau+rho}")
    for i in range(len(jobs) + 3):
        if i < len(jobs): issue(i)
        if i >= 3: consume(i - 3)

def spin(A, fail):
    A(f"s_add_u32 s{sSpin}, s{sSpin}, 1\ns_cmp_gt_u32 s{sSpin}, {SPIN_MAX}\ns_cbranch_scc1 {fail}")

def mlp(A, FAIL, ring, nring, getkey, finish):
    W = f"s[{sWS}:{sWS+3}]"
    VG, VD, AOP, MSK, DG, XP = 6, 7, 20, 28, 32, 36
    A(f"""
    s_add_u32 s{sMl}, s{sMl}, 1
    s_load_dwordx2 s[{sG}:{sG+1}], s[0:1], {KA['wg']}
    s_load_dwordx2 s[{sUp}:{sUp+1}], s[0:1], {KA['wu']}
    s_load_dwordx2 s[{sT}:{sT+1}], s[0:1], {KA['wd']}
    s_mov_b32 s{sG+2}, {512*1792*2}
    s_mov_b32 s{sG+3}, 0x20000
    s_mov_b32 s{sUp+2}, {512*1792*2}
    s_mov_b32 s{sUp+3}, 0x20000
    s_mov_b32 s{sT+2}, {512*1792*2}
    v_lshrrev_b32 v{qT0}, 8, v{qL16}               ; g
    v_and_b32 v{qT1}, 0x70, v{qL16}                ; (n&7)*16
    s_mov_b32 s{sTmp}, {32*3584}
    v_mul_lo_u32 v{VG}, v{qT0}, s{sTmp}
    v_add_u32 v{VG}, v{VG}, v{qT1}
    v_cmp_eq_u32 vcc, 0x70, v{qT1}
    v_mov_b32 v{qT1}, 0x7ff00000
    v_cndmask_b32 v{VG}, v{VG}, v{qT1}, vcc
    v_mul_u32_u24 v{VD}, {14*1024}, v{qT0}
    v_and_b32 v{qT1}, 0xf0, v{qL16}
    v_add_u32 v{VD}, v{VD}, v{qT1}
    s_mul_i32 s{sTmp+8}, s{sW}, {128*3584}
    s_mul_i32 s{sTmp+1}, s{sJ}, 112
    s_add_u32 s{sTmp+8}, s{sTmp+8}, s{sTmp+1}
    s_mul_i32 s{sTmp+9}, s{sJ}, {56*1024}
    s_lshl_b32 s{sTmp+1}, s{sW}, 8
    s_add_u32 s{sTmp+9}, s{sTmp+9}, s{sTmp+1}
    s_mov_b32 s{sTmp+10}, 0x00ff00ff
    s_mov_b32 s{sTmp+11}, 0x00ff00ff
    s_waitcnt lgkmcnt(0)
    """)
    vm = Cnt(A, "vmcnt", 63)
    slots = [("g", j) for j in range(32)] + [("d", j) for j in range(14)]
    tok = {}
    def issue(i):
        m, j = slots[i]
        r = reg(ring + (i % nring) * 4, 4)
        if m == "d":
            tok[i] = vm.issue(f"buffer_load_dwordx4 {r}, v{VD}, s[{sT}:{sT+3}], s{sTmp+9} offen offset:{(j%4)*1024}")
            if j % 4 == 3: A(f"s_add_u32 s{sTmp+9}, s{sTmp+9}, 4096")
        else:
            A(f"s_mov_b64 exec, s[{sTmp+10}:{sTmp+11}]")
            vm.issue(f"buffer_load_dwordx4 {r}, v{VG}, s[{sG}:{sG+3}], s{sTmp+8} offen")
            A(f"s_not_b64 exec, exec")
            tok[i] = vm.issue(f"buffer_load_dwordx4 {r}, v{VG}, s[{sUp}:{sUp+3}], s{sTmp+8} offen")
            A(f"s_mov_b64 exec, -1\ns_add_u32 s{sTmp+8}, s{sTmp+8}, 3584")
    def xload():
        A(f"""
        s_andn2_b32 s{sRow}, 0xfff, s{sKey}
        s_lshl_b32 s{sTmp}, s{sKind}, 21
        s_lshl_b32 s{sTmp+1}, s{sRow}, 10
        s_add_u32 s{sTmp+6}, s{sTmp}, s{sTmp+1}
        s_lshl_b32 s{sTmp+1}, s{sW}, 8
        s_add_u32 s{sTmp}, s{sTmp+6}, s{sTmp+1}
        s_add_u32 s{sTmp}, s{sTmp}, {XB_}
        v_lshrrev_b32 v{qT1}, 8, v{qL16}
        v_lshlrev_b32 v{qT1}, 6, v{qT1}
        """)
        for i in range(4): t = vm.issue(f"buffer_load_dwordx4 v[{XP+4*i}:{XP+4*i+3}], v{qT1}, {W}, s{sTmp} offen offset:{16*i} sc1")
        return t
    nxt = min(nring, len(slots))
    if getkey is None:
        tx = xload()
        for i in range(nxt): issue(i)
    else:
        for i in range(nxt):
            if len(vm.q) > 56: vm.wait(vm.q[8])
            issue(i)
        getkey(); vm.reset()
        tx = xload()
    selmats(A, MSK, 4, qT1, "0xffff", "0xffff0000")
    A(f"s_mov_b32 s{sTmp+4}, 0x01000100\ns_mov_b32 s{sTmp+5}, 0x03020302")
    vm.wait(tx)
    for j in range(32):
        a = AOP + (j % 2) * 4
        A(f"v_perm_b32 v{qT1}, v{XP+j//2}, v{XP+j//2}, s{sTmp+4+j%2}")
        for r in range(4): A(f"v_and_b32 v{a+r}, v{MSK+r}, v{qT1}")
        vm.wait(tok[j])
        A(mfd(DG, a, ring + (j % nring) * 4, DG if j else None))
        if nxt < len(slots): issue(nxt); nxt += 1
    A(f"""
    v_lshrrev_b32 v{qT0}, 8, v{qL16}
    v_and_b32 v{qT1}, 0xf0, v{qL16}
    v_lshlrev_b32 v{qT1}, 1, v{qT1}
    v_lshl_add_u32 v{qT1}, v{qT0}, 4, v{qT1}
    s_lshl_b32 s{sTmp}, s{sW}, 9
    s_add_u32 s{sTmp}, s{sTmp}, {L_PS}
    v_add_u32 v{qT2}, s{sTmp}, v{qT1}
    s_mov_b32 exec_hi, 0
    ds_write_b128 v{qT2}, v[{DG}:{DG+3}]
    s_mov_b32 exec_hi, -1
    v_add_u32 v{qT2}, {L_PS}, v{qL4}
    s_waitcnt lgkmcnt(0)
    s_barrier
    """)
    for w in range(4):
        for m in range(2): A(f"ds_read_b32 v{XP+w*2+m}, v{qT2} offset:{w*512+m*256}")
    A("s_waitcnt lgkmcnt(0)")
    for q in range(2):
        A(f"v_add_f32 v{XP+q}, v{XP+q}, v{XP+2+q}\nv_add_f32 v{XP+4+q}, v{XP+4+q}, v{XP+6+q}\nv_add_f32 v{XP+q}, v{XP+q}, v{XP+4+q}")
        rnd(A, XP + q)
    A(f"v_mul_f32 v{XP+4}, {hex(f32bits(-math.log2(math.e)))}, v{XP}\nv_exp_f32 v{XP+4}, v{XP+4}\nv_add_f32 v{XP+4}, 1.0, v{XP+4}\nv_rcp_f32 v{XP+4}, v{XP+4}")
    A(f"v_mul_f32 v{XP}, v{XP}, v{XP+4}")
    rnd(A, XP)
    A(f"v_mul_f32 v{XP}, v{XP}, v{XP+1}\nv_cvt_pk_bf16_f32 v{XP}, v{XP}, v{XP}")
    A(f"s_lshl_b32 s{sTmp}, s{sW}, 8\ns_add_u32 s{sTmp}, s{sTmp}, {L_H}\nv_add_u32 v{qT2}, s{sTmp}, v{qL4}\nds_write_b32 v{qT2}, v{XP}")
    A(f"v_mul_u32_u24 v{qT2}, 56, v{qT0}\nv_add_u32 v{qT2}, s{sTmp}, v{qT2}")
    for q in range(7): A(f"ds_read_b64 v[{XP+2*q}:{XP+2*q+1}], v{qT2} offset:{8*q}")
    A("s_waitcnt lgkmcnt(0)")
    for j in range(14):
        a = AOP + (j % 2) * 4
        for r in range(4): A(f"v_and_b32 v{a+r}, v{MSK+r}, v{XP+j}")
        vm.wait(tok[32 + j])
        A(mfd(DG, a, ring + ((32 + j) % nring) * 4, DG if j else None))
    A(f"""
    v_lshrrev_b32 v{qT1}, 1, v{qT1}
    s_lshl_b32 s{sTmp}, s{sRep}, 5
    s_add_u32 s{sTmp}, s{sTmp}, s{sJ}
    s_lshl_b32 s{sTmp}, s{sTmp}, 2
    s_add_u32 s{sTmp}, s{sTmp}, s{sW}
    s_lshl_b32 s{sTmp+1}, s{sTmp}, 2
    s_add_u32 s{sTmp+1}, s{sTmp+1}, {F_ML}
    s_lshl_b32 s{sTmp}, s{sTmp}, 8
    s_add_u32 s{sTmp}, s{sTmp}, {MLPY}
    v_cvt_pk_bf16_f32 v{DG}, v{DG}, v{DG+1}
    v_cvt_pk_bf16_f32 v{DG+1}, v{DG+2}, v{DG+3}
    s_mov_b32 exec_hi, 0
    buffer_store_dwordx2 v[{DG}:{DG+1}], v{qT1}, {W}, s{sTmp} offen sc1
    s_mov_b32 exec_hi, -1
    v_mov_b32 v{qT2}, s{sMl}
    s_waitcnt vmcnt(0)
    s_mov_b64 exec, 1
    buffer_store_dword v{qT2}, off, {W}, s{sTmp+1} sc1
    s_mov_b64 exec, -1
    """)
    DONE, L1 = A.label("m_done"), A.label("m_w")
    A(f"s_or_b32 s{sTmp}, s{sJ}, s{sW}\ns_cbranch_scc1 {DONE}")
    SEL, S0, XR, YR, XF, YF, RB = 20, 28, 36, 40, 44, 52, 60
    A(f"s_add_u32 s{sTmp+1}, s{sTmp+6}, {XA}\ns_add_u32 s{sTmp+2}, s{sTmp+6}, {XB_}")
    A(f"buffer_load_dwordx4 v[{XR}:{XR+3}], v{qL16}, {W}, s{sTmp+1} offen sc1\nbuffer_load_dwordx4 v[{YR}:{YR+3}], v{qL16}, {W}, s{sTmp+2} offen sc1")
    selmats(A, SEL, 8, qT1)
    A(f"v_lshrrev_b32 v{qT2}, 1, v{qL16}\ns_lshl_b32 s{sTmp}, s{sRep}, 9\ns_add_u32 s{sTmp}, s{sTmp}, {F_ML}")
    A(f"s_mov_b32 s{sSpin}, 0\n{L1}:\nbuffer_load_dwordx2 v[{XF}:{XF+1}], v{qT2}, {W}, s{sTmp} offen sc1")
    spin(A, FAIL)
    A(f"s_waitcnt vmcnt(0)\nv_min_u32 v{XF}, v{XF}, v{XF+1}\nv_cmp_gt_u32 vcc, s{sMl}, v{XF}\ns_cbranch_vccnz {L1}")
    A(f"s_lshl_b32 s{sTmp}, s{sRep}, 15\ns_add_u32 s{sTmp}, s{sTmp}, {MLPY}")
    A(f"v_lshrrev_b32 v{qT0}, 8, v{qL16}\nv_and_b32 v{qT1}, 0xf0, v{qL16}\nv_lshl_add_u32 v{qT1}, v{qT0}, 10, v{qT1}")
    vm = Cnt(A, "vmcnt", 63); tk = {}
    def ld(i):
        tk[i] = vm.issue(f"buffer_load_dwordx4 v[{RB+(i%16)*4}:{RB+(i%16)*4+3}], v{qT1}, {W}, s{sTmp} offen offset:{(i%4)*256} sc1")
        if i % 4 == 3: A(f"s_add_u32 s{sTmp}, s{sTmp}, 4096")
    for i in range(16): ld(i)
    unpack(A, XR, XF); unpack(A, YR, YF)
    TM = XR
    A(f"""
    s_and_b32 s{sTmp+3}, s{sKey}, 0xffff0000
    s_xor_b32 s{sTmp+1}, s{sTmp+3}, 0x80000000
    s_xor_b32 s{sTmp+2}, s{sTmp+3}, 0xffff0000
    s_bitcmp1_b32 s{sTmp+3}, 31
    s_cselect_b32 s{sTmp+3}, s{sTmp+1}, s{sTmp+2}
    v_mov_b32 v{TM}, s{sTmp+3}
    v_mul_f32 v{TM}, {hex(f32bits(-math.log2(math.e)))}, v{TM}
    v_exp_f32 v{TM}, v{TM}
    v_add_f32 v{TM}, 1.0, v{TM}
    v_rcp_f32 v{TM}, v{TM}
    """)
    rnd(A, TM)
    for i in range(32):
        cg = i % 4
        vm.wait(tk[i])
        d = S0 + 4 * (cg % 2)
        A(mfd(d, SEL + 4 * (cg // 2), RB + 4 * (i % 16), d if i >= 2 else None))
        if i + 16 < 32: ld(i + 16)
    for r in range(4): A(f"v_permlane16_swap_b32 v{S0+r}, v{S0+4+r}")
    for i in range(8): rnd(A, S0 + i)
    for i in range(8): A(f"v_mul_f32 v{S0+i}, v{S0+i}, v{TM}")
    for i in range(8): rnd(A, S0 + i)
    for i in range(8): A(f"v_add_f32 v{S0+i}, v{S0+i}, v{YF+i}")
    for i in range(8): rnd(A, S0 + i)
    for i in range(8): A(f"v_add_f32 v{XF+i}, v{XF+i}, v{S0+i}")
    pack(A, XF, YR); unpack(A, YR, XF)
    finish(XF, YR, RB)
    A(f"{DONE}:")

def qkv_role(A, table_label, stride, P, after_weights=None):
    W = f"s[{sWS}:{sWS+3}]"
    n, g = 6, 7
    A(f"""
    v_and_b32 v19, 63, v0
    v_and_b32 v{n}, 15, v19
    v_lshrrev_b32 v{g}, 4, v19
    v_lshlrev_b32 v{qL4}, 2, v19
    v_lshlrev_b32 v{qL16}, 4, v19
    v_mov_b32 v{qONE}, 1
    s_mov_b32 s{sC}, {hex(f32bits(128 ** -0.5 * math.log2(math.e)))}
    """)
    A(f"v_xor_b32 v20, v{g}, v{n}\nv_lshlrev_b32 v20, 4, v20\nv_lshl_add_u32 v20, v{n}, 10, v20\nv_add_u32 v20, 32768, v20")
    for cl in range(4): A(f"v_xor_b32 v{qRD+cl}, {cl*64}, v20")
    A(f"s_and_b32 s{sTmp}, s{sW}, 1\ns_lshl_b32 s{sTmp}, s{sTmp}, 7\nv_xor_b32 v20, s{sTmp}, v{qL16}")
    for i in range(8): A(f"v_xor_b32 v{qSRC+i}, {i*16}, v20")
    qkv_load_weights(A, n, g)
    if after_weights: after_weights()
    here = A.label("q_pc")
    A(f"""
    s_getpc_b64 s[{sTab}:{sTab+1}]
    {here}:
    s_mul_i32 s{sTmp}, s{sRep}, {stride}
    s_add_u32 s{sTmp}, s{sTmp}, {table_label}-{here}
    s_add_u32 s{sTab}, s{sTab}, s{sTmp}
    s_addc_u32 s{sTab+1}, s{sTab+1}, 0
    s_load_dword s{sNxt}, s[{sTab}:{sTab+1}], 0
    s_mov_b32 s{sPre}, 0
    s_mov_b32 s{sPend}, {WS_BYTES}
    s_mov_b32 s{sPar}, 32768
    s_mov_b32 s{sRun}, 0
    s_mov_b32 s{sMl}, 0
    s_mov_b32 s{sKind}, 0
    s_lshl_b32 s{sDm}, s{sW}, 13
    """)
    TOP, END, HAVE, HAVEX, QBLK, POLL, FAIL, COND, COND2, CPOLL, CGO, CNP, DEC, DECR, DPOLL, NOF = [A.label("q_" + x) for x in
        ("top", "end", "have", "havex", "qblk", "poll", "fail", "cond", "cond2", "cpoll", "cgo", "cnp", "dec", "decr", "dpoll", "nof")]
    def post_pending(A):
        A(f"s_mov_b64 exec, 1\nbuffer_store_dword v{qONE}, off, {W}, s{sPend} sc1\ns_mov_b64 exec, -1\ns_mov_b32 s{sPend}, {WS_BYTES}")
    def flag_load(sid):
        A(f"s_and_b32 s{sTmp}, s{sid}, 127\ns_lshl_b32 s{sTmp}, s{sTmp}, 7\ns_add_u32 s{sTmp}, s{sTmp}, {F_XN - 128}")
        A(f"buffer_load_dword v{qT0}, v{qL4}, {W}, s{sTmp} offen sc1")
    def dma(A, sid):
        A(f"s_and_b32 s{sSrc}, s{sid}, 127\ns_lshl_b32 s{sSrc}, s{sSrc}, 15\ns_xor_b32 s{sTmp+1}, s{sPar}, 32768")
        A(f"s_add_u32 m0, s{sTmp+1}, s{sDm}\ns_add_u32 s{sSrc}, s{sSrc}, s{sDm}\ns_add_u32 s{sSrc}, s{sSrc}, {XN}")
        for i in range(8):
            if i == 4: A(f"s_add_u32 m0, m0, 4096\ns_add_u32 s{sSrc}, s{sSrc}, 4096")
            A(f"buffer_load_dwordx4 v{qSRC+i}, {W}, s{sSrc} offen offset:{(i%4)*1024} sc1 lds")
    A(f"{TOP}:")
    trace(A, 1, 126)
    A(f"""
    s_waitcnt lgkmcnt(0)
    s_mov_b32 s{sCur}, s{sNxt}
    s_bitcmp1_b32 s{sCur}, {T_VALID}
    s_cbranch_scc0 {END}
    s_add_u32 s{sTab}, s{sTab}, 4
    s_addc_u32 s{sTab+1}, s{sTab+1}, 0
    s_and_b32 s{sTmp}, s{sCur}, {(1 << T_CKV) | (1 << T_CQ) | (1 << T_DEC)}
    s_cbranch_scc1 {COND}
    {DECR}:
    s_bitcmp1_b32 s{sCur}, {T_NEW}
    s_cbranch_scc0 {HAVEX}
    s_cmp_lg_u32 s{sPre}, 0
    s_cbranch_scc1 {HAVE}
    s_mov_b32 s{sSpin}, 0
    """)
    A(f"{POLL}:")
    flag_load(sCur)
    spin(A, FAIL)
    A("s_waitcnt vmcnt(0)")
    post_pending(A)
    A(f"v_cmp_eq_u32 vcc, 0, v{qT0}\ns_cmp_lg_u32 vcc_hi, 0\ns_cbranch_scc1 {POLL}")
    dma(A, sCur)
    A("s_waitcnt vmcnt(0)")
    A(f"{HAVE}:")
    A(f"s_mov_b32 s{sPre}, 0\ns_xor_b32 s{sPar}, s{sPar}, 32768")
    for cl in range(4): A(f"v_xor_b32 v{qRD+cl}, 32768, v{qRD+cl}")
    A("s_barrier")
    A(f"{HAVEX}:")
    A(f"s_and_b32 s{sOut}, s{sCur}, 127\n{CGO}:")
    trace(A, 2, 126, sCur)
    A(f"s_bitcmp1_b32 s{sCur}, {T_Q}\ns_cbranch_scc1 {QBLK}")
    def head_fill():
        f = L()
        f(f"s_lshr_b32 s{sXN}, s{sCur}, 16")
        f(f"s_and_b32 s{sTmp}, s{sXN}, 127\ns_lshl_b32 s{sTmp}, s{sTmp}, 7\ns_add_u32 s{sTmp}, s{sTmp}, {F_XN - 128}")
        f(f"buffer_load_dword v{qT0}, v{qL4}, {W}, s{sTmp} offen sc1")
        f(f"s_lshl_b32 s{sOut}, s{sOut}, 5\ns_add_u32 s{sOut}, s{sOut}, s{sJ}\ns_lshl_b32 s{sOut}, s{sOut}, 2\ns_add_u32 s{sOut}, s{sOut}, s{sW}")
        return f
    def mid_fill():
        f = L()
        f("s_waitcnt vmcnt(0)")
        f(f"v_cmp_eq_u32 vcc, 0, v{qT0}")
        f(f"s_bfe_u32 s{sTmp+2}, s{sXN}, 0x10007\ns_cmp_eq_u32 vcc_hi, 0\ns_cselect_b32 s{sTmp+2}, s{sTmp+2}, 0\ns_or_b32 s{sPre}, s{sPre}, s{sTmp+2}")
        f(f"s_cselect_b32 s{sTmp+2}, s{sXN}, s{sCur}")
        dma(f, sTmp + 2)
        post_pending(f)
        return f
    def run(mats, fills):
        ld = Cnt(A, "lgkmcnt", 15)
        steps = [(m, a0, tt, c) for (m, a0) in mats for tt in range(2) for c in range(16)]
        tok = {}
        def rd(i):
            _, _, tt, c = steps[i]
            r = XB + (i % 8) * 4
            tok[i] = ld.issue(f"ds_read_b128 v[{r}:{r+3}], v{qRD+c%4} offset:{tt*16384+(c//4)*256}")
        AH = 6
        for i in range(AH): rd(i)
        q = []
        def fill(budget):
            while q:
                x = q[0]
                isv = not x.startswith("s_")
                if isv and budget <= 0: break
                if x.startswith("buffer_"): budget -= 2
                elif isv: budget -= 1
                else: budget -= 0.34
                A(q.pop(0))
                if x.startswith("s_mov_b64 exec, 1"):
                    A(q.pop(0)); A(q.pop(0))
                if budget <= 0: break
        for i, (m, a0, tt, c) in enumerate(steps):
            q += fills.get(i, [])
            ld.wait(tok[i])
            x = XB + (i % 8) * 4
            for tau in range(2):
                a = a0 + (tt * 2 + tau) * 4
                w = wop(m, tau, c)
                cc = a if c else None
                A(mfd(a, x, w, cc) if m == "v" else mfd(a, w, x, cc))
                if tau == 0 and i + AH < len(steps): rd(i + AH)
                else: fill(2)
        for x in q: A(x)
    def epi_k(tt, a0, base, scale):
        f = L(); a = a0 + tt * 8
        if scale:
            for r in range(8): f(f"v_mul_f32 v{a+r}, s{sC}, v{a+r}")
        for r in range(4): f(f"v_cvt_pk_bf16_f32 v{PK+tt*4+r}, v{a+2*r}, v{a+2*r+1}")
        f(f"buffer_store_dwordx4 v[{PK+tt*4}:{PK+tt*4+3}], v{qL16}, {W}, s{base} offen offset:{tt*1024} sc1")
        return f
    def epi_v(tt, a0):
        f = L()
        for tau in range(2):
            a = a0 + (tt * 2 + tau) * 4
            for r in range(2): f(f"v_cvt_pk_bf16_f32 v{PK+8+tau*4+tt*2+r}, v{a+2*r}, v{a+2*r+1}")
        return f
    sB = sTmp + 3
    nextload = [f"s_load_dword s{sNxt}, s[{sTab}:{sTab+1}], 0"]
    mk = P.get("midkv", 20)
    run([("k", ACC), ("v", ACC + 16)],
        {0: head_fill() + [f"s_lshl_b32 s{sB}, s{sOut}, 12", f"s_add_u32 s{sB}, s{sB}, {KV}"], mk: mid_fill(),
         36: epi_k(0, ACC, sB, True), 44: epi_k(1, ACC, sB, True), 52: epi_v(0, ACC + 16)})
    A(nextload[0])
    for x in epi_v(1, ACC + 16): A(x)
    for tau in range(2):
        A(f"buffer_store_dwordx4 v[{PK+8+tau*4}:{PK+8+tau*4+3}], v{qL16}, {W}, s{sB} offen offset:{2048+tau*1024} sc1")
    A(f"s_lshl_b32 s{sPend}, s{sOut}, 2\ns_add_u32 s{sPend}, s{sPend}, {F_KV}\ns_waitcnt vmcnt(5)\ns_branch {TOP}")
    A(f"{QBLK}:")
    run([("q", ACC)], {0: head_fill() + [f"s_lshl_b32 s{sB}, s{sOut}, 11", f"s_add_u32 s{sB}, s{sB}, {QX}"], P.get("midq", 14): mid_fill(),
                       27: epi_k(0, ACC, sB, False)})
    A(nextload[0])
    for x in epi_k(1, ACC, sB, False): A(x)
    A(f"s_lshl_b32 s{sPend}, s{sOut}, 2\ns_add_u32 s{sPend}, s{sPend}, {F_Q}\ns_waitcnt vmcnt(3)\ns_branch {TOP}")
    CSK = A.label("q_csk")
    A(f"{COND}:")
    A(f"s_bitcmp1_b32 s{sCur}, {T_DEC}\ns_cbranch_scc1 {DEC}")
    A(f"s_cmp_eq_u32 s{sFk}, 0\ns_cbranch_scc1 {CSK}")
    A(f"s_bitcmp1_b32 s{sCur}, {T_CQ}\ns_cbranch_scc1 {COND2}\ns_mov_b32 s{sSpin}, 0")
    A(f"s_and_b32 s{sTmp+2}, s{sCur}, 63\ns_lshl_b32 s{sTmp+2}, s{sTmp+2}, 7\ns_add_u32 s{sTmp+2}, s{sTmp+2}, {F_G}")
    A(f"{CPOLL}:\nbuffer_load_dword v{qT0}, off, {W}, s{sTmp+2} sc1")
    spin(A, FAIL)
    A("s_waitcnt vmcnt(0)")
    post_pending(A)
    A(f"v_cmp_eq_u32 vcc, 0, v{qT0}\ns_cbranch_vccnz {CPOLL}")
    A(f"""
    s_barrier
    s_cmp_lg_u32 s{sW}, 0
    s_cbranch_scc1 {CNP}
    s_andn2_b32 s{sTmp}, 31, s{sRun}
    s_lshl_b32 s{sTmp+1}, s{sTmp}, 10
    s_add_u32 m0, s{sTmp+1}, s{sPar}
    s_and_b32 s{sTmp}, s{sTmp}, 15
    s_lshl_b32 s{sTmp}, s{sTmp}, 4
    v_xor_b32 v{qT1}, s{sTmp}, v{qL16}
    s_and_b32 s{sTmp}, s{sCur}, 63
    s_lshl_b32 s{sTmp}, s{sTmp}, 11
    s_add_u32 s{sTmp}, s{sTmp}, {XM + 1024}
    buffer_load_dwordx4 v{qT1}, {W}, s{sTmp} offen sc1 lds
    s_waitcnt vmcnt(0)
    {CNP}:
    s_barrier
    {COND2}:
    s_and_b32 s{sOut}, s{sCur}, 63
    s_add_u32 s{sOut}, s{sOut}, 128
    s_branch {CGO}
    {CSK}:
    {nextload[0]}
    s_branch {TOP}
    """)
    A(f"{DEC}:\ns_mov_b32 s{sSpin}, 0\n{DPOLL}:")
    flag_load(sCur)
    spin(A, FAIL)
    A("s_waitcnt vmcnt(0)")
    post_pending(A)
    A(f"v_cmp_eq_u32 vcc, 0, v{qT0}\ns_cbranch_vccnz {DPOLL}")
    for rot in (8, 4, 2, 1): A(f"v_max_u32_dpp v{qT0}, v{qT0}, v{qT0} row_ror:{rot} row_mask:0xf bank_mask:0xf")
    for gg in range(4): A(f"v_readlane_b32 s{sTmp+2+gg}, v{qT0}, {16*gg}")
    A(f"""
    s_max_u32 s{sTmp+2}, s{sTmp+2}, s{sTmp+3}
    s_max_u32 s{sRun}, s{sRun}, s{sTmp+2}
    s_max_u32 s{sTmp+4}, s{sTmp+4}, s{sTmp+5}
    s_cmp_gt_u32 s{sTmp+4}, s{sRun}
    s_cselect_b32 s{sFk}, 1, 0
    s_cbranch_scc0 {NOF}
    s_mov_b32 s{sRun}, s{sTmp+4}
    s_mov_b32 s{sKey}, s{sTmp+4}
    """)
    def fin_fork(XF, PKr, TM):
        A(f"s_and_b32 s{sTmp+2}, s{sCur}, 63\ns_lshl_b32 s{sTmp+1}, s{sTmp+2}, 11\ns_add_u32 s{sTmp+1}, s{sTmp+1}, {XM}")
        A(f"buffer_store_dwordx4 v[{PKr}:{PKr+3}], v{qL16}, {W}, s{sTmp+1} offen sc1")
        layernorm(A, XF, None, TM + 12, TM)
        A(f"buffer_store_dwordx4 v[{TM+12}:{TM+15}], v{qL16}, {W}, s{sTmp+1} offen offset:1024 sc1")
        A(f"v_mov_b32 v{qT2}, s{sKey}\ns_lshl_b32 s{sTmp+1}, s{sTmp+2}, 7\ns_add_u32 s{sTmp+1}, s{sTmp+1}, {F_G}\ns_waitcnt vmcnt(0)")
        A(f"s_mov_b64 exec, 1\nbuffer_store_dword v{qT2}, off, {W}, s{sTmp+1} sc1\ns_mov_b64 exec, -1")
    trace(A, 3, 126, sCur)
    mlp(A, FAIL, 52, 19, None, fin_fork)
    trace(A, 4, 126)
    A(f"s_branch {DECR}")
    A(f"""
    {NOF}:
    s_and_b32 s{sTmp}, s{sCur}, 63
    s_lshl_b32 s{sTmp}, s{sTmp}, 5
    s_add_u32 s{sTmp}, s{sTmp}, s{sJ}
    s_lshl_b32 s{sTmp}, s{sTmp}, 2
    s_add_u32 s{sTmp}, s{sTmp}, s{sW}
    s_lshl_b32 s{sTmp}, s{sTmp}, 2
    s_add_u32 s{sTmp}, s{sTmp}, {F_KV + 65536}
    v_mov_b32 v{qT1}, 2
    s_mov_b64 exec, 1
    buffer_store_dword v{qT1}, off, {W}, s{sTmp} sc1
    s_mov_b64 exec, -1
    s_branch {DECR}
    """)
    A(f"{END}:")
    A("s_waitcnt vmcnt(0)")
    post_pending(A)
    A(f"s_cmp_lg_u32 s{sRep}, 1\ns_cbranch_scc1 {FAIL}")
    if P.get("nofinal"): A(f"s_branch {FAIL}")
    A(f"s_load_dwordx2 s[{sO}:{sO+1}], s[0:1], {KA['out']}\ns_mov_b32 s{sO+2}, {2*MB}\ns_mov_b32 s{sO+3}, 0x20000")
    def getkey():
        Lw = A.label("k_w")
        off = F_XN + 4 * 8192
        A(f"s_mov_b32 s{sSpin}, 0\ns_mov_b32 s{sTmp}, {off}\ns_mov_b32 s{sTmp+1}, {off+4096}\n{Lw}:")
        for i in range(8): A(f"buffer_load_dwordx4 v[{20+4*i}:{23+4*i}], v{qL16}, {W}, s{sTmp+i//4} offen offset:{(i%4)*1024} sc1")
        spin(A, FAIL)
        A("s_waitcnt vmcnt(0)")
        A("v_min_u32 v52, v20, v21\nv_max_u32 v53, v20, v21")
        for i in range(22, 52, 2): A(f"v_min3_u32 v52, v{i}, v{i+1}, v52\nv_max3_u32 v53, v{i}, v{i+1}, v53")
        A(f"v_cmp_eq_u32 vcc, 0, v52\ns_cbranch_vccnz {Lw}")
        for rot in (8, 4, 2, 1): A(f"v_max_u32_dpp v53, v53, v53 row_ror:{rot} row_mask:0xf bank_mask:0xf")
        for sw in ("16", "32"): A(f"v_mov_b32 v52, v53\nv_permlane{sw}_swap_b32 v53, v52\nv_max_u32 v53, v53, v52")
        A(f"v_readfirstlane_b32 s{sKey}, v53")
        trace(A, 5, 126)
        A(f"s_andn2_b32 s{sTmp}, 0xfe0, s{sRun}\ns_andn2_b32 s{sTmp+1}, 0xfe0, s{sKey}\ns_cmp_lt_u32 s{sTmp+1}, s{sTmp}\ns_cselect_b32 s{sKind}, 1, 2")
    def fin_out(XF, PKr, TM):
        A(f"s_lshl_b32 s{sTmp}, s{sRow}, 10\nbuffer_store_dwordx4 v[{PKr}:{PKr+3}], v{qL16}, s[{sO}:{sO+3}], s{sTmp} offen sc1")
    mlp(A, FAIL, 256, 46, getkey, fin_out)
    trace(A, 6, 126)
    A(f"{FAIL}:")

def qkv_table(label, lists=None):
    Ls = [encode(l) for l in (lists or task_lists())]
    n = max(len(x) for x in Ls)
    txt = f".p2align 2\n{label}:\n"
    for l in Ls:
        txt += ".long " + ", ".join(hex(x) for x in l + [0] * (n - len(l))) + "\n"
    return txt, n * 4
```

```python
import sys
from asmlib import *
from layout import *
import common
import chain as C, qkv as Q, orole as O
from chain import sWS, sT, sJ, sW, sTmp

NAME = "interleave_layers__memory_aug_recurrent_mem_tr__moe_arch_mod__prompt"
KN = NAME + "_kernel"
sDbg = 12
sSlot = 90
sXcd = 91
D_OVF, D_INIT, D_TEAM = 128, 160, 192

def wait_counter(A, off, target, fail, vt=20):
    L = A.label("g_wc")
    A(f"s_mov_b32 s{sTmp}, 0\nv_mov_b32 v{vt}, {off}\n{L}:\nglobal_load_dword v{vt+1}, v{vt}, s[{sDbg}:{sDbg+1}] sc1")
    A(f"s_add_u32 s{sTmp}, s{sTmp}, 1\ns_cmp_gt_u32 s{sTmp}, {SPIN_MAX}\ns_cbranch_scc1 {fail}")
    A(f"s_waitcnt vmcnt(0)\nv_readfirstlane_b32 s{sTmp+1}, v{vt+1}\ns_cmp_lt_u32 s{sTmp+1}, {target}\ns_cbranch_scc1 {L}")

def load_counts(A, vt, lane16):
    A(f"v_and_b32 v{vt}, 0x70, v{lane16}\nglobal_load_dword v{vt+1}, v{vt}, s[{sDbg}:{sDbg+1}] sc1\ns_waitcnt vmcnt(0)")
    for x in range(8): A(f"v_readlane_b32 s{sTmp+2+x}, v{vt+1}, {x}")
    A(f"s_add_u32 s{sTmp+1}, s{sTmp+2}, s{sTmp+3}")
    for x in range(2, 8): A(f"s_add_u32 s{sTmp+1}, s{sTmp+1}, s{sTmp+2+x}")

def purity(A, impure, fail, vt, lane16):
    L, OK = A.label("g_pu"), A.label("g_pure")
    A(f"s_mov_b32 s{sTmp}, 0\n{L}:")
    load_counts(A, vt, lane16)
    A(f"v_readlane_b32 s{sTmp+10}, v{vt+1}, s{sXcd}")
    A(f"s_cmp_ge_u32 s{sTmp+10}, 32\ns_cbranch_scc1 {OK}\ns_cmp_ge_u32 s{sTmp+1}, 256\ns_cbranch_scc1 {impure}")
    A(f"s_add_u32 s{sTmp}, s{sTmp}, 1\ns_cmp_gt_u32 s{sTmp}, {SPIN_MAX}\ns_cbranch_scc1 {fail}\ns_branch {L}\n{OK}:")

def arrive(A, off_sgpr_or_imm, vt=20):
    L = A.label("g_ar")
    A(f"s_cmp_lg_u32 s{sW}, 0\ns_cbranch_scc1 {L}\nv_mov_b32 v{vt}, {off_sgpr_or_imm}\nv_mov_b32 v{vt+1}, 1\ns_mov_b64 exec, 1")
    A(f"global_atomic_add v{vt}, v{vt+1}, s[{sDbg}:{sDbg+1}]\ns_mov_b64 exec, -1\n{L}:")

def entry(A, P):
    A(f"""
    s_cmp_ge_u32 s2, 256
    s_cbranch_scc1 L_end
    s_load_dwordx2 s[{sWS}:{sWS+1}], s[0:1], {KA['ws']}
    s_load_dwordx2 s[{sDbg}:{sDbg+1}], s[0:1], {KA['dbg']}
    s_mov_b32 s{sWS+2}, {WS_BYTES}
    s_mov_b32 s{sWS+3}, 0x20000
    s_mov_b32 s{sT+3}, 0x20000
    s_getreg_b32 s{sXcd}, hwreg(HW_REG_XCC_ID)
    s_and_b32 s{sXcd}, s{sXcd}, 7
    v_lshrrev_b32 v1, 6, v0
    v_mov_b32 v2, 0
    v_readfirstlane_b32 s{sW}, v1
    """)
    if P.get("fake_xcc"): A(P["fake_xcc"])
    A(f"""
    s_waitcnt lgkmcnt(0)
    s_cmp_lg_u32 s{sW}, 0
    s_cbranch_scc1 L_got
    s_lshl_b32 s{sTmp}, s{sXcd}, 4
    v_mov_b32 v3, s{sTmp}
    v_mov_b32 v4, 1
    s_mov_b64 exec, 1
    global_atomic_add v5, v3, v4, s[{sDbg}:{sDbg+1}] sc0
    s_mov_b64 exec, -1
    s_waitcnt vmcnt(0)
    v_readfirstlane_b32 s{sSlot}, v5
    s_cmp_ge_u32 s{sSlot}, 32
    s_cbranch_scc1 L_ovf
    s_lshl_b32 s{sTmp}, s{sXcd}, 5
    s_add_u32 s{sSlot}, s{sSlot}, s{sTmp}
L_pub:
    v_mov_b32 v3, s{sSlot}
    ds_write_b32 v2, v3
    s_waitcnt lgkmcnt(0)
L_got:
    s_barrier
    ds_read_b32 v3, v2
    s_waitcnt lgkmcnt(0)
    v_readfirstlane_b32 s{sSlot}, v3
    s_barrier
    s_cmp_ge_u32 s{sSlot}, 256
    s_cbranch_scc1 L_end
    s_lshl_b32 s100, s{sSlot}, 2
    s_add_u32 s100, s100, s{sW}
    s_lshl_b32 s100, s100, 12
    s_add_u32 s100, s100, {TRACE}
    """)
    common.trace(A, 0, 10)
    A(f"""
    s_lshr_b32 s{sXcd}, s{sSlot}, 5
    s_cmp_lt_u32 s{sXcd}, 3
    s_cbranch_scc1 L_chain
    s_cmp_lt_u32 s{sXcd}, 6
    s_cbranch_scc1 L_qkv
    s_branch L_o
L_ovf:
    v_mov_b32 v3, {D_OVF}
    s_mov_b64 exec, 1
    global_atomic_add v5, v3, v4, s[{sDbg}:{sDbg+1}] sc0
    s_mov_b64 exec, -1
    s_waitcnt vmcnt(0)
    v_readfirstlane_b32 s{sTmp+11}, v5
    v_lshlrev_b32 v6, 4, v0
    s_mov_b32 s{sTmp}, 0
    s_mov_b32 s{sSlot}, 256
L_ovw:
    """)
    load_counts(A, 7, 6)
    A(f"s_add_u32 s{sTmp}, s{sTmp}, 1\ns_cmp_gt_u32 s{sTmp}, {SPIN_MAX}\ns_cbranch_scc1 L_pub\ns_cmp_lt_u32 s{sTmp+1}, 256\ns_cbranch_scc1 L_ovw")
    for x in range(8):
        A(f"""
        s_min_u32 s{sTmp+2+x}, s{sTmp+2+x}, 32
        s_add_u32 s{sTmp+11}, s{sTmp+11}, s{sTmp+2+x}
        s_add_u32 s{sSlot}, s{sTmp+11}, {32*x}
        s_cmp_lt_u32 s{sTmp+11}, 32
        s_cbranch_scc1 L_pub
        s_sub_u32 s{sTmp+11}, s{sTmp+11}, 32
        """)
    A(f"s_mov_b32 s{sSlot}, 256\ns_branch L_pub")

def chain_role(A, P):
    A("L_chain:")
    A(f"s_and_b32 s{sJ}, s{sSlot}, 31\ns_mov_b32 s{C.sChain}, s{sXcd}\ns_min_u32 s{C.sLayer}, s{sXcd}, 1")
    C.lane_consts(A)
    C.chain_prologue(A)
    A(f"s_lshl_b32 s{sTmp+12}, s{sXcd}, 2\ns_add_u32 s{sTmp+12}, s{sTmp+12}, {D_TEAM}")
    arrive(A, f"s{sTmp+12}")
    C.chain_load_weights(A)
    wait_counter(A, f"s{sTmp+12}", 32, "L_end")
    wait_counter(A, D_INIT, 64, "L_end")
    purity(A, "L_chain_x", "L_end", 20, C.vL16)
    CP = dict(P.get("chain", {}), steady=0)
    C.chain_loop(A, CP)
    A("s_endpgm\nL_chain_x:")
    C.chain_loop(A, dict(CP, st="sc1"))
    A("s_endpgm")

def qkv_role(A, P, stride):
    A("L_qkv:")
    A(f"""
    s_sub_u32 s{sTmp}, s{sSlot}, 96
    s_mul_i32 s{sJ}, s{sTmp}, 171
    s_lshr_b32 s{sJ}, s{sJ}, 9
    s_mul_i32 s{sTmp+1}, s{sJ}, 3
    s_sub_u32 s60, s{sTmp}, s{sTmp+1}
    """)
    Q.qkv_role(A, "qkv_tab", stride, P.get("qkv", {}), after_weights=lambda: wait_counter(A, D_INIT, 64, "L_end"))
    A("s_endpgm")

def o_body(A, P):
    LR = P.get("lr", 4)
    ROUND, TASK, NEXT, D1, D2, DNEXT, TLOOP, NOFL, FL, T2 = [A.label("o_" + x) for x in
        ("round", "task", "next", "d1", "d2", "dnext", "tloop", "nofl", "fl", "t2")]
    sP, sBn, sQ = 52, 53, 54
    def bdesc(dst, fin):
        A(f"s_andn2_b32 s{sTmp}, 31, s{O.sRun}\ns_or_b32 s{sTmp}, s{sTmp}, 32\ns_lshl_b32 s{sTmp}, s{sTmp}, {O.B_ROW}\ns_or_b32 s{sTmp}, s{sTmp}, {O.desc(2, 2, 1, 4 if fin else 3)}")
        A(f"s_cmp_eq_u32 s{sQ}, s{sP}\ns_cselect_b32 s{dst}, s{sTmp}, {O.desc(1, 2, 1, 4 if fin else 3, 0 if fin else 1)}\ns_or_b32 s{dst}, s{dst}, s{sQ}")
    def fdesc(dst):
        bdesc(dst, True)
        A(f"s_or_b32 s{sTmp}, s{sQ}, {O.desc(1, 1, 1, 4)}\ns_cmp_lt_u32 s{sQ}, s{sP}\ns_cselect_b32 s{dst}, s{sTmp}, s{dst}\ns_cmp_lt_u32 s{sQ}, 64\ns_cselect_b32 s{dst}, s{dst}, 0")
    A(f"""
    s_mov_b32 s{O.sTask}, 0
    s_mov_b32 s{O.sRun}, 0
    s_mov_b32 s{O.sBoth}, 0
    s_mov_b32 s{O.sPrev}, 0
    s_mov_b32 s{O.sPre}, 0
    s_mov_b32 s{O.sPreK}, 0
    s_mov_b32 s{O.sPend}, {WS_BYTES}
    s_mov_b32 s{O.sStg}, {O.L_ST[0]}
    s_mov_b32 s{O.sD}, s{O.sRep}
    s_mov_b32 s{O.sS}, s{O.sRep}
    {ROUND}:
    """)
    O.decide(A, "L_end")
    A(f"""
    s_andn2_b32 s{sP}, 0xfff, s{O.sRun}
    s_lshr_b32 s{sP}, s{sP}, 5
    s_or_b32 s{O.sCur}, s{O.sS}, {O.desc(0, 0, 0, 1)}
    s_add_u32 s{sBn}, s{O.sCur}, 4
    s_cmp_lt_u32 s{O.sS}, 60
    s_cselect_b32 s{sBn}, s{sBn}, 0
    s_or_b32 s{sTmp}, s{O.sD}, {O.desc(1, 1, 1, 4)}
    s_or_b32 s{sTmp+1}, s{O.sD}, {O.desc(1, 1, 0, 2)}
    s_cmp_lt_u32 s{O.sD}, s{sP}
    s_cselect_b32 s{O.sNxt}, s{sTmp}, s{sTmp+1}
    s_add_u32 s{sTmp}, s{O.sD}, {4*LR}
    s_cmp_le_u32 s{sTmp}, s{O.sS}
    s_cselect_b32 s{O.sNxt}, s{O.sNxt}, s{sBn}
    s_cselect_b32 s{O.sRet}, 1, 0
    {TASK}:
    """)
    O.o_task(A, P, "L_end")
    A(f"s_cmp_eq_u32 s{O.sRet}, 0\ns_cbranch_scc1 {FL}\ns_cmp_lg_u32 s{O.sPreK}, 0\ns_cbranch_scc1 {NOFL}\n{FL}:")
    O.r_flush(A, P, "L_end")
    A(f"""
    {NOFL}:
    s_mov_b32 s{O.sCur}, s{O.sNxt}
    s_cmp_eq_u32 s{O.sRet}, 1
    s_cbranch_scc1 {D1}
    s_cmp_eq_u32 s{O.sRet}, 2
    s_cbranch_scc1 {D2}
    s_cmp_eq_u32 s{O.sRet}, 4
    s_cbranch_scc1 {TLOOP}
    s_cmp_eq_u32 s{O.sRet}, 0
    s_cbranch_scc1 {NEXT}
    s_add_u32 s{O.sD}, s{O.sD}, 4
    {NEXT}:
    s_add_u32 s{O.sS}, s{O.sS}, 4
    s_cmp_lt_u32 s{O.sS}, 64
    s_cbranch_scc1 {ROUND}
    """)
    O.wait_all_keys(A, F_XN + 8192, "L_end")
    A(f"s_mov_b32 s{O.sRun}, s{O.sKey}\ns_andn2_b32 s{sP}, 0xfff, s{O.sRun}\ns_lshr_b32 s{sP}, s{sP}, 5")
    O.fixup(A)
    A(f"s_mov_b32 s{sQ}, s{O.sD}")
    fdesc(O.sCur)
    A(f"{TLOOP}:\ns_cmp_eq_u32 s{O.sCur}, 0\ns_cbranch_scc1 L_end")
    A(f"s_add_u32 s{sQ}, s{sQ}, 4")
    fdesc(O.sNxt)
    A(f"s_mov_b32 s{O.sRet}, 4\ns_branch {TASK}")
    A(f"{D1}:\ns_cmp_lt_u32 s{O.sD}, s{sP}\ns_cbranch_scc1 {D2}")
    A(f"s_lshr_b32 s{sTmp}, s{O.sD}, 2\ns_bitset1_b32 s{O.sBoth}, s{sTmp}\ns_mov_b32 s{sQ}, s{O.sD}")
    bdesc(O.sNxt, False)
    A(f"s_mov_b32 s{O.sRet}, 2\ns_branch {TASK}")
    A(f"{D2}:\ns_mov_b32 s{O.sNxt}, s{sBn}\ns_mov_b32 s{O.sRet}, 3\ns_branch {TASK}")

def o_role(A, P):
    W = f"s[{sWS}:{sWS+3}]"
    A("L_o:")
    A(f"s_sub_u32 s{sTmp}, s{sSlot}, 192\ns_lshr_b32 s{O.sRep}, s{sTmp}, 4\ns_and_b32 s{O.sU}, s{sTmp}, 15")
    A(f"s_lshl_b32 s{sTmp}, s{sTmp}, 13\ns_add_u32 s{sTmp}, s{sTmp}, {FLAGS}\nv_lshlrev_b32 v1, 4, v0\nv_mov_b64 v[4:5], 0\nv_mov_b64 v[6:7], 0")
    A(f"buffer_store_dwordx4 v[4:7], v1, {W}, s{sTmp} offen sc1\ns_add_u32 s{sTmp}, s{sTmp}, 4096\nbuffer_store_dwordx4 v[4:7], v1, {W}, s{sTmp} offen sc1")
    A(f"v_mov_b64 v[8:9], -1\nv_mov_b64 v[10:11], -1\ns_add_u32 s{sTmp}, s{sTmp}, {MEMH - FLAGS - 4096}")
    A(f"buffer_store_dwordx4 v[8:11], v1, {W}, s{sTmp} offen sc1\ns_add_u32 s{sTmp}, s{sTmp}, 4096\nbuffer_store_dwordx4 v[8:11], v1, {W}, s{sTmp} offen sc1")
    O.o_consts(A)
    A("s_barrier")
    arrive(A, D_INIT, 60)
    O.o_ln0(A)
    wait_counter(A, D_INIT, 64, "L_end", 60)
    O.o_ln0_compute(A)
    O.o_load_weights(A)
    purity(A, "L_o_x", "L_end", 60, O.oL16)
    OP = P.get("o", {})
    o_body(A, OP)
    A("L_o_x:")
    o_body(A, dict(OP, st="sc1"))

HEAD = open("cdna_kernels/" + NAME + ".s.ref").read().split("; Override launch")[0] if True else ""

def generate(P):
    common.TRACE_ON[0] = bool(P.get("trace"))
    A = Asm()
    tab, stride = Q.qkv_table("qkv_tab")
    entry(A, P)
    A("L_end:\ns_endpgm")
    chain_role(A, P); qkv_role(A, P, stride); o_role(A, P)
    body = A.text(verbose=P.get("verbose", False))
    return (HEAD + "; @launch grid=(256,1,1) block=(256,1,1) lds=163840\n"
            + f'.amdgcn_target "amdgcn-amd-amdhsa--gfx950"\n.text\n.globl {KN}\n.p2align 8\n.type {KN},@function\n{KN}:\n'
            + body + tab + f"""
.section .rodata,"a"
.p2align 6
.amdhsa_kernel {KN}
  .amdhsa_next_free_vgpr 512
  .amdhsa_next_free_sgpr 102
  .amdhsa_accum_offset 256
  .amdhsa_group_segment_fixed_size 0
  .amdhsa_kernarg_size 120
  .amdhsa_user_sgpr_count 2
  .amdhsa_user_sgpr_kernarg_segment_ptr 1
  .amdhsa_system_sgpr_workgroup_id_x 1
  .amdhsa_float_denorm_mode_32 3
.end_amdhsa_kernel
""")

DEFAULT = dict(chain=dict(pubpos="early", d1=280, d2=120, nsh=3, g1=60), qkv=dict(midkv=12, midq=8))
if __name__ == "__main__":
    P = dict(DEFAULT)
    if len(sys.argv) > 2: P.update(eval(sys.argv[2]))
    out = sys.argv[1] if len(sys.argv) > 1 else "/code/" + NAME + ".s"
    txt = generate(P)
    open(out, "w").write(txt)
    print("wrote", out, len(txt), "bytes", txt.count("\n"), "lines")
```

```python
from asmlib import *
from layout import *
from common import trace, w_src_regs, w_stage_dma
import math, struct
def f32bits(x): return struct.unpack("<I", struct.pack("<f", x))[0]

class Cnt:
    def __init__(self, A, name, mx):
        self.A, self.name, self.mx, self.q = A, name, mx, []
        self.n = 0
    def issue(self, txt):
        if self.mx == 63 and len(self.q) >= 62: self.wait(self.q[7])
        self.A(txt); self.n += 1; self.q.append(self.n); return self.n
    def wait(self, tok):
        if tok not in self.q: return
        after = len(self.q) - 1 - self.q.index(tok)
        self.A(f"s_waitcnt {self.name}({min(after, self.mx)})")
        self.q = self.q[self.q.index(tok) + 1:]
    def drain(self):
        self.A(f"s_waitcnt {self.name}(0)"); self.q = []
    def reset(self): self.q = []

def delay(A, cyc):
    n = cyc // 4
    while n > 0:
        k = min(n, 16); A(f"s_nop {k-1}"); n -= k

L_MEM, L_QK, L_PS, L_O, L_WO, L_W = 0, 8192, 12288, 0, 16384, 65536
L_KV = 20480
vL16, vLW, vCQ, vCR, vPS, vAGS, vIDX, T0 = range(8)
vW16 = 8
vCRW = 12
T1, T2, T3 = 17, 18, 19
MEMA = 16
LAMPOS = {0: 0, 4: 1, 1: 2, 2: 3, 3: 4, 5: 5, 6: 6, 7: 7}
def mema(lam): return MEMA + 4 * LAMPOS[lam]
QA, KA_, VA = 48, 56, 64
ST = [72 + 8 * i for i in range(7)]
KXR, VX, SOP = 72, 80, 88
OWN = [("q", 0, 0), ("q", 1, 0), ("k", 0, 0), ("k", 1, 0), ("q", 0, 4), ("q", 1, 4), ("k", 0, 4), ("k", 1, 4),
       ("v", 0, 0), ("v", 1, 0), ("v", 0, 4), ("v", 1, 4)]
NE = 10
ESLOT = [MEMA + 8, MEMA + 16, MEMA + 24] + ST
WO_ORDER = [(T, ko) for T in range(8) for ko in range(2)]
WSLOT = [104, 112, 120, MEMA, SOP, SOP + 8]
NO_REG = 10
LOC = {}
for i, k in enumerate(OWN[:NE]): LOC[k] = ("l", i)
for i, (T, ko) in enumerate(WO_ORDER[NO_REG:]): LOC[("o", T, ko)] = ("l", NE + i)
_r = 504
for (T, ko) in WO_ORDER[:NO_REG]:
    LOC[("o", T, ko)] = ("r", _r); _r -= 8
for m in "qkv":
    for tau in range(2):
        for lam in range(8):
            if (m, tau, lam) not in LOC:
                LOC[(m, tau, lam)] = ("r", _r); _r -= 8
assert _r == 120
sWS = 4
sT = 8
sJ, sW = 16, 17
sHALF = 18
sONE = 14
sStep = 22
sKV = 23
sC = 24
sKM = 25
sTmp = 26
sIn = 40
sAG = 42
sLo, sHi = 44, 45
sCnt = 46
sBox = 38
sPar = 3
sFm = 2
sChain, sLayer, sAgr, sFkv, sFkm, sRdy = 60, 61, 62, 63, 64, 65
sFg, sFgS, sG, sFork, sKVd, sMH = 92, 93, 94, 95, 96, 97
sSt = 66
sAcc = 48

def lane_consts(A):
    A(f"""
    v_lshrrev_b32 v{T2}, 6, v0
    v_and_b32 v{T3}, 63, v0
    v_readfirstlane_b32 s{sW}, v{T2}
    v_and_b32 v{T0}, 15, v{T3}
    v_lshrrev_b32 v{T1}, 4, v{T3}
    v_lshlrev_b32 v{vL16}, 4, v{T3}
    """)

def put(A, dst_loc, regidx, src_txt, tmp):
    raise NotImplementedError

def chain_prologue(A):
    n, g = T0, T1
    sM = 56
    vm = Cnt(A, "vmcnt", 63)
    A(f"s_load_dwordx2 s[{sM}:{sM+1}], s[0:1], {KA['mem0']}")
    A(f"""
    s_mov_b32 s{sLo}, 0x05040100
    s_mov_b32 s{sHi}, 0x07060302
    s_mov_b32 s{sHALF}, 0xcccccccc
    s_mov_b32 s{sHALF+1}, 0xcccccccc
    s_mov_b32 s{sC}, {hex(f32bits(128 ** -0.5 * math.log2(math.e)))}
    s_lshl_b32 s{sTmp}, s{sW}, 10
    v_add_u32 v{vW16}, s{sTmp}, v{vL16}
    v_xor_b32 v{vW16+1}, 1024, v{vW16}
    v_xor_b32 v{vW16+2}, 2048, v{vW16}
    v_xor_b32 v{vW16+3}, 3072, v{vW16}
    s_mov_b32 s{sONE}, 0x3f803f80
    s_mov_b32 s{sONE+1}, 0x3f803f80
    s_mul_i32 s{sTmp+1}, s{sW}, 24576
    s_add_u32 s{sTmp+1}, s{sTmp+1}, {L_W}
    v_add_u32 v{vLW}, s{sTmp+1}, v{vL16}
    v_lshrrev_b32 v20, 2, v{n}
    v_xor_b32 v21, v{g}, v20
    v_lshlrev_b32 v22, 5, v{n}
    v_add_u32 v22, s{sTmp}, v22
    v_lshl_add_u32 v{vCQ}, v21, 3, v22
    v_and_b32 v21, 3, v{n}
    v_xor_b32 v21, v21, v{g}
    v_lshl_add_u32 v22, v{g}, 2, v20
    v_lshlrev_b32 v22, 5, v22
    v_lshl_add_u32 v{vCR}, v21, 3, v22
    v_add_u32 v{vCRW}, s{sTmp}, v{vCR}
    v_xor_b32 v{vCRW+1}, 1024, v{vCRW}
    v_xor_b32 v{vCRW+2}, 2048, v{vCRW}
    v_xor_b32 v{vCRW+3}, 3072, v{vCRW}
    ; partial store offset: consumer (8w + n/4)*8192 + j*256 + (4g + n%4)*16
    v_lshlrev_b32 v21, 13, v20
    v_and_b32 v22, 3, v{n}
    v_lshl_add_u32 v22, v{g}, 2, v22
    v_lshl_add_u32 v21, v22, 4, v21
    s_lshl_b32 s{sTmp+1}, s{sW}, 16
    s_lshl_b32 s{sTmp+2}, s{sJ}, 8
    s_add_u32 s{sTmp+1}, s{sTmp+1}, s{sTmp+2}
    v_add_u32 v{vPS}, s{sTmp+1}, v21
    v_and_b32 v21, 1, v{n}
    v_lshl_add_u32 v21, v{g}, 2, v21
    v_bfe_u32 v22, v{n}, 2, 1
    v_lshl_add_u32 v21, v22, 1, v21
    v_lshlrev_b32 v21, 4, v21
    v_bfe_u32 v22, v{n}, 1, 1
    v_lshl_add_u32 v21, v22, 3, v21
    v_add_u32 v{vAGS}, s{sTmp+2}, v21
    v_cmp_lt_u32 vcc, 7, v{n}
    v_mov_b32 v22, 0x7ff00000
    v_cndmask_b32 v{vAGS}, v{vAGS}, v22, vcc
    v_mov_b32 v21, 0x4444
    v_mov_b32 v22, 0xeeee
    v_cndmask_b32 v{vIDX}, v21, v22, s[{sHALF}:{sHALF+1}]
    """)
    A(f"s_lshl_b32 s{sIn}, s{sChain}, 20\ns_add_u32 s{sIn}, s{sIn}, {INBOX}\ns_add_u32 s{sIn+1}, s{sIn}, 32768")
    A(f"s_lshl_b32 s{sAgr}, s{sChain}, 16\ns_add_u32 s{sAgr}, s{sAgr}, {AGR}")
    A("v_mov_b32 v24, -1\nv_mov_b32 v25, -1\nv_mov_b32 v26, -1\nv_mov_b32 v27, -1")
    for st in range(2):
        vm.issue(f"buffer_store_dwordx4 v[24:27], v{vPS}, s[{sWS}:{sWS+3}], s{sIn+st} offen sc1")
    for slot in range(1, 3):
        A(f"s_add_u32 s{sTmp+1}, s{sAgr}, {slot * 8192}")
        vm.issue(f"buffer_store_dwordx2 v[24:25], v{vAGS}, s[{sWS}:{sWS+3}], s{sTmp+1} offen sc1")
    A(f"""
    s_mov_b32 s{sM+2}, 8192
    s_mov_b32 s{sM+3}, 0x20000
    v_and_b32 v21, 1, v{n}
    v_lshl_add_u32 v21, v{g}, 1, v21
    v_lshlrev_b32 v21, 10, v21
    v_bfe_u32 v22, v{n}, 1, 2
    v_lshl_add_u32 v21, v22, 1, v21
    s_lshr_b32 s{sTmp+1}, s{sJ}, 3
    s_lshl_b32 s{sTmp+1}, s{sTmp+1}, 8
    s_and_b32 s{sTmp+2}, s{sJ}, 3
    s_lshl_b32 s{sTmp+2}, s{sTmp+2}, 6
    s_add_u32 s{sTmp+1}, s{sTmp+1}, s{sTmp+2}
    s_and_b32 s{sTmp+2}, s{sJ}, 4
    s_lshl_b32 s{sTmp+2}, s{sTmp+2}, 1
    s_add_u32 s{sTmp+1}, s{sTmp+1}, s{sTmp+2}
    s_waitcnt lgkmcnt(0)
    """)
    for i in range(4): tm = vm.issue(f"buffer_load_ushort v{28+i}, v21, s[{sM}:{sM+3}], s{sTmp+1} offen offset:{16*i}")
    def fin(vm):
        vm.wait(tm)
        A("v_lshl_or_b32 v28, v29, 16, v28\nv_lshl_or_b32 v29, v31, 16, v30\nv_min_u32 v28, -2, v28\nv_min_u32 v29, -2, v29")
        vm.issue(f"buffer_store_dwordx2 v[28:29], v{vAGS}, s[{sWS}:{sWS+3}], s{sAgr} offen sc1")
    return vm, fin

def emit_quad(A, loc, u, perms, tmp):
    kind, x = loc
    for rho, (s1, s0, sel) in enumerate(perms):
        if kind == "r" and x < 256:
            A(f"v_perm_b32 v{x+u*4+rho}, v{s1}, v{s0}, s{sel}")
        else:
            A(f"v_perm_b32 v{tmp+rho}, v{s1}, v{s0}, s{sel}")
    if kind == "r" and x >= 256:
        for rho in range(4): A(f"v_accvgpr_write_b32 a{x-256+u*4+rho}, v{tmp+rho}")
    if kind == "l":
        A(f"ds_write_b128 v{vW16}, v[{tmp}:{tmp+3}] offset:{L_WO+((x-NE)*2+u)*4096}\ns_waitcnt lgkmcnt(0)")

def chain_load_weights(A, vm0, fin, arrive, order="qkv", warm=None):
    n, g = T0, T1
    vm = Cnt(A, "vmcnt", 63); vm.q = list(vm0.q); vm.n = vm0.n
    def warm_up():
        LW = A.label("c_nw")
        A(f"s_cmp_eq_u32 s{sChain}, 0\ns_cbranch_scc1 {LW}")
        A(f"s_lshl_b32 s{sTmp}, s{sChain}, 5\ns_add_u32 s{sTmp}, s{sTmp}, s{sJ}\ns_lshl_b32 s{sTmp}, s{sTmp}, 2\ns_add_u32 s{sTmp}, s{sTmp}, s{sW}")
        A(f"s_mul_i32 s{sTmp}, s{sTmp}, 7168\ns_sub_u32 s{sTmp}, s{sTmp}, {128*7168}\ns_add_u32 s{sTmp+1}, s{sTmp}, 4096\ns_mov_b32 s{sT+2}, {512*1792*2}")
        for m in ("wg", "wu", "wd"):
            A(f"s_load_dwordx2 s[{sT}:{sT+1}], s[0:1], {KA[m]}\ns_waitcnt lgkmcnt(0)")
            for i in range(7): A(f"buffer_load_dwordx4 v[124:127], v{vL16}, s[{sT}:{sT+3}], s{sTmp+i//4} offen offset:{(i%4)*1024} {warm}")
        A(f"{LW}:")
    sK, sV = sTmp + 6, 48
    sQ = 52
    SRC, RD, HOLD, NS = 22, 104, 24, 3
    A(f"""
    s_load_dwordx2 s[{sT}:{sT+1}], s[0:1], {KA['wo']}
    s_load_dwordx2 s[{sQ}:{sQ+1}], s[0:1], {KA['wq']}
    s_load_dwordx2 s[{sK}:{sK+1}], s[0:1], {KA['wk']}
    s_load_dwordx2 s[{sV}:{sV+1}], s[0:1], {KA['wv']}
    s_mov_b32 s{sT+2}, {4*MB}
    s_mov_b32 s{sT+3}, 0x20000
    s_mov_b32 s{sQ+2}, {4*MB}
    s_mov_b32 s{sQ+3}, 0x20000
    s_mov_b32 s{sK+2}, {4*MB}
    s_mov_b32 s{sK+3}, 0x20000
    s_mov_b32 s{sV+2}, {4*MB}
    s_mov_b32 s{sV+3}, 0x20000
    v_and_b32 v20, 1, v{g}
    v_lshlrev_b32 v20, 5, v20
    v_lshrrev_b32 v21, 1, v{g}
    v_lshl_add_u32 v20, v21, 2, v20        ; 32*(g%2) + 4*(g/2)
    v_lshlrev_b32 v20, 10, v20
    v_lshl_add_u32 v20, v{n}, 4, v20
    s_lshl_b32 s{sTmp}, s{sJ}, 17
    s_lshl_b32 s{sTmp+1}, s{sW}, 8
    s_add_u32 s{sTmp}, s{sTmp}, s{sTmp+1}
    s_waitcnt lgkmcnt(0)
    """)
    toks = []
    for ko in range(2):
        for u in range(2):
            for sg in range(8):
                e = 64 * ko + 8 * u + 2 * (sg // 4) + sg % 2 + 16 * ((sg % 4) // 2)
                r = 128 + ((ko * 2 + u) * 8 + sg) * 4
                A(f"s_add_u32 s{sTmp+1}, s{sTmp}, {e * 1024}")
                tk = vm.issue(f"buffer_load_dwordx4 v[{r}:{r+3}], v20, s[{sT}:{sT+3}], s{sTmp+1} offen")
            toks.append(tk)
    w_src_regs(A, vL16, SRC, 20)
    A(f"""
    s_lshr_b32 s{sTmp}, s{sW}, 1
    s_lshl_b32 s{sTmp}, s{sTmp}, 20
    s_and_b32 s{sTmp+1}, s{sW}, 1
    s_lshl_b32 s{sTmp+1}, s{sTmp+1}, 18
    s_add_u32 s{sTmp}, s{sTmp}, s{sTmp+1}
    s_lshl_b32 s{sTmp+1}, s{sJ}, 8
    s_add_u32 s{sTmp}, s{sTmp}, s{sTmp+1}
    s_lshl_b32 s{sTmp+2}, s{sW}, 13
    """)
    srd = dict(q=sQ, k=sK, v=sV)
    jobs = [(m, lh, u) for m in order for lh in range(2) for u in range(2)]
    tk = {}
    def issue(i):
        m, lh, u = jobs[i]
        A(f"s_add_u32 s{sTmp+1}, s{sTmp}, {(256 * lh + 64 * u) * 8192}")
        tk[i] = w_stage_dma(A, vm, srd[m], SRC, sTmp + 1, sTmp + 2, L_W + (i % NS) * 32768, 8)
    for i in range(NS):
        if i == NS - 1: fin(vm)
        issue(i)
    A(f"""
    v_bfe_u32 v20, v{n}, 2, 1
    v_lshrrev_b32 v21, 3, v{n}
    v_and_b32 v{RD}, 1, v{g}
    v_lshl_add_u32 v21, v21, 1, v{RD}              ; row & 3
    v_lshl_add_u32 v{RD}, v20, 3, v21
    v_lshrrev_b32 v{RD+1}, 1, v{g}
    v_lshl_add_u32 v{RD}, v{RD+1}, 5, v{RD}          ; row
    v_lshl_add_u32 v20, v21, 1, v20                ; phi
    s_lshl_b32 s{sTmp+3}, s{sW}, 1
    v_xor_b32 v20, s{sTmp+3}, v20
    v_lshlrev_b32 v20, 5, v20
    v_lshl_add_u32 v20, v{RD}, 8, v20
    v_and_b32 v21, 3, v{n}
    v_lshl_add_u32 v20, v21, 3, v20
    s_lshr_b32 s{sTmp+3}, s{sW}, 1
    s_lshl_b32 s{sTmp+3}, s{sTmp+3}, 14
    s_and_b32 s{sTmp+4}, s{sW}, 1
    s_lshl_b32 s{sTmp+4}, s{sTmp+4}, 10
    s_add_u32 s{sTmp+3}, s{sTmp+3}, s{sTmp+4}
    s_add_u32 s{sTmp+3}, s{sTmp+3}, {L_W}
    v_add_u32 v20, s{sTmp+3}, v20
    """)
    for x in range(4):
        for tau in range(2):
            A(f"v_xor_b32 v{RD+2*x+tau}, {(x >> 1) * 16384 + (x & 1) * 1024 + tau * 32}, v20")
            A(f"v_add_u32 v{RD+8+2*x+tau}, 65536, v{RD+2*x+tau}")
    for ko in range(2):
        for u in range(2):
            vm.wait(toks[ko * 2 + u])
            for T in range(8):
                assert LOC[("o", T, ko)][0] == "l" or LOC[("o", T, ko)][1] >= 256
                b = 128 + (ko * 2 + u) * 32 + T // 2
                emit_quad(A, LOC[("o", T, ko)], u, [(b + 8 * rho + 4, b + 8 * rho, sHi if T % 2 else sLo) for rho in range(4)], 120 + 4 * (T % 2))
    for i, (m, lh, u) in enumerate(jobs):
        vm.wait(tk[i])
        A("s_barrier")
        if i == NS - 1: arrive()
        st = i % NS
        for x in range(4):
            for tau in range(2):
                kind, r = LOC[(m, tau, 4 * lh + x)]
                if kind == "l": r = HOLD + 8 * r
                for q in range(2):
                    A(f"ds_read_b64_tr_b16 {reg(r + 4*u + 2*q, 2)}, v{RD + 8*(st//2) + 2*x + tau} offset:{(st % 2) * 32768 + q * 4096}")
        A("s_waitcnt lgkmcnt(0)\ns_barrier")
        if i + NS < len(jobs): issue(i + NS)
    if warm is not None: warm_up()
    for i in range(2 * NE): A(f"ds_write_b128 v{vLW}, v[{HOLD+4*i}:{HOLD+4*i+3}] offset:{i*1024}")
    A(f"s_mul_i32 s{sTmp+1}, s{sW}, 24576\ns_add_u32 m0, s{sTmp+1}, {L_W + L_KV}\ns_waitcnt lgkmcnt(0)")

def smf(acc, a, b, abid=False):
    return f"v_smfmac_f32_16x16x64_bf16 {v(acc,4)}, {v(a,4)}, {reg(b,8)}, v{vIDX}" + (" abid:1" if abid else "")
def mf(acc, a, b, c=None):
    return f"v_mfma_f32_16x16x32_bf16 {v(acc,4)}, {v(a,4)}, {v(b,4)}, {v(c,4) if c is not None else '0'}"

def xlane(A, op, r, t):
    A(f"{op}_dpp v{r}, v{r}, v{r} quad_perm:[2,3,0,1] row_mask:0xf bank_mask:0xf")
    A(f"v_mov_b32 v{t}, v{r}\nv_permlane16_swap_b32 v{r}, v{t}\n{op} v{r}, v{r}, v{t}")
    A(f"v_mov_b32 v{t}, v{r}\nv_permlane32_swap_b32 v{r}, v{t}\n{op} v{r}, v{r}, v{t}")

NOP16 = [""]
def mf16(acc, a, b, c):
    return NOP16[0] + f"v_mfma_f32_16x16x16_bf16 {v(acc,4)}, {v(a,2)}, {v(b,2)}, {v(c,4)}"
def z64(r): return f"v_mov_b64 v[{r}:{r+1}], 0"

def chain_loop(A, P):
    STF = P.get("st", "")
    stamps = P.get("stamps", False)
    NOP16[0] = P.get("nop16", "")
    W = f"s[{sWS}:{sWS+3}]"
    H = f"s[{sHALF}:{sHALF+1}]"
    LOOP, RETRY, GOT, HOP2, FB, FBR, FAIL = [A.label(x) for x in ("c_loop", "c_retry", "c_got", "c_hop2", "c_fb", "c_fbr", "c_fail")]
    def snap(i):
        if P.get("snap"): A(f"s_memrealtime s[{sSt+2*i}:{sSt+2*i+1}]")
    LAST = A.label("c_last")
    acc = dict(q=QA, k=KA_, v=VA)
    def M(m, tau, lam):
        kind, x = LOC[(m, tau, lam)]
        A(smf(acc[m] + 4 * tau, mema(lam), x if kind == "r" else ESLOT[x]))
    ld = Cnt(A, "lgkmcnt", 15); vm = Cnt(A, "vmcnt", 63)
    def stage(lo, hi):
        for i in range(lo, hi):
            A(f"ds_read_b128 v[{ESLOT[i]}:{ESLOT[i]+3}], v{vLW} offset:{i*2048}")
            A(f"ds_read_b128 v[{ESLOT[i]+4}:{ESLOT[i]+7}], v{vLW} offset:{i*2048+1024}")
    wo_tok = {}
    def wof(i, h):
        r = WSLOT[i] + 4 * h
        wo_tok[i] = ld.issue(f"ds_read_b128 v[{r}:{r+3}], v{vW16} offset:{L_WO+(2*i+h)*4096}")
    A(f"""
    s_mov_b32 s{sStep}, 0
    s_mov_b32 s{sAG}, s{sAgr}
    s_add_u32 s{sAG+1}, s{sAgr}, 4096
    s_mov_b32 s{sCnt}, 0
    s_mov_b32 s{sCnt+1}, 0
    s_lshl_b32 s{sTmp}, s{sJ}, 2
    s_add_u32 s{sTmp}, s{sTmp}, s{sW}
    s_lshl_b32 s{sTmp+1}, s{sChain}, 13
    s_add_u32 s{sTmp+1}, s{sTmp+1}, s{sTmp}
    s_lshr_b32 s{sKM}, s{sTmp+1}, 2
    s_lshl_b32 s{sKM}, s{sKM}, 13
    s_add_u32 s{sKM}, s{sKM}, {KM}
    s_lshr_b32 s{sFkm}, s{sTmp+1}, 2
    s_lshl_b32 s{sFkm}, s{sFkm}, 6
    s_add_u32 s{sFkm}, s{sFkm}, {F_KM - 2048 + WS_BYTES}
    s_cmp_eq_u32 s{sW}, {P.get("fw", 3)}
    s_cselect_b32 s{sFm}, {WS_BYTES}, 0
    s_lshl_b32 s{sTmp+1}, s{sLayer}, 13
    s_add_u32 s{sTmp+1}, s{sTmp+1}, s{sTmp}
    s_lshl_b32 s{sKV}, s{sTmp+1}, 12
    s_add_u32 s{sKV}, s{sKV}, {KV}
    s_lshl_b32 s{sFkv}, s{sTmp+1}, 5
    s_add_u32 s{sFkv}, s{sFkv}, {F_KV}
    """)
    A(f"""
    s_mov_b32 s{sMH}, {WS_BYTES}
    s_cmp_eq_u32 s{sChain}, 2
    s_cselect_b32 s{sFgS}, 1, 3
    s_lshl_b32 s{sTmp}, s{sW}, 2
    s_add_u32 s{sTmp}, s{sTmp}, s{sChain}
    s_cmp_eq_u32 s{sTmp}, 1
    s_cselect_b32 s{sMH}, {MEMH}, s{sMH}
    s_mov_b32 s{sFork}, 0
    s_mov_b32 s{sKVd}, s{sKV}
    """)
    FL = P.get("flags", 1)
    def kv_wait():
        L0, L, LX = A.label("c_gw"), A.label("c_kvw"), A.label("c_kvx")
        def poll(lab, off, dst):
            A(f"{lab}:\nbuffer_load_dword v{T0}, off, {W}, s{off} sc1")
            A(f"s_add_u32 s{sTmp+3}, s{sTmp+3}, 1\ns_cmp_gt_u32 s{sTmp+3}, {SPIN_MAX}\ns_cbranch_scc1 {FAIL}")
            A(f"s_waitcnt vmcnt(0)\nv_readfirstlane_b32 s{dst}, v{T0}\ns_cmp_eq_u32 s{dst}, 0\ns_cbranch_scc1 {lab}")
        A(f"s_mov_b32 s{sTmp+3}, 0")
        poll(L0, sFkv, sRdy)
        A(f"s_and_b32 s{sRdy}, s{sRdy}, s{sFgS}\ns_cbranch_scc1 {LX}")
        A(f"s_mov_b32 s{sFork}, 1\ns_add_u32 s{sKVd}, s{sKV}, {32*MB}\ns_add_u32 s{sFg}, s{sFkv}, {256*KB}")
        poll(L, sFg, sRdy)
        A(f"{LX}:")
    trace(A, 2, MEMA)
    if FL: kv_wait()
    trace(A, 3, MEMA)
    if stamps:
        for i in range(12): A(f"s_mov_b32 s{sAcc+i}, 0")
    def kv_dma(p):
        vm.issue(f"buffer_load_dwordx4 v{vL16}, {W}, s{sKVd} offen offset:{p*1024} {P.get('kvf','')} lds")
    for p in range(4): kv_dma(p)
    A(f"s_add_u32 s{sKV}, s{sKV}, {32*16384}\ns_add_u32 s{sFkv}, s{sFkv}, 4096\ns_mov_b32 s{sRdy}, 0")
    A(f"s_mov_b32 s{sFork}, 0\ns_mov_b32 s{sKVd}, s{sKV}")
    vm.reset()
    stage(3, 10)
    for r in range(QA, QA + 24, 2): A(z64(r))
    A(f"s_lshl_b32 s{sBox}, s{sJ}, 13\ns_add_u32 s{sBox}, s{sBox}, s{sIn}\ns_add_u32 s{sBox+1}, s{sBox}, 4096")
    stage(0, 3)
    A("s_waitcnt lgkmcnt(0)")
    A(f"{LOOP}:")
    m0, m4 = mema(0), mema(4)
    def ag_loads():
        A(f"buffer_load_dwordx4 v[{m0}:{m0+3}], v{vW16}, {W}, s{sAG} offen sc1")
        A(f"buffer_load_dwordx4 v[{m4}:{m4+3}], v{vW16}, {W}, s{sAG+1} offen sc1")
    NSH = P.get("nsh", 2)
    W0A, W0B = A.label("c_w0a"), A.label("c_w0b")
    ag_loads()
    snap(0)
    if stamps and P.get("ref", 0) == 0: A(f"s_memtime s[{sSt}:{sSt+1}]")
    A(f"s_mov_b32 s{sTmp+2}, 0")
    A(f"s_cmp_eq_u32 s{sW}, 0\ns_cbranch_scc1 {W0A}")
    for k in range(1, NSH):
        delay(A, P.get("g2", 100)); ag_loads()
    A(f"{W0B}:")
    npo = 2 * (NSH - 2)
    A("s_waitcnt lgkmcnt(0)")
    A(f"s_waitcnt vmcnt({3+npo})")
    snap(1)
    A(f"v_max3_u32 v{T0}, v{m0}, v{m0+1}, v{m0+2}")
    A(f"v_max_u32 v{T0}, v{T0}, v{m0+3}")
    A(f"ds_write_b128 v{vW16}, v[{m0}:{m0+3}] offset:{L_MEM}")
    M(*OWN[0])
    A(f"s_waitcnt vmcnt({2+npo})")
    A(f"{GOT}:")
    A(f"v_max3_u32 v{T0}, v{m4}, v{m4+1}, v{T0}")
    A(f"v_max3_u32 v{T0}, v{m4+2}, v{m4+3}, v{T0}")
    A(f"ds_write_b128 v{vW16}, v[{m4}:{m4+3}] offset:{L_MEM+4096}")
    M(*OWN[1])
    A(f"v_cmp_eq_u32 vcc, -1, v{T0}")
    M(*OWN[2])
    A(f"s_cbranch_vccnz {RETRY}")
    NB = P.get("nb", 7)
    KVW, KVR = A.label("c_kvs"), A.label("c_kvr")
    for i in range(3, NB):
        M(*OWN[i])
        if i == 3 and FL: A(f"s_and_b32 s{sRdy}, s{sRdy}, s{sFgS}\ns_cbranch_scc0 {KVW}\n{KVR}:")
        if i == 4 and FL: A(f"v_mov_b32 v{T0}, 1")
    A("s_waitcnt lgkmcnt(0)\ns_barrier")
    if stamps and P.get("ref", 0) == 1: A(f"s_memtime s[{sSt}:{sSt+1}]")
    snap(2)
    if P.get("ftrace"): trace(A, 5, MEMA + 8)
    order = [1, 2, 3, 5, 6, 7]
    tm = {}
    own = OWN[NB:]
    NA = P.get("na", 4)
    def rdm(lam): tm[lam] = ld.issue(f"ds_read_b128 v[{mema(lam)}:{mema(lam)+3}], v{vW16+lam%4} offset:{L_MEM+(lam//4)*4096}")
    rdm(order[0])
    for i in range(NA):
        rdm(order[1 + i]); M(*own.pop(0))
    assert all(LOC[o][0] == "r" for o in own)
    def half_sum(a): return [f"v_add_f32 v{a}, v{a}, v{a+2}", f"v_add_f32 v{a+1}, v{a+1}, v{a+3}"]
    def qpost(a): return half_sum(a) + [f"v_cvt_pk_bf16_f32 v{a+2}, v{a}, v{a+1}", f"v_cvt_pk_bf16_f32 v{a+3}, v{a}, v{a+1}"]
    def kpost(a): return half_sum(a) + [f"v_cvt_pk_bf16_f32 v{a+2}, v{a}, v{a+1}"]
    tkv = {}
    def rdkv(p): tkv[p] = ld.issue(f"ds_read_b128 v[{KXR+4*p}:{KXR+4*p+3}], v{vLW} offset:{L_KV+p*1024}")
    def dma(p):
        ld.wait(tkv[p]); kv_dma(p)
    f = [(lambda l=l: rdm(l)) for l in order[1 + NA:]] + [lambda: rdkv(0), lambda: rdkv(1), lambda: rdkv(2), lambda: rdkv(3), lambda: wof(0, 0), lambda: wof(0, 1)]
    if len(order[1 + NA:]): f.pop(0)()
    for i, lam in enumerate(order):
        ld.wait(tm[lam]); M("q", 0, lam); f.pop(0)()
    qp = qpost(QA)
    M("q", 1, order[0]); dma(0)
    if FL: A(f"s_mov_b64 exec, 1\nbuffer_store_dword v{T0}, off, {W}, s{sFkm} sc1\ns_mov_b64 exec, -1")
    M("q", 1, order[1])
    if f: f.pop(0)()
    ld.wait(tkv[3])
    tmh = ld.issue(f"ds_read_b64 v[{SOP+12}:{SOP+13}], v{vAGS} offset:{L_MEM}")
    for i in range(2, 6):
        M("q", 1, order[i]); A(qp.pop(0))
    M("k", 0, order[0]); ld.issue(f"ds_write_b64 v{vCQ}, v[{QA+2}:{QA+3}] offset:{L_QK}")
    M("k", 0, order[1]); ld.issue(f"ds_read_b64_tr_b16 v[{SOP}:{SOP+1}], v{vCRW} offset:{L_QK}"); A("s_nop 0")
    M("k", 0, order[2])
    for x in qpost(QA + 4): A(x)
    ld.issue(f"ds_write_b64 v{vCQ}, v[{QA+6}:{QA+7}] offset:{L_QK+512}")
    M("k", 0, order[3]); tq = ld.issue(f"ds_read_b64_tr_b16 v[{SOP+2}:{SOP+3}], v{vCRW} offset:{L_QK+512}")
    M("k", 0, order[4]); kv_dma(1)
    M("k", 0, order[5]); wof(1, 0)
    MH = SOP + 12
    M("k", 1, order[0]); kv_dma(2)
    M("k", 1, order[1]); ld.wait(tq)
    kp = kpost(KA_)
    A(mf(SOP + 4, KXR, SOP)); kv_dma(3)
    A(mf(SOP + 8, KXR + 4, SOP)); A(kp.pop(0)); A(kp.pop(0))
    M("k", 1, order[2]); A(kp.pop(0))
    M("k", 1, order[3]); ld.issue(f"ds_write_b32 v{vCQ}, v{KA_+2} offset:{L_QK}")
    X = QA
    sel = [f"v_cndmask_b32 v{X+i}, v{SOP+4+i}, v{SOP+8+i}, {H}" for i in range(4)]
    M("k", 1, order[4]); A("s_nop 0"); A(sel[0])
    M("k", 1, order[5]); A(sel[1]); A(sel[2]); A(sel[3])
    Vq = own + [("v", 0, lam) for lam in order] + [("v", 1, lam) for lam in order]
    def vq(n=1):
        for _ in range(n): M(*Vq.pop(0))
    PX, PM = KXR, KXR + 4
    ld.issue(f"ds_write_b128 v{vW16}, v[{X}:{X+3}] offset:{L_PS}")
    vq(); A("s_nop 1")
    for x in kpost(KA_ + 4): A(x)
    tk = ld.issue(f"ds_write_b32 v{vCQ}, v{KA_+6} offset:{L_QK+512}")
    vq(); A(f"v_mov_b32 v{PM}, 0")
    A(f"buffer_store_dwordx2 v[{SOP+12}:{SOP+13}], v{vAGS}, {W}, s{sMH} offen sc1")
    vq(); A(f"v_mov_b32 v{PM+3}, 0"); A(f"s_waitcnt vmcnt({6 if FL else 5})")
    vq(); wof(1, 1)
    for _ in range(P.get("vq1", 1)): vq()
    ld.wait(tk)
    A("s_barrier")
    ts = []; tp = []
    def rd_s(c, h):
        t = ld.issue(f"ds_read_b64_tr_b16 v[{SOP+4*c+2*h}:{SOP+4*c+2*h+1}], v{vCRW+c} offset:{L_QK+h*512}")
        if h: ts.append(t)
    def rd_p(x): tp.append(ld.issue(f"ds_read_b128 v[{X+4*x}:{X+4*x+3}], v{vW16+x} offset:{L_PS}"))
    rd_p(1); rd_p(2); vq(); rd_p(3)
    for c in range(4):
        vq(); rd_s(c, 0); rd_s(c, 1)
    vp0 = half_sum(VA) + [f"v_cvt_pk_bf16_f32 v{VA+2}, v{VA}, v{VA+1}"]
    vp1 = half_sum(VA + 4) + [f"v_cvt_pk_bf16_f32 v{VA+3}, v{VA+4}, v{VA+5}"]
    SM, ONES = MEMA, MEMA + 4
    E = MEMA + 8; CK = T0
    adds = [f"v_add_f32 v{X+i}, v{X+i}, v{X+4+i}" for i in range(4)] + [f"v_add_f32 v{X+8+i}, v{X+8+i}, v{X+12+i}" for i in range(4)] + \
           [f"v_add_f32 v{X+i}, v{X+i}, v{X+8+i}" for i in range(4)]
    ld.wait(tp[2])
    while Vq:
        vq(); A(adds.pop(0))
    ld.wait(ts[1])
    A(mf(SM, SOP, SOP)); A(adds.pop(0)); A(adds.pop(0))
    A(mf(SM, SOP + 4, SOP + 4, SM)); A(adds.pop(0)); ld.wait(ts[3]); A(adds.pop(0))
    A(mf(SM, SOP + 8, SOP + 8, SM)); A(adds.pop(0)); A(adds.pop(0))
    A(mf(SM, SOP + 12, SOP + 12, SM))
    while adds: A(adds.pop(0))
    PVA, ZA = X + 4, X + 12
    PUB = P.get("pub", "sc1")
    def pub(txt):
        if PUB != "none": vm.issue(txt + " " + PUB)
    for i in range(4): A(f"v_exp_f32 v{E+i}, v{X+i}")
    A(f"v_mov_b64 v[{ONES}:{ONES+1}], s[{sONE}:{sONE+1}]")
    A(f"v_cvt_pk_bf16_f32 v{E}, v{E}, v{E+1}\nv_cvt_pk_bf16_f32 v{E+1}, v{E+2}, v{E+3}")
    def selp():
        A(f"v_cndmask_b32 v{PX}, v{E}, 0, {H}\nv_cndmask_b32 v{PX+1}, v{E+1}, 0, {H}")
        A(f"v_cndmask_b32 v{PX+2}, 0, v{E}, {H}\nv_cndmask_b32 v{PX+3}, 0, v{E+1}, {H}")
    selp()
    A(f"v_mul_f32 v{SM}, s{sC}, v{SM}\nv_mul_f32 v{SM+1}, s{sC}, v{SM+1}")
    A(mf(PVA, PX, VX))
    if P.get("pubpos") == "early": pub(f"buffer_store_dwordx4 v[{SOP}:{SOP+3}], v{vW16}, {W}, s{sKM} offen")
    A(f"v_exp_f32 v{E+4}, v{SM}")
    A(f"v_mov_b64 v[{ONES+2}:{ONES+3}], s[{sONE}:{sONE+1}]")
    A(mf(PVA + 4, PX, VX + 4))
    A(f"v_exp_f32 v{E+5}, v{SM+1}")
    A(mf(ZA, PX, ONES))
    for x in vp0[:2]: A(x)
    A(f"v_cvt_pk_bf16_f32 v{E+4}, v{E+4}, v{E+5}")
    A(vp0[2])
    A(f"v_cndmask_b32 v{PM+1}, 0, v{E+4}, {H}\nv_cndmask_b32 v{PM+2}, 0, v{E+4}, {H}")
    for x in vp1: A(x)
    A(mf16(ZA, PM, ONES, ZA))
    A(f"v_max3_f32 v{CK}, |v{X}|, |v{X+1}|, |v{X+2}|")
    A(f"v_max_f32 v{E+2}, |v{SM}|, |v{SM+1}|")
    A(mf16(PVA, PM + 2, VA + 2, PVA))
    A(f"v_cndmask_b32 v{E+2}, 0, v{E+2}, {H}")
    A(f"v_max3_f32 v{CK}, |v{X+3}|, v{E+2}, v{CK}")
    A(mf16(PVA + 4, PM, VA + 2, PVA + 4))
    A(f"v_cmp_lt_f32 vcc, 0x42700000, v{CK}")
    WA = [MEMA + 8 + 4 * i for i in range(6)][::-1] + [VX, VX + 4]
    zl = [r for a in WA for r in (a, a + 2)]
    A(z64(zl.pop(0)))
    for x in half_sum(ZA): A(x)
    A(f"s_cbranch_vccnz {FB}")
    A(f"{FBR}:")
    A(f"v_rcp_f32 v{ZA}, v{ZA}\nv_rcp_f32 v{ZA+1}, v{ZA+1}")
    A(f"v_pk_add_f32 v[{PVA}:{PVA+1}], v[{PVA}:{PVA+1}], v[{PVA+2}:{PVA+3}]")
    A(f"v_pk_add_f32 v[{PVA+4}:{PVA+5}], v[{PVA+4}:{PVA+5}], v[{PVA+6}:{PVA+7}]")
    A(f"v_pk_mul_f32 v[{PVA}:{PVA+1}], v[{PVA}:{PVA+1}], v[{ZA}:{ZA+1}]")
    A(f"v_pk_mul_f32 v[{PVA+4}:{PVA+5}], v[{PVA+4}:{PVA+5}], v[{ZA}:{ZA+1}]")
    A(f"v_cvt_pk_bf16_f32 v{PVA+2}, v{PVA}, v{PVA+1}")
    A(f"v_cvt_pk_bf16_f32 v{PVA+3}, v{PVA+4}, v{PVA+5}")
    two = ld.issue(f"ds_write_b64 v{vCQ}, v[{PVA+2}:{PVA+3}] offset:{L_O}")
    for _ in range(P.get("z1", 12)): A(z64(zl.pop(0)))
    A(f"v_lshrrev_b32 v{T0}, 1, v{vW16}\ns_add_u32 s{sTmp+4}, s{sKM}, 4096")
    ld.wait(two)
    A("s_barrier")
    OOP = KXR
    to = [ld.issue(f"ds_read_b64_tr_b16 v[{OOP+2*i}:{OOP+2*i+1}], v{vCR} offset:{L_O+i*1024}") for i in range(4)]
    pubs = [f"buffer_store_dwordx4 v[{SOP}:{SOP+3}], v{vW16}, {W}, s{sKM} offen",
            f"buffer_store_dwordx2 v[{VA+2}:{VA+3}], v{T0}, {W}, s{sTmp+4} offen"]
    if P.get("pubpos") != "early": pub(pubs[0])
    OUT = QA
    def post(T):
        a = WA[T]
        return half_sum(a) + [f"v_cvt_pk_bf16_f32 v{OUT+T}, v{a}, v{a+1}"] + ([f"v_and_or_b32 v{OUT+T}, v{OUT+T}, -2, s{sPar}"] if T % 4 == 0 else [])
    pend = [z64(r) for r in zl]
    fq = [(2, 0), (2, 1), (3, 0), (3, 1), None, (4, 0), None, (4, 1), None, (5, 0), None, (5, 1)]
    sal = [f"s_and_b32 s{sPar}, s{sStep}, 1",
           f"s_add_u32 s{sStep}, s{sStep}, 1", f"s_and_b32 s{sAG}, s{sStep}, 3", f"s_lshl_b32 s{sAG}, s{sAG}, 13"]
    done_st0 = False
    for i, (T, ko) in enumerate(WO_ORDER):
        kind, x = LOC[("o", T, ko)]
        if i < 2: ld.wait(to[2 * i + 1])
        if kind == "l": ld.wait(wo_tok[x - NE])
        A(smf(WA[T], OOP + 4 * ko, x if kind == "r" else WSLOT[x - NE]))
        if i >= 3 and i % 2 == 1: pend += post((i - 3) // 2)
        q = fq.pop(0) if fq else None
        if q:
            wof(*q)
            if sal: A(sal.pop(0))
            if sal: A(sal.pop(0))
        else:
            n = 0
            while pend and n < 3: A(pend.pop(0)); n += 1
        if i == 0:
            pub(pubs[1])
        if i == 1: A(f"s_cmp_eq_u32 s{sStep}, {NSEG}\ns_cbranch_scc1 {LAST}")
        if not done_st0 and i >= 9 and not any(f"v{OUT+3}," in p for p in pend):
            vm.issue(f"buffer_store_dwordx4 v[{OUT}:{OUT+3}], v{vPS}, {W}, s{sIn} offen {STF}"); done_st0 = True
    for x in pend: A(x)
    assert done_st0
    RA, SEL = VA, VA + 4
    a = WA[7]
    A(f"v_pk_add_f32 v[{a}:{a+1}], v[{a}:{a+1}], v[{a+2}:{a+3}]\nv_cvt_pk_bf16_f32 v{OUT+7}, v{a}, v{a+1}")
    vm.issue(f"buffer_store_dwordx4 v[{OUT+4}:{OUT+7}], v{vPS}, {W}, s{sIn+1} offen {STF}")
    snap(3)
    A(f"""
    s_add_u32 s{sAG}, s{sAG}, s{sAgr}
    s_add_u32 s{sAG+1}, s{sAG}, 4096
    s_add_u32 s{sKV}, s{sKV}, {0 if P.get("samekv") else 32*16384}
    s_add_u32 s{sKM}, s{sKM}, {0 if P.get("samekm") else 32*8192}
    s_add_u32 s{sFkv}, s{sFkv}, 4096
    s_add_u32 s{sFkm}, s{sFkm}, 2048
    s_andn2_b32 s{sFkm}, s{sFkm}, s{sFm}
    """)
    A(f"s_mov_b32 s{sKVd}, s{sKV}\ns_add_u32 s{sMH}, s{sMH}, 8192")
    if FL: A(f"s_buffer_load_dword s{sRdy}, {W}, s{sFkv}")
    for r in range(QA + 8, QA + 16, 2): A(z64(r))
    for r in range(QA, QA + 8, 2): A(z64(r))
    SETS = [MEMA, ST[0]]
    def inbox_load(b, it):
        r = SETS[b] + 4 * it
        A(f"buffer_load_dwordx4 v[{r}:{r+3}], v{vL16}, {W}, s{sBox + it // 4} offen offset:{(it % 4) * 1024} sc1")
    OTH, P1R = A.label("c_oth"), A.label("c_p1r")
    A(f"s_cmp_lg_u32 s{sW}, 0\ns_cbranch_scc1 {OTH}")
    A(f"s_mov_b32 s{sTmp+2}, 0\ns_add_u32 s{sCnt}, s{sCnt}, 1")
    PZ = ST[6]
    A(f"v_mov_b64 v[{PZ}:{PZ+1}], -1\ns_xor_b32 s{sTmp+8}, s{sAG}, {2 << 13}")
    A(f"buffer_store_dwordx2 v[{PZ}:{PZ+1}], v{vAGS}, {W}, s{sTmp+8} offen {STF}")
    A(f"s_mov_b32 vcc_lo, 0xaaaaaaaa\ns_mov_b32 vcc_hi, 0xaaaaaaaa\nv_mov_b32 v{T0}, 0x3f80\nv_cndmask_b32 v{T0}, v{T0}, 1.0, vcc")
    for r in range(4):
        A(f"s_mov_b32 vcc_lo, {hex(0x00030003 << (2*r))}\ns_mov_b32 vcc_hi, {hex(0x00030003 << (2*r))}\nv_cndmask_b32 v{SEL+r}, 0, v{T0}, vcc")
    delay(A, P.get("d1", 0))
    snap(4)
    for it in range(8): inbox_load(0, it)
    snap(5)
    delay(A, P.get("g1", 60))
    for it in range(8): inbox_load(1, it)
    def rpass(b, fail, first=False):
        for it in range(8):
            r = SETS[b] + 4 * it
            A(f"s_waitcnt vmcnt({15-it})")
            if first and it == 0: snap(6)
            if first and it == 7: snap(7)
            A(mf(RA, r, SEL, RA if it else None))
            if it == 0: A(f"v_xor_b32 v{T0}, s{sPar}, v{r}")
            else: A(f"v_bitop3_b32 v{T0}, v{T0}, v{r}, s{sPar} bitop3:0xf6")
        A(f"v_and_b32 v{T0}, 1, v{T0}\nv_cmp_ne_u32 vcc, 0, v{T0}")
        A(f"v_mov_b32 v{T0}, 0\nv_mov_b32 v{T0}, 0")
        A(f"s_cbranch_vccnz {fail}")
    rpass(0, P1R, True)
    PUBL = A.label("c_publ")
    A(f"{PUBL}:")
    A(f"v_cvt_pk_bf16_f32 v{RA}, v{RA}, v{RA+1}\nv_cvt_pk_bf16_f32 v{RA+1}, v{RA+2}, v{RA+3}")
    A(f"v_min_u32 v{RA}, -2, v{RA}\nv_min_u32 v{RA+1}, -2, v{RA+1}")
    A(f"buffer_store_dwordx2 v[{RA}:{RA+1}], v{vAGS}, {W}, s{sAG} offen {STF}")
    A(f"{HOP2}:")
    snap(8)
    A("s_barrier")
    if P.get("ftrace"): trace(A, 4, MEMA)
    if P.get("snap"):
        SN = A.label("c_sn")
        A(f"s_cmp_lg_u32 s{sStep}, {P['snap']}\ns_cbranch_scc1 {SN}\ns_waitcnt lgkmcnt(0)")
        for i in range(9): A(f"s_mov_b32 s{sAcc+1+i}, s{sSt+2*i}")
        A(f"{SN}:")
    if stamps:
        A("s_waitcnt lgkmcnt(0)")
        A(f"s_cmp_gt_u32 s{sStep}, 16")
        i = 11
        A(f"s_cselect_b32 s{sTmp}, s{sSt+2*i}, s{sSt}\ns_sub_u32 s{sTmp}, s{sTmp}, s{sSt}\ns_add_u32 s{sAcc+i}, s{sAcc+i}, s{sTmp}")
    if P.get("steady", 1):
        SK = A.label("c_sk")
        A(f"s_cmp_lg_u32 s{sStep}, 16\ns_cbranch_scc1 {SK}\ns_memtime s[20:21]\ns_mov_b32 s{sCnt}, 0\ns_mov_b32 s{sCnt+1}, 0\n{SK}:")
    delay(A, P.get("d2", 0))
    A(f"s_cmp_eq_u32 s{sFork}, 0\ns_cbranch_scc1 {LOOP}")
    FK = A.label("c_fk")
    A(f"s_mov_b32 s{sTmp+3}, 0\n{FK}:")
    ag_loads()
    A(f"s_add_u32 s{sTmp+3}, s{sTmp+3}, 1\ns_cmp_gt_u32 s{sTmp+3}, {SPIN_MAX}\ns_cbranch_scc1 {FAIL}")
    A(f"s_waitcnt vmcnt(0)\nv_max3_u32 v{T0}, v{m0}, v{m0+1}, v{m0+2}\nv_max3_u32 v{T0}, v{m0+3}, v{m4}, v{T0}\nv_max3_u32 v{T0}, v{m4+1}, v{m4+2}, v{T0}\nv_max_u32 v{T0}, v{T0}, v{m4+3}")
    A(f"v_cmp_eq_u32 vcc, -1, v{T0}\ns_cbranch_vccnz {FK}")
    A(f"s_lshl_b32 s{sAG}, s{sStep}, 13\ns_add_u32 s{sAG}, s{sAG}, {MEMH}\ns_add_u32 s{sAG+1}, s{sAG}, 4096\ns_mov_b32 s{sFork}, 0")
    A(f"s_branch {LOOP}")
    if FL:
        A(f"{KVW}:")
        A(f"s_cmp_ge_u32 s{sStep}, {NSEG-1}\ns_cbranch_scc1 {KVR}")
        kv_wait()
        A(f"s_branch {KVR}")
    A(f"{LAST}:")
    if FL: A(f"s_add_u32 s{sFkm}, s{sFkm}, 2048\nv_mov_b32 v{T0}, 1\ns_waitcnt vmcnt(0)\ns_barrier\ns_mov_b64 exec, 1\nbuffer_store_dword v{T0}, off, {W}, s{sFkm} sc1\ns_mov_b64 exec, -1")
    A(f"s_branch {FAIL}")
    A(f"{OTH}:")
    trace(A, 1, MEMA, sStep)
    stage(0, 10)
    for r in range(VA, VA + 8, 2): A(z64(r))
    A(f"s_branch {HOP2}")
    A(f"{W0A}:")
    A("s_waitcnt vmcnt(3)")
    stage(0, 5)
    if NSH > 1: ag_loads()
    stage(5, 10)
    for k in range(2, NSH): ag_loads()
    for r in range(VA, VA + 8, 2): A(z64(r))
    A(f"s_branch {W0B}")
    P1S = A.label("c_p1s")
    A(f"{P1R}:")
    for it in range(8): inbox_load(0, it)
    A(f"s_add_u32 s{sCnt}, s{sCnt}, 1")
    rpass(1, P1S)
    A(f"s_branch {PUBL}")
    A(f"{P1S}:")
    for it in range(8): inbox_load(1, it)
    A(f"s_add_u32 s{sTmp+2}, s{sTmp+2}, 1\ns_add_u32 s{sCnt}, s{sCnt}, 1\ns_cmp_gt_u32 s{sTmp+2}, {SPIN_MAX}\ns_cbranch_scc1 {FAIL}")
    rpass(0, P1R)
    A(f"s_branch {PUBL}")
    A(f"{RETRY}:")
    ag_loads()
    A(f"s_add_u32 s{sTmp+2}, s{sTmp+2}, 1\ns_add_u32 s{sCnt+1}, s{sCnt+1}, 1\ns_cmp_gt_u32 s{sTmp+2}, {SPIN_MAX}\ns_cbranch_scc1 {FAIL}")
    for r in range(QA, QA + 12, 2): A(z64(r))
    A(f"s_waitcnt vmcnt({2+npo})")
    A(f"v_max3_u32 v{T0}, v{m0}, v{m0+1}, v{m0+2}")
    A(f"v_max_u32 v{T0}, v{T0}, v{m0+3}")
    A(f"ds_write_b128 v{vW16}, v[{m0}:{m0+3}] offset:{L_MEM}")
    M(*OWN[0])
    A(f"s_branch {GOT}")
    A(f"{FB}:")
    A(f"v_max3_f32 v{CK}, v{X}, v{X+1}, v{X+2}\nv_max_f32 v{CK}, v{X+3}, v{CK}")
    A(f"s_mov_b64 exec, {H}\nv_max3_f32 v{CK}, v{SM}, v{SM+1}, v{CK}\ns_mov_b64 exec, -1")
    xlane(A, "v_max_f32", CK, E)
    for i in range(4): A(f"v_sub_f32 v{E+i}, v{X+i}, v{CK}")
    for i in range(2): A(f"v_sub_f32 v{E+4+i}, v{SM+i}, v{CK}")
    for i in range(6): A(f"v_exp_f32 v{E+i}, v{E+i}")
    A(f"v_cvt_pk_bf16_f32 v{E}, v{E}, v{E+1}\nv_cvt_pk_bf16_f32 v{E+1}, v{E+2}, v{E+3}\nv_cvt_pk_bf16_f32 v{E+4}, v{E+4}, v{E+5}")
    selp()
    A(f"v_cndmask_b32 v{PM+1}, 0, v{E+4}, {H}\nv_cndmask_b32 v{PM+2}, 0, v{E+4}, {H}")
    A(mf(ZA, PX, ONES)); A(mf(PVA, PX, VX)); A(mf(PVA + 4, PX, VX + 4))
    A(mf16(ZA, PM, ONES, ZA)); A(mf16(PVA, PM + 2, VA + 2, PVA)); A(mf16(PVA + 4, PM, VA + 2, PVA + 4))
    A("s_nop 7")
    for x in half_sum(ZA): A(x)
    A(f"s_branch {FBR}")
    A(f"{FAIL}:")
```

```python
from asmlib import *
import struct, math
def f32bits(x): return struct.unpack("<I", struct.pack("<f", x))[0]

class L(list):
    def __call__(self, txt):
        for ln in txt.split("\n"):
            ln = ln.strip()
            if ln: self.append(ln)

def allsum(A, regs, t):
    for rot in (8, 4, 2, 1):
        for r in regs: A(f"v_add_f32_dpp v{r}, v{r}, v{r} row_ror:{rot} row_mask:0xf bank_mask:0xf")
    for sw in ("16", "32"):
        for i, r in enumerate(regs): A(f"v_mov_b32 v{t+i}, v{r}")
        for i, r in enumerate(regs): A(f"v_permlane{sw}_swap_b32 v{r}, v{t+i}")
        for i, r in enumerate(regs): A(f"v_add_f32 v{r}, v{r}, v{t+i}")

def rnd(A, r):
    A(f"v_cvt_pk_bf16_f32 v{r}, 0, v{r}")

def unpack(A, pk, f):
    for i in range(4):
        A(f"v_lshlrev_b32 v{f+2*i}, 16, v{pk+i}\nv_and_b32 v{f+2*i+1}, 0xffff0000, v{pk+i}")
def pack(A, f, pk):
    for i in range(4): A(f"v_cvt_pk_bf16_f32 v{pk+i}, v{f+2*i}, v{f+2*i+1}")

def layernorm(A, x, y, pk, t, extra=None):
    s_, d = t, t + 4
    A(f"v_add_f32 v{s_}, v{x}, v{x+1}\nv_add_f32 v{s_+1}, v{x+2}, v{x+3}\nv_add_f32 v{s_+2}, v{x+4}, v{x+5}\nv_add_f32 v{s_+3}, v{x+6}, v{x+7}")
    A(f"v_add_f32 v{s_}, v{s_}, v{s_+1}\nv_add_f32 v{s_+2}, v{s_+2}, v{s_+3}\nv_add_f32 v{s_}, v{s_}, v{s_+2}")
    allsum(A, [s_] + ([extra] if extra is not None else []), s_ + 2)
    A(f"v_mul_f32 v{s_}, {hex(f32bits(1/512))}, v{s_}")
    for i in range(8): A(f"v_sub_f32 v{d+i}, v{x+i}, v{s_}")
    A(f"v_mul_f32 v{s_+1}, v{d}, v{d}\nv_mul_f32 v{s_+2}, v{d+1}, v{d+1}")
    for i in range(2, 8): A(f"v_fmac_f32 v{s_+1+i%2}, v{d+i}, v{d+i}")
    A(f"v_add_f32 v{s_+1}, v{s_+1}, v{s_+2}")
    rnd(A, s_)
    red = L(); allsum(red, [s_ + 1], s_ + 2)
    oth = L()
    for i in range(8): oth(f"v_sub_f32 v{d+i}, v{x+i}, v{s_}")
    for i in range(8): rnd(oth, d + i)
    while red or oth:
        if red: A(red.pop(0))
        for _ in range(2):
            if oth: A(oth.pop(0))
    A(f"v_mul_f32 v{s_+1}, {hex(f32bits(1/512))}, v{s_+1}")
    rnd(A, s_ + 1)
    A(f"v_add_f32 v{s_+1}, {hex(f32bits(1e-5))}, v{s_+1}")
    rnd(A, s_ + 1)
    A(f"v_sqrt_f32 v{s_+1}, v{s_+1}")
    rnd(A, s_ + 1)
    A(f"v_rcp_f32 v{s_+1}, v{s_+1}")
    for i in range(8): A(f"v_mul_f32 v{d+i}, v{d+i}, v{s_+1}")
    pack(A, d, pk)
    if y is not None: unpack(A, pk, y)

def layernorm1(A, x, y, pk, t, extra=None):
    s_, d = t, t + 4
    A(f"v_add_f32 v{s_}, v{x}, v{x+1}\nv_mul_f32 v{s_+1}, v{x}, v{x}\nv_add_f32 v{s_+2}, v{x+2}, v{x+3}\nv_mul_f32 v{s_+3}, v{x+1}, v{x+1}")
    for i in range(2, 8):
        if i >= 4: A(f"v_add_f32 v{s_+2*(i%2)}, v{s_+2*(i%2)}, v{x+i}")
        A(f"v_fmac_f32 v{s_+1+2*(i%2)}, v{x+i}, v{x+i}")
    A(f"v_add_f32 v{s_}, v{s_}, v{s_+2}\nv_add_f32 v{s_+1}, v{s_+1}, v{s_+3}")
    allsum(A, [s_, s_ + 1] + ([extra] if extra is not None else []), d)
    A(f"v_mul_f32 v{s_}, {hex(f32bits(1/512))}, v{s_}\nv_mul_f32 v{s_+1}, {hex(f32bits(1/512))}, v{s_+1}")
    A(f"v_fma_f32 v{s_+1}, -v{s_}, v{s_}, v{s_+1}")
    rnd(A, s_)
    sc = L()
    sc(f"v_max_f32 v{s_+1}, 0, v{s_+1}")
    rnd(sc, s_ + 1)
    sc(f"v_add_f32 v{s_+1}, {hex(f32bits(1e-5))}, v{s_+1}")
    rnd(sc, s_ + 1)
    sc(f"v_sqrt_f32 v{s_+1}, v{s_+1}")
    rnd(sc, s_ + 1)
    sc(f"v_rcp_f32 v{s_+1}, v{s_+1}")
    oth = L()
    for i in range(8): oth(f"v_sub_f32 v{d+i}, v{x+i}, v{s_}")
    for i in range(8): rnd(oth, d + i)
    while sc or oth:
        if sc: A(sc.pop(0))
        for _ in range(2):
            if oth: A(oth.pop(0))
    for i in range(8): A(f"v_mul_f32 v{d+i}, v{d+i}, v{s_+1}")
    pack(A, d, pk)
    if y is not None: unpack(A, pk, y)

def selmats(A, dst, n, tmp, lo="0x3f80", hi="1.0"):
    A(f"s_mov_b32 vcc_lo, 0xaaaaaaaa\ns_mov_b32 vcc_hi, 0xaaaaaaaa\nv_mov_b32 v{tmp}, {lo}\nv_mov_b32 v{dst}, {hi}\nv_cndmask_b32 v{tmp}, v{tmp}, v{dst}, vcc")
    for r in range(n):
        A(f"s_mov_b32 vcc_lo, {hex(0x00030003 << (2*r))}\ns_mov_b32 vcc_hi, {hex(0x00030003 << (2*r))}\nv_cndmask_b32 v{dst+r}, 0, v{tmp}, vcc")

def mfd(d, a, b, c): return f"v_mfma_f32_16x16x32_bf16 {v(d,4)}, {reg(a,4)}, {reg(b,4)}, {v(c,4) if c is not None else '0'}"

sTr = 100
TRACE_ON = [False]
def trace(A, code, vt, sreg=None):
    if not TRACE_ON[0]: return
    A(f"s_memrealtime s[98:99]\ns_waitcnt lgkmcnt(0)\nv_mov_b32 v{vt}, s98")
    if sreg is None: A(f"v_mov_b32 v{vt+1}, {code}")
    else: A(f"s_lshl_b32 s99, s{sreg}, 8\ns_or_b32 s99, s99, {code}\nv_mov_b32 v{vt+1}, s99")
    A(f"s_mov_b64 exec, 1\nbuffer_store_dwordx2 v[{vt}:{vt+1}], off, s[4:7], s{sTr}\ns_mov_b64 exec, -1\ns_add_u32 s{sTr}, s{sTr}, 8")

def w_src_regs(A, l16, v0, t):
    A(f"v_lshrrev_b32 v{t}, 8, v{l16}\nv_and_b32 v{v0}, 0xf0, v{l16}\nv_lshlrev_b32 v{v0+1}, 6, v{t}\nv_xor_b32 v{v0}, v{v0}, v{v0+1}")
    A(f"v_lshl_add_u32 v{v0}, v{t}, 13, v{v0}\nv_xor_b32 v{v0+1}, 32, v{v0}")

def w_stage_dma(A, vm, srd, v0, s_src, s_lds, t, n):
    tok = None
    for i in range(n):
        A(f"s_add_u32 m0, s{s_lds}, {t + i * 1024}")
        if i: A(f"s_add_u32 s{s_src}, s{s_src}, 32768")
        else: A("s_nop 0")
        tok = vm.issue(f"buffer_load_dwordx4 v{v0 + (i // 2) % 2}, s[{srd}:{srd+3}], s{s_src} offen lds")
    return tok
```

```python
MB = 1 << 20
KB = 1 << 10
NSEG = 64
INBOX = 0
AGR   = 4 * MB
FLAGS = 232 * MB
KST   = 64 * KB
F_XN  = FLAGS
F_OB  = FLAGS + 320 * KB
F_ML  = FLAGS + 324 * KB
F_G   = FLAGS + 328 * KB
F_KV  = FLAGS + 384 * KB
F_Q   = F_KV + 16
F_KM  = F_KV + 768 * KB
FLAG_BYTES = 1536 * KB
MEMH  = FLAGS + FLAG_BYTES
XN    = 6 * MB
X2    = 10 * MB
OBOX  = 12 * MB
XA    = 20 * MB
XB_   = 26 * MB
OUTA  = 32 * MB
MLPY  = 236 * MB
XM    = 34 * MB
TRACE = 36 * MB
KV    = 40 * MB
QX    = 136 * MB
KM    = 184 * MB
WS_BYTES = 256 * MB
KA = dict(x=0, mem0=8, wq=16, wk=24, wv=32, wo=40, seg=48, bx=56, wr=64, wg=72, wu=80, wd=88, out=96, dbg=104, ws=112)
SPIN_MAX = 0x100000
```

```python
from asmlib import *
from layout import *
from common import *
from chain import Cnt, sWS, sT, sJ, sW, sC, sTmp, sLo, sHi

oL16, oL8, oL4, oOR, oPS, oRL, oOW, oT = range(8)
oWR0 = 8
SELA, SELB = 16, 20
BIAS = 24
oSK, oSQ, oSM, oSV, oFO, oFL, oKEY, oVT = 32, 33, 34, 35, 36, 37, 38, 39
KR, OA, SX, SMM = 40, 72, 104, 112
QR, MR, VR = 120, 136, 152
PXR, PMR, VMR = 116, 196, 200
OP, EX = 40, 56
ACC, XO = 40, 104
RB = 120
XR, S0, XF, YF = 184, 188, 196, 204
PKO = 212
oFK = 244
oL32 = 246
oTHR = 247
L_O, L_ST, L_KM, L_VOTE = 0, 16384, 65536, 81920
sRep, sU = 60, 61
sTask = 62
sCur, sNxt, sPrev = 63, 64, 65
sPre, sSpin = 66, 67
sOut = 68
sX = 72
sPreK, sRow, sKey, sPend = 76, 77, 78, 79
sD_ = 80
sKp, sHd, sBox, sPq, sPk = 84, 85, 86, 87, 88
sR = 90
sRun, sD, sBoth, sS, sFin, sRet = 46, 47, 48, 49, 50, 51
B_SET, B_KIND, B_DST, B_KA, B_VALID, B_SAME, B_ROW = 6, 14, 16, 17, 20, 21, 22
def desc(set_, kind, dst, ka, same=0): return set_ << B_SET | kind << B_KIND | dst << B_DST | ka << B_KA | 1 << B_VALID | same << B_SAME
cQF, cKF, cKV, cQX, cKM, cKD, cM0, cM1, cM2, cBX, cOB, cTK = 14, 15, 18, 19, 20, 21, 22, 23, 40, 41, 42, 43
def wo_op(ks, T): return 256 + (ks * 4 + T) * 4
def mf32(d, a, b, c): return f"v_mfma_f32_32x32x16_bf16 {v(d,16)}, {reg(a,4)}, {reg(b,4)}, {v(c,16) if c is not None else '0'}"

def o_consts(A):
    n, g, l, t = 40, 41, 42, 43
    A(f"""
    v_and_b32 v{l}, 63, v0
    v_and_b32 v{n}, 15, v{l}
    v_lshrrev_b32 v{g}, 4, v{l}
    v_lshlrev_b32 v{oL8}, 3, v{l}
    v_lshlrev_b32 v{oL4}, 2, v{l}
    v_lshlrev_b32 v{oL16}, 4, v{l}
    s_mov_b32 s{sC}, {hex(f32bits(128 ** -0.5 * math.log2(math.e)))}
    s_mov_b32 s{sLo}, 0x05040100
    s_mov_b32 s{sHi}, 0x07060302
    s_and_b32 s{sTmp}, s{sW}, 1
    s_lshl_b32 s{sTmp}, s{sTmp}, 4
    v_lshlrev_b32 v{t}, 2, v{g}
    v_sub_u32 v{t}, v{n}, v{t}
    v_add_u32 v{t}, s{sTmp}, v{t}
    v_mov_b32 v{oT}, 0xfe000000
    """)
    for i in range(8):
        A(f"v_cmp_le_i32 vcc, {16*(i//4) + i%4}, v{t}\nv_cndmask_b32 v{BIAS+i}, v{oT}, 0, vcc")
    A(f"""
    ; partial store offset: token 4hf (+8q+r) * 16384 + u*1024 + w*256 + (l%32)*8
    v_lshrrev_b32 v{t}, 5, v{l}
    v_lshlrev_b32 v{t}, 16, v{t}
    v_and_b32 v{oPS}, 0xff, v{oL8}
    v_add_u32 v{t}, v{t}, v{oPS}
    s_lshl_b32 s{sTmp}, s{sU}, 10
    s_lshl_b32 s{sTmp+1}, s{sW}, 8
    s_add_u32 s{sTmp}, s{sTmp}, s{sTmp+1}
    v_add_u32 v{oPS}, s{sTmp}, v{t}
    v_lshlrev_b32 v{t}, 10, v{g}
    v_lshl_add_u32 v{oRL}, v{n}, 4, v{t}
    s_lshl_b32 s{sTmp}, s{sW}, 12
    v_add_u32 v{oOW}, s{sTmp}, v{oL16}
    v_and_b32 v{t}, 1, v{g}
    v_lshlrev_b32 v{t}, 12, v{t}
    v_lshl_add_u32 v{t}, v{n}, 4, v{t}
    v_lshrrev_b32 v{oOR}, 1, v{g}
    v_lshl_add_u32 v{oOR}, v{oOR}, 8, v{t}
    s_lshr_b32 s{sTmp}, s{sW}, 1
    s_lshl_b32 s{sTmp+1}, s{sTmp}, 14
    s_add_u32 s{sTmp+1}, s{sTmp+1}, {L_ST}
    v_add_u32 v{oSK}, s{sTmp+1}, v{oL16}
    s_lshl_b32 s{sTmp+1}, s{sTmp}, 13
    s_and_b32 s{sTmp+2}, s{sW}, 1
    s_lshl_b32 s{sTmp+2}, s{sTmp+2}, 10
    s_add_u32 s{sTmp+2}, s{sTmp+2}, s{sTmp+1}
    s_add_u32 s{sTmp+2}, s{sTmp+2}, {L_ST + 32768}
    v_add_u32 v{oSQ}, s{sTmp+2}, v{oL16}
    s_add_u32 s{sTmp+1}, s{sTmp+1}, {L_KM}
    v_add_u32 v{oSM}, s{sTmp+1}, v{oL16}
    v_add_u32 v{oSV}, s{sTmp+1}, v{oL8}
    ; flag offsets: lanes 0..3 KV words, lanes 4..7 Q words (others repeat)
    v_and_b32 v{oFO}, 0x70, v{oL16}
    s_lshl_b32 s{sTmp}, s{sW}, 2
    s_add_u32 s{sTmp}, s{sTmp}, {L_VOTE}
    v_mov_b32 v{oVT}, s{sTmp}
    """)
    selmats(A, SELA, 8, t)
    A(f"""
    s_load_dwordx2 s[{sOut}:{sOut+1}], s[0:1], {KA['out']}
    s_load_dwordx2 s[{sX}:{sX+1}], s[0:1], {KA['x']}
    s_load_dwordx2 s[{sT}:{sT+1}], s[0:1], {KA['wr']}
    s_mov_b32 s{sOut+2}, {2*MB}
    s_mov_b32 s{sOut+3}, 0x20000
    s_mov_b32 s{sX+2}, {2*MB}
    s_mov_b32 s{sX+3}, 0x20000
    s_mov_b32 s{sT+2}, 1024
    s_mov_b32 s{sD_+3}, 0x20000
    s_lshr_b32 s{sHd}, s{sW}, 1
    s_lshl_b32 s{sTmp}, s{sU}, 1
    s_add_u32 s{sHd}, s{sHd}, s{sTmp}
    s_add_u32 s{cTK}, s{sTmp}, s{sW}
    s_lshl_b32 s{cQF}, s{sHd}, 7
    s_lshl_b32 s{cKF}, s{sHd}, 6
    s_add_u32 s{cKF}, s{cKF}, {F_KM}
    s_add_u32 s{cQF}, s{cQF}, {F_KV}
    s_lshl_b32 s{sTmp}, s{sU}, 2
    s_add_u32 s{sTmp}, s{sTmp}, s{sW}
    s_lshl_b32 s{cKV}, s{sTmp}, 13
    s_add_u32 s{cKV}, s{cKV}, {KV}
    s_lshl_b32 s{cQX}, s{sTmp}, 12
    s_add_u32 s{cQX}, s{cQX}, {QX}
    s_lshl_b32 s{cOB}, s{sRep}, 8
    s_add_u32 s{cOB}, s{cOB}, s{sTmp}
    s_lshl_b32 s{cOB}, s{cOB}, 2
    s_add_u32 s{cOB}, s{cOB}, {F_OB}
    s_lshl_b32 s{cKM}, s{sHd}, 13
    s_add_u32 s{cKM}, s{cKM}, {KM}
    s_and_b32 s{sTmp}, s{sW}, 1
    s_mul_i32 s{sTmp}, s{sTmp}, 3072
    s_add_u32 s{cKD}, s{cKM}, s{sTmp}
    s_lshr_b32 s{cM2}, s{sW}, 1
    s_lshl_b32 s{cM2}, s{cM2}, 13
    s_add_u32 s{cM2}, s{cM2}, s{sTmp}
    s_add_u32 s{cM2}, s{cM2}, {L_KM}
    s_lshl_b32 s{cM0}, s{sW}, 12
    s_add_u32 s{cM0}, s{cM0}, {L_ST + 32768}
    s_lshl_b32 s{cM1}, s{sW}, 13
    s_add_u32 s{cM1}, s{cM1}, {L_ST}
    s_lshl_b32 s{cBX}, s{sRep}, 21
    s_add_u32 s{cBX}, s{cBX}, {OBOX}
    v_lshlrev_b32 v{oL32}, 1, v{oL16}
    s_mov_b32 s{sT+3}, 0x20000
    s_waitcnt lgkmcnt(0)
    """)

def o_wr(A):
    unpack(A, 56, oWR0)
    from statistics import NormalDist
    A(f"v_mul_f32 v56, v{oWR0}, v{oWR0}")
    for i in range(1, 8): A(f"v_fmac_f32 v56, v{oWR0+i}, v{oWR0+i}")
    allsum(A, [56], 57)
    A("v_sqrt_f32 v56, v56")
    for r in range(16):
        rem = 2048 - 32 * max(0, 4 * r - 5)
        z = -NormalDist().inv_cdf(math.log(2) / rem) if r < 13 else 0.0
        A(f"s_mov_b32 s{sTmp+2}, {hex(f32bits(z))}\nv_writelane_b32 v{oTHR}, s{sTmp+2}, {r}")
    A(f"v_mul_f32 v{oTHR}, v{oTHR}, v56\nv_or_b32 v{oTHR}, 0x80000000, v{oTHR}")

def o_prologue(A, nst, arrive, wait_init):
    W = f"s[{sWS}:{sWS+3}]"
    XL, sB_ = 176, sTmp + 4
    vm = Cnt(A, "vmcnt", 63)
    vm.q = list(range(-nst, 0))
    A(f"s_load_dwordx2 s[{sD_}:{sD_+1}], s[0:1], {KA['wo']}\ns_mov_b32 s{sD_+2}, {4*MB}")
    o_consts(A)
    A(f"""
    s_lshl_b32 s{sRow}, s{sRep}, 4
    s_add_u32 s{sRow}, s{sRow}, s{sU}
    s_lshl_b32 s{sRow}, s{sRow}, 2
    s_add_u32 s{sRow}, s{sRow}, s{sW}
    s_lshl_b32 s{sTmp}, s{sRow}, 10
    """)
    tw = vm.issue(f"buffer_load_dwordx4 v[56:59], v{oL16}, s[{sT}:{sT+3}], 0 offen")
    tx = []
    for k in range(8):
        tx.append(vm.issue(f"buffer_load_dwordx4 v[{XL+4*k}:{XL+4*k+3}], v{oL16}, s[{sX}:{sX+3}], s{sTmp} offen"))
        A(f"s_add_u32 s{sTmp}, s{sTmp}, {256*1024}")
    A(f"""
    v_lshrrev_b32 v44, 9, v{oL16}
    v_lshlrev_b32 v44, 12, v44
    v_and_b32 v45, 0xff, v{oL8}
    v_add_u32 v44, v44, v45
    s_lshl_b32 s{sB_}, s{sU}, 18
    s_lshl_b32 s{sTmp+1}, s{sW}, 8
    s_add_u32 s{sB_}, s{sB_}, s{sTmp+1}
    """)
    tk = {}
    POOL, NP = 64, 7
    def issue(i):
        for j in range(8):
            e = 32 * (i // 2) + 8 * (i % 2) + j % 4 + 16 * (j // 4)
            r = POOL + (i % NP) * 16 + j * 2
            A(f"s_add_u32 s{sTmp+1}, s{sB_}, {e * 1024}")
            tk[i] = vm.issue(f"buffer_load_dwordx2 v[{r}:{r+1}], v44, s[{sD_}:{sD_+3}], s{sTmp+1} offen")
    def consume(i):
        vm.wait(tk[i])
        for T in range(4):
            b = POOL + (i % NP) * 16 + T // 2
            x = wo_op(i, T) - 256
            for rho in range(4): A(f"v_perm_b32 v{48+4*(T%2)+rho}, v{b+4*rho+2}, v{b+4*rho}, s{sHi if T % 2 else sLo}")
            for rho in range(4): A(f"v_accvgpr_write_b32 a{x+rho}, v{48+4*(T%2)+rho}")
    for i in range(5): issue(i)
    vm.wait(tw)
    A("s_barrier")
    arrive()
    issue(5)
    o_wr(A)
    vm.wait(tx[-1])
    issue(6)
    A(f"s_lshl_b32 s{sTmp+3}, s{sRow}, 10\ns_add_u32 s{sTmp+3}, s{sTmp+3}, {XN}")
    for k in range(8):
        unpack(A, XL + 4 * k, 208)
        layernorm(A, 208, None, XL + 4 * k, 216)
        if k >= 4: consume(k - 4)
        vm.issue(f"buffer_store_dwordx4 v[{XL+4*k}:{XL+4*k+3}], v{oL16}, {W}, s{sTmp+3} offen sc1")
        A(f"s_add_u32 s{sTmp+3}, s{sTmp+3}, {256*1024}")
    for i in range(4, 7): consume(i)
    wait_init(); vm.reset()
    trace(A, 8, 250)
    A(f"s_lshl_b32 s{sTmp+1}, s{sRow}, 5\ns_add_u32 s{sTmp+1}, s{sTmp+1}, {F_XN}\nv_lshlrev_b32 v61, 9, v{oL16}\nv_mov_b32 v60, 1\ns_mov_b64 exec, 0xff")
    vm.issue(f"buffer_store_dword v60, v61, {W}, s{sTmp+1} offen sc1")
    A("s_mov_b64 exec, -1")
    for i in range(7, 14): issue(i)
    for i in range(7, 16):
        consume(i)
        if i + NP < 16: issue(i + NP)

def spin(A, fail):
    A(f"s_add_u32 s{sSpin}, s{sSpin}, 1\ns_cmp_gt_u32 s{sSpin}, {SPIN_MAX}\ns_cbranch_scc1 {fail}")

def post_key(A):
    W = f"s[{sWS}:{sWS+3}]"
    A(f"s_mov_b64 exec, 1\nbuffer_store_dword v{oKEY}, off, {W}, s{sKp} sc1\ns_mov_b64 exec, -1\ns_mov_b32 s{sKp}, {WS_BYTES}")

def post_ob(A, STF, key=True):
    W = f"s[{sWS}:{sWS+3}]"
    A(f"v_mov_b32 v{oT}, s{sTask}\ns_mov_b64 exec, 1\nbuffer_store_dword v{oT}, off, {W}, s{sPend} {STF}\ns_mov_b64 exec, -1\ns_mov_b32 s{sPend}, {WS_BYTES}")
    if key: post_key(A)

def wait_ob(A, FAIL):
    W = f"s[{sWS}:{sWS+3}]"
    Lb = A.label("o_wob")
    A(f"s_and_b32 s{sTmp}, s{cOB}, -256\ns_mov_b32 s{sSpin}, 0\n{Lb}:")
    A(f"buffer_load_dword v{oT}, v{oL4}, {W}, s{sTmp} offen sc1")
    spin(A, FAIL)
    A(f"s_waitcnt vmcnt(0)\nv_cmp_gt_u32 vcc, s{sTask}, v{oT}\ns_cbranch_vccnz {Lb}")

def r_loads(box):
    W = f"s[{sWS}:{sWS+3}]"
    R = L()
    sTk, sOf, sA, sB2, sBx = sR, sR + 1, sR + 2, sR + 3, sR + 4
    R(f"s_lshl_b32 s{sBx}, s{cTK}, 14\ns_add_u32 s{sBx}, s{sBx}, s{box}")
    for pg in range(4):
        for cg in range(4):
            R.append(("vm", f"buffer_load_dwordx4 v[{RB+(pg*4+cg)*4}:{RB+(pg*4+cg)*4+3}], v{oRL}, {W}, s{sBx} offen offset:{cg*256} sc1", f"rb{pg*4+cg}"))
        if pg < 3: R(f"s_add_u32 s{sBx}, s{sBx}, 4096")
    return R

def r_stream(first):
    W = f"s[{sWS}:{sWS+3}]"
    R = L()
    sTk, sOf, sA, sB2, sBx = sR, sR + 1, sR + 2, sR + 3, sR + 4
    R(f"s_and_b32 s{sOf}, s{sPrev}, 63\ns_lshl_b32 s{sTk}, s{sOf}, 5\ns_add_u32 s{sTk}, s{sTk}, s{cTK}")
    if not first:
        R(f"s_lshl_b32 s{sBx}, s{sOf}, 5\ns_add_u32 s{sBx}, s{sBx}, s{sHd}\ns_lshl_b32 s{sBx}, s{sBx}, 10\ns_lshr_b32 s{sA}, s{sPrev}, {B_ROW}\ns_xor_b32 s{sB2}, s{cTK}, 32")
    R(f"s_lshl_b32 s{sOf}, s{sTk}, 10")
    if first:
        R.append(("vm", f"buffer_load_dwordx4 v[{XR}:{XR+3}], v{oL16}, s[{sX}:{sX+3}], s{sOf} offen", "x"))
    else:
        R.append(f"s_add_u32 s{sBx}, s{sBx}, {XM - X2}")
        R.append(("grp", [f"s_cmp_eq_u32 s{sA}, s{sB2}", f"s_cselect_b32 s{sA}, s{sBx}, s{sOf}"]))
        R(f"s_add_u32 s{sA}, s{sA}, {X2}")
        R.append(("vm", f"buffer_load_dwordx4 v[{XR}:{XR+3}], v{oL16}, {W}, s{sA} offen sc1", "x"))
    R.append(("grp", ["s_mov_b64 exec, 1", f"buffer_store_dword v{oKEY}, off, {W}, s{sKp} sc1", "s_mov_b64 exec, -1"]))
    for i in range(16):
        cg = i % 4
        d = S0 + 4 * (cg % 2)
        if i % 4 == 0: R.append(("wait", f"rb{i+3}"))
        R(mfd(d, SELB if cg // 2 else SELA, RB + 4 * i, d if i >= 2 else None))
    R(f"s_bfe_u32 s{sA}, s{sPrev}, {(2 << 16) | B_KIND}\ns_lshl_b32 s{sA}, s{sA}, 21\ns_add_u32 s{sA}, s{sA}, s{sOf}\ns_add_u32 s{sB2}, s{sA}, {XB_}\ns_add_u32 s{sA}, s{sA}, {XA}")
    R.append(("wait", "x"))
    unpack(R, XR, XF)
    for r in range(4): R(f"v_permlane16_swap_b32 v{S0+r}, v{S0+4+r}")
    for i in range(8): rnd(R, S0 + i)
    for i in range(8): R(f"v_add_f32 v{XF+i}, v{XF+i}, v{S0+i}")
    PK1, PK2, PK3, PK4, TM = RB, RB + 4, RB + 8, RB + 12, RB + 16
    pack(R, XF, PK1); unpack(R, PK1, XF)
    R.append(("vm", f"buffer_store_dwordx4 v[{PK1}:{PK1+3}], v{oL16}, {W}, s{sA} offen sc1", "s1"))
    layernorm1(R, XF, YF, PK2, TM)
    R.append(("vm", f"buffer_store_dwordx4 v[{PK2}:{PK2+3}], v{oL16}, {W}, s{sB2} offen sc1", "s2"))
    RR = S0
    for i in range(8): R(f"v_add_f32 v{XF+i}, v{XF+i}, v{YF+i}")
    pack(R, XF, PK3)
    R(f"v_mul_f32 v{RR}, v{YF}, v{oWR0}\nv_mul_f32 v{RR+1}, v{YF+1}, v{oWR0+1}")
    for i in range(2, 8): R(f"v_fmac_f32 v{RR+i%2}, v{YF+i}, v{oWR0+i}")
    R(f"v_add_f32 v{RR}, v{RR}, v{RR+1}")
    if first:
        R(f"s_add_u32 s{sA}, s{sOf}, {X2}\ns_add_u32 s{sB2}, s{sOf}, {XN + 2*MB}")
        R.append(("vm", f"buffer_store_dwordx4 v[{PK3}:{PK3+3}], v{oL16}, {W}, s{sA} offen sc1", "s3"))
        unpack(R, PK3, XF)
        layernorm1(R, XF, None, PK4, TM, extra=RR)
        R.append(("vm", f"buffer_store_dwordx4 v[{PK4}:{PK4+3}], v{oL16}, {W}, s{sB2} offen sc1", "last"))
    else:
        R.append(f"s_add_u32 s{sA}, s{sOf}, {OUTA}")
        R.append(("grp", [f"s_bitcmp1_b32 s{sPrev}, {B_DST}", f"s_cselect_b64 s[{sD_}:{sD_+1}], s[{sOut}:{sOut+1}], s[{sWS}:{sWS+1}]",
                          f"s_cselect_b32 s{sD_+2}, s{sOut+2}, s{sWS+2}", f"s_cselect_b32 s{sA}, s{sOf}, s{sA}"]))
        R.append(("vm", f"buffer_store_dwordx4 v[{PK3}:{PK3+3}], v{oL16}, s[{sD_}:{sD_+3}], s{sA} offen sc1", "last"))
        allsum(R, [RR], RR + 1)
    rnd(R, RR)
    R(f"""
    v_ashrrev_i32 v{RR+1}, 31, v{RR}
    v_or_b32 v{RR+1}, 0x80000000, v{RR+1}
    v_xor_b32 v{RR}, v{RR}, v{RR+1}
    s_sub_u32 s{sA}, 4095, s{sTk}
    v_and_b32 v{RR}, 0xffff0000, v{RR}
    v_or_b32 v{oKEY}, s{sA}, v{RR}
    s_bfe_u32 s{sA}, s{sPrev}, {(3 << 16) | B_KA}
    s_lshl_b32 s{sA}, s{sA}, 16
    s_lshl_b32 s{sB2}, s{sTk}, 5
    s_add_u32 s{sA}, s{sA}, s{sB2}
    s_add_u32 s{sKp}, s{sA}, {F_XN}
    """)
    fin = [("wait", "last"), ("grp", ["s_mov_b64 exec, 1", f"buffer_store_dword v{oKEY}, off, {W}, s{sKp} sc1", "s_mov_b64 exec, -1", f"s_mov_b32 s{sKp}, {WS_BYTES}"])]
    return R, fin

def emit_item(A, vm, toks, x):
    if isinstance(x, str): A(x)
    elif x[0] == "vm": toks[x[2]] = vm.issue(x[1])
    elif x[0] == "wait": vm.wait(toks[x[1]])
    elif x[0] == "grp":
        for y in x[1]:
            if y.startswith("buffer_"): vm.issue(y)
            else: A(y)

def r_flush(A, P, FAIL):
    STF = P.get("st", "")
    DONE, K2 = A.label("o_fd"), A.label("o_f2")
    A("s_waitcnt vmcnt(0)")
    post_ob(A, STF)
    A(f"s_cmp_ge_u32 s{sW}, 2\ns_cbranch_scc1 {DONE}\ns_cmp_eq_u32 s{sPrev}, 0\ns_cbranch_scc1 {DONE}")
    wait_ob(A, FAIL)
    A(f"s_and_b32 s{sTmp}, s{sPrev}, {3 << B_KIND}\ns_cbranch_scc1 {K2}")
    for first in (True, False):
        vm = Cnt(A, "vmcnt", 63); toks = {}
        R, fin = r_stream(first)
        for x in list(r_loads(sBox)) + list(R) + fin: emit_item(A, vm, toks, x)
        if first: A(f"s_branch {DONE}\n{K2}:")
    A(f"{DONE}:\ns_mov_b32 s{sPrev}, 0")
    trace(A, 7, 250)

def o_task(A, P, FAIL):
    W = f"s[{sWS}:{sWS+3}]"
    STF = P.get("st", "")
    sA, sB2 = sTmp + 6, sTmp + 7
    def qflag(D, d, name):
        D(f"s_and_b32 s{sA}, s{d}, 0xff\ns_lshl_b32 s{sA}, s{sA}, 12\ns_add_u32 s{sA}, s{sA}, s{cQF}")
        D.append(("vm", f"buffer_load_dword v{oFL}, v{oFO}, {W}, s{sA} offen sc1", name))
    def kflag(D, d, name, dst=oFK):
        D(f"s_and_b32 s{sA}, s{d}, 0xff00\ns_lshl_b32 s{sA}, s{sA}, 3\ns_add_u32 s{sA}, s{sA}, s{cKF}")
        D.append(("vm", f"buffer_load_dword v{dst}, off, {W}, s{sA} sc1", name))
    def dma_items(d, sh=None):
        D = L()
        D(f"s_lshl_b32 s{sB2}, s{d}, 18\ns_lshl_b32 s{sA}, s{d}, 19\ns_add_u32 m0, s{cM0}, {('s%d' % sh) if sh else 0}\ns_add_u32 s{sB2}, s{sB2}, s{cQX}")
        for i in range(4): D.append(("vm", f"buffer_load_dwordx4 v{oL16}, {W}, s{sB2} offen offset:{i*1024} sc1 lds", "dma"))
        D(f"s_add_u32 m0, s{cM1}, {('s%d' % sh) if sh else 0}\ns_add_u32 s{sA}, s{sA}, s{cKV}")
        for h in range(2):
            if h: D(f"s_add_u32 m0, m0, 4096\ns_add_u32 s{sA}, s{sA}, 4096")
            for i in range(4): D.append(("vm", f"buffer_load_dwordx4 v{oL16}, {W}, s{sA} offen offset:{i*1024} sc1 lds", "dma"))
        return D
    def km_dma(d):
        D = L()
        D(f"s_lshl_b32 s{sA}, s{d}, 18\ns_mov_b32 m0, s{cM2}\ns_add_u32 s{sA}, s{sA}, s{cKD}")
        for i in range(3): D.append(("vm", f"buffer_load_dwordx4 v{oL16}, {W}, s{sA} offen offset:{i*1024} sc1 lds", "kdma"))
        return D
    L1, HAVE, L2, HAVEK, KLDS, NOOB, FB, FBR, OBL = [A.label("o_" + x) for x in ("w1", "have", "w2", "havek", "klds", "noob", "fb", "fbr", "obl")]
    W1, W2, WE = A.label("o_wr1"), A.label("o_wr2"), A.label("o_we")
    dummy = (Cnt(A, "vmcnt", 63), {})
    def emit(items):
        for x in items: emit_item(A, *dummy, x)
    trace(A, 1, 250, sCur)
    A(f"s_cmp_lg_u32 s{sPre}, 0\ns_cbranch_scc1 {HAVE}\ns_mov_b32 s{sSpin}, 0\n{L1}:")
    D = L(); qflag(D, sCur, "f"); emit(D)
    spin(A, FAIL)
    A("s_waitcnt vmcnt(0)")
    post_ob(A, STF)
    A(f"v_cmp_eq_u32 vcc, 0, v{oFL}\ns_cbranch_vccnz {L1}")
    A(f"s_and_b32 s{sPq}, s{sCur}, 0xff")
    emit(dma_items(sPq))
    A(f"s_waitcnt vmcnt(0)\ns_barrier\n{HAVE}:")
    trace(A, 2, 250)
    ld = Cnt(A, "lgkmcnt", 15)
    tq = []
    for c in range(4):
        ld.issue(f"ds_read_b128 v[{QR+4*c}:{QR+4*c+3}], v{oSQ} offset:{c*2048}")
        for tt in range(2): t = ld.issue(f"ds_read_b128 v[{KR+(tt*4+c)*4}:{KR+(tt*4+c)*4+3}], v{oSK} offset:{c*4096+tt*1024}")
        tq.append(t)
    D = L(); qflag(D, sNxt, "f"); kflag(D, sNxt, "f", oFK + 1); emit(D)
    for c in range(4):
        ld.wait(tq[c])
        for tt in range(2):
            A(mfd(SX + 4 * tt, KR + (tt * 4 + c) * 4, QR + 4 * c, SX + 4 * tt if c else BIAS + 4 * tt))
            if tt == 0: tm = ld.issue(f"ds_read_b128 v[{MR+4*c}:{MR+4*c+3}], v{oSM} offset:{c*1024}")
            else: ld.issue(f"ds_read_b64 v[{VMR+2*c}:{VMR+2*c+1}], v{oSV} offset:{4096+c*512}")
    CK, ZZ, T1 = PXR, PXR + 1, PXR + 2
    xs = L()
    xs(f"v_mov_b32 v{PMR}, 0\nv_mov_b32 v{PMR+3}, 0")
    for i in range(8): xs(f"v_exp_f32 v{EX+i}, v{SX+i}")
    xs(f"v_max3_f32 v{CK}, v{SX}, v{SX+1}, v{SX+2}\nv_max3_f32 v{CK}, v{SX+3}, v{SX+4}, v{CK}\nv_max3_f32 v{CK}, v{SX+5}, v{SX+6}, v{CK}")
    xs(f"v_add_f32 v{ZZ}, v{EX}, v{EX+1}\nv_add_f32 v{T1}, v{EX+2}, v{EX+3}")
    for i in range(4, 8): xs(f"v_add_f32 v{ZZ+i%2}, v{ZZ+i%2}, v{EX+i}")
    vr = [f"ds_read_b128 v[{VR+i*4}:{VR+i*4+3}], v{oSK} offset:{(i//2)*4096+2048+(i%2)*1024}" for i in range(8)]
    A(f"s_cmp_lg_u32 s{sPreK}, 0\ns_cbranch_scc1 {KLDS}")
    for x in vr: A(x)
    for x in xs: A(x)
    A("s_waitcnt vmcnt(0) lgkmcnt(0)")
    post_ob(A, STF)
    A(f"s_mov_b32 s{sSpin}, 0\n{L2}:")
    D = L(); kflag(D, sCur, "f"); emit(D)
    spin(A, FAIL)
    A(f"s_waitcnt vmcnt(0)\nv_cmp_eq_u32 vcc, 0, v{oFK}\ns_cbranch_vccnz {L2}")
    A(f"s_and_b32 s{sA}, s{sCur}, 0xff00\ns_lshl_b32 s{sA}, s{sA}, 10\ns_add_u32 s{sA}, s{sA}, s{cKM}")
    for c in range(4): A(f"buffer_load_dwordx4 v[{MR+4*c}:{MR+4*c+3}], v{oL16}, {W}, s{sA} offen offset:{c*1024} sc1")
    A(f"s_add_u32 s{sA}, s{sA}, 4096")
    for c in range(4): A(f"buffer_load_dwordx2 v[{VMR+2*c}:{VMR+2*c+1}], v{oL8}, {W}, s{sA} offen offset:{c*512} sc1")
    for c in range(4):
        A(f"s_waitcnt vmcnt({7-c})")
        A(mfd(SMM, MR + 4 * c, QR + 4 * c, SMM if c else None))
    A(f"s_waitcnt vmcnt(0)\ns_branch {HAVEK}\n{KLDS}:")
    ld.wait(tm)
    xq = list(xs)
    for c in range(4):
        A(mfd(SMM, MR + 4 * c, QR + 4 * c, SMM if c else None))
        A(vr[2 * c]); A(vr[2 * c + 1])
    for x in xq: A(x)
    A("s_waitcnt vmcnt(2)")
    post_ob(A, STF, key=False)
    A(f"{HAVEK}:")
    trace(A, 3, 250)
    A(f"v_mul_f32 v{SMM}, s{sC}, v{SMM}\nv_mul_f32 v{SMM+1}, s{sC}, v{SMM+1}")
    A(f"v_exp_f32 v{EX+8}, v{SMM}\nv_exp_f32 v{EX+9}, v{SMM+1}")
    A(f"v_max_f32 v{CK}, v{SX+7}, v{CK}\nv_max3_f32 v{CK}, v{SMM}, v{SMM+1}, v{CK}")
    A(f"v_add_f32 v{ZZ}, v{ZZ}, v{EX+8}\nv_add_f32 v{T1}, v{T1}, v{EX+9}\nv_add_f32 v{ZZ}, v{ZZ}, v{T1}")
    A(f"v_cmp_lt_f32 vcc, 0x42700000, v{CK}")
    def zred():
        for sw in ("16", "32"):
            A(f"v_mov_b32 v{T1}, v{ZZ}\nv_permlane{sw}_swap_b32 v{ZZ}, v{T1}\nv_add_f32 v{ZZ}, v{ZZ}, v{T1}")
    A(f"s_mov_b32 s{sTmp+2}, 0x21800000\ns_and_b32 s{sTmp}, s{cOB}, -256")
    zred()
    A(f"v_cmp_gt_f32 s[{sTmp+4}:{sTmp+5}], s{sTmp+2}, v{ZZ}\nv_rcp_f32 v{ZZ}, v{ZZ}\ns_or_b64 vcc, vcc, s[{sTmp+4}:{sTmp+5}]\ns_cbranch_vccnz {FB}\n{FBR}:")
    A(f"buffer_load_dword v{oT}, v{oL4}, {W}, s{sTmp} offen sc1")
    for i in range(0, 10, 2): A(f"v_pk_mul_f32 v[{EX+i}:{EX+i+1}], v[{EX+i}:{EX+i+1}], v[{ZZ-1}:{ZZ}] op_sel:[0,1] op_sel_hi:[1,1]")
    pack(A, EX, PXR)
    A("s_waitcnt lgkmcnt(0)")
    sal = [f"s_mov_b32 s{sR+5}, s{sBox}", f"s_mov_b32 s{sR+6}, s{sTask}", f"s_add_u32 s{sTask}, s{sTask}, 1", f"s_and_b32 s{sBox}, s{sTask}, 1", f"s_lshl_b32 s{sBox}, s{sBox}, 19",
           f"s_add_u32 s{sBox}, s{sBox}, s{cBX}", f"s_cmp_ge_u32 s{sW}, 2", f"s_cselect_b32 s{sPrev}, 0, s{sPrev}"]
    for i in range(8):
        A(mfd(OA + 4 * i, VR + 4 * i, PXR, None))
        A(sal[i])
        if i == 0: A(f"v_cvt_pk_bf16_f32 v{PMR+1}, v{EX+8}, v{EX+9}\nv_cvt_pk_bf16_f32 v{PMR+2}, v{EX+8}, v{EX+9}")
    pk = L()
    for c in range(4):
        pack(pk, OA + 8 * c, OP + 4 * c)
        pk(f"ds_write_b128 v{oOW}, v[{OP+4*c}:{OP+4*c+3}] offset:{L_O+c*1024}")
    for i in range(8):
        A(f"v_mfma_f32_16x16x16_bf16 {v(OA+4*i,4)}, {v(VMR+2*(i//2),2)}, {v(PMR + (0 if i % 2 else 2),2)}, {v(OA+4*i,4)}")
        if i >= 4:
            A("s_nop 0"); A(pk.pop(0)); A(pk.pop(0))
        else: A("s_nop 1")
    for x in pk: A(x)
    trace(A, 4, 250)
    OBK = A.label("o_obk")
    A(f"s_cmp_eq_u32 s{sPrev}, 0\ns_cbranch_scc1 {NOOB}\ns_mov_b32 s{sSpin}, 0")
    A(f"{OBL}:\ns_waitcnt vmcnt(0)\nv_cmp_gt_u32 vcc, s{sR+6}, v{oT}\ns_cbranch_vccz {OBK}")
    A(f"buffer_load_dword v{oT}, v{oL4}, {W}, s{sTmp} offen sc1")
    spin(A, FAIL)
    A(f"s_branch {OBL}\n{OBK}:")
    vmR = Cnt(A, "vmcnt", 63); tokR = {}
    RL = r_loads(sR + 5)
    NPRE = P.get("npre", 16)
    k = 0
    while RL and k < NPRE:
        x = RL.pop(0); emit_item(A, vmR, tokR, x); k += not isinstance(x, str)
    A(f"s_waitcnt lgkmcnt(0)\ns_barrier\ns_branch {W1}\n{NOOB}:")
    A("s_waitcnt lgkmcnt(0) vmcnt(0)\ns_barrier")
    def stage_w(R, fin):
        ld = Cnt(A, "lgkmcnt", 15); vm = Cnt(A, "vmcnt", 63); toks = {}
        if R:
            vm.q = list(vmR.q); vm.n = vmR.n; toks = dict(tokR); R = list(RL) + list(R)
        tok = {}
        def rd(i):
            tok[i] = ld.issue(f"ds_read_b128 v[{XO+(i%4)*4}:{XO+(i%4)*4+3}], v{oOR} offset:{L_O+(i//8)*8192+(i%8)*512}")
        for i in range(3): rd(i)
        R = list(R)
        own = L()
        own(f"s_bfe_u32 s{sTmp}, s{sNxt}, {(2 << 16) | B_VALID}\ns_and_b32 s{sPq}, s{sNxt}, 0xff\ns_bfe_u32 s{sPk}, s{sNxt}, 0x80008")
        own.append(("grp", [f"v_cmp_eq_u32 vcc, 0, v{oFL}", f"s_cmp_eq_u64 vcc, 0", f"s_cselect_b32 s{sPre}, s{sTmp}, 0", f"s_cmp_eq_u32 s{sPre}, 1", f"s_cselect_b32 s{sPq}, s{sPq}, 1024",
                            f"s_cselect_b32 s{sTmp+8}, 0, 0x20000"]))
        own.append(("grp", [f"s_cmp_eq_u32 s{sTmp}, 3", f"s_cselect_b32 s{sPre}, 1, s{sPre}"]))
        own.append(("grp", [f"v_cmp_eq_u32 vcc, 0, v{oFK+1}", f"s_cmp_eq_u64 vcc, 0", f"s_cselect_b32 s{sPreK}, s{sTmp}, 0", f"s_and_b32 s{sPreK}, s{sPreK}, 1", f"s_cselect_b32 s{sPk}, s{sPk}, 1024"]))
        dm = km_dma(sPk) + dma_items(sPq, sTmp + 8)
        k0 = [i for i, x in enumerate(dm) if not isinstance(x, str)][0]
        own += dm[:k0] + [("at", P.get("dmaat", 4))] + dm[k0:]
        own(f"s_lshl_b32 s{sTmp}, s{sPreK}, 1\ns_or_b32 s{sTmp}, s{sTmp}, s{sPre}\nv_mov_b32 v{oFL}, s{sTmp}")
        own.append(("ds", f"ds_write_b32 v{oVT}, v{oFL}"))
        def cost(x):
            if isinstance(x, str):
                if x.startswith("v_mfma"): return 2
                if x.startswith(("v_exp", "v_rcp", "v_sqrt", "v_permlane")): return 2
                return 1
            return {"vm": 3, "wait": 1, "ds": 2}.get(x[0]) or len(x[1])
        hold = [0]
        def drain(q, budget, n, vmmax):
            while q and budget > 0:
                x = q[0]
                k = None if isinstance(x, str) else x[0]
                if k == "at":
                    if n < x[1]: return budget
                    q.pop(0); continue
                if k == "gap":
                    q[0] = ("at", n + x[1]); continue
                if k == "vm":
                    if vmmax <= 0: return budget
                    vmmax -= 1
                q.pop(0)
                if k == "ds": ld.issue(x[1])
                else: emit_item(A, vm, toks, x)
                budget -= cost(x)
            return budget
        n = 0
        for i in range(16):
            ld.wait(tok[i])
            for T in range(4):
                a = ACC + T * 16
                A(mf32(a, XO + (i % 4) * 4, wo_op(i, T), a if i else None))
                n += 1
                b = P.get("bud", 6)
                if T == 1 and i + 3 < 16: rd(i + 3); b -= 1
                if T == 3: b -= 1
                if n <= 2:
                    b = drain(R, b, n, 2); drain(own, b, n, 1)
                else:
                    b = drain(own, b, n, 1 if n % P.get("dmaper", 2) == 0 else 0); drain(R, b, n, 2)
        drain(own, 999, 999, 999); drain(R, 999, 999, 999)
        late = P.get("latekey", 1)
        for r in range(16):
            for h in range(2): A(f"v_cvt_pk_bf16_f32 v{PKO+2*r+h}, v{ACC+32*h+r}, v{ACC+32*h+16+r}")
            A(f"s_add_u32 s{sTmp}, s{sBox}, {(8*(r//4)+r%4)*16384}")
            vm.issue(f"buffer_store_dwordx2 v[{PKO+2*r}:{PKO+2*r+1}], v{oPS}, {W}, s{sTmp} offen {STF}")
        for x in fin: emit_item(A, vm, toks, x)
        vm.wait(toks["dma"])
    stage_w([], [])
    A(f"s_branch {WE}\n{W1}:\ns_and_b32 s{sTmp}, s{sPrev}, {3 << B_KIND}\ns_cbranch_scc1 {W2}")
    R, fin = r_stream(True)
    stage_w(R, fin if P.get("key1", 1) else [])
    A(f"s_branch {WE}")
    A(f"{FB}:")
    for sw in ("16", "32"):
        A(f"v_mov_b32 v{T1}, v{CK}\nv_permlane{sw}_swap_b32 v{CK}, v{T1}\nv_max_f32 v{CK}, v{CK}, v{T1}")
    for i in range(10): A(f"v_sub_f32 v{EX+i}, v{SX+i}, v{CK}")
    for i in range(10): A(f"v_exp_f32 v{EX+i}, v{EX+i}")
    A(f"v_add_f32 v{ZZ}, v{EX}, v{EX+1}")
    for i in range(2, 10): A(f"v_add_f32 v{ZZ}, v{ZZ}, v{EX+i}")
    zred()
    A(f"v_rcp_f32 v{ZZ}, v{ZZ}\ns_branch {FBR}")
    A(f"{W2}:")
    stage_w(r_stream(False)[0], [])
    A(f"{WE}:")
    A(f"""
    v_and_b32 v{oFL}, -16, v{oVT}
    s_waitcnt lgkmcnt(0)
    s_barrier
    ds_read_b128 v[{SX}:{SX+3}], v{oFL}
    s_mov_b32 s{sPrev}, s{sCur}
    s_mov_b32 s{sPend}, s{cOB}
    s_waitcnt lgkmcnt(0)
    v_and_b32 v{SX}, v{SX}, v{SX+1}
    v_and_b32 v{SX+2}, v{SX+2}, v{SX+3}
    v_and_b32 v{SX}, v{SX}, v{SX+2}
    v_readfirstlane_b32 s{sTmp}, v{SX}
    s_and_b32 s{sPre}, s{sTmp}, 1
    s_and_b32 s{sPreK}, s{sTmp}, 2
    """)
    trace(A, 6, 250)

def wait_all_keys(A, off, FAIL):
    W = f"s[{sWS}:{sWS+3}]"
    L = A.label("k_w")
    A(f"s_mov_b32 s{sSpin}, 0\ns_mov_b32 s{sTmp}, {off + 52*1024}\nv_mov_b32 v193, s{sRun}\n{L}:")
    A(f"buffer_load_dword v160, v{oL32}, {W}, s{sTmp} offen sc1\nbuffer_load_dword v161, v{oL32}, {W}, s{sTmp} offen offset:2048 sc1")
    spin(A, FAIL)
    A(f"s_waitcnt vmcnt(0)\nv_min_u32 v192, v160, v161\nv_max3_u32 v193, v160, v161, v193\nv_cmp_eq_u32 vcc, 0, v192")
    A(f"s_cbranch_vccnz {L}\ns_add_u32 s{sTmp}, s{sTmp}, 4096\ns_cmp_lt_u32 s{sTmp}, {off + KST}\ns_cbranch_scc1 {L}")
    for rot in (8, 4, 2, 1): A(f"v_max_u32_dpp v193, v193, v193 row_ror:{rot} row_mask:0xf bank_mask:0xf")
    for sw in ("16", "32"): A(f"v_mov_b32 v192, v193\nv_permlane{sw}_swap_b32 v193, v192\nv_max_u32 v193, v193, v192")
    A(f"v_readfirstlane_b32 s{sKey}, v193")

def decide(A, FAIL):
    W = f"s[{sWS}:{sWS+3}]"
    L = A.label("d_w")
    A(f"s_mov_b32 s{sSpin}, 0\ns_lshl_b32 s{sTmp}, s{sS}, 10\ns_add_u32 s{sTmp}, s{sTmp}, {F_XN + KST - 11*1024}\n{L}:")
    A(f"buffer_load_dword v160, v{oL32}, {W}, s{sTmp} offen sc1\nbuffer_load_dword v161, v{oL32}, {W}, s{sTmp} offen offset:2048 sc1")
    spin(A, FAIL)
    A("s_waitcnt vmcnt(0)\nv_min_u32 v162, v160, v161\nv_max_u32 v163, v160, v161")
    A(f"v_cmp_eq_u32 vcc, 0, v162\ns_cbranch_vccnz {L}")
    for rot in (8, 4, 2, 1): A(f"v_max_u32_dpp v163, v163, v163 row_ror:{rot} row_mask:0xf bank_mask:0xf")
    for g in range(4): A(f"v_readlane_b32 s{sTmp+2+g}, v163, {16*g}")
    A(f"s_max_u32 s{sTmp+2}, s{sTmp+2}, s{sTmp+3}\ns_max_u32 s{sTmp+4}, s{sTmp+4}, s{sTmp+5}\ns_max_u32 s{sRun}, s{sRun}, s{sTmp+2}\ns_max_u32 s{sRun}, s{sRun}, s{sTmp+4}")

def fixup(A):
    W = f"s[{sWS}:{sWS+3}]"
    DONE = A.label("f_done")
    sP, sOff, sBig = sTmp + 2, sTmp + 3, sTmp + 4
    A(f"""
    s_cmp_ge_u32 s{sW}, 2
    s_cbranch_scc1 {DONE}
    s_andn2_b32 s{sP}, 0xfff, s{sRun}
    s_lshr_b32 s{sP}, s{sP}, 5                     ; s*
    s_lshl_b32 s{sRow}, s{sRep}, 5
    s_lshl_b32 s{sTmp}, s{sU}, 1
    s_add_u32 s{sRow}, s{sRow}, s{sTmp}
    s_add_u32 s{sRow}, s{sRow}, s{sW}
    ; rounds j with 4j+rep < s*  -> mask of copies
    s_add_u32 s{sTmp}, s{sP}, 3
    s_sub_u32 s{sTmp}, s{sTmp}, s{sRep}
    s_lshr_b32 s{sTmp}, s{sTmp}, 2
    s_lshl_b32 s{sTmp}, 1, s{sTmp}
    s_sub_u32 s{sTmp}, s{sTmp}, 1
    s_and_b32 s{sTmp+1}, s{sTmp}, s{sBoth}
    s_mov_b32 s{sBig}, {WS_BYTES}
    s_lshl_b32 s{sOff}, s{sRow}, 10
    """)
    for j in range(16):
        A(f"s_add_u32 s{sTmp+5}, s{sOff}, {OUTA + j*128*1024}\ns_bitcmp1_b32 s{sTmp+1}, {j}\ns_cselect_b32 s{sTmp+5}, s{sTmp+5}, s{sBig}")
        A(f"buffer_load_dwordx4 v[{168+4*j}:{171+4*j}], v{oL16}, {W}, s{sTmp+5} offen sc1")
    A(f"""
    v_lshlrev_b32 v160, 8, v{oL16}
    s_mov_b32 vcc_lo, s{sTmp}
    s_mov_b32 vcc_hi, 0
    v_mov_b32 v161, {KST}
    v_cndmask_b32 v161, v161, 0, vcc
    v_add_u32 v161, v161, v160
    s_lshl_b32 s{sTmp+5}, s{sRow}, 5
    s_add_u32 s{sTmp+6}, s{sTmp+5}, {F_XN + 4*KST}
    s_add_u32 s{sTmp+5}, s{sTmp+5}, {F_XN + 2*KST}
    buffer_load_dword v162, v161, {W}, s{sTmp+5} offen sc1
    """)
    for j in range(16):
        A(f"s_add_u32 s{sTmp+5}, s{sOff}, {j*128*1024}\ns_bitcmp1_b32 s{sTmp+1}, {j}\ns_cselect_b32 s{sTmp+5}, s{sTmp+5}, s{sBig}")
        A(f"s_waitcnt vmcnt(16)")
        A(f"buffer_store_dwordx4 v[{168+4*j}:{171+4*j}], v{oL16}, s[{sOut}:{sOut+3}], s{sTmp+5} offen sc1")
    A(f"""
    s_mov_b32 vcc_lo, s{sBoth}
    v_mov_b32 v161, 0x7ff00000
    v_cndmask_b32 v160, v161, v160, vcc
    s_waitcnt vmcnt(0)
    buffer_store_dword v162, v160, {W}, s{sTmp+6} offen sc1
    {DONE}:
    """)
```

```python
from asmlib import *
from layout import *
from common import *
from chain import Cnt, sWS, sT, sJ, sW, sC, sTmp, sLo, sHi

qL16, qL4, qT0, qT1, qFV, qT2 = range(6)
qST, qL32 = 8, 9
qRD = 120
qSRC = 12
ACC = 20
XB = 68
PK = 100
KEY = 116
qVT = 118
WB = dict(k=128, v=256, q=384)
def wop(m, k): return WB[m] + k * 4
def mf32(d, a, b, c): return f"v_mfma_f32_32x32x16_bf16 {v(d,16)}, {reg(a,4)}, {reg(b,4)}, {v(c,16) if c is not None else '0'}"
sI1, sI2, sTurn, sQB, sB, sGo = range(40, 46)
sCur, sNxt, sPre, sPend, sPar, sKF, sOut, sSpin, sDm, sFk, sRun, sHW, sKey, sRow = range(46, 60)
sRep, sKind, sMode, sSrc = 60, 61, 62, 63
sG, sUp, sO = 64, 68, 72
sN2, sSv = 76, 77
NPL = 23
L_ML, L_PS, L_H, L_VT = 65536, 159744, 161792, 162816

def qkv_load_weights(A, n, g, first=None):
    NS = 5
    SRC, RD = 20, 22
    w_src_regs(A, qL16, SRC, 25)
    A(f"""
    s_load_dwordx2 s[{sG}:{sG+1}], s[0:1], {KA['wk']}
    s_load_dwordx2 s[{sUp}:{sUp+1}], s[0:1], {KA['wv']}
    s_load_dwordx2 s[{sT}:{sT+1}], s[0:1], {KA['wq']}
    s_mov_b32 s{sT+2}, {4*MB}
    s_mov_b32 s{sT+3}, 0x20000
    s_mov_b32 s{sG+2}, {4*MB}
    s_mov_b32 s{sG+3}, 0x20000
    s_mov_b32 s{sUp+2}, {4*MB}
    s_mov_b32 s{sUp+3}, 0x20000
    v_lshrrev_b32 v25, 2, v{n}
    v_lshrrev_b32 v26, 1, v{g}
    v_lshl_add_u32 v27, v26, 3, v25
    v_lshlrev_b32 v27, 8, v27
    v_lshl_add_u32 v26, v25, 1, v26
    v_and_b32 v25, 1, v{g}
    v_xor_b32 v26, v26, v25
    s_lshl_b32 s{sTmp}, s{sW}, 1
    v_xor_b32 v26, s{sTmp}, v26
    v_lshl_add_u32 v27, v26, 5, v27
    v_and_b32 v25, 3, v{n}
    v_lshl_add_u32 v{RD}, v25, 3, v27
    v_add_u32 v{RD+1}, 65536, v{RD}
    v_add_u32 v{RD+2}, 131072, v{RD}
    s_lshl_b32 s{sTmp+2}, s{sW}, 13
    s_lshl_b32 s{sTmp}, s{sW}, 18
    s_lshl_b32 s{sTmp+1}, s{sJ}, 8
    s_add_u32 s{sTmp}, s{sTmp}, s{sTmp+1}
    s_waitcnt lgkmcnt(0)
    """)
    vm = Cnt(A, "vmcnt", 63)
    srd = dict(k=sG, v=sUp, q=sT)
    jobs = [(m, b) for m in "kvq" for b in range(4)]
    tk = {}
    def issue(i):
        m, b = jobs[i]
        A(f"s_add_u32 s{sTmp+1}, s{sTmp}, {b * 128 * 8192}")
        tk[i] = w_stage_dma(A, vm, srd[m], SRC, sTmp + 1, sTmp + 2, (i % NS) * 32768, 8)
    for i in range(NS): issue(i)
    for i, (m, b) in enumerate(jobs):
        vm.wait(tk[i])
        A("s_barrier")
        if i == 0 and first: first()
        base = (i % NS) * 32768
        for kl in range(8):
            for hq in range(2):
                off = base + kl * 4096 + hq * 1024
                A(f"ds_read_b64_tr_b16 {reg(wop(m, b*8+kl) + 2*hq, 2)}, v{RD + off // 65536} offset:{off % 65536}")
        if i + NS < len(jobs):
            A("s_waitcnt lgkmcnt(0)\ns_barrier")
            issue(i + NS)
    A("s_waitcnt lgkmcnt(0)\ns_barrier")

def spin(A, fail):
    A(f"s_add_u32 s{sSpin}, s{sSpin}, 1\ns_cmp_gt_u32 s{sSpin}, {SPIN_MAX}\ns_cbranch_scc1 {fail}")

VG, VD = 6, 7
def mlp_setup(A, j0):
    A(f"""
    s_load_dwordx2 s[{sG}:{sG+1}], s[0:1], {KA['wg']}
    s_load_dwordx2 s[{sUp}:{sUp+1}], s[0:1], {KA['wu']}
    s_load_dwordx2 s[{sT}:{sT+1}], s[0:1], {KA['wd']}
    s_mov_b32 s{sG+2}, {512*1792*2}
    s_mov_b32 s{sUp+2}, {512*1792*2}
    s_mov_b32 s{sT+2}, {512*1792*2}
    v_lshrrev_b32 v{qT0}, 8, v{qL16}               ; g
    v_and_b32 v{qT1}, 0x70, v{qL16}                ; (n&7)*16
    s_mov_b32 s{sTmp}, {32*3584}
    v_mul_lo_u32 v{VG}, v{qT0}, s{sTmp}
    v_add_u32 v{VG}, v{VG}, v{qT1}
    v_cmp_eq_u32 vcc, 0x70, v{qT1}
    v_mov_b32 v{qT1}, 0x7ff00000
    v_cndmask_b32 v{VG}, v{VG}, v{qT1}, vcc
    v_mul_u32_u24 v{VD}, {14*1024}, v{qT0}
    v_and_b32 v{qT1}, 0xf0, v{qL16}
    v_add_u32 v{VD}, v{VD}, v{qT1}
    s_mul_i32 s{sTmp+8}, s{sW}, {128*3584}
    s_mul_i32 s{sTmp+1}, s{sJ}, 112
    s_add_u32 s{sTmp+8}, s{sTmp+8}, s{sTmp+1}
    s_add_u32 s{sTmp+8}, s{sTmp+8}, {j0*3584}
    s_mul_i32 s{sTmp+9}, s{sJ}, {56*1024}
    s_lshl_b32 s{sTmp+1}, s{sW}, 8
    s_add_u32 s{sTmp+9}, s{sTmp+9}, s{sTmp+1}
    s_mov_b32 s{sTmp+10}, 0x00ff00ff
    s_mov_b32 s{sTmp+11}, 0x00ff00ff
    s_waitcnt lgkmcnt(0)
    """)

def mlp_preload(A, touch):
    mlp_setup(A, 0)
    A(f"s_mul_i32 s{sTmp}, s{sW}, {NPL*1024}\ns_add_u32 m0, s{sTmp}, {L_ML}")
    for j in range(NPL):
        A(f"s_mov_b64 exec, s[{sTmp+10}:{sTmp+11}]")
        A(f"buffer_load_dwordx4 v{VG}, s[{sG}:{sG+3}], s{sTmp+8} offen lds")
        A(f"s_not_b64 exec, exec")
        A(f"buffer_load_dwordx4 v{VG}, s[{sUp}:{sUp+3}], s{sTmp+8} offen lds")
        A(f"s_add_u32 s{sTmp+8}, s{sTmp+8}, 3584\ns_add_u32 m0, m0, 1024")
    if touch:
        A(f"s_mov_b32 m0, {L_PS}\ns_waitcnt vmcnt(20)")
        for j in range(NPL, 32):
            A(f"s_mov_b64 exec, s[{sTmp+10}:{sTmp+11}]")
            A(f"buffer_load_dwordx4 v{VG}, s[{sG}:{sG+3}], s{sTmp+8} offen lds")
            A(f"s_not_b64 exec, exec")
            A(f"buffer_load_dwordx4 v{VG}, s[{sUp}:{sUp+3}], s{sTmp+8} offen lds")
            A(f"s_add_u32 s{sTmp+8}, s{sTmp+8}, 3584")
        A("s_mov_b64 exec, -1")
        for j in range(14): A(f"buffer_load_dwordx4 v{VD}, s[{sT}:{sT+3}], s{sTmp+9} offen lds\ns_add_u32 s{sTmp+9}, s{sTmp+9}, 1024")
    A("s_mov_b64 exec, -1")

def mlp(A, FAIL, ring, nring, getkey, inst):
    W = f"s[{sWS}:{sWS+3}]"
    AOP, MSK, DG, XP, LB = 20, 28, 32, 36, 52
    mlp_setup(A, NPL)
    vm = Cnt(A, "vmcnt", 63)
    slots = [("g", j) for j in range(NPL, 32)] + [("d", j) for j in range(14)]
    tok = {}
    def sreg(i): return ring + 4 * i if i < nring else (LB + ((NPL + i - nring) % 3) * 4 if i < nring + 3 else ring + 4 * (i - nring - 3))
    def issue(i):
        m, j = slots[i]
        r = reg(sreg(i), 4)
        if m == "d":
            tok[i] = vm.issue(f"buffer_load_dwordx4 {r}, v{VD}, s[{sT}:{sT+3}], s{sTmp+9} offen offset:{(j%4)*1024}")
            if j % 4 == 3: A(f"s_add_u32 s{sTmp+9}, s{sTmp+9}, 4096")
        else:
            A(f"s_mov_b64 exec, s[{sTmp+10}:{sTmp+11}]")
            vm.issue(f"buffer_load_dwordx4 {r}, v{VG}, s[{sG}:{sG+3}], s{sTmp+8} offen")
            A(f"s_not_b64 exec, exec")
            tok[i] = vm.issue(f"buffer_load_dwordx4 {r}, v{VG}, s[{sUp}:{sUp+3}], s{sTmp+8} offen")
            A(f"s_mov_b64 exec, -1\ns_add_u32 s{sTmp+8}, s{sTmp+8}, 3584")
    def xload():
        A(f"""
        s_andn2_b32 s{sRow}, 0xfff, s{sKey}
        s_lshl_b32 s{sTmp}, s{sKind}, 21
        s_lshl_b32 s{sTmp+1}, s{sRow}, 10
        s_add_u32 s{sTmp}, s{sTmp}, s{sTmp+1}
        s_lshl_b32 s{sTmp+1}, s{sW}, 8
        s_add_u32 s{sTmp}, s{sTmp}, s{sTmp+1}
        s_add_u32 s{sTmp}, s{sTmp}, {XB_}
        v_lshrrev_b32 v{qT1}, 8, v{qL16}
        v_lshlrev_b32 v{qT1}, 6, v{qT1}
        """)
        for i in range(4): t = vm.issue(f"buffer_load_dwordx4 v[{XP+4*i}:{XP+4*i+3}], v{qT1}, {W}, s{sTmp} offen offset:{16*i} sc1")
        return t
    nxt = min(nring, len(slots))
    if getkey is None:
        tx = xload()
        for i in range(nxt): issue(i)
    else:
        for i in range(nxt): issue(i)
        getkey(); vm.reset()
        tx = xload()
    selmats(A, MSK, 4, qT1, "0xffff", "0xffff0000")
    A(f"s_mov_b32 s{sTmp+4}, 0x01000100\ns_mov_b32 s{sTmp+5}, 0x03020302")
    A(f"s_mul_i32 s{sTmp}, s{sW}, {NPL*1024}\ns_add_u32 s{sTmp}, s{sTmp}, {L_ML}\nv_add_u32 v{qT2}, s{sTmp}, v{qL16}")
    ld = Cnt(A, "lgkmcnt", 15); lt = {}
    def lrd(j): lt[j] = ld.issue(f"ds_read_b128 v[{LB+(j%3)*4}:{LB+(j%3)*4+3}], v{qT2} offset:{j*1024}")
    for j in range(3): lrd(j)
    vm.wait(tx)
    for j in range(32):
        a = AOP + (j % 2) * 4
        A(f"v_perm_b32 v{qT1}, v{XP+j//2}, v{XP+j//2}, s{sTmp+4+j%2}")
        for r in range(4): A(f"v_and_b32 v{a+r}, v{MSK+r}, v{qT1}")
        if j < NPL:
            ld.wait(lt[j])
            A(mfd(DG, a, LB + (j % 3) * 4, DG if j else None))
            if j + 3 < NPL: lrd(j + 3)
            elif nxt < len(slots): issue(nxt); nxt += 1
        else:
            vm.wait(tok[j - NPL])
            A(mfd(DG, a, sreg(j - NPL), DG))
            if nxt < len(slots): issue(nxt); nxt += 1
    assert nxt == len(slots)
    A(f"""
    v_lshrrev_b32 v{qT0}, 8, v{qL16}
    v_and_b32 v{qT1}, 0xf0, v{qL16}
    v_lshlrev_b32 v{qT1}, 1, v{qT1}
    v_lshl_add_u32 v{qT1}, v{qT0}, 4, v{qT1}
    s_lshl_b32 s{sTmp}, s{sW}, 9
    s_add_u32 s{sTmp}, s{sTmp}, {L_PS}
    v_add_u32 v{qT2}, s{sTmp}, v{qT1}
    s_mov_b32 exec_hi, 0
    ds_write_b128 v{qT2}, v[{DG}:{DG+3}]
    s_mov_b32 exec_hi, -1
    v_add_u32 v{qT2}, {L_PS}, v{qL4}
    s_waitcnt lgkmcnt(0)
    s_barrier
    """)
    for w in range(4):
        for m in range(2): A(f"ds_read_b32 v{XP+w*2+m}, v{qT2} offset:{w*512+m*256}")
    A("s_waitcnt lgkmcnt(0)")
    for q in range(2):
        A(f"v_add_f32 v{XP+q}, v{XP+q}, v{XP+2+q}\nv_add_f32 v{XP+4+q}, v{XP+4+q}, v{XP+6+q}\nv_add_f32 v{XP+q}, v{XP+q}, v{XP+4+q}")
        rnd(A, XP + q)
    A(f"v_mul_f32 v{XP+4}, {hex(f32bits(-math.log2(math.e)))}, v{XP}\nv_exp_f32 v{XP+4}, v{XP+4}\nv_add_f32 v{XP+4}, 1.0, v{XP+4}\nv_rcp_f32 v{XP+4}, v{XP+4}")
    A(f"v_mul_f32 v{XP}, v{XP}, v{XP+4}")
    rnd(A, XP)
    A(f"v_mul_f32 v{XP}, v{XP}, v{XP+1}\nv_cvt_pk_bf16_f32 v{XP}, v{XP}, v{XP}")
    A(f"s_lshl_b32 s{sTmp}, s{sW}, 8\ns_add_u32 s{sTmp}, s{sTmp}, {L_H}\nv_add_u32 v{qT2}, s{sTmp}, v{qL4}\nds_write_b32 v{qT2}, v{XP}")
    A(f"v_mul_u32_u24 v{qT2}, 56, v{qT0}\nv_add_u32 v{qT2}, s{sTmp}, v{qT2}")
    for q in range(7): A(f"ds_read_b64 v[{XP+2*q}:{XP+2*q+1}], v{qT2} offset:{8*q}")
    A("s_waitcnt lgkmcnt(0)")
    for j in range(14):
        a = AOP + (j % 2) * 4
        i = 32 - NPL + j
        for r in range(4): A(f"v_and_b32 v{a+r}, v{MSK+r}, v{XP+j}")
        vm.wait(tok[i])
        A(mfd(DG, a, sreg(i), DG if j else None))
    A(f"""
    v_lshrrev_b32 v{qT1}, 1, v{qT1}
    s_lshl_b32 s{sTmp}, s{inst}, 7
    s_add_u32 s{sTmp}, s{sTmp}, s{sHW}
    s_lshl_b32 s{sTmp}, s{sTmp}, 8
    s_add_u32 s{sTmp}, s{sTmp}, {MLPY - 64*32768}
    v_cvt_pk_bf16_f32 v{DG}, v{DG}, v{DG+1}
    v_cvt_pk_bf16_f32 v{DG+1}, v{DG+2}, v{DG+3}
    v_min_u32 v{DG}, -2, v{DG}
    v_min_u32 v{DG+1}, -2, v{DG+1}
    s_mov_b32 exec_hi, 0
    buffer_store_dwordx2 v[{DG}:{DG+1}], v{qT1}, {W}, s{sTmp} offen sc1
    s_mov_b32 exec_hi, -1
    """)

def gather(A, FAIL, inst, finish):
    W = f"s[{sWS}:{sWS+3}]"
    DONE, L1 = A.label("m_done"), A.label("m_w")
    SEL, S0, XR, YR, XF, YF, RB = 20, 28, 36, 40, 44, 52, 60
    A(f"""
    s_lshl_b32 s{sTmp}, s{sKind}, 21
    s_lshl_b32 s{sTmp+1}, s{sRow}, 10
    s_add_u32 s{sTmp}, s{sTmp}, s{sTmp+1}
    s_add_u32 s{sTmp+1}, s{sTmp}, {XA}
    s_add_u32 s{sTmp+2}, s{sTmp}, {XB_}
    s_lshl_b32 s{sTmp}, s{inst}, 7
    s_add_u32 s{sTmp}, s{sTmp}, s{sW}
    s_lshl_b32 s{sTmp}, s{sTmp}, 8
    s_add_u32 s{sTmp}, s{sTmp}, {MLPY - 64*32768}
    v_lshrrev_b32 v{qT0}, 8, v{qL16}
    v_and_b32 v{qT1}, 0xf0, v{qL16}
    v_lshl_add_u32 v{qT2}, v{qT0}, 10, v{qT1}
    buffer_load_dwordx4 v[{XR}:{XR+3}], v{qL16}, {W}, s{sTmp+1} offen sc1
    buffer_load_dwordx4 v[{YR}:{YR+3}], v{qL16}, {W}, s{sTmp+2} offen sc1
    s_mov_b32 s{sSpin}, 0
    {L1}:
    """)
    for p in range(8):
        A(f"s_add_u32 s{sTmp+1}, s{sTmp}, {p*4096}\nbuffer_load_dwordx4 v[{RB+4*p}:{RB+4*p+3}], v{qT2}, {W}, s{sTmp+1} offen sc1")
    spin(A, FAIL)
    selmats(A, SEL, 4, S0)
    for p in range(8):
        r = RB + 4 * p
        A(f"s_waitcnt vmcnt({7-p})")
        A(mfd(S0, SEL, r, S0 if p else None))
        A(f"v_max3_u32 v{XF}, v{r}, v{r+1}, " + (f"v{XF}" if p else "0"))
        A(f"v_max3_u32 v{XF}, v{r+2}, v{r+3}, v{XF}")
    A(f"v_cmp_eq_u32 vcc, -1, v{XF}\ns_cbranch_vccnz {L1}")
    A(f"""
    v_lshlrev_b32 v{qT1}, 1, v{qT1}
    v_lshl_add_u32 v{qT1}, v{qT0}, 4, v{qT1}
    s_lshl_b32 s{sTmp}, s{sW}, 9
    s_add_u32 s{sTmp}, s{sTmp}, {L_PS}
    v_add_u32 v{qT1}, s{sTmp}, v{qT1}
    s_mov_b32 exec_hi, 0
    ds_write_b128 v{qT1}, v[{S0}:{S0+3}]
    s_mov_b32 exec_hi, -1
    v_add_u32 v{qT1}, {L_PS}, v{qL32}
    """)
    unpack(A, XR, XF); unpack(A, YR, YF)
    TM = XR
    A(f"""
    s_waitcnt lgkmcnt(0)
    s_barrier
    s_cmp_lg_u32 s{sW}, 0
    s_cbranch_scc1 {DONE}
    ds_read_b128 v[{S0}:{S0+3}], v{qT1}
    ds_read_b128 v[{S0+4}:{S0+7}], v{qT1} offset:16
    s_and_b32 s{sTmp+3}, s{sKey}, 0xffff0000
    s_xor_b32 s{sTmp+1}, s{sTmp+3}, 0x80000000
    s_xor_b32 s{sTmp+2}, s{sTmp+3}, 0xffff0000
    s_bitcmp1_b32 s{sTmp+3}, 31
    s_cselect_b32 s{sTmp+3}, s{sTmp+1}, s{sTmp+2}
    v_mov_b32 v{TM}, s{sTmp+3}
    v_mul_f32 v{TM}, {hex(f32bits(-math.log2(math.e)))}, v{TM}
    v_exp_f32 v{TM}, v{TM}
    v_add_f32 v{TM}, 1.0, v{TM}
    v_rcp_f32 v{TM}, v{TM}
    """)
    rnd(A, TM)
    A("s_waitcnt lgkmcnt(0)")
    for i in range(8): rnd(A, S0 + i)
    for i in range(8): A(f"v_mul_f32 v{S0+i}, v{S0+i}, v{TM}")
    for i in range(8): rnd(A, S0 + i)
    for i in range(8): A(f"v_add_f32 v{S0+i}, v{S0+i}, v{YF+i}")
    for i in range(8): rnd(A, S0 + i)
    for i in range(8): A(f"v_add_f32 v{XF+i}, v{XF+i}, v{S0+i}")
    pack(A, XF, YR); unpack(A, YR, XF)
    finish(XF, YR, RB)
    A(f"{DONE}:")

def qkv_role(A, P, first=None, after_weights=None):
    W = f"s[{sWS}:{sWS+3}]"
    n, g = 6, 7
    A(f"""
    v_and_b32 v19, 63, v0
    v_and_b32 v{n}, 15, v19
    v_lshrrev_b32 v{g}, 4, v19
    v_lshlrev_b32 v{qL4}, 2, v19
    v_lshlrev_b32 v{qL16}, 4, v19
    v_lshlrev_b32 v{qL32}, 5, v19
    s_mov_b32 s{sC}, {hex(f32bits(128 ** -0.5 * math.log2(math.e)))}
    s_lshl_b32 s{sHW}, s{sJ}, 2
    s_add_u32 s{sHW}, s{sHW}, s{sW}
    s_mul_i32 s{sTmp}, s{sW}, 3
    s_add_u32 s{sTmp}, s{sTmp}, s{sRep}
    s_lshl_b32 s{sTmp}, s{sTmp}, 5
    s_add_u32 s{sTmp}, s{sTmp}, s{sJ}
    s_lshl_b32 s{sTmp}, s{sTmp}, 10
    s_add_u32 s{sTmp}, s{sTmp}, {MLPY}
    v_mov_b64 v[20:21], -1
    v_mov_b64 v[22:23], -1
    """)
    for i in range(6): A(f"buffer_store_dwordx4 v[20:23], v{qL16}, {W}, s{sTmp} offen sc1\ns_add_u32 s{sTmp}, s{sTmp}, {12*32768}")
    A(f"v_lshrrev_b32 v24, 1, v{g}\nv_xor_b32 v24, v24, v{n}\nv_lshlrev_b32 v24, 4, v24\nv_and_b32 v25, 31, v19\nv_lshl_add_u32 v24, v25, 10, v24")
    for cl in range(8): A(f"v_xor_b32 v{qRD+cl}, {cl*32}, v24")
    A(f"v_and_b32 v24, 1, v{g}\nv_lshlrev_b32 v24, 10, v24\nv_lshl_add_u32 v24, v{n}, 4, v24\nv_lshrrev_b32 v25, 1, v{g}\nv_lshl_add_u32 v{qST}, v25, 8, v24")
    A(f"s_and_b32 s{sTmp}, s{sW}, 1\ns_lshl_b32 s{sTmp}, s{sTmp}, 7\nv_xor_b32 v24, s{sTmp}, v{qL16}")
    for i in range(8): A(f"v_xor_b32 v{qSRC+i}, {i*16}, v24")
    A(f"s_lshl_b32 s{sTmp}, s{sW}, 2\ns_add_u32 s{sTmp}, s{sTmp}, {L_VT}\nv_mov_b32 v{qVT}, s{sTmp}\nv_mov_b32 v{qVT+1}, {L_VT}")
    qkv_load_weights(A, n, g, first)
    if after_weights: after_weights()
    N0, NPRE = P.get("n0", 6), P.get("npre", 3)
    A(f"""
    s_mov_b32 s{sNxt}, s{sRep}
    s_add_u32 s{sI1}, s{sRep}, 3
    s_add_u32 s{sI2}, s{sRep}, 64
    s_mov_b32 s{sTurn}, {N0 - 1}
    s_mov_b32 s{sPre}, 0
    s_mov_b32 s{sPend}, {WS_BYTES}
    s_mov_b32 s{sQB}, {WS_BYTES}
    s_mov_b32 s{sPar}, 32768
    s_mov_b32 s{sRun}, 0
    s_mov_b32 s{sKind}, 0
    s_mov_b32 s{sMode}, 0
    s_lshl_b32 s{sDm}, s{sW}, 13
    """)
    SLOW, END, HAVE, POLL, FAIL, PATCH, NOPRE, FORK, COLD = [A.label("q_" + x) for x in
        ("slow", "end", "have", "poll", "fail", "patch", "nopre", "fork", "cold")]
    CE = [A.label("q_c0"), A.label("q_c1")]; WE = [A.label("q_w0"), A.label("q_w1")]
    def post(A, off, val):
        A(f"s_mov_b64 exec, 1\nbuffer_store_dword v{val}, off, {W}, s{off} sc1\ns_mov_b64 exec, -1")
    def key_loads(A):
        A(f"s_cmp_lt_u32 s{sNxt}, 64\ns_cselect_b32 s{sTmp}, 3, 0\ns_add_u32 s{sTmp}, s{sTmp}, s{sNxt}\ns_lshl_b32 s{sTmp}, s{sTmp}, 10\ns_add_u32 s{sTmp}, s{sTmp}, {F_XN - 3072}")
        A(f"buffer_load_dword v{KEY}, v{qL32}, {W}, s{sTmp} offen sc1\nbuffer_load_dword v{KEY+1}, v{qL32}, {W}, s{sTmp} offen offset:2048 sc1")
    def key_eval(A):
        A(f"v_min_u32 v{qT0}, v{KEY}, v{KEY+1}\nv_max_u32 v{KEY}, v{KEY}, v{KEY+1}\nv_cmp_eq_u32 vcc, 0, v{qT0}")
        for rot in (8, 4, 2, 1): A(f"v_max_u32_dpp v{KEY}, v{KEY}, v{KEY} row_ror:{rot} row_mask:0xf bank_mask:0xf\ns_nop 0")
        for gg in range(4): A(f"v_readlane_b32 s{sTmp+2+gg}, v{KEY}, {16*gg}")
        A(f"""
        s_max_u32 s{sTmp+2}, s{sTmp+2}, s{sTmp+3}
        s_max_u32 s{sTmp+4}, s{sTmp+4}, s{sTmp+5}
        s_max_u32 s{sTmp+2}, s{sTmp+2}, s{sTmp+4}
        """)
        A.append(("grp", [f"s_cmp_eq_u64 vcc, 0", f"s_cselect_b32 s{sPre}, 1, 0"]))
        A.append(("grp", [f"s_bitcmp1_b32 s{sNxt}, 6", f"s_cselect_b32 s{sTmp+2}, s{sTmp+2}, 0"]))
        A(f"s_max_u32 s{sRun}, s{sRun}, s{sTmp+2}\ns_bfe_u32 s{sTmp+2}, s{sRun}, 0x70005\ns_xor_b32 s{sTmp+2}, s{sTmp+2}, 63")
        A.append(("grp", [f"s_cmp_eq_u32 s{sTmp+2}, s{sNxt}", f"s_cselect_b32 s{sFk}, 1, 0"]))
    def dma(A, sid):
        A(f"s_and_b32 s{sSrc}, s{sid}, 127\ns_lshl_b32 s{sSrc}, s{sSrc}, 15\ns_xor_b32 s{sTmp+1}, s{sPar}, 32768")
        A(f"s_add_u32 m0, s{sTmp+1}, s{sDm}\ns_add_u32 s{sSrc}, s{sSrc}, s{sDm}\ns_add_u32 s{sSrc}, s{sSrc}, {XN}")
        for i in range(8):
            if i == 4: A(f"s_add_u32 m0, m0, 4096\ns_add_u32 s{sSrc}, s{sSrc}, 4096")
            A(f"buffer_load_dwordx4 v{qSRC+i}, {W}, s{sSrc} offen offset:{(i%4)*1024} sc1 lds")
    def advance(A):
        A.append(("grp", [f"s_cmp_lt_u32 s{sI1}, 64", f"s_cselect_b32 s{sTurn}, s{sTurn}, 0", f"s_cmp_lg_u32 s{sTurn}, 0",
                          f"s_cselect_b32 s{sN2}, s{sI1}, s{sI2}", f"s_cselect_b32 s{sTmp}, 3, 0", f"s_cselect_b32 s{sTurn}, s{sTurn}, 2"]))
        A(f"s_sub_u32 s{sTurn}, s{sTurn}, 1\ns_add_u32 s{sI1}, s{sI1}, s{sTmp}\ns_xor_b32 s{sTmp}, s{sTmp}, 3\ns_add_u32 s{sI2}, s{sI2}, s{sTmp}")
    def epi(a0, pk, base, off, scale):
        f = L()
        if scale:
            for r in range(16): f(f"v_mul_f32 v{a0+r}, s{sC}, v{a0+r}")
        for p in range(2):
            for d, r in enumerate((4*p, 4*p+2, 4*p+8, 4*p+10)): f(f"v_cvt_pk_bf16_f32 v{pk+4*p+d}, v{a0+r}, v{a0+r+1}")
            f(f"buffer_store_dwordx4 v[{pk+4*p}:{pk+4*p+3}], v{qST}, {W}, s{base} offen offset:{off+p*512} sc1")
        return f
    def emit(items):
        for x in items:
            if isinstance(x, str): A(x)
            else:
                for y in x[1]: A(y)
    AH, NW_ = 5, 4
    def rdtxt(i, par):
        k = i % 32
        r = XB + (i % 8) * 4
        return f"ds_read_b128 v[{r}:{r+3}], v{qRD+k%8} offset:{par*32768+(k//8)*256}"
    def block(par):
        ld = Cnt(A, "lgkmcnt", 15)
        A(f"{CE[par]}:")
        tok = {}
        for i in range(NW_): tok[i] = ld.issue(rdtxt(i, par))
        A(f"{WE[par]}:")
        trace(A, 2, 10, sNxt)
        f0 = L(); f0(f"s_mov_b32 s{sCur}, s{sNxt}\ns_mov_b32 s{sNxt}, s{sN2}"); key_loads(f0)
        f4 = L(); advance(f4)
        f0 += epi(ACC + 32, PK, sQB, 0, False)
        f0(f"s_lshl_b32 s{sOut}, s{sCur}, 7\ns_add_u32 s{sOut}, s{sOut}, s{sHW}\ns_lshl_b32 s{sB}, s{sOut}, 12\ns_add_u32 s{sB}, s{sB}, {KV}")
        f0(f"s_lshl_b32 s{sQB}, s{sOut}, 11\ns_add_u32 s{sQB}, s{sQB}, {QX}\ns_lshl_b32 s{sKF}, s{sOut}, 5\ns_add_u32 s{sKF}, s{sKF}, {F_KV}")
        f1 = L(); f1("s_waitcnt vmcnt(2)"); key_eval(f1)
        f1.append(("grp", [f"s_cmp_lg_u32 s{sPre}, 0", f"s_cselect_b32 s{sTmp+2}, s{sNxt}, s{sCur}"]))
        f2 = L(); dma(f2, sTmp + 2)
        f3 = L(); f3("s_waitcnt vmcnt(8)"); post(f3, sPend, qFV)
        f3(f"s_add_u32 s{sPend}, s{sKF}, 16")
        f3(f"s_or_b32 s{sTmp}, s{sFk}, s{sMode}\ns_lshr_b32 s{sTmp+1}, s{sNxt}, 7\ns_or_b32 s{sTmp}, s{sTmp}, s{sTmp+1}\ns_sub_u32 s{sTmp+1}, s{sNxt}, s{sRep}")
        f3.append(("grp", [f"s_cmp_eq_u32 s{sTmp+1}, {3*NPRE}", f"s_cselect_b32 s{sTmp}, 1, s{sTmp}"]))
        f3(f"s_andn2_b32 s{sTmp}, s{sPre}, s{sTmp}\nv_mov_b32 v{qT0}, s{sTmp}\ns_add_u32 s{sTmp}, s{sMode}, 1\nv_mov_b32 v{qFV}, s{sTmp}")
        f3.append(("ds", f"ds_write_b32 v{qVT}, v{qT0} offset:{par*16}"))
        fills = {0: f0, P.get("p1", 16): f1 + f2, P.get("p3", 44): f3 + epi(ACC, PK + 8, sB, 0, True), 67: epi(ACC + 16, PK, sB, 2048, False) + f4}
        q = []
        def fill(budget, vmok):
            while q and budget > 0:
                x = q[0]
                if not isinstance(x, str):
                    q.pop(0)
                    if x[0] == "ds": ld.issue(x[1]); budget -= 1
                    else:
                        for y in x[1]: A(y)
                        budget -= len(x[1])
                    continue
                if x.startswith("buffer_"):
                    if not vmok: break
                    vmok = False; budget -= 2
                budget -= 1
                A(q.pop(0))
                if x.startswith("s_mov_b64 exec, 1"):
                    A(q.pop(0)); A(q.pop(0)); budget -= 3
        nrd = NW_
        BAR = 91
        for i in range(96):
            m, k = "kvq"[i // 32], i % 32
            a0 = ACC + 16 * (i // 32)
            q += fills.get(i, [])
            if i == BAR:
                assert not q
                A("s_waitcnt vmcnt(5) lgkmcnt(0)\ns_barrier"); ld.reset()
                tv = ld.issue(f"ds_read_b128 v[{PK+8}:{PK+11}], v{qVT+1} offset:{par*16}")
            elif i % 2 == 0 and i < BAR: ld.wait(tok[i + 1])
            x = XB + (i % 8) * 4
            cc = a0 if k else None
            A(mf32(a0, x, wop(m, k), cc) if m == "v" else mf32(a0, wop(m, k), x, cc))
            want = min(96, i + AH + 1 + max(0, i - 84))
            b = 5
            while nrd < want and nrd - 8 <= i:
                tok[nrd] = ld.issue(rdtxt(nrd, par)); nrd += 1; b -= 1
            if BAR <= i < BAR + NW_: ld.issue(rdtxt(i - BAR, par ^ 1))
            if i == BAR + 1: A(f"s_xor_b32 s{sPar}, s{sPar}, 32768")
            if i == BAR + 3:
                ld.wait(tv)
                A(f"v_and_b32 v{PK+8}, v{PK+8}, v{PK+9}\nv_and_b32 v{PK+10}, v{PK+10}, v{PK+11}\nv_and_b32 v{PK+8}, v{PK+8}, v{PK+10}")
                A(f"v_readfirstlane_b32 s{sGo}, v{PK+8}")
            if i == P.get("pk", BAR + 2):
                A("s_waitcnt vmcnt(0)"); post(A, sKF, qFV)
            fill(b + 1, i % 2 == 0)
        A(f"s_cmp_lg_u32 s{sGo}, 0\ns_cbranch_scc1 {WE[par ^ 1]}\ns_branch {SLOW}")
    A(f"s_mov_b32 s{sPar}, 0\nv_mov_b32 v{qFV}, 1")
    f = L(); advance(f); emit(f)
    A(f"{SLOW}:")
    trace(A, 1, 10)
    emit(epi(ACC + 32, PK, sQB, 0, False))
    A(f"""
    s_mov_b32 s{sQB}, {WS_BYTES}
    s_xor_b32 s{sPar}, s{sPar}, 32768
    s_cmp_lg_u32 s{sMode}, 0
    s_cbranch_scc1 {PATCH}
    s_cmp_ge_u32 s{sNxt}, 128
    s_cbranch_scc1 {END}
    s_cmp_lg_u32 s{sPre}, 0
    s_cbranch_scc1 {HAVE}
    s_mov_b32 s{sSpin}, 0
    {POLL}:
    """)
    key_loads(A)
    spin(A, FAIL)
    A("s_waitcnt vmcnt(0)")
    post(A, sPend, qFV)
    A(f"s_mov_b32 s{sPend}, {WS_BYTES}\nv_min_u32 v{qT0}, v{KEY}, v{KEY+1}\nv_cmp_eq_u32 vcc, 0, v{qT0}\ns_cbranch_vccnz {POLL}")
    dma(A, sNxt)
    f = L(); key_eval(f); emit(f)
    A(f"""
    {HAVE}:
    s_xor_b32 s{sPar}, s{sPar}, 32768
    s_cmp_lg_u32 s{sFk}, 0
    s_cbranch_scc1 {FORK}
    """)
    A(f"s_waitcnt vmcnt(0)\ns_sub_u32 s{sTmp}, s{sNxt}, s{sRep}\ns_cmp_lg_u32 s{sTmp}, {3*NPRE}\ns_cbranch_scc1 {COLD}")
    mlp_preload(A, P.get('touch', 1))
    A(f"{COLD}:\ns_waitcnt lgkmcnt(0)\ns_barrier\ns_cmp_lg_u32 s{sPar}, 0\ns_cbranch_scc1 {CE[1]}")
    block(0); block(1)
    A(f"{FORK}:")
    A(f"s_mov_b32 s{sKey}, s{sRun}\ns_mov_b32 s{sMode}, 1")
    for i in range(3): A(f"s_mov_b32 s{sSv+i}, s{sI1+i}")
    trace(A, 3, 10, sNxt)
    mlp(A, FAIL, 64, 13, None, sNxt)
    trace(A, 4, 10)
    A(f"s_branch {COLD}")
    A(f"{PATCH}:")
    def fin_fork(XF, PKr, TM):
        A(f"s_lshl_b32 s{sTmp+1}, s{sCur}, 5\ns_add_u32 s{sTmp+1}, s{sTmp+1}, s{sJ}\ns_lshl_b32 s{sTmp+1}, s{sTmp+1}, 10\ns_add_u32 s{sTmp+1}, s{sTmp+1}, {XM - 64*32768}")
        A(f"buffer_store_dwordx4 v[{PKr}:{PKr+3}], v{qL16}, {W}, s{sTmp+1} offen sc1")
        layernorm1(A, XF, None, TM + 12, TM)
        A(f"""
        s_and_b32 s{sTmp}, s{sRow}, 31
        s_lshl_b32 s{sTmp+1}, s{sTmp}, 10
        s_add_u32 s{sTmp+1}, s{sTmp+1}, s{sPar}
        s_and_b32 s{sTmp}, s{sTmp}, 15
        s_lshl_b32 s{sTmp}, s{sTmp}, 4
        s_or_b32 s{sTmp}, s{sTmp}, s{sTmp+1}
        v_xor_b32 v{qT1}, s{sTmp}, v{qL16}
        ds_write_b128 v{qT1}, v[{TM+12}:{TM+15}]
        """)
    gather(A, FAIL, sCur, fin_fork)
    trace(A, 7, 10)
    for i in range(3): A(f"s_mov_b32 s{sI1+i}, s{sSv+i}")
    A(f"s_mov_b32 s{sN2}, s{sNxt}\ns_add_u32 s{sNxt}, s{sCur}, 64\ns_mov_b32 s{sMode}, 0\ns_branch {COLD}")
    A(f"{END}:")
    A("s_waitcnt vmcnt(0)")
    post(A, sPend, qFV)
    A(f"s_cmp_lg_u32 s{sRep}, 0\ns_cbranch_scc1 {FAIL}")
    if P.get("nofinal"): A(f"s_branch {FAIL}")
    A(f"s_load_dwordx2 s[{sO}:{sO+1}], s[0:1], {KA['out']}\ns_mov_b32 s{sO+2}, {2*MB}\ns_mov_b32 s{sO+3}, 0x20000")
    def getkey():
        Lw = A.label("k_w")
        off = F_XN + 4 * KST
        A(f"s_mov_b32 s{sSpin}, 0\ns_mov_b32 s{sTmp}, {off}\nv_mov_b32 v53, 0\n{Lw}:")
        A(f"buffer_load_dword v20, v{qL32}, {W}, s{sTmp} offen sc1\nbuffer_load_dword v21, v{qL32}, {W}, s{sTmp} offen offset:2048 sc1")
        spin(A, FAIL)
        A(f"s_waitcnt vmcnt(0)\nv_min_u32 v52, v20, v21\nv_max3_u32 v53, v20, v21, v53\nv_cmp_eq_u32 vcc, 0, v52")
        A(f"s_cbranch_vccnz {Lw}\ns_add_u32 s{sTmp}, s{sTmp}, 4096\ns_cmp_lt_u32 s{sTmp}, {off + KST}\ns_cbranch_scc1 {Lw}")
        for rot in (8, 4, 2, 1): A(f"v_max_u32_dpp v53, v53, v53 row_ror:{rot} row_mask:0xf bank_mask:0xf")
        for sw in ("16", "32"): A(f"v_mov_b32 v52, v53\nv_permlane{sw}_swap_b32 v53, v52\nv_max_u32 v53, v53, v52")
        A(f"v_readfirstlane_b32 s{sKey}, v53")
        trace(A, 5, 10)
        A(f"s_andn2_b32 s{sTmp}, 0xfe0, s{sRun}\ns_andn2_b32 s{sTmp+1}, 0xfe0, s{sKey}\ns_cmp_lt_u32 s{sTmp+1}, s{sTmp}\ns_cselect_b32 s{sKind}, 1, 2")
    def fin_out(XF, PKr, TM):
        A(f"s_lshl_b32 s{sTmp}, s{sRow}, 10\nbuffer_store_dwordx4 v[{PKr}:{PKr+3}], v{qL16}, s[{sO}:{sO+3}], s{sTmp} offen sc1")
    mlp(A, FAIL, 256, 23, getkey, sNxt)
    A(f"s_cmp_lg_u32 s{sJ}, 0\ns_cbranch_scc1 {FAIL}\ns_barrier")
    gather(A, FAIL, sNxt, fin_out)
    trace(A, 6, 10)
    A(f"{FAIL}:")
```

```python
import sys
from asmlib import *
from layout import *
import common
import chain as C, qkv as Q, orole as O
from chain import sWS, sT, sJ, sW, sTmp

NAME = "interleave_layers__memory_aug_recurrent_mem_tr__moe_arch_mod__prompt"
KN = NAME + "_kernel"
sDbg = 12
sSlot = 90
sXcd = 91
sReal = 89
D_O, D_CH, D_Q = 0, 128, 160

def wait_team(A, off, nw, target, fail, vt=20):
    L = A.label("g_wt")
    d = sTmp + 6
    A(f"v_mbcnt_lo_u32_b32 v{vt}, -1, 0\nv_and_b32 v{vt}, {nw-1}, v{vt}\nv_lshlrev_b32 v{vt}, 2, v{vt}\nv_add_u32 v{vt}, {off}, v{vt}")
    A(f"s_mov_b32 s{sTmp}, 0\n{L}:\nglobal_load_dword v{vt+1}, v{vt}, s[{sDbg}:{sDbg+1}] sc1")
    A(f"s_add_u32 s{sTmp}, s{sTmp}, 1\ns_cmp_gt_u32 s{sTmp}, {SPIN_MAX}\ns_cbranch_scc1 {fail}\ns_waitcnt vmcnt(0)")
    for i in range(nw): A(f"v_readlane_b32 s{d+i}, v{vt+1}, {i}")
    A(f"s_add_u32 s{sTmp+1}, s{d}, s{d+1}")
    for i in range(2, nw): A(f"s_add_u32 s{sTmp+1}, s{sTmp+1}, s{d+i}")
    A(f"s_mul_i32 s{sTmp+1}, s{sTmp+1}, 0x01010101\ns_lshr_b32 s{sTmp+1}, s{sTmp+1}, 24\ns_cmp_lt_u32 s{sTmp+1}, {target}\ns_cbranch_scc1 {L}")

def purity(A, impure, n):
    d = sTmp + 6
    A(f"s_lshl_b32 s{sTmp}, s{sReal}, 3\ns_lshr_b64 s[{d}:{d+1}], s[{d}:{d+1}], s{sTmp}\ns_and_b32 s{d}, s{d}, 0xff\ns_cmp_lg_u32 s{d}, {n}\ns_cbranch_scc1 {impure}")

def arrive(A, off, vt=20, st=sTmp + 10):
    L = A.label("g_ar")
    A(f"s_cmp_lg_u32 s{sW}, 0\ns_cbranch_scc1 {L}\ns_lshl_b32 s{st}, s{sReal}, 3\ns_lshl_b64 s[{st}:{st+1}], 1, s{st}")
    A(f"v_mov_b32 v{vt+2}, {off}\nv_mov_b32 v{vt}, s{st}\nv_mov_b32 v{vt+1}, s{st+1}\ns_mov_b64 exec, 1")
    A(f"global_atomic_add_x2 v{vt+2}, v[{vt}:{vt+1}], s[{sDbg}:{sDbg+1}]\ns_mov_b64 exec, -1\n{L}:")

def entry(A, P):
    A(f"""
    s_cmp_ge_u32 s2, 256
    s_cbranch_scc1 L_end
    s_load_dwordx2 s[{sWS}:{sWS+1}], s[0:1], {KA['ws']}
    s_load_dwordx2 s[{sDbg}:{sDbg+1}], s[0:1], {KA['dbg']}
    s_mov_b32 s{sWS+2}, {WS_BYTES}
    s_mov_b32 s{sWS+3}, 0x20000
    s_mov_b32 s{sT+3}, 0x20000
    s_getreg_b32 s{sReal}, hwreg(HW_REG_XCC_ID)
    s_and_b32 s{sReal}, s{sReal}, 7
    v_lshrrev_b32 v1, 6, v0
    s_and_b32 s{sXcd}, s2, 7
    s_lshr_b32 s{sSlot}, s2, 3
    v_readfirstlane_b32 s{sW}, v1
    """)
    if P.get("fake_xcc"): A(P["fake_xcc"])
    A(f"""
    s_lshl_b32 s100, s{sXcd}, 5
    s_add_u32 s100, s100, s{sSlot}
    s_lshl_b32 s100, s100, 2
    s_add_u32 s100, s100, s{sW}
    s_lshl_b32 s100, s100, 12
    s_add_u32 s100, s100, {TRACE}
    s_waitcnt lgkmcnt(0)
    """)
    common.trace(A, 0, 10)
    A(f"""
    s_cmp_lt_u32 s{sXcd}, 3
    s_cbranch_scc1 L_chain
    s_cmp_eq_u32 s{sXcd}, 7
    s_cbranch_scc1 L_qkv
    s_bitcmp1_b32 s{sSlot}, 4
    s_cbranch_scc1 L_qkv
    s_branch L_o
    """)

def chain_role(A, P):
    A("L_chain:")
    A(f"s_mov_b32 s{sJ}, s{sSlot}\ns_mov_b32 s{C.sChain}, s{sXcd}\ns_min_u32 s{C.sLayer}, s{sXcd}, 1")
    C.lane_consts(A)
    vm, fin = C.chain_prologue(A)
    sOff = 66
    A(f"s_lshl_b32 s{sOff}, s{sXcd}, 3\ns_add_u32 s{sOff}, s{sOff}, {D_CH}")
    C.chain_load_weights(A, vm, fin, lambda: arrive(A, f"s{sOff}", 120), P.get("order", "kvq"), warm=P.get("warm", ""))
    wait_team(A, D_O, 8, 64, "L_end")
    wait_team(A, f"s{sOff}", 2, 32, "L_end")
    purity(A, "L_chain_x", 32)
    CP = dict(P.get("chain", {}), steady=0)
    C.chain_loop(A, CP)
    A("s_endpgm\nL_chain_x:")
    C.chain_loop(A, dict(CP, st="sc1"))
    A("s_endpgm")

def qkv_role(A, P):
    A("L_qkv:")
    A(f"""
    s_sub_u32 s{sTmp}, s{sXcd}, 3
    s_lshl_b32 s{sTmp}, s{sTmp}, 4
    s_and_b32 s{sTmp+1}, s{sSlot}, 31
    s_add_u32 s{sTmp}, s{sTmp}, s{sTmp+1}
    s_cmp_eq_u32 s{sXcd}, 7
    s_cselect_b32 s{sTmp+1}, 0, 16
    s_sub_u32 s{sTmp}, s{sTmp}, s{sTmp+1}
    s_mul_i32 s{sJ}, s{sTmp}, 171
    s_lshr_b32 s{sJ}, s{sJ}, 9
    s_mul_i32 s{sTmp+1}, s{sJ}, 3
    s_sub_u32 s60, s{sTmp}, s{sTmp+1}
    """)
    Q.qkv_role(A, P.get("qkv", {}), first=lambda: arrive(A, D_Q, 30),
               after_weights=lambda: (wait_team(A, D_O, 8, 64, "L_end"), wait_team(A, D_Q, 2, 96, "L_end")))
    A("s_endpgm")

def o_body(A, P):
    LR = P.get("lr", 4)
    K0 = P.get("k0", 9)
    budget = P.get("budget", [1] * 15 + [3])
    ROUND, TASK, NEXT, NOFL, FL, PICK, TAILP = [A.label("o_" + x) for x in ("round", "task", "next", "nofl", "fl", "pick", "tailp")]
    sP, sBn, sBel, smA, smB, smF, sAv, sLeft = 52, 53, 54, 55, 56, 57, 58, 59
    sThr = 89
    t = sTmp
    def below():
        A(f"""
        s_andn2_b32 s{sP}, 0xfff, s{O.sRun}
        s_lshr_b32 s{sP}, s{sP}, 5
        s_min_u32 s{sP}, s{sP}, 64
        s_add_u32 s{t}, s{sP}, 3
        s_sub_u32 s{t}, s{t}, s{O.sRep}
        s_lshr_b32 s{t}, s{t}, 2
        s_bfm_b32 s{sBel}, s{t}, 0
        """)
    A(f"""
    s_mov_b32 s{O.sTask}, 0
    s_mov_b32 s{O.sRun}, 0
    s_mov_b32 s{O.sPrev}, 0
    s_mov_b32 s{O.sPre}, 0
    s_mov_b32 s{O.sPreK}, 0
    s_mov_b32 s{O.sFin}, 0
    s_mov_b32 s{smA}, 0
    s_mov_b32 s{smB}, 0
    s_mov_b32 s{smF}, 0
    s_mov_b32 s{O.sPend}, {WS_BYTES}
    s_mov_b32 s{O.sKp}, {WS_BYTES}
    s_mov_b32 s{O.sBox}, s{O.cBX}
    s_mov_b32 s{O.sS}, s{O.sRep}
    s_mov_b32 s{O.sD}, {sum(b << (2 * k) for k, b in enumerate(budget))}
    {ROUND}:
    """)
    O.decide(A, "L_end")
    below()
    A(f"""
    s_mul_i32 s{O.sCur}, s{O.sS}, 257
    s_or_b32 s{O.sCur}, s{O.sCur}, {O.desc(0, 0, 0, 1)}
    s_add_u32 s{sBn}, s{O.sCur}, {4*257}
    s_cmp_lt_u32 s{O.sS}, 60
    s_cselect_b32 s{sBn}, s{sBn}, 0
    s_lshr_b32 s{t}, s{O.sS}, 2
    s_nop 3
    v_readlane_b32 s{sThr}, v{O.oTHR}, s{t}
    s_sub_i32 s{t}, s{t}, {LR - 1}
    s_max_i32 s{t}, s{t}, 0
    s_bfm_b32 s{sAv}, s{t}, 0
    s_and_b32 s{sLeft}, s{O.sD}, 3
    s_lshr_b32 s{O.sD}, s{O.sD}, 2
    {PICK}:
    """)
    GA, GB, GAF, GD, NONE = [A.label("o_" + x) for x in ("ga", "gb", "gaf", "gd", "none")]
    A(f"""
    s_cmp_eq_u32 s{sLeft}, 0
    s_cbranch_scc1 {NONE}
    s_sub_u32 s{sLeft}, s{sLeft}, 1
    s_andn2_b32 s{t+1}, s{sAv}, s{smA}             ; A missing
    s_and_b32 s{t}, s{t+1}, s{sBel}
    s_cbranch_scc1 {GAF}
    s_andn2_b32 s{t+2}, s{sAv}, s{sBel}
    s_andn2_b32 s{t+2}, s{t+2}, s{smB}             ; B missing
    s_cmp_lg_u32 s{O.sFin}, 0
    s_cselect_b32 s{t+1}, 0, s{t+1}
    s_cmp_ge_u32 s{O.sRun}, s{sThr}
    s_cselect_b32 s{t}, 0, s{t+1}
    s_cmp_lg_u32 s{t}, 0
    s_cbranch_scc1 {GA}
    s_mov_b32 s{t}, s{t+2}
    s_cmp_lg_u32 s{t}, 0
    s_cbranch_scc1 {GB}
    s_mov_b32 s{t}, s{t+1}
    s_cmp_lg_u32 s{t}, 0
    s_cbranch_scc1 {GA}
    {NONE}:
    s_mov_b32 s{O.sNxt}, s{sBn}
    s_mov_b32 s{O.sRet}, 0
    s_branch {TASK}
    {GAF}:
    s_ff1_i32_b32 s{t}, s{t}
    s_bitset1_b32 s{smA}, s{t}
    s_bitset1_b32 s{smF}, s{t}
    s_mov_b32 s{O.sNxt}, {O.desc(1, 1, 1, 4)}
    s_branch {GD}
    {GA}:
    s_ff1_i32_b32 s{t}, s{t}
    s_bitset1_b32 s{smA}, s{t}
    s_mov_b32 s{O.sNxt}, {O.desc(1, 1, 0, 2)}
    s_branch {GD}
    {GB}:
    s_ff1_i32_b32 s{t}, s{t}
    s_bitset1_b32 s{smB}, s{t}
    s_andn2_b32 s{t+1}, 31, s{O.sRun}
    s_or_b32 s{t+1}, s{t+1}, 32
    s_lshl_b32 s{t+1}, s{t+1}, {O.B_ROW}
    s_or_b32 s{t+1}, s{t+1}, {O.desc(2, 2, 1, 3)}
    s_lshl_b32 s{t+2}, s{t}, 2
    s_add_u32 s{t+2}, s{t+2}, s{O.sRep}
    s_cmp_eq_u32 s{t+2}, s{sP}
    s_cselect_b32 s{O.sNxt}, s{t+1}, {O.desc(1, 2, 1, 3)}
    s_lshl_b32 s{t+1}, s{O.sFin}, {O.B_KA}
    s_add_u32 s{O.sNxt}, s{O.sNxt}, s{t+1}
    {GD}:
    s_lshl_b32 s{t}, s{t}, 2
    s_add_u32 s{t}, s{t}, s{O.sRep}
    s_mul_i32 s{t}, s{t}, 257
    s_or_b32 s{O.sNxt}, s{O.sNxt}, s{t}
    s_xor_b32 s{t}, s{O.sNxt}, s{O.sCur}
    s_and_b32 s{t}, s{t}, 0xff
    s_cselect_b32 s{t}, 0, {1 << O.B_SAME}
    s_or_b32 s{O.sNxt}, s{O.sNxt}, s{t}
    s_mov_b32 s{O.sRet}, 1
    {TASK}:
    s_cmp_eq_u32 s{O.sCur}, 0
    s_cbranch_scc1 {NOFL}
    """)
    O.o_task(A, P, "L_end")
    A(f"s_cmp_lg_u32 s{O.sPreK}, 0\ns_cbranch_scc1 {NOFL}\ns_and_b32 s{t}, s{O.sCur}, {3 << O.B_KIND}\ns_cbranch_scc0 {FL}")
    A(f"s_and_b32 s{t}, s{O.sNxt}, {(3 << O.B_KIND) | (1 << O.B_VALID)}\ns_cmp_eq_u32 s{t}, {1 << O.B_VALID}\ns_cbranch_scc1 {NOFL}\n{FL}:")
    O.r_flush(A, P, "L_end")
    A(f"""
    {NOFL}:
    s_mov_b32 s{O.sCur}, s{O.sNxt}
    s_cmp_lg_u32 s{O.sRet}, 0
    s_cbranch_scc1 {PICK}
    s_cmp_lg_u32 s{O.sFin}, 0
    s_cbranch_scc1 L_end
    s_add_u32 s{O.sS}, s{O.sS}, 4
    s_cmp_lt_u32 s{O.sS}, 64
    s_cbranch_scc1 {ROUND}
    """)
    O.wait_all_keys(A, F_XN + KST, "L_end")
    A(f"s_mov_b32 s{O.sRun}, s{O.sKey}")
    below()
    A(f"s_andn2_b32 s{t}, s{smA}, s{smF}\ns_and_b32 s{t}, s{t}, s{sBel}\ns_andn2_b32 s{t+1}, s{smB}, s{sBel}\ns_or_b32 s{O.sBoth}, s{t}, s{t+1}")
    O.fixup(A)
    A(f"s_mov_b32 s{O.sFin}, 1\ns_mov_b32 s{sAv}, 0xffff\ns_mov_b32 s{sLeft}, 64\ns_branch {PICK}")

def o_role(A, P):
    W = f"s[{sWS}:{sWS+3}]"
    A("L_o:")
    A(f"s_sub_u32 s{O.sRep}, s{sXcd}, 3\ns_and_b32 s{O.sU}, s{sSlot}, 15\ns_lshl_b32 s{sTmp}, s{O.sRep}, 4\ns_add_u32 s{sTmp}, s{sTmp}, s{O.sU}")
    A(f"s_lshl_b32 s{sTmp}, s{sTmp}, 12\ns_add_u32 s{sTmp}, s{sTmp}, {FLAGS}\nv_lshlrev_b32 v1, 4, v0\nv_mov_b64 v[4:5], 0\nv_mov_b64 v[6:7], 0")
    A(f"v_mov_b64 v[8:9], -1\nv_mov_b64 v[10:11], -1")
    for i in range(8):
        A(f"buffer_store_dwordx4 v[{4 if i < 6 else 8}:{7 if i < 6 else 11}], v1, {W}, s{sTmp} offen sc1\ns_add_u32 s{sTmp}, s{sTmp}, {256*KB}")
    sOff = 92
    A(f"s_lshl_b32 s{sOff}, s{O.sRep}, 3")
    O.o_prologue(A, 8, lambda: arrive(A, f"s{sOff}", 60), lambda: wait_team(A, D_O, 8, 64, "L_end", 60))
    wait_team(A, f"s{sOff}", 2, 16, "L_end", 60)
    purity(A, "L_o_x", 16)
    OP = P.get("o", {})
    o_body(A, OP)
    A("L_o_x:")
    o_body(A, dict(OP, st="sc1"))

HEAD = open("cdna_kernels/" + NAME + ".s.ref").read().split("; Override launch")[0] if True else ""

def generate(P):
    common.TRACE_ON[0] = bool(P.get("trace"))
    A = Asm()
    entry(A, P)
    A("L_end:\ns_endpgm")
    chain_role(A, P); qkv_role(A, P); o_role(A, P)
    body = A.text(verbose=P.get("verbose", False))
    return (HEAD + "; @launch grid=(256,1,1) block=(256,1,1) lds=163840\n"
            + f'.amdgcn_target "amdgcn-amd-amdhsa--gfx950"\n.text\n.globl {KN}\n.p2align 8\n.type {KN},@function\n{KN}:\n'
            + body + f"""
.section .rodata,"a"
.p2align 6
.amdhsa_kernel {KN}
  .amdhsa_next_free_vgpr 512
  .amdhsa_next_free_sgpr 102
  .amdhsa_accum_offset 256
  .amdhsa_group_segment_fixed_size 0
  .amdhsa_kernarg_size 120
  .amdhsa_user_sgpr_count 2
  .amdhsa_user_sgpr_kernarg_segment_ptr 1
  .amdhsa_system_sgpr_workgroup_id_x 1
  .amdhsa_float_denorm_mode_32 3
.end_amdhsa_kernel
""")

DEFAULT = dict(chain=dict(pubpos="early", d1=280, d2=120, nsh=3, g1=60), qkv=dict(touch=0))
if __name__ == "__main__":
    P = dict(DEFAULT)
    if len(sys.argv) > 2: P.update(eval(sys.argv[2]))
    out = sys.argv[1] if len(sys.argv) > 1 else "/code/" + NAME + ".s"
    txt = generate(P)
    open(out, "w").write(txt)
    print("wrote", out, len(txt), "bytes", txt.count("\n"), "lines")
```

```python
import re

def v(a, n=1):
    return f"v{a}" if n == 1 else f"v[{a}:{a+n-1}]"
def ar(a, n=1):
    return f"a{a}" if n == 1 else f"a[{a}:{a+n-1}]"
def s(a, n=1):
    return f"s{a}" if n == 1 else f"s[{a}:{a+n-1}]"
def reg(r, n=1):
    if r < 256:
        assert r + n <= 256
        return v(r, n)
    return ar(r - 256, n)

_REG = re.compile(r"\b([vas])(?:(\d+)|\[(\d+):(\d+)\])(?![\w])")
def regs_of(op):
    out = set()
    op = op.strip()
    for m in _REG.finditer(op):
        k = m.group(1)
        if m.group(2) is not None:
            out.add((k, int(m.group(2))))
        else:
            for i in range(int(m.group(3)), int(m.group(4)) + 1):
                out.add((k, i))
    if re.search(r"\bvcc\b", op): out |= {("s", "vcc")}
    if re.search(r"\bvcc_lo\b|\bvcc_hi\b", op): out |= {("s", "vcc")}
    if re.search(r"\bexec(_lo|_hi)?\b", op): out |= {("s", "exec")}
    if re.search(r"\bm0\b", op): out |= {("s", "m0")}
    return out

TRANS = ("v_exp_f32", "v_log_f32", "v_rcp_f32", "v_rsq_f32", "v_sqrt_f32", "v_sin_f32", "v_cos_f32", "v_rcp_iflag_f32")

class Ins:
    __slots__ = ("text", "mn", "kind", "wr", "rd", "srcc", "ab", "passes", "dpp", "data", "wide", "lds_dma")
    def __init__(self, text):
        self.text = text
        t = text.split(";")[0].strip()
        parts = t.split(None, 1)
        mn = parts[0]
        for suf in ("_e32", "_e64", "_dpp", "_sdwa"):
            if mn.endswith(suf): mn = mn[: -len(suf)]
        self.mn = mn
        rest = parts[1] if len(parts) > 1 else ""
        ops = [o.strip() for o in re.split(r",(?![^\[]*\])", rest)] if rest else []
        self.dpp = bool(re.search(r"quad_perm|row_shr|row_shl|row_ror|row_bcast|row_mirror|row_half_mirror|row_newbcast|wave_", rest))
        self.wr = set(); self.rd = set(); self.srcc = set(); self.ab = set(); self.passes = 0
        self.data = set(); self.wide = False; self.lds_dma = False
        if ops:
            last = ops[-1].split()
            mods = " ".join(last[1:])
            ops[-1] = last[0] if last else ""
        else:
            mods = ""
        R = [regs_of(o) for o in ops]
        if mn.startswith("v_mfma") or mn.startswith("v_smfmac"):
            self.kind = "mfma"
            self.wr = R[0]
            if mn.startswith("v_smfmac"):
                self.ab = R[1] | R[2] | R[3]; self.srcc = R[0]
            else:
                self.ab = R[1] | R[2]; self.srcc = R[3]
            self.rd = self.ab | self.srcc
            if "32x32" in mn: self.passes = 8
            elif "16x16" in mn: self.passes = 4
            else: self.passes = 2
            if mn.endswith("_f32") and "bf16" not in mn and "f16" not in mn: raise ValueError("sgemm not modelled")
        elif mn.startswith("v_"):
            self.kind = "valu"
            if mn.startswith("v_cmpx"):
                self.wr = R[0] | {("s", "exec")}; self.rd = set().union(*R[1:])
            elif mn.startswith("v_permlane") and "swap" in mn:
                self.wr = R[0] | R[1]; self.rd = R[0] | R[1]
            elif mn in ("v_add_co_u32", "v_sub_co_u32", "v_addc_co_u32", "v_subb_co_u32", "v_subrev_co_u32", "v_mad_u64_u32", "v_div_scale_f32"):
                self.wr = R[0] | R[1]; self.rd = set().union(*R[2:])
            elif mn == "v_nop":
                pass
            else:
                self.wr = R[0]; self.rd = set().union(*R[1:]) if len(R) > 1 else set()
                if mn.startswith("v_fmac") or mn.startswith("v_dot2c") or mn.startswith("v_pk_fmac") or mn == "v_writelane_b32" or self.dpp or "d16" in mn:
                    self.rd |= R[0]
                if mn == "v_div_fmas_f32": self.rd |= {("s", "vcc")}
        elif mn.startswith("buffer_") or mn.startswith("global_") or mn.startswith("flat_"):
            self.kind = "vmem"
            is_lds = bool(re.search(r"\blds\b", mods)) or "load_lds" in mn
            if mn in ("buffer_inv", "buffer_wbl2"):
                pass
            elif is_lds:
                self.lds_dma = True; self.rd = set().union(*R) | {("s", "m0")}
            elif "load" in mn:
                self.wr = R[0]; self.rd = set().union(*R[1:])
                if "d16" in mn: self.rd |= R[0]
            elif "store" in mn:
                self.rd = set().union(*R)
                self.data = R[0] if mn.startswith("buffer_") else R[1]
                self.wide = mn.endswith("x3") or mn.endswith("x4")
            elif "atomic" in mn:
                ret = bool(re.search(r"\bsc0\b", mods))
                self.rd = set().union(*R)
                if ret: self.wr = R[0]
            else:
                raise ValueError(text)
        elif mn.startswith("ds_"):
            self.kind = "ds"
            if "read" in mn or "permute" in mn or "swizzle" in mn or "rtn" in mn:
                self.wr = R[0]; self.rd = set().union(*R[1:])
            else:
                self.rd = set().union(*R)
        elif mn.startswith("s_"):
            self.kind = "salu"
            if mn in ("s_nop", "s_waitcnt", "s_barrier", "s_endpgm", "s_sleep", "s_setprio", "s_branch") or mn.startswith("s_cbranch"):
                self.kind = "ctl"
            elif mn.startswith("s_cmp") or mn.startswith("s_bitcmp"):
                self.rd = set().union(*R) if R else set()
            else:
                self.wr = R[0] if R else set(); self.rd = set().union(*R[1:]) if len(R) > 1 else set()
                if "saveexec" in mn: self.wr |= {("s", "exec")}
        else:
            raise ValueError("unknown instruction: " + text)
    def states(self):
        if self.mn == "s_nop":
            return int(self.text.split(";")[0].split()[1], 0) + 1
        return 1

def _isv(rs): return {r for r in rs if r[0] in "va"}
def _iss(rs): return {r for r in rs if r[0] == "s"}

def need(p, c):
    n = 0
    if p.kind == "mfma":
        D = p.wr
        big = {2: 5, 4: 8, 8: 12, 16: 20}[p.passes]
        if c.kind == "mfma":
            if D & c.ab: n = max(n, big)
            if D & c.srcc:
                if not (c.srcc == D and c.mn == p.mn):
                    n = max(n, {2: 5, 4: 8, 8: 12, 16: 20}[p.passes])
                elif p.passes == 2: n = max(n, 2)
            elif D & c.wr: n = max(n, big)
        elif c.kind in ("valu", "vmem", "ds"):
            if D & (c.rd | c.wr): n = max(n, big)
        if c.kind == "valu" and (p.srcc & c.wr):
            n = max(n, {2: 1, 4: 3, 8: 7, 16: 15}[p.passes])
    if p.kind == "valu":
        W = _isv(p.wr); S = _iss(p.wr)
        if c.kind == "mfma":
            if W & c.rd: n = max(n, 2)
            if ("s", "exec") in S: n = max(n, 4)
        if c.kind == "valu":
            if c.dpp and (W & c.rd): n = max(n, 2)
            if c.dpp and ("s", "exec") in S: n = max(n, 5)
            if c.mn.startswith("v_permlane") and (W & c.rd): n = max(n, 2)
            if c.mn.startswith("v_permlane") and ("s", "exec") in S: n = max(n, 4)
            if c.mn in ("v_readlane_b32", "v_readfirstlane_b32") and (W & c.rd): n = max(n, 1)
            if c.mn in ("v_readlane_b32", "v_readfirstlane_b32", "v_writelane_b32") and ("s", "exec") in S: n = max(n, 4)
            if p.mn in TRANS and c.mn not in TRANS and (W & (c.rd | c.wr)): n = max(n, 1)
            if p.mn in TRANS and (W & c.rd): n = max(n, 1)
            if S & c.rd:
                n = max(n, 4 if c.mn in ("v_readlane_b32", "v_writelane_b32", "v_div_fmas_f32") else 2)
            if ("op_sel" in p.text or "sdwa" in p.text or "dst_sel" in p.text) and (W & (c.rd | c.wr)): n = max(n, 1)
            if p.mn.startswith("v_dot") and (W & (c.rd | c.wr)):
                n = max(n, 0 if (c.mn == p.mn and not (W & (c.rd - c.wr))) and p.mn.startswith("v_dot2c") else 3)
        if c.kind in ("vmem", "ds") and p.mn in TRANS and (W & c.rd): n = max(n, 1)
        if c.kind in ("vmem", "ds") and p.mn.startswith("v_dot") and (W & c.rd): n = max(n, 3)
        if c.kind == "vmem" and (S & c.rd): n = max(n, 5)
    if p.kind == "vmem" and p.wide:
        if c.kind == "valu" and (p.data & c.wr): n = max(n, 2)
        elif c.kind in ("vmem", "ds", "mfma") and (p.data & c.wr): n = max(n, 2)
    if p.kind == "salu" and ("s", "m0") in p.wr:
        if (c.kind == "vmem" and c.lds_dma) or "addtid" in c.mn or c.mn.startswith("s_movrel") or c.mn == "s_sendmsg": n = max(n, 1)
    return n

MAXW = 20
def occ(p):
    if p.kind != "mfma": return 0
    return 1 if "16x16x16" in p.mn else p.passes
class Asm:
    def __init__(self):
        self.items = []
        self._lab = 0
    def __call__(self, txt):
        for ln in txt.split("\n"):
            ln = ln.strip()
            if ln: self.items.append(ln)
    def label(self, base="L"):
        self._lab += 1
        return f"{base}_{self._lab}"
    def raw_text(self):
        return "\n".join((x if x.endswith(":") else "  " + x) for x in self.items) + "\n"
    def text(self, fix=True, verbose=False):
        if not fix: return self.raw_text()
        P = []
        for x in self.items:
            if x.endswith(":") or x.startswith(".") or x.startswith(";"):
                P.append(x)
            else:
                P.append(Ins(x))
        total = 0
        i = 0
        labels = {x[:-1]: q for q, x in enumerate(P) if isinstance(x, str) and x.endswith(":")}
        while i < len(P):
            n = len(P)
            p = P[i]
            if (not isinstance(p, Ins) or p.kind in ("ctl", "ds") or (p.kind == "salu" and ("s", "m0") not in p.wr)
                    or (p.kind == "vmem" and not p.wide)):
                i += 1; continue
            lim = MAXW if p.kind == "mfma" else 5
            stack = [(i + 1, 0, occ(p) - 1)]
            seen = {}
            fixat = None
            while stack and fixat is None:
                j, d, fr = stack.pop()
                while j < n and d < lim:
                    if seen.get(j, (99, 99)) <= (d, fr) and seen[j][1] <= fr: break
                    seen[j] = (d, fr)
                    c = P[j]
                    if not isinstance(c, Ins):
                        j += 1; continue
                    k = need(p, c)
                    if k > d:
                        fixat = (j, k - d); break
                    if c.mn == "s_endpgm": break
                    if c.kind == "mfma":
                        d = max(d, fr); fr = d + occ(c)
                    d += c.states()
                    if c.mn == "s_branch" or c.mn.startswith("s_cbranch"):
                        tgt = c.text.split(";")[0].split()[1]
                        if tgt in labels: stack.append((labels[tgt], d, fr))
                        if c.mn == "s_branch": break
                    if c.mn in ("s_setpc_b64", "s_swappc_b64"): break
                    j += 1
            if fixat:
                j, k = fixat
                if verbose: print(f"hazard: +{k} before '{P[j].text}' (producer '{p.text}')")
                total += k
                ins = []
                while k > 0:
                    m = min(k, 16); ins.append(Ins(f"s_nop {m-1}")); k -= m
                P[j:j] = ins
                for lb in labels:
                    if labels[lb] >= j: labels[lb] += len(ins)
                if j <= i: i += len(ins)
                continue
            i += 1
        self.nops_inserted = total
        return "\n".join((x if isinstance(x, str) and (x.endswith(":") or x.startswith(".")) else "  " + (x if isinstance(x, str) else x.text)) for x in P) + "\n"
```

```python
from asmlib import *
from layout import *
from common import trace, trace_clk, w_src_regs, w_stage_dma
import math, struct
def f32bits(x): return struct.unpack("<I", struct.pack("<f", x))[0]

class Cnt:
    def __init__(self, A, name, mx):
        self.A, self.name, self.mx, self.q = A, name, mx, []
        self.n = 0
    def issue(self, txt):
        if self.mx == 63 and len(self.q) >= 62: self.wait(self.q[7])
        self.A(txt); self.n += 1; self.q.append(self.n); return self.n
    def wait(self, tok):
        if tok not in self.q: return
        after = len(self.q) - 1 - self.q.index(tok)
        self.A(f"s_waitcnt {self.name}({min(after, self.mx)})")
        self.q = self.q[self.q.index(tok) + 1:]
    def drain(self):
        self.A(f"s_waitcnt {self.name}(0)"); self.q = []
    def reset(self): self.q = []

def delay(A, cyc):
    n = cyc // 4
    while n > 0:
        k = min(n, 16); A(f"s_nop {k-1}"); n -= k

L_MEM, L_QK, L_PS, L_O, L_WO, L_W = 4096, 0, 12288, 4096, 16384, 65536
L_KV = 20480
vL16, vLW, vCQ, vCR, vPS, vAGS, vIDX, T0 = range(8)
vW16 = 8
vCRW = 12
T1, T2, T3 = 17, 18, 19
MEMA = 16
LAMPOS = {0: 0, 4: 1, 1: 2, 2: 3, 3: 4, 5: 5, 6: 6, 7: 7}
def mema(lam): return MEMA + 4 * LAMPOS[lam]
QA, KA_, VA = 48, 56, 64
ST = [72 + 8 * i for i in range(7)]
KXR, VX, SOP = 72, 80, 88
OWN = [("q", 0, 0), ("q", 1, 0), ("k", 0, 0), ("k", 1, 0), ("q", 0, 4), ("q", 1, 4), ("k", 0, 4), ("k", 1, 4),
       ("v", 0, 0), ("v", 1, 0), ("v", 0, 4), ("v", 1, 4)]
NE = 10
ESLOT = [MEMA + 8, MEMA + 16, MEMA + 24] + ST
WO_ORDER = [(T, ko) for T in range(8) for ko in range(2)]
WSLOT = [104, 112, 120, MEMA, SOP, SOP + 8]
NO_REG = 10
LOC = {}
for i, k in enumerate(OWN[:NE]): LOC[k] = ("l", i)
for i, (T, ko) in enumerate(WO_ORDER[NO_REG:]): LOC[("o", T, ko)] = ("l", NE + i)
_r = 504
for (T, ko) in WO_ORDER[:NO_REG]:
    LOC[("o", T, ko)] = ("r", _r); _r -= 8
for m in "qkv":
    for tau in range(2):
        for lam in range(8):
            if (m, tau, lam) not in LOC:
                LOC[(m, tau, lam)] = ("r", _r); _r -= 8
assert _r == 120
sWS = 4
sT = 8
sJ, sW = 16, 17
sHALF = 18
sONE = 14
sStep = 22
sKV = 23
sC = 24
sKM = 25
sTmp = 26
sIn = 40
sAG = 42
sLo, sHi = 44, 45
sCnt = 46
sBox = 38
sPar = 3
sFo = 20
sPk = 66
sIt = 21
sFm = 2
sChain, sLayer, sAgr, sFkv, sFkm, sRdy = 60, 61, 62, 63, 64, 65
sFg, sFgS, sG, sFork, sKVd, sMH = 92, 93, 94, 95, 96, 97
sSt = 66
sAcc = 48

def lane_consts(A):
    A(f"""
    v_lshrrev_b32 v{T2}, 6, v0
    v_and_b32 v{T3}, 63, v0
    v_readfirstlane_b32 s{sW}, v{T2}
    v_and_b32 v{T0}, 15, v{T3}
    v_lshrrev_b32 v{T1}, 4, v{T3}
    v_lshlrev_b32 v{vL16}, 4, v{T3}
    """)

def put(A, dst_loc, regidx, src_txt, tmp):
    raise NotImplementedError

def chain_prologue(A, sync):
    n, g = T0, T1
    sM = 56
    vm = Cnt(A, "vmcnt", 63)
    A(f"s_load_dwordx2 s[{sM}:{sM+1}], s[0:1], {KA['mem0']}")
    A(f"""
    s_mov_b32 s{sLo}, 0x05040100
    s_mov_b32 s{sHi}, 0x07060302
    s_mov_b32 s{sHALF}, 0xcccccccc
    s_mov_b32 s{sHALF+1}, 0xcccccccc
    s_mov_b32 s{sC}, {hex(f32bits(128 ** -0.5 * math.log2(math.e)))}
    s_lshl_b32 s{sTmp}, s{sW}, 10
    v_add_u32 v{vW16}, s{sTmp}, v{vL16}
    v_xor_b32 v{vW16+1}, 1024, v{vW16}
    v_xor_b32 v{vW16+2}, 2048, v{vW16}
    v_xor_b32 v{vW16+3}, 3072, v{vW16}
    s_mov_b32 s{sONE}, 0x3f803f80
    s_mov_b32 s{sONE+1}, 0x3f803f80
    s_mul_i32 s{sTmp+1}, s{sW}, 24576
    s_add_u32 s{sTmp+1}, s{sTmp+1}, {L_W}
    v_add_u32 v{vLW}, s{sTmp+1}, v{vL16}
    v_lshrrev_b32 v20, 2, v{n}
    v_xor_b32 v21, v{g}, v20
    v_lshlrev_b32 v22, 5, v{n}
    v_add_u32 v22, s{sTmp}, v22
    v_lshl_add_u32 v{vCQ}, v21, 3, v22
    v_and_b32 v21, 3, v{n}
    v_xor_b32 v21, v21, v{g}
    v_lshl_add_u32 v22, v{g}, 2, v20
    v_lshlrev_b32 v22, 5, v22
    v_lshl_add_u32 v{vCR}, v21, 3, v22
    v_add_u32 v{vCRW}, s{sTmp}, v{vCR}
    v_xor_b32 v{vCRW+1}, 1024, v{vCRW}
    v_xor_b32 v{vCRW+2}, 2048, v{vCRW}
    v_xor_b32 v{vCRW+3}, 3072, v{vCRW}
    ; partial store offset: consumer (8w + n/4)*8192 + j*256 + (4g + n%4)*16
    v_lshlrev_b32 v21, 13, v20
    v_and_b32 v22, 3, v{n}
    v_lshl_add_u32 v22, v{g}, 2, v22
    v_lshl_add_u32 v21, v22, 4, v21
    s_lshl_b32 s{sTmp+1}, s{sW}, 16
    s_lshl_b32 s{sTmp+2}, s{sJ}, 8
    s_add_u32 s{sTmp+1}, s{sTmp+1}, s{sTmp+2}
    v_add_u32 v{vPS}, s{sTmp+1}, v21
    v_and_b32 v21, 1, v{n}
    v_lshl_add_u32 v21, v{g}, 2, v21
    v_bfe_u32 v22, v{n}, 2, 1
    v_lshl_add_u32 v21, v22, 1, v21
    v_lshlrev_b32 v21, 4, v21
    v_bfe_u32 v22, v{n}, 1, 1
    v_lshl_add_u32 v21, v22, 3, v21
    v_add_u32 v{vAGS}, s{sTmp+2}, v21
    v_cmp_lt_u32 vcc, 7, v{n}
    v_mov_b32 v22, 0x7ff00000
    v_cndmask_b32 v{vAGS}, v{vAGS}, v22, vcc
    v_mov_b32 v21, 0x4444
    v_mov_b32 v22, 0xeeee
    v_cndmask_b32 v{vIDX}, v21, v22, s[{sHALF}:{sHALF+1}]
    """)
    A(f"s_lshl_b32 s{sIn}, s{sChain}, 20\ns_add_u32 s{sIn}, s{sIn}, {INBOX}\ns_add_u32 s{sIn+1}, s{sIn}, 32768")
    A(f"s_lshl_b32 s{sAgr}, s{sChain}, 16\ns_add_u32 s{sAgr}, s{sAgr}, {AGR}")
    A("v_mov_b32 v24, -1\nv_mov_b32 v25, -1\nv_mov_b32 v26, -1\nv_mov_b32 v27, -1\ns_waitcnt lgkmcnt(0)")
    for st in range(2):
        vm.issue(f"buffer_store_dwordx4 v[24:27], v{vPS}, s[{sWS}:{sWS+3}], s{sIn+st} offen sc1")
    for slot in range(4):
        A(f"s_add_u32 s{sTmp+1}, s{sAgr}, {slot * 8192}")
        vm.issue(f"buffer_store_dwordx2 v[24:25], v{vAGS}, s[{sWS}:{sWS+3}], s{sTmp+1} offen sc1")
    sync()
    trace(A, 10, 112)
    A(f"""
    s_mov_b32 s{sM+2}, 8192
    s_mov_b32 s{sM+3}, 0x20000
    v_and_b32 v21, 1, v{n}
    v_lshl_add_u32 v21, v{g}, 1, v21
    v_lshlrev_b32 v21, 10, v21
    v_bfe_u32 v22, v{n}, 1, 2
    v_lshl_add_u32 v21, v22, 1, v21
    s_lshr_b32 s{sTmp+1}, s{sJ}, 3
    s_lshl_b32 s{sTmp+1}, s{sTmp+1}, 8
    s_and_b32 s{sTmp+2}, s{sJ}, 3
    s_lshl_b32 s{sTmp+2}, s{sTmp+2}, 6
    s_add_u32 s{sTmp+1}, s{sTmp+1}, s{sTmp+2}
    s_and_b32 s{sTmp+2}, s{sJ}, 4
    s_lshl_b32 s{sTmp+2}, s{sTmp+2}, 1
    s_add_u32 s{sTmp+1}, s{sTmp+1}, s{sTmp+2}
    s_waitcnt lgkmcnt(0)
    """)
    for i in range(4): tm = vm.issue(f"buffer_load_ushort v{28+i}, v21, s[{sM}:{sM+3}], s{sTmp+1} offen offset:{16*i}")
    def fin(vm):
        vm.wait(tm)
        A("v_lshl_or_b32 v28, v29, 16, v28\nv_lshl_or_b32 v29, v31, 16, v30\nv_min_u32 v28, -2, v28\nv_min_u32 v29, -2, v29")
        vm.issue(f"buffer_store_dwordx2 v[28:29], v{vAGS}, s[{sWS}:{sWS+3}], s{sAgr} offen sc1")
    return vm, fin

def emit_quad(A, loc, u, perms, tmp):
    kind, x = loc
    for rho, (s1, s0, sel) in enumerate(perms):
        if kind == "r" and x < 256:
            A(f"v_perm_b32 v{x+u*4+rho}, v{s1}, v{s0}, s{sel}")
        else:
            A(f"v_perm_b32 v{tmp+rho}, v{s1}, v{s0}, s{sel}")
    if kind == "r" and x >= 256:
        for rho in range(4): A(f"v_accvgpr_write_b32 a{x-256+u*4+rho}, v{tmp+rho}")
    if kind == "l":
        A(f"ds_write_b128 v{vW16}, v[{tmp}:{tmp+3}] offset:{L_WO+((x-NE)*2+u)*4096}\ns_waitcnt lgkmcnt(0)")

def chain_load_weights(A, vm0, fin, hooks, order="qkv", warm=None, early=0, depth=5):
    n, g = T0, T1
    vm = Cnt(A, "vmcnt", 63); vm.q = list(vm0.q); vm.n = vm0.n
    def warm_up():
        LW = A.label("c_nw")
        A(f"s_cmp_eq_u32 s{sChain}, 0\ns_cbranch_scc1 {LW}")
        A(f"s_lshl_b32 s{sTmp}, s{sChain}, 5\ns_add_u32 s{sTmp}, s{sTmp}, s{sJ}\ns_lshl_b32 s{sTmp}, s{sTmp}, 2\ns_add_u32 s{sTmp}, s{sTmp}, s{sW}")
        A(f"s_mul_i32 s{sTmp}, s{sTmp}, 7168\ns_sub_u32 s{sTmp}, s{sTmp}, {128*7168}\ns_add_u32 s{sTmp+1}, s{sTmp}, 4096\ns_mov_b32 s{sT+2}, {512*1792*2}")
        for m in ("wg", "wu", "wd"):
            A(f"s_load_dwordx2 s[{sT}:{sT+1}], s[0:1], {KA[m]}\ns_waitcnt lgkmcnt(0)")
            for i in range(7): A(f"buffer_load_dwordx4 v[116:119], v{vL16}, s[{sT}:{sT+3}], s{sTmp+i//4} offen offset:{(i%4)*1024} {warm}")
        if early: A(f"s_waitcnt vmcnt({early-1})")
        A(f"{LW}:")
    if -3 in hooks: hooks[-3]()
    if early: warm_up()
    if -2 in hooks: hooks[-2]()
    sK, sV = sTmp + 6, 48
    sQ = 52
    SRC, RD, HOLD, NS = 22, 104, 24, 5
    assert order[-1] == 'v'
    PARK = list(range(128, 160, 4)) + list(range(184, 200, 4))
    A(f"""
    s_load_dwordx2 s[{sT}:{sT+1}], s[0:1], {KA['wo']}
    s_load_dwordx2 s[{sQ}:{sQ+1}], s[0:1], {KA['wq']}
    s_load_dwordx2 s[{sK}:{sK+1}], s[0:1], {KA['wk']}
    s_load_dwordx2 s[{sV}:{sV+1}], s[0:1], {KA['wv']}
    s_mov_b32 s{sT+2}, {4*MB}
    s_mov_b32 s{sT+3}, 0x20000
    s_mov_b32 s{sQ+2}, {4*MB}
    s_mov_b32 s{sQ+3}, 0x20000
    s_mov_b32 s{sK+2}, {4*MB}
    s_mov_b32 s{sK+3}, 0x20000
    s_mov_b32 s{sV+2}, {4*MB}
    s_mov_b32 s{sV+3}, 0x20000
    v_and_b32 v20, 1, v{g}
    v_lshlrev_b32 v20, 5, v20
    v_lshrrev_b32 v21, 1, v{g}
    v_lshl_add_u32 v20, v21, 2, v20        ; 32*(g%2) + 4*(g/2)
    v_lshlrev_b32 v20, 10, v20
    v_lshl_add_u32 v20, v{n}, 4, v20
    s_lshl_b32 s{sTmp}, s{sJ}, 17
    s_lshl_b32 s{sTmp+1}, s{sW}, 8
    s_add_u32 s{sTmp}, s{sTmp}, s{sTmp+1}
    s_waitcnt lgkmcnt(0)
    """)
    toks = []
    for ko in range(2):
        for u in range(2):
            for sg in range(8):
                e = 64 * ko + 8 * u + 2 * (sg // 4) + sg % 2 + 16 * ((sg % 4) // 2)
                r = 128 + ((ko * 2 + u) * 8 + sg) * 4
                A(f"s_add_u32 s{sTmp+1}, s{sTmp}, {e * 1024}")
                tk = vm.issue(f"buffer_load_dwordx4 v[{r}:{r+3}], v20, s[{sT}:{sT+3}], s{sTmp+1} offen")
            toks.append(tk)
    if -1 in hooks:
        A(f"s_waitcnt vmcnt({len(vm.q)})"); hooks[-1]()
    w_src_regs(A, vL16, SRC, 20)
    A(f"""
    s_lshr_b32 s{sTmp}, s{sW}, 1
    s_lshl_b32 s{sTmp}, s{sTmp}, 20
    s_and_b32 s{sTmp+1}, s{sW}, 1
    s_lshl_b32 s{sTmp+1}, s{sTmp+1}, 18
    s_add_u32 s{sTmp}, s{sTmp}, s{sTmp+1}
    s_lshl_b32 s{sTmp+1}, s{sJ}, 8
    s_add_u32 s{sTmp}, s{sTmp}, s{sTmp+1}
    s_lshl_b32 s{sTmp+2}, s{sW}, 13
    """)
    srd = dict(q=sQ, k=sK, v=sV)
    jobs = [(m, lh, u) for m in order for lh in range(2) for u in range(2)]
    tk = {}
    def issue(i):
        m, lh, u = jobs[i]
        A(f"s_add_u32 s{sTmp+1}, s{sTmp}, {(256 * lh + 64 * u) * 8192}")
        tk[i] = w_stage_dma(A, vm, srd[m], SRC, sTmp + 1, sTmp + 2, ((i + 2) % NS) * 32768, 8)
    for i in range(depth):
        if i == depth - 1: fin(vm)
        issue(i)
    A(f"""
    v_bfe_u32 v20, v{n}, 2, 1
    v_lshrrev_b32 v21, 3, v{n}
    v_and_b32 v{RD}, 1, v{g}
    v_lshl_add_u32 v21, v21, 1, v{RD}              ; row & 3
    v_lshl_add_u32 v{RD}, v20, 3, v21
    v_lshrrev_b32 v{RD+1}, 1, v{g}
    v_lshl_add_u32 v{RD}, v{RD+1}, 5, v{RD}          ; row
    v_lshl_add_u32 v20, v21, 1, v20                ; phi
    s_lshl_b32 s{sTmp+3}, s{sW}, 1
    v_xor_b32 v20, s{sTmp+3}, v20
    v_lshlrev_b32 v20, 5, v20
    v_lshl_add_u32 v20, v{RD}, 8, v20
    v_and_b32 v21, 3, v{n}
    v_lshl_add_u32 v20, v21, 3, v20
    s_lshr_b32 s{sTmp+3}, s{sW}, 1
    s_lshl_b32 s{sTmp+3}, s{sTmp+3}, 14
    s_and_b32 s{sTmp+4}, s{sW}, 1
    s_lshl_b32 s{sTmp+4}, s{sTmp+4}, 10
    s_add_u32 s{sTmp+3}, s{sTmp+3}, s{sTmp+4}
    s_add_u32 s{sTmp+3}, s{sTmp+3}, 65536
    v_add_u32 v20, s{sTmp+3}, v20
    """)
    for x in range(4):
        for tau in range(2):
            A(f"v_xor_b32 v{RD+2*x+tau}, {(x >> 1) * 16384 + (x & 1) * 1024 + tau * 32}, v20")
    for ko in range(2):
        for u in range(2):
            vm.wait(toks[ko * 2 + u])
            for T in range(8):
                assert LOC[("o", T, ko)][0] == "l" or LOC[("o", T, ko)][1] >= 256
                b = 128 + (ko * 2 + u) * 32 + T // 2
                loc = LOC[("o", T, ko)]
                if loc[0] == "l": loc = ("r", HOLD + 8 * (loc[1] - NE))
                emit_quad(A, loc, u, [(b + 8 * rho + 4, b + 8 * rho, sHi if T % 2 else sLo) for rho in range(4)], 120 + 4 * (T % 2))
    for i, r in enumerate(PARK): A(f"v_mov_b64 v[{r}:{r+1}], v[{HOLD+4*i}:{HOLD+4*i+1}]\nv_mov_b64 v[{r+2}:{r+3}], v[{HOLD+4*i+2}:{HOLD+4*i+3}]")
    cur = 1
    trace(A, 11, 112)
    for i, (m, lh, u) in enumerate(jobs):
        st = (i + 2) % NS
        if st // 2 != cur:
            for x in range(8): A(f"v_add_u32 v{RD+x}, {(st // 2 - cur) * 65536}, v{RD+x}")
            cur = st // 2
        if i == 10:
            for k, r in enumerate(PARK): A(f"ds_write_b128 v{vW16}, v[{r}:{r+3}] offset:{L_WO+k*4096}")
            A("s_waitcnt lgkmcnt(0)")
        vm.wait(tk[i])
        A("s_barrier")
        if i % 2 == 1: trace(A, 12 + i // 2, 112)
        if depth < NS and i + depth < len(jobs): issue(i + depth)
        if i in hooks: hooks[i]()
        for x in range(4):
            for tau in range(2):
                kind, r = LOC[(m, tau, 4 * lh + x)]
                if kind == "l": r = HOLD + 8 * r
                for q in range(2):
                    A(f"ds_read_b64_tr_b16 {reg(r + 4*u + 2*q, 2)}, v{RD + 2*x + tau} offset:{(st % 2) * 32768 + q * 4096}")
        if depth == NS or i == 9 or i == 11: A("s_waitcnt lgkmcnt(0)\ns_barrier")
        else: A("s_waitcnt lgkmcnt(0)")
        if depth == NS and i + NS < len(jobs): issue(i + NS)
    if 12 in hooks: hooks[12]()
    if warm is not None and not early: warm_up()
    A(f"s_lshl_b32 s{sTmp}, s{sJ}, 13\ns_add_u32 s{sTmp}, s{sTmp}, s{sIn}\ns_add_u32 s{sTmp+1}, s{sTmp}, 4096\ns_lshl_b32 s{sTmp+2}, s{sW}, 13\ns_add_u32 s{sTmp+2}, s{sTmp+2}, s{sAgr}")
    A(f"buffer_load_dwordx4 v[104:107], v{vW16}, s[{sWS}:{sWS+3}], s{sTmp} offen sc1\nbuffer_load_dwordx4 v[104:107], v{vW16}, s[{sWS}:{sWS+3}], s{sTmp+1} offen sc1")
    A(f"buffer_load_dwordx2 v[104:105], v{vAGS}, s[{sWS}:{sWS+3}], s{sTmp+2} offen sc1")
    for i in range(2 * NE): A(f"ds_write_b128 v{vLW}, v[{HOLD+4*i}:{HOLD+4*i+3}] offset:{i*1024}")
    A(f"s_mul_i32 s{sTmp+1}, s{sW}, 24576\ns_add_u32 m0, s{sTmp+1}, {L_W + L_KV}\ns_waitcnt lgkmcnt(0)")

def smf(acc, a, b, abid=False):
    return f"v_smfmac_f32_16x16x64_bf16 {v(acc,4)}, {v(a,4)}, {reg(b,8)}, v{vIDX}" + (" abid:1" if abid else "")
def mf(acc, a, b, c=None):
    return f"v_mfma_f32_16x16x32_bf16 {v(acc,4)}, {v(a,4)}, {v(b,4)}, {v(c,4) if c is not None else '0'}"

def xlane(A, op, r, t):
    A(f"{op}_dpp v{r}, v{r}, v{r} quad_perm:[2,3,0,1] row_mask:0xf bank_mask:0xf")
    A(f"v_mov_b32 v{t}, v{r}\nv_permlane16_swap_b32 v{r}, v{t}\n{op} v{r}, v{r}, v{t}")
    A(f"v_mov_b32 v{t}, v{r}\nv_permlane32_swap_b32 v{r}, v{t}\n{op} v{r}, v{r}, v{t}")

NOP16 = [""]
def mf16(acc, a, b, c):
    return NOP16[0] + f"v_mfma_f32_16x16x16_bf16 {v(acc,4)}, {v(a,2)}, {v(b,2)}, {v(c,4)}"
def z64(r): return f"v_mov_b64 v[{r}:{r+1}], 0"

def chain_loop(A, P):
    STF = P.get("st", "")
    stamps = P.get("stamps", False)
    NOP16[0] = P.get("nop16", "")
    W = f"s[{sWS}:{sWS+3}]"
    H = f"s[{sHALF}:{sHALF+1}]"
    LOOP, RETRY, GOT, HOP2, FB, FBR, FAIL = [A.label(x) for x in ("c_loop", "c_retry", "c_got", "c_hop2", "c_fb", "c_fbr", "c_fail")]
    def snap(i):
        if P.get("snap"): A(f"s_memrealtime s[{sSt+2*i}:{sSt+2*i+1}]")
    LAST = A.label("c_last")
    acc = dict(q=QA, k=KA_, v=VA)
    def M(m, tau, lam):
        kind, x = LOC[(m, tau, lam)]
        A(smf(acc[m] + 4 * tau, mema(lam), x if kind == "r" else ESLOT[x]))
    ld = Cnt(A, "lgkmcnt", 15); vm = Cnt(A, "vmcnt", 63)
    def stage(lo, hi):
        for i in range(lo, hi):
            A(f"ds_read_b128 v[{ESLOT[i]}:{ESLOT[i]+3}], v{vLW} offset:{i*2048}")
            A(f"ds_read_b128 v[{ESLOT[i]+4}:{ESLOT[i]+7}], v{vLW} offset:{i*2048+1024}")
    wo_tok = {}
    def wof(i, h):
        r = WSLOT[i] + 4 * h
        wo_tok[i] = ld.issue(f"ds_read_b128 v[{r}:{r+3}], v{vW16} offset:{L_WO+(2*i+h)*4096}")
    A(f"""
    s_mov_b32 s{sStep}, 0
    s_mov_b32 s{sIt}, 0
    s_mov_b32 s{sAG}, s{sAgr}
    s_add_u32 s{sAG+1}, s{sAgr}, 4096
    s_mov_b32 s{sCnt}, 0
    s_mov_b32 s{sCnt+1}, 0
    s_lshl_b32 s{sTmp}, s{sJ}, 2
    s_add_u32 s{sTmp}, s{sTmp}, s{sW}
    s_lshl_b32 s{sTmp+1}, s{sChain}, 13
    s_add_u32 s{sTmp+1}, s{sTmp+1}, s{sTmp}
    s_lshr_b32 s{sKM}, s{sTmp+1}, 2
    s_lshl_b32 s{sKM}, s{sKM}, 13
    s_add_u32 s{sKM}, s{sKM}, {KM}
    s_lshr_b32 s{sFkm}, s{sTmp+1}, 2
    s_lshl_b32 s{sFkm}, s{sFkm}, 6
    s_add_u32 s{sFkm}, s{sFkm}, {F_KM - 2048 + WS_BYTES}
    s_cmp_eq_u32 s{sW}, {P.get("fw", 3)}
    s_cselect_b32 s{sFm}, {WS_BYTES}, 0
    s_lshl_b32 s{sTmp+1}, s{sLayer}, 13
    s_add_u32 s{sTmp+1}, s{sTmp+1}, s{sTmp}
    s_lshl_b32 s{sKV}, s{sTmp+1}, 12
    s_add_u32 s{sKV}, s{sKV}, {KV}
    s_lshl_b32 s{sFkv}, s{sTmp+1}, 5
    s_add_u32 s{sFkv}, s{sFkv}, {F_KV}
    """)
    A(f"""
    s_mov_b32 s{sMH}, {WS_BYTES}
    s_cmp_eq_u32 s{sChain}, 2
    s_cselect_b32 s{sFo}, {256*KB}, s{sMH}
    s_cselect_b32 s{sFgS}, 1, 3
    s_lshl_b32 s{sTmp}, s{sW}, 2
    s_add_u32 s{sTmp}, s{sTmp}, s{sChain}
    s_cmp_eq_u32 s{sTmp}, {9 if P.get('nomh') else 1}
    s_cselect_b32 s{sMH}, {MEMH}, s{sMH}
    s_mov_b32 s{sFork}, 0
    s_mov_b32 s{sKVd}, s{sKV}
    """)
    FL = P.get("flags", 1)
    SK_ = P.get("skip", 1)
    def kv_dma(p):
        vm.issue(f"buffer_load_dwordx4 v{vL16}, {W}, s{sKVd} offen offset:{p*1024} {P.get('kvf','')} lds")
    KVS = 0 if P.get("samekv") else 32*16384
    def kv_wait(fork=False):
        L0, L, LX = A.label("c_gw"), A.label("c_kvw"), A.label("c_kvx")
        def poll(lab):
            A(f"{lab}:\nbuffer_load_dword v{T0}, off, {W}, s{sFg} sc1")
            A(f"s_add_u32 s{sTmp+3}, s{sTmp+3}, 1\ns_cmp_gt_u32 s{sTmp+3}, {SPIN_MAX}\ns_cbranch_scc1 {FAIL}")
            A(f"s_waitcnt vmcnt(0) lgkmcnt(0)\nv_readfirstlane_b32 s{sRdy}, v{T0}\ns_cmp_eq_u32 s{sRdy}, 0\ns_cbranch_scc1 {lab}")
        A(f"s_mov_b32 s{sTmp+3}, 0\ns_sub_u32 s{sFg}, s{sFkv}, 4096\ns_sub_u32 s{sKVd}, s{sKV}, {KVS}\ns_mov_b32 s{sFork}, 0")
        if not fork:
            poll(L0)
            A(f"s_and_b32 s{sRdy}, s{sRdy}, s{sFgS}\ns_cbranch_scc1 {LX}")
        A(f"s_mov_b32 s{sFork}, 1\ns_add_u32 s{sKVd}, s{sKVd}, {32*MB}\ns_add_u32 s{sFg}, s{sFg}, {256*KB}")
        poll(L)
        A(f"{LX}:\nbuffer_load_dword v{T0}, off, {W}, s{sFkv} sc1")
        for p in range(4): kv_dma(p)
        A(f"s_waitcnt vmcnt(4)\nv_readfirstlane_b32 s{sRdy}, v{T0}\ns_mov_b32 s{sG}, 0")
    A(f"s_add_u32 s{sKV}, s{sKV}, {KVS}\ns_add_u32 s{sFkv}, s{sFkv}, 4096")
    trace(A, 2, MEMA)
    if P.get("peek"):
        PK, PK2 = A.label("c_pk"), A.label("c_pk2")
        A(f"s_cmp_eq_u32 s{sPk}, 0\ns_cbranch_scc1 {PK}\ns_sub_u32 s{sKVd}, s{sKV}, {KVS}\ns_mov_b32 s{sRdy}, s{sPk+1}\ns_mov_b32 s{sG}, 0")
        for p in range(4): kv_dma(p)
        A(f"s_branch {PK2}\n{PK}:")
    kv_wait()
    if P.get("peek"): A(f"{PK2}:")
    trace(A, 3, MEMA)
    if stamps:
        for i in range(12): A(f"s_mov_b32 s{sAcc+i}, 0")
    vm.reset()
    A("s_waitcnt vmcnt(4)")
    stage(3, 10)
    for r in range(QA, QA + 24, 2): A(z64(r))
    A(f"s_lshl_b32 s{sBox}, s{sJ}, 13\ns_add_u32 s{sBox}, s{sBox}, s{sIn}\ns_add_u32 s{sBox+1}, s{sBox}, 4096")
    stage(0, 3)
    A("s_waitcnt lgkmcnt(0)")
    A(f"{LOOP}:")
    m0, m4 = mema(0), mema(4)
    def ag_loads():
        A(f"buffer_load_dwordx4 v[{m0}:{m0+3}], v{vW16}, {W}, s{sAG} offen sc1")
        A(f"buffer_load_dwordx4 v[{m4}:{m4+3}], v{vW16}, {W}, s{sAG+1} offen sc1")
    NSH = P.get("nsh", 2)
    W0A, W0B = A.label("c_w0a"), A.label("c_w0b")
    ag_loads()
    snap(0)
    if stamps and P.get("ref", 0) == 0: A(f"s_memtime s[{sSt}:{sSt+1}]")
    A(f"s_mov_b32 s{sTmp+2}, 0")
    ZL = P.get("zl", 1)
    if ZL:
        for r in range(QA, QA + 24, 2): A(z64(r))
    for k in range(1, NSH):
        delay(A, P.get("g2", 0)); ag_loads()
    if not ZL: A(z64(VA))
    npo = 2 * (NSH - 2)
    A("s_waitcnt lgkmcnt(0)")
    XB, XR = A.label("c_xb"), A.label("c_xr")
    if P.get("skip", 1): A(f"s_and_b32 s{sTmp+3}, s{sRdy}, s{sFgS}\ns_cbranch_scc0 {XB}\n{XR}:")
    A(f"s_waitcnt vmcnt({3+npo})")
    snap(1)
    A(f"v_max3_u32 v{T0}, v{m0}, v{m0+1}, v{m0+2}")
    A(f"v_max_u32 v{T0}, v{T0}, v{m0+3}")
    A(f"ds_write_b128 v{vW16}, v[{m0}:{m0+3}] offset:{L_MEM}")
    M(*OWN[0])
    A(f"s_waitcnt vmcnt({2+npo})")
    A(f"v_max3_u32 v{T0}, v{m4}, v{m4+1}, v{T0}")
    A(f"v_max3_u32 v{T0}, v{m4+2}, v{m4+3}, v{T0}")
    A(f"ds_write_b128 v{vW16}, v[{m4}:{m4+3}] offset:{L_MEM+4096}")
    M(*OWN[1])
    A(f"v_cmp_eq_u32 vcc, -1, v{T0}")
    M(*OWN[2])
    A(f"s_cbranch_vccnz {RETRY}\n{GOT}:")
    NB = P.get("nb", 7)
    KVW, KVR = A.label("c_kvs"), A.label("c_kvr")
    tkv = {}
    def rdkv(p): tkv[p] = ld.issue(f"ds_read_b128 v[{KXR+4*p}:{KXR+4*p+3}], v{vLW} offset:{L_KV+p*1024}")
    EK = P.get("ek", 1)
    for i in range(3, NB):
        M(*OWN[i])
        if EK:
            for p in {7: [[0], [1], [2], [3]], 6: [[0], [1, 2], [3]], 5: [[0, 1], [2, 3]]}[NB][i - 3]: rdkv(p)
        if i == 3: A(f"s_and_b32 s{sRdy}, s{sRdy}, s{sFgS}\ns_cselect_b32 s{sKVd}, s{sKV}, {WS_BYTES}")
        if SK_: pass
        elif i == 4: A(f"s_cselect_b32 s{sFork}, 0, s{sG}")
        elif i == 5: A(f"s_add_u32 s{sTmp+5}, s{sKV}, {32*MB}\ns_cmp_lg_u32 s{sFork}, 0")
        elif i == 6: A(f"s_cselect_b32 s{sKVd}, s{sTmp+5}, s{sKVd}")
        if i == 4 and FL: A(f"v_mov_b32 v{T0}, 1")
    A(f"s_waitcnt lgkmcnt({4 if EK else 0})\ns_barrier")
    if stamps and P.get("ref", 0) == 1: A(f"s_memtime s[{sSt}:{sSt+1}]")
    snap(2)
    if P.get("ftrace"): trace(A, 5, MEMA + 8)
    order = [1, 2, 3, 5, 6, 7]
    tm = {}
    own = OWN[NB:]
    NA = 11 - NB
    def rdm(lam): tm[lam] = ld.issue(f"ds_read_b128 v[{mema(lam)}:{mema(lam)+3}], v{vW16+lam%4} offset:{L_MEM+(lam//4)*4096}")
    rdm(order[0])
    for i in range(NA):
        if i < 5: rdm(order[1 + i])
        M(*own.pop(0))
    assert all(LOC[o][0] == "r" for o in own)
    def half_sum(a): return [f"v_add_f32 v{a}, v{a}, v{a+2}", f"v_add_f32 v{a+1}, v{a+1}, v{a+3}"]
    def kpost(a): return half_sum(a) + [f"v_cvt_pk_bf16_f32 v{a+2}, v{a}, v{a+1}"]
    def qwr(a, off): ld.issue(f"ds_write2_b32 v{vCQ}, v{a}, v{a} offset0:{off} offset1:{off+1}")
    X = QA
    PX, PM = KXR, KXR + 4
    if NA < 5: rdm(order[5])
    f = [lambda: rdkv(0), lambda: rdkv(1), lambda: rdkv(2), lambda: rdkv(3), lambda: wof(0, 0), lambda: wof(0, 1)]
    if EK: f = [lambda: kv_dma(0), lambda: wof(0, 0), lambda: kv_dma(1), lambda: wof(0, 1), lambda: kv_dma(2), lambda: None]
    FP = P.get("fp", 0)
    def kmflag(): A(f"s_mov_b64 exec, 1\nbuffer_store_dword v{T0}, off, {W}, s{sFkm} sc1\ns_mov_b64 exec, -1")
    if FP == 0: f = [kmflag] + f[:5]
    late = (lambda p: None) if EK else kv_dma
    for lam in order:
        ld.wait(tm[lam]); M("q", 0, lam); f.pop(0)()
    qp = kpost(QA)
    M("q", 1, order[0])
    if EK: kv_dma(3)
    if FL and not EK: A(f"s_mov_b64 exec, 1\nbuffer_store_dword v{T0}, off, {W}, s{sFkm} sc1\ns_mov_b64 exec, -1")
    M("q", 1, order[1]); tmh = ld.issue(f"ds_read_b64 v[{SOP+12}:{SOP+13}], v{vAGS} offset:{L_MEM}"); A(qp.pop(0))
    M("q", 1, order[2]); wof(1, 0); A(qp.pop(0))
    M("q", 1, order[3]); wof(1, 1); A(qp.pop(0))
    M("q", 1, order[4]); qwr(QA + 2, 0)
    M("q", 1, order[5]); ld.issue(f"ds_read_b64_tr_b16 v[{SOP}:{SOP+1}], v{vCRW} offset:{L_QK}")
    qp = kpost(QA + 4)
    M("k", 0, order[0]); ld.wait(tkv[3]); late(0)
    if FP == 1: kmflag()
    M("k", 0, order[1]); wof(2, 0); A(qp.pop(0))
    M("k", 0, order[2]); wof(2, 1); A(qp.pop(0)); A(qp.pop(0))
    M("k", 0, order[3]); qwr(QA + 6, 128); tq = ld.issue(f"ds_read_b64_tr_b16 v[{SOP+2}:{SOP+3}], v{vCRW} offset:{L_QK+512}")
    M("k", 0, order[4]); late(1)
    M("k", 0, order[5])
    kp = kpost(KA_)
    M("k", 1, order[0]); late(2)
    NK = P.get("nk", 2)
    for i in range(1, NK): M("k", 1, order[i])
    ld.wait(tq); A(kp.pop(0))
    A(mf(SOP + 4, KXR, SOP)); vm.issue(f"buffer_store_dwordx2 v[{SOP+12}:{SOP+13}], v{vAGS}, {W}, s{sMH} offen sc1"); A(kp.pop(0)); A(kp.pop(0))
    A(mf(SOP + 8, KXR + 4, SOP)); ld.issue(f"ds_write_b32 v{vCQ}, v{KA_+2}")
    sel = [f"v_cndmask_b32 v{X+i}, v{SOP+4+i}, v{SOP+8+i}, {H}" for i in range(4)]
    Vq = [("k", 1, order[i]) for i in range(NK, 6)] + own + [("v", 0, lam) for lam in order] + [("v", 1, lam) for lam in order]
    def vq(n=1):
        for _ in range(n): M(*Vq.pop(0))
    vs = [lambda: (late(3), A(f"v_mov_b32 v{PM}, 0"))] + [(lambda x=x: A(x)) for x in sel]
    for _ in range(NK, 6):
        vq(); vs.pop(0)()
    vq()
    while vs: vs.pop(0)()
    kp = kpost(KA_ + 4)
    vq(); ld.issue(f"ds_write_b128 v{vW16}, v[{X}:{X+3}] offset:{L_PS}")
    for x in kp: A(x)
    vq(); tk = ld.issue(f"ds_write_b32 v{vCQ}, v{KA_+6} offset:512"); A(f"s_waitcnt vmcnt({6 if FL else 5})"); A(f"v_mov_b32 v{PM+3}, 0")
    SM, ONES = MEMA, MEMA + 4
    on = [f"v_mov_b64 v[{ONES}:{ONES+1}], s[{sONE}:{sONE+1}]", f"v_mov_b64 v[{ONES+2}:{ONES+3}], s[{sONE}:{sONE+1}]"]
    for i in range(P.get("vq1", 3)):
        vq()
        if on and i + 1 < P.get("vq1", 3): A(on.pop(0))
    ld.wait(tk)
    A("s_barrier")
    ts = []; tp = []
    def rd_s(c, h):
        t = ld.issue(f"ds_read_b64_tr_b16 v[{SOP+4*c+2*h}:{SOP+4*c+2*h+1}], v{vCRW+c} offset:{L_QK+h*512}")
        if h: ts.append(t)
    def rd_p(x): tp.append(ld.issue(f"ds_read_b128 v[{X+4*x}:{X+4*x+3}], v{vW16+x} offset:{L_PS}"))
    vp0 = half_sum(VA) + [f"v_cvt_pk_bf16_f32 v{VA+2}, v{VA}, v{VA+1}"]
    vp1 = half_sum(VA + 4) + [f"v_cvt_pk_bf16_f32 v{VA+3}, v{VA+4}, v{VA+5}"]
    fv = on
    rd_p(1); rd_p(2); vq(); rd_p(3)
    for c in range(4):
        vq(); rd_s(c, 0); rd_s(c, 1)
        if len(Vq) == 4: fv += vp0; vp0 = []
        if c == 3: ld.wait(tp[2])
        if fv: A(fv.pop(0))
    fv += vp0
    E = MEMA + 8; CK = T0
    adds = [f"v_add_f32 v{X+i}, v{X+i}, v{X+4+i}" for i in range(4)] + [f"v_add_f32 v{X+8+i}, v{X+8+i}, v{X+12+i}" for i in range(4)] + \
           [f"v_add_f32 v{X+i}, v{X+i}, v{X+8+i}" for i in range(4)]
    while Vq:
        vq()
        if not Vq: ld.wait(ts[1])
        A(adds.pop(0))
    PUB = P.get("pub", "sc1")
    def pub(txt):
        if PUB != "none": vm.issue(txt + " " + PUB)
    A(mf(SM, SOP, SOP))
    if P.get("kearly", 0): pub(f"buffer_store_dwordx4 v[{SOP}:{SOP+3}], v{vW16}, {W}, s{sKM} offen")
    A(adds.pop(0)); A(adds.pop(0))
    A(mf(SM, SOP + 4, SOP + 4, SM)); ld.wait(ts[3]); A(adds.pop(0)); A(adds.pop(0))
    A(mf(SM, SOP + 8, SOP + 8, SM)); A(adds.pop(0)); A(adds.pop(0))
    A(mf(SM, SOP + 12, SOP + 12, SM))
    while adds: A(adds.pop(0))
    PVA, ZA = X + 4, X + 12
    for i in range(4): A(f"v_exp_f32 v{E+i}, v{X+i}")
    A(f"v_cvt_pk_bf16_f32 v{E}, v{E}, v{E+1}\nv_mul_f32 v{SM}, s{sC}, v{SM}\nv_cvt_pk_bf16_f32 v{E+1}, v{E+2}, v{E+3}")
    def selp():
        A(f"v_cndmask_b32 v{PX}, v{E}, 0, {H}\nv_cndmask_b32 v{PX+1}, v{E+1}, 0, {H}")
        A(f"v_cndmask_b32 v{PX+2}, 0, v{E}, {H}\nv_cndmask_b32 v{PX+3}, 0, v{E+1}, {H}")
    selp()
    A(f"v_mul_f32 v{SM+1}, s{sC}, v{SM+1}\nv_exp_f32 v{E+4}, v{SM}")
    A(mf(ZA, PX, ONES))
    if not P.get("kearly", 0): pub(f"buffer_store_dwordx4 v[{SOP}:{SOP+3}], v{vW16}, {W}, s{sKM} offen")
    fv += vp1
    A(f"v_exp_f32 v{E+5}, v{SM+1}"); A(fv.pop(0))
    A(mf(PVA, PX, VX))
    A(f"s_add_u32 s{sTmp+4}, s{sKM}, 4096")
    A(f"v_cvt_pk_bf16_f32 v{E+4}, v{E+4}, v{E+5}"); A(fv.pop(0))
    A(mf(PVA + 4, PX, VX + 4))
    A(f"v_cndmask_b32 v{PM+1}, 0, v{E+4}, {H}\nv_cndmask_b32 v{PM+2}, 0, v{E+4}, {H}")
    for x in fv: A(x)
    A(f"v_lshrrev_b32 v{SOP+4}, 1, v{vW16}")
    A(mf16(ZA, PM, ONES, ZA))
    VE = P.get("vearly", 1)
    if VE: pub(f"buffer_store_dwordx2 v[{VA+2}:{VA+3}], v{SOP+4}, {W}, s{sTmp+4} offen")
    A(f"v_max3_f32 v{CK}, |v{X}|, |v{X+1}|, |v{X+2}|")
    A(f"v_max_f32 v{E+2}, |v{SM}|, |v{SM+1}|")
    A(mf16(PVA, PM + 2, VA + 2, PVA))
    A(f"v_cndmask_b32 v{E+2}, 0, v{E+2}, {H}")
    A(f"v_max3_f32 v{CK}, |v{X+3}|, v{E+2}, v{CK}")
    A(mf16(PVA + 4, PM, VA + 2, PVA + 4))
    A(f"v_cmp_lt_f32 vcc, 0x42700000, v{CK}")
    WA = [MEMA + 8 + 4 * i for i in range(6)][::-1] + [VX, VX + 4]
    zl = [r for a in WA for r in (a, a + 2)]
    A(z64(zl.pop(0)))
    for x in half_sum(ZA): A(x)
    A(f"s_cbranch_vccnz {FB}")
    A(f"{FBR}:")
    A(f"v_rcp_f32 v{ZA}, v{ZA}\nv_rcp_f32 v{ZA+1}, v{ZA+1}")
    A(f"v_pk_add_f32 v[{PVA}:{PVA+1}], v[{PVA}:{PVA+1}], v[{PVA+2}:{PVA+3}]")
    A(f"v_pk_add_f32 v[{PVA+4}:{PVA+5}], v[{PVA+4}:{PVA+5}], v[{PVA+6}:{PVA+7}]")
    A(f"v_pk_mul_f32 v[{PVA}:{PVA+1}], v[{PVA}:{PVA+1}], v[{ZA}:{ZA+1}]")
    A(f"v_pk_mul_f32 v[{PVA+4}:{PVA+5}], v[{PVA+4}:{PVA+5}], v[{ZA}:{ZA+1}]")
    A(f"v_cvt_pk_bf16_f32 v{PVA+2}, v{PVA}, v{PVA+1}")
    A(f"v_cvt_pk_bf16_f32 v{PVA+3}, v{PVA+4}, v{PVA+5}")
    two = ld.issue(f"ds_write_b64 v{vCQ}, v[{PVA+2}:{PVA+3}] offset:{L_O}")
    for _ in range(P.get("z1", 12)): A(z64(zl.pop(0)))
    ld.wait(two)
    A("s_barrier")
    OOP = KXR
    to = [ld.issue(f"ds_read_b64_tr_b16 v[{OOP+2*i}:{OOP+2*i+1}], v{vCR} offset:{L_O+i*1024}") for i in range(4)]
    pubs = [f"buffer_store_dwordx4 v[{SOP}:{SOP+3}], v{vW16}, {W}, s{sKM} offen",
            f"buffer_store_dwordx2 v[{VA+2}:{VA+3}], v{SOP+4}, {W}, s{sTmp+4} offen"]
    OUT = QA
    def post(T):
        a = WA[T]
        return half_sum(a) + [f"v_cvt_pk_bf16_f32 v{OUT+T}, v{a}, v{a+1}"] + ([f"v_and_or_b32 v{OUT+T}, v{OUT+T}, -2, s{sPar}"] if T % 4 == 0 else [])
    pend = [z64(r) for r in zl]
    fq = [(3, 0), (3, 1), (4, 0), (4, 1), (5, 0), (5, 1)]
    sal = [f"s_and_b32 s{sPar}, s{sIt}, 1", f"s_add_u32 s{sIt}, s{sIt}, 1",
           f"s_add_u32 s{sStep}, s{sStep}, 1", f"s_and_b32 s{sAG}, s{sIt}, 3", f"s_lshl_b32 s{sAG}, s{sAG}, 13"]
    for x in sal: A(x)
    if not VE: pub(pubs[1])
    A(f"s_cmp_eq_u32 s{sStep}, {NSEG}\ns_cbranch_scc1 {LAST}")
    done_st0 = False
    for i, (T, ko) in enumerate(WO_ORDER):
        kind, x = LOC[("o", T, ko)]
        if i == 0: ld.wait(to[1])
        if kind == "l": ld.wait(wo_tok[x - NE])
        A(smf(WA[T], OOP + 4 * ko, x if kind == "r" else WSLOT[x - NE]))
        if i == 0: ld.wait(to[3])
        if i == 12: ld.wait(wo_tok[5])
        if not done_st0 and i >= 10 and not any(f"v{OUT+3}," in p for p in pend):
            vm.issue(f"buffer_store_dwordx4 v[{OUT}:{OUT+3}], v{vPS}, {W}, s{sIn} offen {STF}"); done_st0 = True
        if i >= 3 and i % 2 == 1: pend += post((i - 3) // 2)
        if fq: wof(*fq.pop(0))
        n = 0
        while pend and n < (1 if i < 3 else 2): A(pend.pop(0)); n += 1
    for x in pend: A(x)
    assert done_st0
    RA, SEL = VA, VA + 4
    a = WA[7]
    A(f"v_pk_add_f32 v[{a}:{a+1}], v[{a}:{a+1}], v[{a+2}:{a+3}]\nv_cvt_pk_bf16_f32 v{OUT+7}, v{a}, v{a+1}")
    vm.issue(f"buffer_store_dwordx4 v[{OUT+4}:{OUT+7}], v{vPS}, {W}, s{sIn+1} offen {STF}")
    snap(3)
    A(f"""
    s_add_u32 s{sAG}, s{sAG}, s{sAgr}
    s_add_u32 s{sAG+1}, s{sAG}, 4096
    s_add_u32 s{sKV}, s{sKV}, {KVS}
    s_add_u32 s{sKM}, s{sKM}, {0 if P.get("samekm") else 32*8192}
    s_add_u32 s{sFkv}, s{sFkv}, 4096
    s_add_u32 s{sFkm}, s{sFkm}, 2048
    s_andn2_b32 s{sFkm}, s{sFkm}, s{sFm}
    """)
    A(f"s_add_u32 s{sMH}, s{sMH}, 8192\ns_add_u32 s{sFg}, s{sFkv}, s{sFo}")
    if not ZL:
        for r in range(QA + 8, QA + 16, 2): A(z64(r))
        for r in range(QA, QA + 8, 2): A(z64(r))
    SETS = [MEMA, ST[0]]
    def inbox_load(b, it):
        r = SETS[b] + 4 * it
        A(f"buffer_load_dwordx4 v[{r}:{r+3}], v{vL16}, {W}, s{sBox + it // 4} offen offset:{(it % 4) * 1024} sc1")
    OTH, P1R = A.label("c_oth"), A.label("c_p1r")
    A(f"s_cmp_lg_u32 s{sW}, 0\ns_cbranch_scc1 {OTH}")
    A(f"s_mov_b32 s{sTmp+2}, 0\ns_add_u32 s{sCnt}, s{sCnt}, 1")
    PZ = RA
    N1 = P.get('n1', 3)
    A(f"v_mov_b64 v[{PZ}:{PZ+1}], -1\ns_xor_b32 s{sTmp+8}, s{sAG}, {2 << 13}")
    A(f"buffer_store_dwordx2 v[{PZ}:{PZ+1}], v{vAGS}, {W}, s{sTmp+8} offen {STF}")
    A(f"s_mov_b32 vcc_lo, 0xaaaaaaaa\ns_mov_b32 vcc_hi, 0xaaaaaaaa\nv_mov_b32 v{T0}, 0x3f80\nv_cndmask_b32 v{T0}, v{T0}, 1.0, vcc")
    for r in range(4):
        A(f"s_mov_b32 vcc_lo, {hex(0x00030003 << (2*r))}\ns_mov_b32 vcc_hi, {hex(0x00030003 << (2*r))}\nv_cndmask_b32 v{SEL+r}, 0, v{T0}, vcc")
    for lo, hi in {1: [(10 - N1, 10)], 2: [(10 - N1, 11 - N1), (11 - N1, 10)], 3: [(7, 8), (8, 9), (9, 10)]}[P.get("l1", 2)]:
        stage(lo, hi); A("s_waitcnt lgkmcnt(0)")
    if P.get("w1") is not None: A(f"s_waitcnt vmcnt({P['w1']})")
    delay(A, P.get("d1", 0))
    snap(4)
    for it in range(8): inbox_load(0, it)
    snap(5)
    delay(A, P.get("g1", 0))
    ONE = P.get("one", 0)
    if not ONE:
        for it in range(8): inbox_load(1, it)
    A(f"s_buffer_load_dword s{sRdy}, {W}, s{sFkv}" + ("" if SK_ else f"\ns_buffer_load_dword s{sG}, {W}, s{sFg}"))
    def rpass(b, fail, first=False):
        for it in range(8):
            r = SETS[b] + 4 * it
            A(f"s_waitcnt vmcnt({15-it if first and not ONE else 7-it})")
            if first and it == 0: snap(6)
            if first and it == 7: snap(7)
            A(mf(RA, r, SEL, RA if it else None))
            if it == 0: A(f"v_xor_b32 v{T0}, s{sPar}, v{r}")
            else: A(f"v_bitop3_b32 v{T0}, v{T0}, v{r}, s{sPar} bitop3:0xf6")
        A(f"v_and_b32 v{T0}, 1, v{T0}\nv_cmp_ne_u32 vcc, 0, v{T0}")
        if first: A(f"v_mov_b32 v{T0}, 0\nv_mov_b32 v{T0}, 0\ns_cbranch_vccnz {fail}")
        else: A(f"s_add_u32 s{sCnt}, s{sCnt}, 1\ns_cbranch_vccz {fail}")
    rpass(0, P1R, True)
    PUBL = A.label("c_publ")
    A(f"{PUBL}:")
    A(f"v_cvt_pk_bf16_f32 v{RA}, v{RA}, v{RA+1}\nv_cvt_pk_bf16_f32 v{RA+1}, v{RA+2}, v{RA+3}")
    A(f"v_min_u32 v{RA}, -2, v{RA}\nv_min_u32 v{RA+1}, -2, v{RA+1}")
    A(f"buffer_store_dwordx2 v[{RA}:{RA+1}], v{vAGS}, {W}, s{sAG} offen {STF}")
    if not ONE: A("s_waitcnt vmcnt(1)")
    stage(0, 10 - N1)
    if P.get("l2") is not None: A(f"s_waitcnt lgkmcnt({P['l2']})")
    for r in range(VA + 2, VA + 8 - 8 * ZL, 2): A(z64(r))
    if P.get("w2") is not None: A(f"s_waitcnt vmcnt({P['w2']})")
    A(f"{HOP2}:")
    snap(8)
    A("s_barrier")
    if P.get("ftrace"): trace(A, 4, MEMA)
    if P.get("snap"):
        SN = A.label("c_sn")
        A(f"s_cmp_lg_u32 s{sStep}, {P['snap']}\ns_cbranch_scc1 {SN}\ns_waitcnt lgkmcnt(0)")
        for i in range(9): A(f"s_mov_b32 s{sAcc+1+i}, s{sSt+2*i}")
        A(f"{SN}:")
    if stamps:
        A("s_waitcnt lgkmcnt(0)")
        A(f"s_cmp_gt_u32 s{sStep}, 16")
        i = 11
        A(f"s_cselect_b32 s{sTmp}, s{sSt+2*i}, s{sSt}\ns_sub_u32 s{sTmp}, s{sTmp}, s{sSt}\ns_add_u32 s{sAcc+i}, s{sAcc+i}, s{sTmp}")
    if P.get("steady", 1):
        SK = A.label("c_sk")
        A(f"s_cmp_lg_u32 s{sStep}, 16\ns_cbranch_scc1 {SK}\ns_memtime s[56:57]\ns_mov_b32 s{sCnt}, 0\ns_mov_b32 s{sCnt+1}, 0\n{SK}:")
    delay(A, P.get("d2", 0))
    FK0 = A.label("c_fk0")
    A(f"s_cmp_le_u32 s{sKVd}, s{sKV}\ns_cbranch_scc1 {LOOP}\ns_cmp_lg_u32 s{sKVd}, {WS_BYTES}\ns_cbranch_scc1 {FK0}")
    A(f"buffer_store_dwordx2 v[{RA}:{RA+1}], v{vAGS}, {W}, s{sMH} offen sc1")
    kv_wait()
    A(f"s_cmp_eq_u32 s{sFork}, 0\ns_cbranch_scc1 {LOOP}")
    FK = A.label("c_fk")
    A(f"{FK0}:")
    def ag_wait(lab):
        A(f"s_mov_b32 s{sTmp+3}, 0\n{lab}:")
        ag_loads()
        A(f"s_add_u32 s{sTmp+3}, s{sTmp+3}, 1\ns_cmp_gt_u32 s{sTmp+3}, {SPIN_MAX}\ns_cbranch_scc1 {FAIL}")
        A(f"s_waitcnt vmcnt(0)\nv_max3_u32 v{T0}, v{m0}, v{m0+1}, v{m0+2}\nv_max3_u32 v{T0}, v{m0+3}, v{m4}, v{T0}\nv_max3_u32 v{T0}, v{m4+1}, v{m4+2}, v{T0}\nv_max_u32 v{T0}, v{T0}, v{m4+3}")
        A(f"v_cmp_eq_u32 vcc, -1, v{T0}\ns_cbranch_vccnz {lab}")
    ag_wait(FK)
    FK1 = A.label("c_fk1")
    A(f"{FK1}:\ns_lshl_b32 s{sAG}, s{sStep}, 13\ns_add_u32 s{sAG}, s{sAG}, {MEMH}\ns_add_u32 s{sAG+1}, s{sAG}, 4096\ns_mov_b32 s{sFork}, 0")
    A(f"s_branch {LOOP}")
    if P.get("skip", 1):
        XP, XS = A.label("c_xp"), A.label("c_xs")
        A(f"{XB}:\ns_cmp_lg_u32 s{sFgS}, 1\ns_cbranch_scc1 {XR}\ns_cmp_ge_u32 s{sStep}, {NSEG-1}\ns_cbranch_scc1 {XR}\n{XP}:")
        A(f"s_cmp_lg_u32 s{sRdy}, 0\ns_cbranch_scc1 {XS}\nbuffer_load_dword v{T0}, off, {W}, s{sFkv} sc1")
        A(f"s_add_u32 s{sTmp+3}, s{sTmp+3}, 1\ns_cmp_gt_u32 s{sTmp+3}, {SPIN_MAX}\ns_cbranch_scc1 {FAIL}")
        A(f"s_waitcnt vmcnt(0)\nv_readfirstlane_b32 s{sRdy}, v{T0}\ns_branch {XP}\n{XS}:\ns_cmp_eq_u32 s{sRdy}, 1\ns_cbranch_scc1 {XR}")
        ag_wait(A.label("c_xw"))
        A(f"v_mov_b32 v{T0}, 1\ns_barrier\ns_mov_b64 exec, 1\nbuffer_store_dword v{T0}, off, {W}, s{sFkm} sc1\ns_mov_b64 exec, -1")
        A(f"s_add_u32 s{sStep}, s{sStep}, 1\ns_add_u32 s{sKV}, s{sKV}, {KVS}\ns_add_u32 s{sKM}, s{sKM}, {32*8192}\ns_add_u32 s{sFkv}, s{sFkv}, 4096")
        A(f"s_add_u32 s{sFkm}, s{sFkm}, 2048\ns_andn2_b32 s{sFkm}, s{sFkm}, s{sFm}")
        kv_wait(True)
        A(f"s_branch {FK1}")
    A(f"{LAST}:")
    if FL: A(f"s_add_u32 s{sFkm}, s{sFkm}, 2048\nv_mov_b32 v{T0}, 1\ns_waitcnt vmcnt(0)\ns_barrier\ns_mov_b64 exec, 1\nbuffer_store_dword v{T0}, off, {W}, s{sFkm} sc1\ns_mov_b64 exec, -1")
    A(f"s_branch {P.get('done', FAIL)}")
    A(f"{OTH}:")
    trace(A, 1, MEMA, sStep)
    trace_clk(A, MEMA)
    A(f"s_buffer_load_dword s{sRdy}, {W}, s{sFkv}" + ("" if SK_ else f"\ns_buffer_load_dword s{sG}, {W}, s{sFg}"))
    stage(0, 10)
    for r in range(VA + 2, VA + 8 - 8 * ZL, 2): A(z64(r))
    A(f"s_branch {HOP2}")
    A(f"{P1R}:")
    if ONE:
        for it in range(8): inbox_load(0, it)
        rpass(0, PUBL)
    else:
        rpass(1, PUBL)
        for it in range(8): inbox_load(1, it)
    A(f"s_add_u32 s{sTmp+2}, s{sTmp+2}, 1\ns_cmp_gt_u32 s{sTmp+2}, {SPIN_MAX}\ns_cbranch_scc0 {P1R}\ns_branch {FAIL}")
    RL = A.label("c_rl")
    A(f"{RETRY}:")
    for r in range(QA, QA + 12, 2): A(z64(r))
    A(f"{RL}:")
    ag_loads()
    A(f"s_add_u32 s{sTmp+2}, s{sTmp+2}, 1\ns_add_u32 s{sCnt+1}, s{sCnt+1}, 1\ns_cmp_gt_u32 s{sTmp+2}, {SPIN_MAX}\ns_cbranch_scc1 {FAIL}")
    A(f"s_waitcnt vmcnt({2+npo})")
    A(f"v_max3_u32 v{T0}, v{m0}, v{m0+1}, v{m0+2}\nv_max3_u32 v{T0}, v{m0+3}, v{m4}, v{T0}\nv_max3_u32 v{T0}, v{m4+1}, v{m4+2}, v{T0}\nv_max_u32 v{T0}, v{T0}, v{m4+3}")
    A(f"v_cmp_eq_u32 vcc, -1, v{T0}\ns_cbranch_vccnz {RL}")
    A(f"ds_write_b128 v{vW16}, v[{m0}:{m0+3}] offset:{L_MEM}")
    M(*OWN[0])
    A(f"ds_write_b128 v{vW16}, v[{m4}:{m4+3}] offset:{L_MEM+4096}")
    M(*OWN[1]); M(*OWN[2])
    A(f"s_branch {GOT}")
    A(f"{FB}:")
    A(f"v_max3_f32 v{CK}, v{X}, v{X+1}, v{X+2}\nv_max_f32 v{CK}, v{X+3}, v{CK}")
    A(f"s_mov_b64 exec, {H}\nv_max3_f32 v{CK}, v{SM}, v{SM+1}, v{CK}\ns_mov_b64 exec, -1")
    xlane(A, "v_max_f32", CK, E)
    for i in range(4): A(f"v_sub_f32 v{E+i}, v{X+i}, v{CK}")
    for i in range(2): A(f"v_sub_f32 v{E+4+i}, v{SM+i}, v{CK}")
    for i in range(6): A(f"v_exp_f32 v{E+i}, v{E+i}")
    A(f"v_cvt_pk_bf16_f32 v{E}, v{E}, v{E+1}\nv_cvt_pk_bf16_f32 v{E+1}, v{E+2}, v{E+3}\nv_cvt_pk_bf16_f32 v{E+4}, v{E+4}, v{E+5}")
    selp()
    A(f"v_cndmask_b32 v{PM+1}, 0, v{E+4}, {H}\nv_cndmask_b32 v{PM+2}, 0, v{E+4}, {H}")
    A(mf(ZA, PX, ONES)); A(mf(PVA, PX, VX)); A(mf(PVA + 4, PX, VX + 4))
    A(mf16(ZA, PM, ONES, ZA)); A(mf16(PVA, PM + 2, VA + 2, PVA)); A(mf16(PVA + 4, PM, VA + 2, PVA + 4))
    A("s_nop 7")
    for x in half_sum(ZA): A(x)
    A(f"s_branch {FBR}")
    A(f"{FAIL}:")
```

```python
from asmlib import *
import struct, math
def f32bits(x): return struct.unpack("<I", struct.pack("<f", x))[0]

class L(list):
    def __call__(self, txt):
        for ln in txt.split("\n"):
            ln = ln.strip()
            if ln: self.append(ln)

def allsum(A, regs, t):
    for rot in (8, 4, 2, 1):
        for r in regs: A(f"v_add_f32_dpp v{r}, v{r}, v{r} row_ror:{rot} row_mask:0xf bank_mask:0xf")
    for sw in ("16", "32"):
        for i, r in enumerate(regs): A(f"v_mov_b32 v{t+i}, v{r}")
        for i, r in enumerate(regs): A(f"v_permlane{sw}_swap_b32 v{r}, v{t+i}")
        for i, r in enumerate(regs): A(f"v_add_f32 v{r}, v{r}, v{t+i}")

def rnd(A, r):
    A(f"v_cvt_pk_bf16_f32 v{r}, 0, v{r}")

def unpack(A, pk, f):
    for i in range(4):
        A(f"v_lshlrev_b32 v{f+2*i}, 16, v{pk+i}\nv_and_b32 v{f+2*i+1}, 0xffff0000, v{pk+i}")
def pack(A, f, pk):
    for i in range(4): A(f"v_cvt_pk_bf16_f32 v{pk+i}, v{f+2*i}, v{f+2*i+1}")

def layernorm(A, x, y, pk, t, extra=None):
    s_, d = t, t + 4
    A(f"v_add_f32 v{s_}, v{x}, v{x+1}\nv_add_f32 v{s_+1}, v{x+2}, v{x+3}\nv_add_f32 v{s_+2}, v{x+4}, v{x+5}\nv_add_f32 v{s_+3}, v{x+6}, v{x+7}")
    A(f"v_add_f32 v{s_}, v{s_}, v{s_+1}\nv_add_f32 v{s_+2}, v{s_+2}, v{s_+3}\nv_add_f32 v{s_}, v{s_}, v{s_+2}")
    allsum(A, [s_] + ([extra] if extra is not None else []), s_ + 2)
    A(f"v_mul_f32 v{s_}, {hex(f32bits(1/512))}, v{s_}")
    for i in range(8): A(f"v_sub_f32 v{d+i}, v{x+i}, v{s_}")
    A(f"v_mul_f32 v{s_+1}, v{d}, v{d}\nv_mul_f32 v{s_+2}, v{d+1}, v{d+1}")
    for i in range(2, 8): A(f"v_fmac_f32 v{s_+1+i%2}, v{d+i}, v{d+i}")
    A(f"v_add_f32 v{s_+1}, v{s_+1}, v{s_+2}")
    rnd(A, s_)
    red = L(); allsum(red, [s_ + 1], s_ + 2)
    oth = L()
    for i in range(8): oth(f"v_sub_f32 v{d+i}, v{x+i}, v{s_}")
    for i in range(8): rnd(oth, d + i)
    while red or oth:
        if red: A(red.pop(0))
        for _ in range(2):
            if oth: A(oth.pop(0))
    A(f"v_mul_f32 v{s_+1}, {hex(f32bits(1/512))}, v{s_+1}")
    rnd(A, s_ + 1)
    A(f"v_add_f32 v{s_+1}, {hex(f32bits(1e-5))}, v{s_+1}")
    rnd(A, s_ + 1)
    A(f"v_sqrt_f32 v{s_+1}, v{s_+1}")
    rnd(A, s_ + 1)
    A(f"v_rcp_f32 v{s_+1}, v{s_+1}")
    for i in range(8): A(f"v_mul_f32 v{d+i}, v{d+i}, v{s_+1}")
    pack(A, d, pk)
    if y is not None: unpack(A, pk, y)

def layernorm1(A, x, y, pk, t, extra=None):
    s_, d = t, t + 4
    A(f"v_add_f32 v{s_}, v{x}, v{x+1}\nv_mul_f32 v{s_+1}, v{x}, v{x}\nv_add_f32 v{s_+2}, v{x+2}, v{x+3}\nv_mul_f32 v{s_+3}, v{x+1}, v{x+1}")
    for i in range(2, 8):
        if i >= 4: A(f"v_add_f32 v{s_+2*(i%2)}, v{s_+2*(i%2)}, v{x+i}")
        A(f"v_fmac_f32 v{s_+1+2*(i%2)}, v{x+i}, v{x+i}")
    A(f"v_add_f32 v{s_}, v{s_}, v{s_+2}\nv_add_f32 v{s_+1}, v{s_+1}, v{s_+3}")
    allsum(A, [s_, s_ + 1] + ([extra] if extra is not None else []), d)
    A(f"v_mul_f32 v{s_}, {hex(f32bits(1/512))}, v{s_}\nv_mul_f32 v{s_+1}, {hex(f32bits(1/512))}, v{s_+1}")
    A(f"v_fma_f32 v{s_+1}, -v{s_}, v{s_}, v{s_+1}")
    rnd(A, s_)
    sc = L()
    sc(f"v_max_f32 v{s_+1}, 0, v{s_+1}")
    rnd(sc, s_ + 1)
    sc(f"v_add_f32 v{s_+1}, {hex(f32bits(1e-5))}, v{s_+1}")
    rnd(sc, s_ + 1)
    sc(f"v_sqrt_f32 v{s_+1}, v{s_+1}")
    rnd(sc, s_ + 1)
    sc(f"v_rcp_f32 v{s_+1}, v{s_+1}")
    oth = L()
    for i in range(8): oth(f"v_sub_f32 v{d+i}, v{x+i}, v{s_}")
    for i in range(8): rnd(oth, d + i)
    while sc or oth:
        if sc: A(sc.pop(0))
        for _ in range(2):
            if oth: A(oth.pop(0))
    for i in range(8): A(f"v_mul_f32 v{d+i}, v{d+i}, v{s_+1}")
    pack(A, d, pk)
    if y is not None: unpack(A, pk, y)

def selmats(A, dst, n, tmp, lo="0x3f80", hi="1.0"):
    A(f"s_mov_b32 vcc_lo, 0xaaaaaaaa\ns_mov_b32 vcc_hi, 0xaaaaaaaa\nv_mov_b32 v{tmp}, {lo}\nv_mov_b32 v{dst}, {hi}\nv_cndmask_b32 v{tmp}, v{tmp}, v{dst}, vcc")
    for r in range(n):
        A(f"s_mov_b32 vcc_lo, {hex(0x00030003 << (2*r))}\ns_mov_b32 vcc_hi, {hex(0x00030003 << (2*r))}\nv_cndmask_b32 v{dst+r}, 0, v{tmp}, vcc")

def mfd(d, a, b, c): return f"v_mfma_f32_16x16x32_bf16 {v(d,4)}, {reg(a,4)}, {reg(b,4)}, {v(c,4) if c is not None else '0'}"

sTr = 100
TRACE_ON = [False]
def trace(A, code, vt, sreg=None):
    if not TRACE_ON[0]: return
    if TRACE_ON[0] == 4 and not (vt in (16, 28) or (vt == 10 and code in (3, 5, 6))): return
    A(f"s_memrealtime s[98:99]\ns_waitcnt lgkmcnt(0)\nv_mov_b32 v{vt}, s98")
    if sreg is None: A(f"v_mov_b32 v{vt+1}, {code}")
    else: A(f"s_lshl_b32 s99, s{sreg}, 8\ns_or_b32 s99, s99, {code}\nv_mov_b32 v{vt+1}, s99")
    A(f"s_mov_b64 exec, 1\nbuffer_store_dwordx2 v[{vt}:{vt+1}], off, s[4:7], s{sTr}\ns_mov_b64 exec, -1\ns_add_u32 s{sTr}, s{sTr}, 8")

def trace_clk(A, vt):
    if TRACE_ON[0] != 2: return
    A("s_memtime s[98:99]\ns_waitcnt lgkmcnt(0)\ns_lshr_b32 s101, s98, 4")
    trace(A, 9, vt, 101)

def w_src_regs(A, l16, v0, t):
    A(f"v_lshrrev_b32 v{t}, 8, v{l16}\nv_and_b32 v{v0}, 0xf0, v{l16}\nv_lshlrev_b32 v{v0+1}, 6, v{t}\nv_xor_b32 v{v0}, v{v0}, v{v0+1}")
    A(f"v_lshl_add_u32 v{v0}, v{t}, 13, v{v0}\nv_xor_b32 v{v0+1}, 32, v{v0}")

def w_stage_dma(A, vm, srd, v0, s_src, s_lds, t, n):
    tok = None
    for i in range(n):
        A(f"s_add_u32 m0, s{s_lds}, {t + i * 1024}")
        if i: A(f"s_add_u32 s{s_src}, s{s_src}, 32768")
        else: A("s_nop 0")
        tok = vm.issue(f"buffer_load_dwordx4 v{v0 + (i // 2) % 2}, s[{srd}:{srd+3}], s{s_src} offen lds")
    return tok
```

```python
MB = 1 << 20
KB = 1 << 10
NSEG = 64
INBOX = 0
AGR   = 4 * MB
FLAGS = 232 * MB
KSH   = 7
KSEG  = 32 << KSH
KST   = 64 * KSEG
F_XN  = FLAGS
F_DL  = F_XN + 64
F_KV  = FLAGS + 1024 * KB
F_Q   = F_KV + 16
F_KM  = F_KV + 768 * KB
FLAG_BYTES = 2560 * KB
MEMH  = FLAGS + FLAG_BYTES
XN    = 6 * MB
X2    = 10 * MB
OBOX  = 12 * MB
XA    = 20 * MB
XB_   = 26 * MB
MLPY  = 235 * MB
XM    = 34 * MB
TRACE = 36 * MB
KV    = 40 * MB
QX    = 136 * MB
KM    = 184 * MB
WS_BYTES = 256 * MB
KA = dict(x=0, mem0=8, wq=16, wk=24, wv=32, wo=40, seg=48, bx=56, wr=64, wg=72, wu=80, wd=88, out=96, dbg=104, ws=112)
SPIN_MAX = 0x100000
```

```python
from asmlib import *
from layout import *
from common import *
from chain import Cnt, sWS, sT, sJ, sW, sC, sTmp, sLo, sHi

oL16, oL8, oL4, oOR, oPS, oRL, oOW, oT = range(8)
oWR0 = 8
SELA, oIDX = 16, 20
BIAS = 24
oSK, oSQ, oSM, oSV, oFO, oFL, oKEY, oVT = 32, 33, 34, 35, 36, 37, 38, 39
KR, OA, SX, SMM = 40, 72, 104, 112
QR, MR, VR = 120, 136, 152
PXR, PMR, VMR = 116, 196, 200
OP, EX = 40, 56
ACC, XO = 40, 104
RB = 120
XR, S0, XF, YF = 184, 188, 196, 204
PKO = 212
oFK = 244
oL32 = 246
oL256 = 255
oKP, oFO2, oTM = 248, 252, 253
oTHR = 247
L_O, L_ST, L_KM, L_VOTE = 0, 16384, 65536, 81920
sNk = 3
sRep, sU = 60, 61
sTask = 62
sCur, sNxt, sPrev = 63, 64, 65
sPre, sSpin = 66, 67
sOut = 68
sX = 72
sPreK, sRow, sKey = 76, 77, 78
sEx = 44
sD_ = 80
sKp, sHd, sBox, sPq, sPk = 84, 85, 86, 87, 88
sR = 90
sRun, sD, sBoth, sS, sFin, sRet = 46, 47, 48, 49, 50, 51
B_SET, B_KIND, B_DST, B_KA, B_VALID, B_SAME, B_ROW = 6, 14, 16, 17, 20, 21, 22
def desc(set_, kind, ka): return set_ << B_SET | kind << B_KIND | ka << B_KA | 1 << B_VALID
cQF, cKF, cKV, cQX, cKM, cKD, cM0, cM1, cM2, cBX, sTag, cTK = 14, 15, 18, 19, 20, 21, 22, 23, 40, 41, 42, 43
def wo_op(ks, T): return 256 + (ks * 4 + T) * 4
def mf32(d, a, b, c): return f"v_mfma_f32_32x32x16_bf16 {v(d,16)}, {reg(a,4)}, {reg(b,4)}, {v(c,16) if c is not None else '0'}"

def o_consts(A):
    n, g, l, t = 40, 41, 42, 43
    A(f"""
    v_and_b32 v{l}, 63, v0
    v_and_b32 v{n}, 15, v{l}
    v_lshrrev_b32 v{g}, 4, v{l}
    v_lshlrev_b32 v{oL8}, 3, v{l}
    v_lshlrev_b32 v{oL4}, 2, v{l}
    v_lshlrev_b32 v{oL16}, 4, v{l}
    s_mov_b32 s{sC}, {hex(f32bits(128 ** -0.5 * math.log2(math.e)))}
    s_mov_b32 s{sLo}, 0x05040100
    s_mov_b32 s{sHi}, 0x07060302
    s_and_b32 s{sTmp}, s{sW}, 1
    s_lshl_b32 s{sTmp}, s{sTmp}, 4
    v_lshlrev_b32 v{t}, 2, v{g}
    v_sub_u32 v{t}, v{n}, v{t}
    v_add_u32 v{t}, s{sTmp}, v{t}
    v_mov_b32 v{oT}, 0xfe000000
    """)
    for i in range(8):
        A(f"v_cmp_le_i32 vcc, {16*(i//4) + i%4}, v{t}\nv_cndmask_b32 v{BIAS+i}, v{oT}, 0, vcc")
    A(f"""
    ; partial store offset: token (4hf + g%2 (+8q+2p)) * 16384 + u*1024 + w*256 + n*16
    v_lshrrev_b32 v{t}, 5, v{l}
    v_lshlrev_b32 v{t}, 16, v{t}
    v_and_b32 v{oPS}, 1, v{g}
    v_lshl_add_u32 v{t}, v{oPS}, 14, v{t}
    v_lshl_add_u32 v{t}, v{n}, 4, v{t}
    s_lshl_b32 s{sTmp}, s{sU}, 10
    s_lshl_b32 s{sTmp+1}, s{sW}, 8
    s_add_u32 s{sTmp}, s{sTmp}, s{sTmp+1}
    v_add_u32 v{oPS}, s{sTmp}, v{t}
    v_lshlrev_b32 v{t}, 10, v{g}
    v_lshl_add_u32 v{oRL}, v{n}, 4, v{t}
    s_lshl_b32 s{sTmp}, s{sW}, 12
    v_add_u32 v{oOW}, s{sTmp}, v{oL16}
    v_and_b32 v{t}, 1, v{g}
    v_lshlrev_b32 v{t}, 12, v{t}
    v_lshl_add_u32 v{t}, v{n}, 4, v{t}
    v_lshrrev_b32 v{oOR}, 1, v{g}
    v_lshl_add_u32 v{oOR}, v{oOR}, 8, v{t}
    s_lshr_b32 s{sTmp}, s{sW}, 1
    s_lshl_b32 s{sTmp+1}, s{sTmp}, 14
    s_add_u32 s{sTmp+1}, s{sTmp+1}, {L_ST}
    v_add_u32 v{oSK}, s{sTmp+1}, v{oL16}
    s_lshl_b32 s{sTmp+1}, s{sTmp}, 13
    s_and_b32 s{sTmp+2}, s{sW}, 1
    s_lshl_b32 s{sTmp+2}, s{sTmp+2}, 10
    s_add_u32 s{sTmp+2}, s{sTmp+2}, s{sTmp+1}
    s_add_u32 s{sTmp+2}, s{sTmp+2}, {L_ST + 32768}
    v_add_u32 v{oSQ}, s{sTmp+2}, v{oL16}
    s_add_u32 s{sTmp+1}, s{sTmp+1}, {L_KM}
    v_add_u32 v{oSM}, s{sTmp+1}, v{oL16}
    v_add_u32 v{oSV}, s{sTmp+1}, v{oL8}
    ; flag offsets: lanes 0..3 KV words, lanes 4..7 Q words (others repeat)
    v_and_b32 v{oFO}, 0xf0, v{oL16}
    v_and_b32 v{oFO2}, 64, v{oL16}
    v_mov_b32 v{oKP}, 0
    v_lshlrev_b32 v{oL256}, 4, v{oL16}
    v_and_b32 v{t}, 1, v{l}
    v_xor_b32 v{oTM+1}, 1, v{t}
    s_lshl_b32 s{sTmp}, s{sW}, 3
    s_add_u32 s{sTmp}, s{sTmp}, {L_VOTE}
    v_mov_b32 v{oVT}, s{sTmp}
    """)
    A(f"s_mov_b32 vcc_lo, 0xaaaaaaaa\ns_mov_b32 vcc_hi, 0xaaaaaaaa\nv_mov_b32 v{t}, 0x3f80\nv_cndmask_b32 v{t}, v{t}, 1.0, vcc")
    for r in range(2):
        A(f"s_mov_b32 vcc_lo, {hex(0x000f000f << (4*r))}\ns_mov_b32 vcc_hi, {hex(0x0f000f00 << (4*r))}\nv_cndmask_b32 v{SELA+r}, 0, v{t}, vcc\nv_cndmask_b32 v{SELA+2+r}, 0, v{t}, vcc")
    A(f"s_mov_b32 vcc_lo, 0xcccccccc\ns_mov_b32 vcc_hi, 0xcccccccc\nv_mov_b32 v{t}, 0x4444\nv_mov_b32 v{oIDX}, 0xeeee\nv_cndmask_b32 v{oIDX}, v{t}, v{oIDX}, vcc")
    A(f"""
    s_mov_b32 s{sOut+2}, {2*MB}
    s_mov_b32 s{sOut+3}, 0x20000
    s_mov_b32 s{sX+2}, {2*MB}
    s_mov_b32 s{sX+3}, 0x20000
    s_mov_b32 s{sT+2}, 1024
    s_mov_b32 s{sD_+3}, 0x20000
    s_lshr_b32 s{sHd}, s{sW}, 1
    s_lshl_b32 s{sTmp}, s{sU}, 1
    s_add_u32 s{sHd}, s{sHd}, s{sTmp}
    s_add_u32 s{cTK}, s{sTmp}, s{sW}
    s_lshl_b32 s{cQF}, s{sU}, 8
    s_lshl_b32 s{cKF}, s{sU}, 7
    s_add_u32 s{cKF}, s{cKF}, {F_KM}
    s_add_u32 s{cQF}, s{cQF}, {F_KV}
    s_lshl_b32 s{sTmp}, s{sU}, 2
    s_add_u32 s{sTmp}, s{sTmp}, s{sW}
    s_lshl_b32 s{cKV}, s{sTmp}, 13
    s_add_u32 s{cKV}, s{cKV}, {KV}
    s_lshl_b32 s{cQX}, s{sTmp}, 12
    s_add_u32 s{cQX}, s{cQX}, {QX}
    s_lshl_b32 s{cKM}, s{sHd}, 13
    s_add_u32 s{cKM}, s{cKM}, {KM}
    s_and_b32 s{sTmp}, s{sW}, 1
    s_mul_i32 s{sTmp}, s{sTmp}, 3072
    s_add_u32 s{cKD}, s{cKM}, s{sTmp}
    s_lshr_b32 s{cM2}, s{sW}, 1
    s_lshl_b32 s{cM2}, s{cM2}, 13
    s_add_u32 s{cM2}, s{cM2}, s{sTmp}
    s_add_u32 s{cM2}, s{cM2}, {L_KM}
    s_lshl_b32 s{cM0}, s{sW}, 12
    s_add_u32 s{cM0}, s{cM0}, {L_ST + 32768}
    s_lshl_b32 s{cM1}, s{sW}, 13
    s_add_u32 s{cM1}, s{cM1}, {L_ST}
    s_lshl_b32 s{cBX}, s{sRep}, 20
    s_add_u32 s{cBX}, s{cBX}, {OBOX}
    v_lshlrev_b32 v{oL32}, {KSH-4}, v{oL16}
    s_mov_b32 s{sT+3}, 0x20000
    s_waitcnt lgkmcnt(0)
    """)

def o_wr(A, P):
    unpack(A, 56, oWR0)
    from statistics import NormalDist
    A(f"v_mul_f32 v56, v{oWR0}, v{oWR0}")
    for i in range(1, 8): A(f"v_fmac_f32 v56, v{oWR0+i}, v{oWR0+i}")
    allsum(A, [56], 57)
    A("v_sqrt_f32 v56, v56")
    for r in range(19):
        rem = max(2048 - 32 * max(0, 4 * r - 5), 32)
        z = -NormalDist().inv_cdf(math.log(2) / rem)
        z *= P.get("zs", 1.0)
        A(f"s_mov_b32 s{sTmp+2}, {hex(f32bits(z))}\nv_writelane_b32 v{oTHR}, s{sTmp+2}, {r}")
    A(f"v_mul_f32 v{oTHR}, v{oTHR}, v56\nv_or_b32 v{oTHR}, 0x80000000, v{oTHR}")

def o_prologue(A, late_args, wait_init, P={}, hold=None):
    W = f"s[{sWS}:{sWS+3}]"
    XL, sB_ = 176, sTmp + 4
    vm = Cnt(A, "vmcnt", 63)
    A(f"s_load_dwordx2 s[{sD_}:{sD_+1}], s[0:1], {KA['wo']}\ns_load_dwordx2 s[{sX}:{sX+1}], s[0:1], {KA['x']}\ns_mov_b32 s{sD_+2}, {4*MB}")
    o_consts(A)
    A(f"""
    s_lshl_b32 s{sRow}, s{sRep}, 4
    s_add_u32 s{sRow}, s{sRow}, s{sU}
    s_lshl_b32 s{sRow}, s{sRow}, 2
    s_add_u32 s{sRow}, s{sRow}, s{sW}
    s_lshl_b32 s{sTmp}, s{sRow}, 10
    """)
    tx = []
    for k in range(8):
        tx.append(vm.issue(f"buffer_load_dwordx4 v[{XL+4*k}:{XL+4*k+3}], v{oL16}, s[{sX}:{sX+3}], s{sTmp} offen"))
        A(f"s_add_u32 s{sTmp}, s{sTmp}, {256*1024}")
    A(f"""
    v_lshrrev_b32 v44, 9, v{oL16}
    v_lshlrev_b32 v44, 12, v44
    v_and_b32 v45, 0xf0, v{oL16}
    v_add_u32 v44, v44, v45
    v_bfe_u32 v45, v{oL16}, 8, 1
    v_lshl_add_u32 v44, v45, 3, v44                ; columns 8n + 4*(g%2) + T
    s_lshl_b32 s{sB_}, s{sU}, 18
    s_lshl_b32 s{sTmp+1}, s{sW}, 8
    s_add_u32 s{sB_}, s{sB_}, s{sTmp+1}
    """)
    tk = {}
    POOL, NP = 64, 7
    def issue(i):
        for j in range(8):
            e = 32 * (i // 2) + 8 * (i % 2) + j % 4 + 16 * (j // 4)
            r = POOL + (i % NP) * 16 + j * 2
            A(f"s_add_u32 s{sTmp+1}, s{sB_}, {e * 1024 + (P.get('nowo', 0) << 24)}")
            tk[i] = vm.issue(f"buffer_load_dwordx2 v[{r}:{r+1}], v44, s[{sD_}:{sD_+3}], s{sTmp+1} offen")
    def consume(i):
        vm.wait(tk[i])
        for T in range(4):
            b = POOL + (i % NP) * 16 + T // 2
            x = wo_op(i, T) - 256
            for rho in range(4): A(f"v_perm_b32 v{48+4*(T%2)+rho}, v{b+4*rho+2}, v{b+4*rho}, s{sHi if T % 2 else sLo}")
            for rho in range(4): A(f"v_accvgpr_write_b32 a{x+rho}, v{48+4*(T%2)+rho}")
    NF = P.get('nf', 4)
    for i in range(NF): issue(i)
    late_args()
    A(f"s_load_dwordx2 s[{sOut}:{sOut+1}], s[0:1], {KA['out']}\ns_load_dwordx2 s[{sT}:{sT+1}], s[0:1], {KA['wr']}\ns_waitcnt lgkmcnt(0)")
    vm.issue(f"buffer_load_dwordx4 v[56:59], v{oL16}, s[{sT}:{sT+3}], 0 offen")
    A(f"s_lshl_b32 s{sTmp+3}, s{sRow}, 10\ns_add_u32 s{sTmp+3}, s{sTmp+3}, {XN}")
    def ln(k):
        vm.wait(tx[k])
        unpack(A, XL + 4 * k, 212)
        layernorm(A, 212, None, XL + 4 * k, 220)
        t = vm.issue(f"buffer_store_dwordx4 v[{XL+4*k}:{XL+4*k+3}], v{oL16}, {W}, s{sTmp+3} offen sc1")
        A(f"s_add_u32 s{sTmp+3}, s{sTmp+3}, {256*1024}")
        return t
    def flags(mask):
        A(f"s_lshl_b32 s{sTmp+1}, s{sRow}, {KSH}\ns_add_u32 s{sTmp+1}, s{sTmp+1}, {F_XN}\nv_lshlrev_b32 v61, {KSH+4}, v{oL16}\nv_mov_b32 v60, 1\ns_mov_b64 exec, {mask}")
        vm.issue(f"buffer_store_dword v60, v61, {W}, s{sTmp+1} offen sc1")
        A("s_mov_b64 exec, -1")
    S1, S2, S3 = A.label("o_s1"), A.label("o_s2"), A.label("o_s3")
    A(f"s_cmp_lt_u32 s{sRep}, 4\ns_cbranch_scc1 {S1}\ns_waitcnt vmcnt(0)\ns_branch {S2}\n{S1}:")
    for k in range(8): ln(k)
    A(f"{S2}:")
    for i in range(NF): consume(i)
    A(f"s_cmp_ge_u32 s{sRep}, 4\ns_cbranch_scc1 {S3}")
    wait_init(); vm.reset()
    trace(A, 8, 250)
    flags(0xff)
    A(f"{S3}:")
    if hold: hold()
    for i in range(NF, NF + NP): issue(i)
    o_wr(A, P)
    A(f"s_lshl_b32 s{sTmp+3}, s{sU}, 2\ns_add_u32 s{sTmp+3}, s{sTmp+3}, s{sW}\ns_lshl_b32 s{sTmp+3}, s{sTmp+3}, 13\ns_add_u32 s{sTmp+3}, s{sTmp+3}, s{cBX}")
    A(f"s_cmp_ge_u32 s{sRep}, 4\ns_cselect_b32 s{sTmp+3}, {WS_BYTES}, s{sTmp+3}")
    A(f"v_mov_b64 v[208:209], 0\nv_mov_b64 v[210:211], 0")
    for i in range(NF, 16):
        consume(i)
        if i + NP < 16: issue(i + NP)
        if 9 <= i < 13:
            for k in range(4): vm.issue(f"buffer_store_dwordx4 v[208:211], v{oL16}, {W}, s{sTmp+3} offen offset:{k*1024} {P.get('clr', 'sc1')}")
            A(f"s_add_u32 s{sTmp+3}, s{sTmp+3}, {4096 if i != 10 else (1 << 19) - 4096}")
    A("s_waitcnt vmcnt(0)\ns_barrier")

def spin(A, fail):
    A(f"s_add_u32 s{sSpin}, s{sSpin}, 1\ns_cmp_gt_u32 s{sSpin}, {SPIN_MAX}\ns_cbranch_scc1 {fail}")

def post_key(A):
    W = f"s[{sWS}:{sWS+3}]"
    A(f"s_mov_b64 exec, 1\nbuffer_store_dword v{oKEY}, off, {W}, s{sKp} sc1\ns_mov_b64 exec, -1\ns_mov_b32 s{sKp}, {WS_BYTES}")

def p_store(r, STF):
    return [f"s_add_u32 s{sKey}, s{sBox}, {(8*(r//4)+r%4)*16384}",
            f"buffer_store_dwordx4 v[{PKO+2*r}:{PKO+2*r+3}], v{oPS}, s[{sWS}:{sWS+3}], s{sKey} offen {STF}"]

def probe_load(box):
    return [f"s_lshl_b32 s{sR+7}, s{cTK}, 14", f"s_add_u32 s{sR+7}, s{sR+7}, s{box}",
            f"buffer_load_dword v{oT}, v{oL256}, s[{sWS}:{sWS+3}], s{sR+7} offen sc1"]
def probe_wait(A, FAIL, n=0):
    L0, OK = A.label("o_pl"), A.label("o_pk")
    A(f"s_mov_b32 s{sSpin}, 0\ns_mov_b64 vcc, 0\ns_waitcnt vmcnt({n})\n{L0}:\nv_and_b32 v{oT}, 1, v{oT}\nv_cmp_ne_u32 vcc, s{sR+6}, v{oT}\ns_cbranch_vccz {OK}")
    A(probe_load(0)[2])
    spin(A, FAIL)
    A(f"s_waitcnt vmcnt(0)\ns_branch {L0}\n{OK}:")

def r_check(A, FAIL, box):
    RT, BK = A.label("o_rt"), A.label("o_bk")
    tg = [f"v_xor_b32 v{oT}, s{sR+6}, v{RB}"] + [f"v_bitop3_b32 v{oT}, v{oT}, v{RB+4*i}, s{sR+6} bitop3:0xf6" for i in range(1, 16)]
    end = [f"v_and_b32 v{oT}, v{oTM+1}, v{oT}", f"v_cmp_ne_u32 vcc, 0, v{oT}"]
    def outl():
        L2 = A.label("o_rl")
        A(f"{RT}:\ns_mov_b32 s{sSpin}, 0\n{L2}:")
        for x in r_loads(box): A(x if isinstance(x, str) else x[1])
        spin(A, FAIL)
        A("s_waitcnt vmcnt(0)")
        for x in tg + end: A(x)
        A(f"s_cbranch_vccnz {L2}\ns_branch {BK}")
    return tg, ("grp", end + [f"s_cbranch_vccnz {RT}", f"{BK}:"]), outl

def r_loads(box):
    W = f"s[{sWS}:{sWS+3}]"
    R = L()
    sTk, sOf, sA, sB2, sBx = sR, sR + 1, sR + 2, sR + 3, sR + 4
    R(f"s_lshl_b32 s{sBx}, s{cTK}, 14\ns_add_u32 s{sBx}, s{sBx}, s{box}")
    for pg in range(4):
        for k, cg in enumerate((0, 2, 1, 3)):
            R.append(("vm", f"buffer_load_dwordx4 v[{RB+(pg*4+k)*4}:{RB+(pg*4+k)*4+3}], v{oRL}, {W}, s{sBx} offen offset:{cg*256} sc1", f"rb{pg*4+k}"))
        if pg < 3: R(f"s_add_u32 s{sBx}, s{sBx}, 4096")
    return R

def x_load():
    R = L()
    sTk, sOf, sA, sB2, sBx = sR, sR + 1, sR + 2, sR + 3, sR + 4
    R(f"s_and_b32 s{sOf}, s{sPrev}, 63\ns_lshl_b32 s{sTk}, s{sOf}, 5\ns_add_u32 s{sBx}, s{sTk}, s{sHd}\ns_add_u32 s{sTk}, s{sTk}, s{cTK}")
    R(f"s_lshl_b32 s{sBx}, s{sBx}, 10\ns_lshr_b32 s{sA}, s{sPrev}, {B_ROW}\ns_xor_b32 s{sB2}, s{cTK}, 32")
    R(f"s_lshl_b32 s{sOf}, s{sTk}, 10\ns_add_u32 s{sBx}, s{sBx}, {XM - X2}\ns_cmp_eq_u32 s{sA}, s{sB2}\ns_cselect_b32 s{sA}, s{sBx}, s{sOf}\ns_add_u32 s{sA}, s{sA}, {X2}")
    R(f"s_and_b32 s{sB2}, s{sPrev}, {3 << B_KIND}\ns_cselect_b32 s{sA}, s{sA}, s{sOf}\ns_cselect_b64 s[{sD_}:{sD_+1}], s[{sWS}:{sWS+1}], s[{sX}:{sX+1}]\ns_cselect_b32 s{sD_+2}, s{sWS+2}, s{sX+2}")
    R(f"buffer_load_dwordx4 v[{XR}:{XR+3}], v{oL16}, s[{sD_}:{sD_+3}], s{sA} offen sc1")
    return R

def r_stream(first, chk):
    W = f"s[{sWS}:{sWS+3}]"
    R = L()
    sTk, sOf, sA, sB2, sBx = sR, sR + 1, sR + 2, sR + 3, sR + 4
    for r in range(S0, S0 + 8, 2): R(f"v_mov_b64 v[{r}:{r+1}], 0")
    for i in range(16):
        if i % 4 == 0: R.append(("wait", f"rb{i+3}"))
        R(chk[0][i])
    R.append(chk[1])
    up = L(); unpack(up, XR, XF)
    for i in range(8):
        R.append(("grp", [f"v_smfmac_f32_16x16x64_bf16 {v(S0+4*(i%2),4)}, {v(SELA,4)}, {v(RB+8*i,8)}, v{oIDX}", up[i]]))
    R(f"s_bfe_u32 s{sA}, s{sPrev}, {(2 << 16) | B_KIND}\ns_lshl_b32 s{sA}, s{sA}, 21\ns_add_u32 s{sA}, s{sA}, s{sOf}\ns_add_u32 s{sB2}, s{sA}, {XB_}\ns_add_u32 s{sA}, s{sA}, {XA}")
    for r in range(4): R(f"v_permlane16_swap_b32 v{S0+r}, v{S0+4+r}")
    for i in range(8): rnd(R, S0 + i)
    for i in range(8): R(f"v_add_f32 v{XF+i}, v{XF+i}, v{S0+i}")
    PK1, PK2, PK3, PK4, TM = RB, RB + 4, RB + 8, RB + 12, RB + 16
    pack(R, XF, PK1); unpack(R, PK1, XF)
    R.append(("vm", f"buffer_store_dwordx4 v[{PK1}:{PK1+3}], v{oL16}, {W}, s{sA} offen sc1", "s1"))
    layernorm1(R, XF, YF, PK2, TM)
    R.append(("vm", f"buffer_store_dwordx4 v[{PK2}:{PK2+3}], v{oL16}, {W}, s{sB2} offen sc1", "s2"))
    RR = S0
    for i in range(8): R(f"v_add_f32 v{XF+i}, v{XF+i}, v{YF+i}")
    pack(R, XF, PK3)
    R(f"v_mul_f32 v{RR}, v{YF}, v{oWR0}\nv_mul_f32 v{RR+1}, v{YF+1}, v{oWR0+1}")
    for i in range(2, 8): R(f"v_fmac_f32 v{RR+i%2}, v{YF+i}, v{oWR0+i}")
    R(f"v_add_f32 v{RR}, v{RR}, v{RR+1}")
    if first:
        R(f"s_add_u32 s{sA}, s{sOf}, {X2}\ns_add_u32 s{sB2}, s{sOf}, {XN + 2*MB}")
        R.append(("vm", f"buffer_store_dwordx4 v[{PK3}:{PK3+3}], v{oL16}, {W}, s{sA} offen sc1", "s3"))
        unpack(R, PK3, XF)
        layernorm1(R, XF, None, PK4, TM, extra=RR)
        R.append(("vm", f"buffer_store_dwordx4 v[{PK4}:{PK4+3}], v{oL16}, {W}, s{sB2} offen sc1", "last"))
    else:
        R.append(("vm", f"buffer_store_dwordx4 v[{PK3}:{PK3+3}], v{oL16}, s[{sOut}:{sOut+3}], s{sOf} offen sc1", "last"))
        allsum(R, [RR], RR + 1)
    rnd(R, RR)
    R(f"""
    v_ashrrev_i32 v{RR+1}, 31, v{RR}
    v_or_b32 v{RR+1}, 0x80000000, v{RR+1}
    v_xor_b32 v{RR}, v{RR}, v{RR+1}
    s_sub_u32 s{sA}, 4095, s{sTk}
    v_and_b32 v{RR}, 0xffff0000, v{RR}
    v_or_b32 v{oKEY}, s{sA}, v{RR}
    s_bfe_u32 s{sA}, s{sPrev}, {(3 << 16) | B_KA}
    s_lshl_b32 s{sA}, s{sA}, {KSH+11}
    s_lshl_b32 s{sB2}, s{sTk}, {KSH}
    s_add_u32 s{sA}, s{sA}, s{sB2}
    s_add_u32 s{sKp}, s{sA}, {F_XN}
    """)
    fin = [("wait", "last"), ("grp", ["s_mov_b64 exec, 1", f"buffer_store_dword v{oKEY}, off, {W}, s{sKp} sc1", "s_mov_b64 exec, -1", f"s_mov_b32 s{sKp}, {WS_BYTES}"])]
    return R, fin

def emit_item(A, vm, toks, x):
    if isinstance(x, str): A(x)
    elif x[0] == "vm": toks[x[2]] = vm.issue(x[1])
    elif x[0] == "wait": vm.wait(toks[x[1]])
    elif x[0] == "grp":
        for y in x[1]:
            if y.startswith("buffer_"): vm.issue(y)
            else: A(y)

def r_flush(A, P, FAIL):
    STF = P.get("st", "")
    DONE, K2 = A.label("o_fd"), A.label("o_f2")
    A(f"s_cmp_ge_u32 s{sW}, 2\ns_cbranch_scc1 {DONE}\ns_cmp_eq_u32 s{sPrev}, 0\ns_cbranch_scc1 {DONE}")
    A(f"s_mov_b32 s{sR+6}, s{sTag}\ns_waitcnt vmcnt(0)")
    post_key(A)
    for x in probe_load(sBox) + x_load(): A(x)
    probe_wait(A, FAIL, 1)
    A(f"s_and_b32 s{sTmp}, s{sPrev}, {3 << B_KIND}\ns_cbranch_scc1 {K2}")
    for first in (True, False):
        vm = Cnt(A, "vmcnt", 63); toks = {}
        chk = r_check(A, FAIL, sBox)
        R, fin = r_stream(first, chk)
        for x in list(r_loads(sBox)) + list(R) + fin: emit_item(A, vm, toks, x)
        A(f"s_branch {DONE}")
        chk[2]()
        if first: A(f"{K2}:")
    A(f"{DONE}:\ns_mov_b32 s{sPrev}, 0")
    trace(A, 7, 250)

def o_task(A, P, FAIL):
    W = f"s[{sWS}:{sWS+3}]"
    STF = P.get("st", "")
    sA, sB2 = sTmp + 6, sTmp + 7
    def qflag(D, d, name, sA=sA):
        D(f"s_and_b32 s{sA}, s{d}, 0xff\ns_lshl_b32 s{sA}, s{sA}, 12\ns_add_u32 s{sA}, s{sA}, s{cQF}")
        D.append(("vm", f"buffer_load_dword v{oFL}, v{oFO}, {W}, s{sA} offen sc1", name))
    def kflag(D, d, name, dst=oFK, sA=sA):
        D(f"s_and_b32 s{sA}, s{d}, 0xff00\ns_lshl_b32 s{sA}, s{sA}, 3\ns_add_u32 s{sA}, s{sA}, s{cKF}")
        D.append(("vm", f"buffer_load_dword v{dst}, v{oFO2}, {W}, s{sA} offen sc1", name))
    def dma_items(d, sh=None):
        D = L()
        D(f"s_lshl_b32 s{sB2}, s{d}, 18\ns_lshl_b32 s{sA}, s{d}, 19\ns_add_u32 m0, s{cM0}, {('s%d' % sh) if sh else 0}\ns_add_u32 s{sB2}, s{sB2}, s{cQX}")
        for part in range(2 if sh else 1):
            if part: D(f"s_sub_u32 m0, m0, 8192\ns_sub_u32 s{sB2}, s{sB2}, 8192")
            for i in range(4): D.append(("vm", f"buffer_load_dwordx4 v{oL16}, {W}, s{sB2} offen offset:{i*1024} sc1 lds", "dma"))
        D(f"s_add_u32 m0, s{cM1}, {('s%d' % sh) if sh else 0}\ns_add_u32 s{sA}, s{sA}, s{cKV}")
        if not sh:
            for h in range(2):
                if h: D(f"s_add_u32 m0, m0, 4096\ns_add_u32 s{sA}, s{sA}, 4096")
                for i in range(4): D.append(("vm", f"buffer_load_dwordx4 v{oL16}, {W}, s{sA} offen offset:{i*1024} sc1 lds", "dma"))
            return D
        cur = 0
        for kv, offs in ((0, (0, 4096, -12288, -16384)), (1, (-16384, -12288, 4096, 0))):
            for o in offs:
                if o != cur: D(f"s_add_i32 m0, m0, {o - cur}\ns_add_i32 s{sA}, s{sA}, {o - cur}")
                cur = o
                for i in range(2): D.append(("vm", f"buffer_load_dwordx4 v{oL16}, {W}, s{sA} offen offset:{(2*kv+i)*1024} sc1 lds", "dmv" if kv else "dma"))
        return D
    def km_dma(d):
        D = L()
        D(f"s_lshl_b32 s{sA}, s{d}, 18\ns_mov_b32 m0, s{cM2}\ns_add_u32 s{sA}, s{sA}, s{cKD}")
        for part in range(2):
            if part: D(f"s_sub_u32 m0, m0, 8192\ns_sub_u32 s{sA}, s{sA}, 8192")
            for i in range(3): D.append(("vm", f"buffer_load_dwordx4 v{oL16}, {W}, s{sA} offen offset:{i*1024} sc1 lds", "dmv"))
        return D
    L1, HAVE, L2, HAVEK, KLDS, NOOB, FB, FBR = [A.label("o_" + x) for x in ("w1", "have", "w2", "havek", "klds", "noob", "fb", "fbr")]
    W0, W1, W2, WE = A.label("o_wr0"), A.label("o_wr1"), A.label("o_wr2"), A.label("o_we")
    dummy = (Cnt(A, "vmcnt", 63), {})
    def emit(items):
        for x in items: emit_item(A, *dummy, x)
    trace(A, 1, 250, sCur)
    trace_clk(A, 250)
    A(f"s_cmp_lg_u32 s{sPre}, 0\ns_cbranch_scc1 {HAVE}\ns_mov_b32 s{sSpin}, 0\n{L1}:")
    D = L(); qflag(D, sCur, "f"); emit(D)
    spin(A, FAIL)
    A("s_waitcnt vmcnt(0)")
    post_key(A)
    A(f"v_cmp_eq_u32 vcc, 0, v{oFL}\ns_cbranch_vccnz {L1}")
    A(f"s_and_b32 s{sPq}, s{sCur}, 0xff")
    emit(dma_items(sPq))
    A(f"s_waitcnt vmcnt(0)\ns_barrier\n{HAVE}:")
    trace(A, 2, 250)
    ld = Cnt(A, "lgkmcnt", 15)
    tq = []
    for c in range(4):
        ld.issue(f"ds_read_b128 v[{QR+4*c}:{QR+4*c+3}], v{oSQ} offset:{c*2048}")
        for tt in range(2): t = ld.issue(f"ds_read_b128 v[{KR+(tt*4+c)*4}:{KR+(tt*4+c)*4+3}], v{oSK} offset:{c*4096+tt*1024}")
        tq.append(t)
    A(f"s_cmp_lt_u32 s{sW}, 2\ns_cselect_b32 s{sPrev}, s{sPrev}, 0\ns_cmp_lg_u32 s{sPrev}, 0\ns_cselect_b64 s[{sEx}:{sEx+1}], -1, 0")
    A(f"s_mov_b32 s{sR+5}, s{sBox}\ns_mov_b32 s{sR+6}, s{sTag}")
    pl = probe_load(sR + 5)
    A(pl[0]); A(pl[1])
    D = L(); qflag(D, sNxt, "f", sPq); D2 = L(); kflag(D2, sCur, "f", oFK, sPk)
    xl = x_load()
    for x in D[:3] + D2[:3] + xl[:-1]: A(x)
    EX1, EX0 = f"s_mov_b64 exec, s[{sEx}:{sEx+1}]", "s_mov_b64 exec, -1"
    for c in range(4):
        ld.wait(tq[c])
        for tt in range(2):
            A(mfd(SX + 4 * tt, KR + (tt * 4 + c) * 4, QR + 4 * c, SX + 4 * tt if c else BIAS + 4 * tt))
        if c == P.get("prb", 0): A(EX1); A(pl[2]); A(xl[-1]); A("s_not_b64 exec, exec"); A(D[3][1]); A(EX0); A(D2[3][1])
    CK, ZZ, T1 = PXR, PXR + 1, PXR + 2
    xs = L()
    xs(f"v_mov_b32 v{PMR}, 0\nv_mov_b32 v{PMR+3}, 0")
    for i in range(8): xs(f"v_exp_f32 v{EX+i}, v{SX+i}")
    xs(f"v_max3_f32 v{CK}, v{SX}, v{SX+1}, v{SX+2}\nv_max3_f32 v{CK}, v{SX+3}, v{SX+4}, v{CK}\nv_max3_f32 v{CK}, v{SX+5}, v{SX+6}, v{CK}")
    xs(f"v_add_f32 v{ZZ}, v{EX}, v{EX+1}\nv_add_f32 v{T1}, v{EX+2}, v{EX+3}")
    for i in range(4, 8): xs(f"v_add_f32 v{ZZ+i%2}, v{ZZ+i%2}, v{EX+i}")
    vr = [f"ds_read_b128 v[{VR+i*4}:{VR+i*4+3}], v{oSK} offset:{(i//2)*4096+2048+(i%2)*1024}" for i in range(8)]
    A(f"s_cmp_lg_u32 s{sPreK}, 0\ns_cbranch_scc1 {KLDS}")
    KGO = A.label("o_kgo")
    for x in xs: A(x)
    A(f"s_mov_b32 s{sSpin}, 0\ns_and_b32 s{sA}, s{sCur}, 0xff00\ns_lshl_b32 s{sA}, s{sA}, 10\ns_add_u32 s{sA}, s{sA}, s{cKM}\ns_add_u32 s{sB2}, s{sA}, 4096")
    A(f"{L2}:\ns_waitcnt vmcnt(0)\nv_cmp_eq_u32 vcc, 0, v{oFK}\ns_cbranch_vccz {KGO}")
    post_key(A)
    A(D2[3][1])
    spin(A, FAIL)
    A(f"s_branch {L2}\n{KGO}:")
    for c in range(4): A(f"buffer_load_dwordx4 v[{MR+4*c}:{MR+4*c+3}], v{oL16}, {W}, s{sA} offen offset:{c*1024} sc1")
    for c in range(4): A(f"buffer_load_dwordx2 v[{VMR+2*c}:{VMR+2*c+1}], v{oL8}, {W}, s{sB2} offen offset:{c*512} sc1")
    A(D[3][1]); A(D2[3][1])
    A("s_barrier")
    for x in vr: A(x)
    for c in range(4):
        A(f"s_waitcnt vmcnt({9-c})")
        A(mfd(SMM, MR + 4 * c, QR + 4 * c, SMM if c else None))
    A(f"s_waitcnt vmcnt(2)\ns_branch {HAVEK}\n{KLDS}:")
    A("s_waitcnt vmcnt(12)\ns_barrier")
    for c in range(4): tm = ld.issue(f"ds_read_b128 v[{MR+4*c}:{MR+4*c+3}], v{oSM} offset:{c*1024}")
    for c in range(4): ld.issue(f"ds_read_b64 v[{VMR+2*c}:{VMR+2*c+1}], v{oSV} offset:{4096+c*512}")
    xq = list(xs)
    for _ in range(13): A(xq.pop(0))
    ld.wait(tm)
    for c in range(4):
        A(mfd(SMM, MR + 4 * c, QR + 4 * c, SMM if c else None))
        A(vr[2 * c]); A(vr[2 * c + 1])
    for x in xq: A(x)
    A(f"{HAVEK}:")
    trace(A, 3, 250)
    vmR = Cnt(A, "vmcnt", 63); tokR = {}
    def zred():
        for sw in ("16", "32"):
            A(f"v_mov_b32 v{T1}, v{ZZ}\nv_permlane{sw}_swap_b32 v{ZZ}, v{T1}\nv_add_f32 v{ZZ}, v{ZZ}, v{T1}")
    def att2(red):
        FB, FBR = A.label("o_fb"), A.label("o_fbr")
        RL = list(r_loads(sR + 5)) if red else []
        def rl(n):
            while n and RL:
                x = RL.pop(0); emit_item(A, vmR, tokR, x); n -= not isinstance(x, str)
        A(f"v_mul_f32 v{SMM}, s{sC}, v{SMM}\nv_mul_f32 v{SMM+1}, s{sC}, v{SMM+1}")
        A(f"v_exp_f32 v{EX+8}, v{SMM}\nv_exp_f32 v{EX+9}, v{SMM+1}")
        A(f"v_max_f32 v{CK}, v{SX+7}, v{CK}\nv_max3_f32 v{CK}, v{SMM}, v{SMM+1}, v{CK}")
        A(f"v_add_f32 v{ZZ}, v{ZZ}, v{EX+8}\nv_add_f32 v{T1}, v{T1}, v{EX+9}\nv_add_f32 v{ZZ}, v{ZZ}, v{T1}")
        A(f"s_mov_b32 s{sTmp+2}, 0x21800000")
        zred()
        if red: probe_wait(A, FAIL, 3)
        rl(1)
        A(f"v_cmp_lt_f32 vcc, 0x42700000, v{CK}")
        A(f"v_cmp_gt_f32 s[{sTmp+4}:{sTmp+5}], s{sTmp+2}, v{ZZ}\nv_rcp_f32 v{ZZ}, v{ZZ}")
        rl(1)
        A(f"s_or_b64 vcc, vcc, s[{sTmp+4}:{sTmp+5}]\ns_cbranch_vccnz {FB}\n{FBR}:")
        rl(1)
        for i in range(0, 10, 2): A(f"v_pk_mul_f32 v[{EX+i}:{EX+i+1}], v[{EX+i}:{EX+i+1}], v[{ZZ-1}:{ZZ}] op_sel:[0,1] op_sel_hi:[1,1]")
        rl(1)
        pack(A, EX, PXR)
        A("s_waitcnt lgkmcnt(0)")
        sal = [f"s_add_u32 s{sTask}, s{sTask}, 1", f"s_xor_b32 s{sBox}, s{sBox}, {1 << 19}", f"s_bfe_u32 s{sTag}, s{sTask}, 0x10001",
               f"s_bfe_u32 s{sTmp}, s{sNxt}, {(1 << 16) | B_VALID}", f"s_and_b32 s{sPq}, s{sNxt}, 0xff", f"s_bfe_u32 s{sPk}, s{sNxt}, 0x80008", "s_nop 0", "s_nop 0"]
        for i in range(8):
            A(mfd(OA + 4 * i, VR + 4 * i, PXR, None))
            if red and i % 2: rl(1)
            if not red or i < 3: A(sal[i])
            if i == 0: A(f"v_cvt_pk_bf16_f32 v{PMR+1}, v{EX+8}, v{EX+9}\nv_cvt_pk_bf16_f32 v{PMR+2}, v{EX+8}, v{EX+9}")
        pk = L()
        for c in range(4):
            pack(pk, OA + 8 * c, OP + 4 * c)
            pk(f"ds_write_b128 v{oOW}, v[{OP+4*c}:{OP+4*c+3}] offset:{L_O+c*1024}")
        for i in range(8):
            A(f"v_mfma_f32_16x16x16_bf16 {v(OA+4*i,4)}, {v(VMR+2*(i//2),2)}, {v(PMR + (0 if i % 2 else 2),2)}, {v(OA+4*i,4)}")
            if red and i % 2: rl(1)
            elif i >= 4: A("s_nop 0")
            else: A("s_nop 1")
            if i >= 4: A(pk.pop(0)); A(pk.pop(0))
        for i, x in enumerate(pk):
            A(x)
            if i % 6 == 5: rl(1)
        trace(A, 4, 250)
        def fb():
            A(f"{FB}:")
            for sw in ("16", "32"):
                A(f"v_mov_b32 v{T1}, v{CK}\nv_permlane{sw}_swap_b32 v{CK}, v{T1}\nv_max_f32 v{CK}, v{CK}, v{T1}")
            for i in range(10): A(f"v_sub_f32 v{EX+i}, v{SX+i}, v{CK}")
            for i in range(10): A(f"v_exp_f32 v{EX+i}, v{EX+i}")
            A(f"v_add_f32 v{ZZ}, v{EX}, v{EX+1}")
            for i in range(2, 10): A(f"v_add_f32 v{ZZ}, v{ZZ}, v{EX+i}")
            zred()
            A(f"v_rcp_f32 v{ZZ}, v{ZZ}\ns_branch {FBR}")
        return fb, RL
    A(f"s_cmp_lg_u32 s{sPrev}, 0\ns_cbranch_scc1 {W1}")
    fb0, _ = att2(False)
    A(f"s_cmp_lt_u32 s{sW}, 2\ns_cbranch_scc1 {W0}")
    def stage_w(R, pre, endkey=False):
        ld = Cnt(A, "lgkmcnt", 15); vm = Cnt(A, "vmcnt", 63); toks = {}
        R = list(R)
        vm.q = list(vmR.q); vm.n = vmR.n; toks = dict(tokR)
        A("s_waitcnt lgkmcnt(0)\ns_barrier")
        ST_ = P.get("stamps", ())
        def stamp(n):
            if n in ST_: r = (8, 10, 12, 48, 98)[ST_.index(n)]; A(f"s_memtime s[{r}:{r+1}]")
        stamp(0)
        tok = {}
        def rd(i):
            tok[i] = ld.issue(f"ds_read_b128 v[{XO+(i%4)*4}:{XO+(i%4)*4+3}], v{oOR} offset:{L_O+(i//8)*8192+(i%8)*512}")
        for i in range(3): rd(i)
        while R and R[0] != "mark": emit_item(A, vm, toks, R.pop(0))
        R = R[1:]
        if pre:
            own = R = L()
            own.append(("at", P.get("dmaat", 4) - 3))
            own.append(("grp", ["s_waitcnt vmcnt(0)", f"v_cmp_eq_u32 vcc, 0, v{oFL}", f"s_cmp_eq_u64 vcc, 0", f"s_cselect_b32 s{sPre}, s{sTmp}, 0", f"s_cmp_eq_u32 s{sPre}, 1",
                                f"s_cselect_b32 s{sPq}, s{sPq}, 1024", f"s_cselect_b32 s{sTmp+8}, 0, 0x28000"]))
            dm = dma_items(sPq, sTmp + 8)
            kf = L(); kflag(kf, sNxt, "kf", oFK + 1, sTmp + 3)
            k1 = [i for i, x in enumerate(dm) if not isinstance(x, str)][P.get("kfat", 12)]
            own += dm[:k1] + kf + dm[k1:]
            k0 = [i for i, x in enumerate(own) if not isinstance(x, str) and x[0] == "vm"][0]
            own[k0:k0] = [f"s_min_u32 s{sTmp+2}, s{sS}, 67", f"s_lshl1_add_u32 s{sTmp+2}, s{sW}, s{sTmp+2}", f"s_lshl_b32 s{sTmp+2}, s{sTmp+2}, {KSH+5}",
                          f"s_add_u32 s{sTmp+2}, s{sTmp+2}, {F_XN + KST - 11*KSEG}", ("vm", f"buffer_load_dword v{oKP+1}, v{oL32}, {W}, s{sTmp+2} offen sc1", "keys")]
            own.append(("at", P.get("kmat", 50))); own.append(("wait", "kf"))
            own.append(("grp", [f"v_cmp_eq_u32 vcc, 0, v{oFK+1}", f"s_cmp_eq_u64 vcc, 0", f"s_cselect_b32 s{sPreK}, s{sTmp}, 0", f"s_and_b32 s{sPreK}, s{sPreK}, 1", f"s_cselect_b32 s{sPk}, s{sPk}, 1024"]))
            own += km_dma(sPk)
            own(f"v_cmp_eq_u32 vcc, 0, v{oKP+1}")
            for rot in (8, 4, 2, 1): own(f"v_max_u32_dpp v{oKP+1}, v{oKP+1}, v{oKP+1} row_ror:{rot} row_mask:0xf bank_mask:0xf\ns_nop 0")
            for sw in ("16", "32"): own(f"v_mov_b32 v{oKP}, v{oKP+1}\ns_nop 0\nv_permlane{sw}_swap_b32 v{oKP+1}, v{oKP}\nv_max_u32 v{oKP+1}, v{oKP+1}, v{oKP}")
            own.append(("grp", [f"s_cmp_eq_u64 vcc, 0", f"s_cselect_b32 s{sTmp+2}, 4, 0"]))
            own(f"s_lshl_b32 s{sTmp}, s{sPreK}, 1\ns_or_b32 s{sTmp}, s{sTmp}, s{sPre}\ns_or_b32 s{sTmp}, s{sTmp}, s{sTmp+2}\nv_mov_b32 v{oKP}, s{sTmp}")
            own.append(("ds", f"ds_write_b64 v{oVT}, v[{oKP}:{oKP+1}]"))
        def cost(x):
            if isinstance(x, str):
                if x.startswith("v_mfma"): return 2
                if x.startswith(("v_exp", "v_rcp", "v_sqrt", "v_permlane")): return 2
                return 1
            return {"vm": 3, "wait": 1, "ds": 2}.get(x[0]) or len(x[1])
        def drain(q, budget, n, vmmax):
            while q and budget > 0:
                x = q[0]
                k = None if isinstance(x, str) else x[0]
                if k == "at":
                    if n < x[1]: return budget
                    q.pop(0); continue
                if k == "vm":
                    if vmmax <= 0: return budget
                    vmmax -= 1
                q.pop(0)
                if k == "ds": ld.issue(x[1])
                else: emit_item(A, vm, toks, x)
                budget -= cost(x)
            return budget
        n = 0
        seq = [(i, T) for i in range(12) for T in range(4)] + [(i, T) for h in range(2) for i in range(12, 16) for T in (2*h, 2*h+1)]
        def cv(r, h): return [f"v_cvt_pk_bf16_f32 v{PKO+2*(r+q)+h}, v{ACC+32*h+r+q}, v{ACC+32*h+16+r+q}" for q in range(2)]
        def sw(r, h): return f"v_permlane16_swap_b32 v{PKO+2*r+h}, v{PKO+2*r+2+h}"
        t0 = cv(0, 0)
        for r in range(0, 16, 2):
            if r + 2 < 16: t0 += cv(r + 2, 0)
            t0.append(sw(r, 0))
            if r: t0.append(f"v_bfi_b32 v{PKO+2*r-4}, v{oTM+1}, s{sTag}, v{PKO+2*r-4}")
        t0.append(f"v_bfi_b32 v{PKO+28}, v{oTM+1}, s{sTag}, v{PKO+28}")
        R += [("at", 58)] + t0
        for i, T in seq:
            ld.wait(tok[i])
            a = ACC + T * 16
            A(mf32(a, XO + (i % 4) * 4, wo_op(i, T), a if i else None))
            n += 1
            stamp(n)
            b = P.get("bud", 6)
            if T == 1 and i + 3 < 16: rd(i + 3); b -= 1
            if T == 3: b -= 1
            drain(R, b, n, 0 if (pre and n < P.get("kmat", 50) and n % P.get("dmaskip", 2) == 0) else 1)
        drain(R, 999, 999, 999)
        stamp(70)
        for x in cv(0, 1): A(x)
        for r in range(0, 16, 2):
            if r + 2 < 16:
                for x in cv(r + 2, 1): A(x)
            x = p_store(r, STF); A(x[0])
            A(sw(r, 1))
            vm.issue(x[1])
        stamp(80)
        if pre: vm.wait(toks["dma"])
        if "last" in toks and endkey:
            vm.wait(toks["last"]); post_key(A)
        stamp(90)
    stage_w([], True)
    A(f"s_branch {WE}\n{W0}:")
    stage_w([], False)
    A(f"s_branch {WE}\n{W1}:")
    fb1, RL = att2(True)
    pkey = L(); post_key(pkey)
    A(f"s_and_b32 s{sTmp}, s{sPrev}, {3 << B_KIND}\ns_cbranch_scc1 {W2}")
    def rlist(first, chk):
        R = list(r_stream(first, chk)[0])
        k = [i for i, x in enumerate(R) if x == ("wait", "rb3")][0]
        return RL + ["mark"] + R[:k] + [("grp", pkey), ("at", P.get("rat", 4))] + R[k:]
    chk1, chk2 = r_check(A, FAIL, sR + 5), r_check(A, FAIL, sR + 5)
    stage_w(rlist(True, chk1), False, P.get('endkey', 1))
    A(f"s_branch {WE}")
    chk1[2](); chk2[2]()
    fb0(); fb1()
    A(f"{W2}:")
    stage_w(rlist(False, chk2), False)
    A(f"{WE}:")
    A(f"""
    v_and_b32 v{oFL}, -32, v{oVT}
    s_waitcnt lgkmcnt(0)
    s_barrier
    ds_read_b128 v[{SX}:{SX+3}], v{oFL} offset:16
    s_mov_b32 s{sPrev}, s{sCur}
    s_waitcnt lgkmcnt(0)
    v_and_b32 v{SX}, v{SX}, v{SX+2}
    v_max_u32 v{SX+1}, v{SX+1}, v{SX+3}
    v_readfirstlane_b32 s{sTmp}, v{SX}
    v_readfirstlane_b32 s{sNk}, v{SX+1}
    s_and_b32 s{sPre}, s{sTmp}, 1
    s_and_b32 s{sPreK}, s{sTmp}, 2
    s_bitcmp1_b32 s{sTmp}, 2
    s_cselect_b32 s{sNk}, s{sNk}, 0
    """)
    trace(A, 6, 250)
    for i, r in enumerate((10, 12)[:len(P.get("stamps", (0,))) - 1]):
        A(f"s_sub_u32 s{r}, s{r}, s8"); trace(A, 20 + i, 250, r)

def decide(A, FAIL):
    W = f"s[{sWS}:{sWS+3}]"
    L, GO = A.label("d_w"), A.label("d_g")
    A(f"s_max_u32 s{sRun}, s{sRun}, s{sNk}\ns_cmp_lg_u32 s{sNk}, 0\ns_mov_b32 s{sNk}, 0\ns_cbranch_scc1 {GO}\ns_mov_b32 s{sSpin}, 0\n{L}:")
    A(f"s_min_u32 s{sTmp}, s{sS}, 71\ns_lshl_b32 s{sTmp}, s{sTmp}, {KSH+5}\ns_add_u32 s{sTmp+1}, s{sTmp}, {F_XN + KST - 9*KSEG}\ns_add_u32 s{sTmp}, s{sTmp}, {F_XN + KST - 11*KSEG}")
    A(f"buffer_load_dword v{oKP}, v{oL32}, {W}, s{sTmp} offen sc1\nbuffer_load_dword v{oKP+1}, v{oL32}, {W}, s{sTmp+1} offen sc1")
    spin(A, FAIL)
    A("s_waitcnt vmcnt(0)")
    post_key(A)
    A(f"v_min_u32 v162, v{oKP}, v{oKP+1}\nv_max_u32 v163, v{oKP}, v{oKP+1}\nv_cmp_eq_u32 vcc, 0, v162\ns_cbranch_vccnz {L}")
    for rot in (8, 4, 2, 1): A(f"v_max_u32_dpp v163, v163, v163 row_ror:{rot} row_mask:0xf bank_mask:0xf")
    for g in range(4): A(f"v_readlane_b32 s{sTmp+2+g}, v163, {16*g}")
    A(f"s_max_u32 s{sTmp+2}, s{sTmp+2}, s{sTmp+3}\ns_max_u32 s{sTmp+4}, s{sTmp+4}, s{sTmp+5}\ns_max_u32 s{sRun}, s{sRun}, s{sTmp+2}\ns_max_u32 s{sRun}, s{sRun}, s{sTmp+4}\n{GO}:")
```

```python
from asmlib import *
from layout import *
from common import *
from chain import Cnt, sWS, sT, sJ, sW, sC, sTmp, sLo, sHi

qL16, qL4, qT0, qT1, qFV, qT2 = range(6)
qST, qLK = 8, 9
qKA = 7
qRD = 120
qSRC = 12
ACC = 20
XB = 68
PK = 100
KEY = 116
qVT = 118
WB = dict(k=128, v=256, q=384)
def wop(m, k): return WB[m] + k * 4
def mf32(d, a, b, c): return f"v_mfma_f32_32x32x16_bf16 {v(d,16)}, {reg(a,4)}, {reg(b,4)}, {v(c,16) if c is not None else '0'}"
sLead, sI2, _, sQB, sB, sGo = range(40, 46)
sCur, sNxt, sPre, sPend, sPar, sKF, sOut, sSpin, sDm, sFk, sRun, sHW, sKey, sRow = range(46, 60)
sRep, sKind, sMode, sSrc = 60, 61, 62, 63
sG, sUp, sO = 64, 68, 72
sN2 = 76
NPL = 23
L_ML, L_PS, L_H, L_VT = 65536, 159744, 161792, 162816

def qkv_load_weights(A, n, g, first, orders, depth):
    NS = 5
    SRC, RD = 20, 22
    w_src_regs(A, qL16, SRC, 25)
    A(f"""
    s_load_dwordx2 s[{sG}:{sG+1}], s[0:1], {KA['wk']}
    s_load_dwordx2 s[{sUp}:{sUp+1}], s[0:1], {KA['wv']}
    s_load_dwordx2 s[{sT}:{sT+1}], s[0:1], {KA['wq']}
    s_mov_b32 s{sT+2}, {4*MB}
    s_mov_b32 s{sT+3}, 0x20000
    s_mov_b32 s{sG+2}, {4*MB}
    s_mov_b32 s{sG+3}, 0x20000
    s_mov_b32 s{sUp+2}, {4*MB}
    s_mov_b32 s{sUp+3}, 0x20000
    v_lshrrev_b32 v25, 2, v{n}
    v_lshrrev_b32 v26, 1, v{g}
    v_lshl_add_u32 v27, v26, 3, v25
    v_lshlrev_b32 v27, 8, v27
    v_lshl_add_u32 v26, v25, 1, v26
    v_and_b32 v25, 1, v{g}
    v_xor_b32 v26, v26, v25
    s_lshl_b32 s{sTmp}, s{sW}, 1
    v_xor_b32 v26, s{sTmp}, v26
    v_lshl_add_u32 v27, v26, 5, v27
    v_and_b32 v25, 3, v{n}
    v_lshl_add_u32 v{RD}, v25, 3, v27
    v_add_u32 v{RD+1}, 65536, v{RD}
    v_add_u32 v{RD+2}, 131072, v{RD}
    s_lshl_b32 s{sTmp+2}, s{sW}, 13
    s_lshl_b32 s{sTmp}, s{sW}, 18
    s_lshl_b32 s{sTmp+1}, s{sJ}, 8
    s_add_u32 s{sTmp}, s{sTmp}, s{sTmp+1}
    s_waitcnt lgkmcnt(0)
    """)
    srd = dict(k=sG, v=sUp, q=sT)
    LB = [A.label("q_ld") for _ in range(4)]
    if len(orders) > 1: A(f"s_cmp_eq_u32 s{sRep}, 1\ns_cbranch_scc1 {LB[1]}\ns_cmp_eq_u32 s{sRep}, 2\ns_cbranch_scc1 {LB[2]}")
    for c, order in enumerate(orders):
        A(f"{LB[c]}:")
        vm = Cnt(A, "vmcnt", 63)
        jobs = [(m, b) for m in order for b in range(4)]
        tk = {}
        def issue(i):
            m, b = jobs[i]
            A(f"s_add_u32 s{sTmp+1}, s{sTmp}, {b * 128 * 8192}")
            tk[i] = w_stage_dma(A, vm, srd[m], SRC, sTmp + 1, sTmp + 2, (i % NS) * 32768, 8)
        for i in range(depth): issue(i)
        if -1 in first: first[-1]()
        for i, (m, b) in enumerate(jobs):
            vm.wait(tk[i])
            A("s_barrier")
            if depth < NS and i + depth < len(jobs): issue(i + depth)
            base = (i % NS) * 32768
            for kl in range(8):
                for hq in range(2):
                    off = base + kl * 4096 + hq * 1024
                    A(f"ds_read_b64_tr_b16 {reg(wop(m, b*8+kl) + 2*hq, 2)}, v{RD + off // 65536} offset:{off % 65536}")
            if depth < NS: A("s_waitcnt lgkmcnt(0)")
            elif i + NS < len(jobs):
                A("s_waitcnt lgkmcnt(0)\ns_barrier")
                issue(i + NS)
        if c + 1 < len(orders): A(f"s_branch {LB[3]}")
    A(f"{LB[3]}:\ns_waitcnt lgkmcnt(0)\ns_barrier")

def spin(A, fail):
    A(f"s_add_u32 s{sSpin}, s{sSpin}, 1\ns_cmp_gt_u32 s{sSpin}, {SPIN_MAX}\ns_cbranch_scc1 {fail}")

VG, VD = 6, 7
def mlp_setup(A):
    A(f"""
    s_load_dwordx2 s[{sG}:{sG+1}], s[0:1], {KA['wg']}
    s_load_dwordx2 s[{sUp}:{sUp+1}], s[0:1], {KA['wu']}
    s_load_dwordx2 s[{sT}:{sT+1}], s[0:1], {KA['wd']}
    s_mov_b32 s{sG+2}, {512*1792*2}
    s_mov_b32 s{sUp+2}, {512*1792*2}
    s_mov_b32 s{sT+2}, {512*1792*2}
    v_lshrrev_b32 v{qT0}, 7, v{qL16}
    v_and_b32 v{qT1}, 0x70, v{qL16}
    v_mul_u32_u24 v{VG}, {16*3584}, v{qT0}
    v_add_u32 v{VG}, v{VG}, v{qT1}
    v_cmp_eq_u32 vcc, 0x70, v{qT1}
    v_mov_b32 v{qT1}, 0x7ff00000
    v_cndmask_b32 v{VG}, v{VG}, v{qT1}, vcc
    v_lshrrev_b32 v{qT0}, 8, v{qL16}
    v_mul_u32_u24 v{VD}, {14*1024}, v{qT0}
    v_and_b32 v{qT1}, 0xf0, v{qL16}
    v_add_u32 v{VD}, v{VD}, v{qT1}
    s_mul_i32 s{sTmp+8}, s{sW}, {128*3584}
    s_mul_i32 s{sTmp+1}, s{sJ}, 112
    s_add_u32 s{sTmp+8}, s{sTmp+8}, s{sTmp+1}
    s_mul_i32 s{sTmp+9}, s{sJ}, {56*1024}
    s_lshl_b32 s{sTmp+1}, s{sW}, 8
    s_add_u32 s{sTmp+9}, s{sTmp+9}, s{sTmp+1}
    s_waitcnt lgkmcnt(0)
    """)

def gu_load(A, vm, i, dst):
    srd = sUp if i % 2 else sG
    A(f"s_add_u32 s{sTmp+10}, s{sTmp+8}, {(i // 2) * 3584}")
    if dst is not None: return vm.issue(f"buffer_load_dwordx4 {v(dst, 4)}, v{VG}, s[{srd}:{srd+3}], s{sTmp+10} offen")
    t = vm.issue(f"buffer_load_dwordx4 v{VG}, s[{srd}:{srd+3}], s{sTmp+10} offen lds")
    A("s_add_u32 m0, m0, 1024")
    return t

def mlp_preload(A):
    mlp_setup(A)
    A(f"s_mul_i32 s{sTmp}, s{sW}, {NPL*1024}\ns_add_u32 m0, s{sTmp}, {L_ML}")
    vm = Cnt(A, "vmcnt", 63)
    for i in range(NPL): gu_load(A, vm, i, None)

def mlp(A, FAIL, getkey, inst, bx=32768):
    W = f"s[{sWS}:{sWS+3}]"
    AOP, MSK, DG, XP, RING = 20, 24, 28, 36, 56
    LB = [44, 48, 52, qSRC, qSRC + 4, qRD, qRD + 4]
    vm = Cnt(A, "vmcnt", 63)
    tok = {}
    def xload():
        A(f"""
        s_andn2_b32 s{sRow}, 0xfff, s{sKey}
        s_lshl_b32 s{sTmp}, s{sKind}, 21
        s_lshl_b32 s{sTmp+1}, s{sRow}, 10
        s_add_u32 s{sTmp}, s{sTmp}, s{sTmp+1}
        s_lshl_b32 s{sTmp+1}, s{sW}, 8
        s_add_u32 s{sTmp}, s{sTmp}, s{sTmp+1}
        s_add_u32 s{sTmp}, s{sTmp}, {XB_}
        v_lshrrev_b32 v{qT2}, 7, v{qL16}
        v_lshlrev_b32 v{qT2}, 5, v{qT2}
        """)
        for i in range(2): t = vm.issue(f"buffer_load_dwordx4 v[{XP+4*i}:{XP+4*i+3}], v{qT2}, {W}, s{sTmp} offen offset:{16*i} sc1")
        return t
    if getkey is None: tx = xload()
    mlp_setup(A)
    A(f"s_xor_b32 s{sTmp+11}, s{sPar}, {bx}\ns_add_u32 s{sTmp+11}, s{sTmp+11}, s{sDm}\ns_mov_b32 m0, s{sTmp+11}")
    for i in range(NPL, 31): tok[i] = gu_load(A, vm, i, None)
    tok[31] = gu_load(A, vm, 31, RING)
    for j in range(14):
        tok[32 + j] = vm.issue(f"buffer_load_dwordx4 {v(RING+4+4*j, 4)}, v{VD}, s[{sT}:{sT+3}], s{sTmp+9} offen offset:{(j%4)*1024}")
        if j % 4 == 3: A(f"s_add_u32 s{sTmp+9}, s{sTmp+9}, 4096")
    if getkey is not None:
        getkey(); vm.reset()
        tx = xload()
    A(f"s_mov_b32 vcc_lo, 0xaaaaaaaa\ns_mov_b32 vcc_hi, 0xaaaaaaaa\nv_mov_b32 v{qT1}, 0xffff\nv_mov_b32 v{MSK}, 0xffff0000\nv_cndmask_b32 v{qT1}, v{qT1}, v{MSK}, vcc")
    for r in range(4):
        A(f"s_mov_b32 vcc_lo, {hex(0x03030303 << (2*r))}\ns_mov_b32 vcc_hi, {hex(0x03030303 << (2*r))}\nv_cndmask_b32 v{MSK+r}, 0, v{qT1}, vcc")
    A(f"s_mov_b32 s{sTmp+4}, 0x01000100\ns_mov_b32 s{sTmp+5}, 0x03020302")
    A(f"s_mul_i32 s{sTmp}, s{sW}, {NPL*1024}\ns_add_u32 s{sTmp}, s{sTmp}, {L_ML}\nv_add_u32 v{qT2}, s{sTmp}, v{qL16}\nv_add_u32 v{qT0}, s{sTmp+11}, v{qL16}")
    ld = Cnt(A, "lgkmcnt", 15); lt = {}
    def lrd(i):
        if i >= 31: return
        if i >= NPL: vm.wait(tok[i])
        lt[i] = ld.issue(f"ds_read_b128 {v(LB[i % 7], 4)}, v{qT2 if i < NPL else qT0} offset:{(i % NPL)*1024}")
    for i in range(7): lrd(i)
    vm.wait(tx)
    for j in range(16):
        A(f"v_perm_b32 v{qT1}, v{XP+j//2}, v{XP+j//2}, s{sTmp+4+j%2}")
        for r in range(4): A(f"v_and_b32 v{AOP+r}, v{MSK+r}, v{qT1}")
        if j < 15: ld.wait(lt[2 * j + 1])
        else: ld.wait(lt[30]); vm.wait(tok[31])
        for m in range(2):
            i = 2 * j + m
            A(mfd(DG + 4 * m, AOP, LB[i % 7] if i < 31 else RING, DG + 4 * m if j else None))
            lrd(i + 7)
    A(f"""
    v_lshrrev_b32 v{qT0}, 8, v{qL16}
    v_and_b32 v{qT1}, 0xf0, v{qL16}
    v_lshlrev_b32 v{qT1}, 1, v{qT1}
    v_and_b32 v{qT2}, 1, v{qT0}
    v_lshl_add_u32 v{qT2}, v{qT2}, 4, v{qT1}
    v_add_u32 v{qT2}, s{sTmp+11}, v{qT2}
    s_mov_b32 exec_lo, 0x00ff00ff
    s_mov_b32 exec_hi, 0xff00ff00
    ds_write_b128 v{qT2}, v[{DG}:{DG+3}]
    ds_write_b128 v{qT2}, v[{DG+4}:{DG+7}] offset:512
    s_mov_b64 exec, -1
    s_xor_b32 s{sTmp}, s{sPar}, {bx}
    v_add_u32 v{qT2}, s{sTmp}, v{qL4}
    v_lshl_add_u32 v{qT1}, v{qT0}, 4, v{qT1}
    s_waitcnt lgkmcnt(0)
    s_barrier
    """)
    for w in range(4):
        for m in range(2): A(f"ds_read2st64_b32 v[{XP+8*m+2*w}:{XP+8*m+2*w+1}], v{qT2} offset0:{w*32+m*2} offset1:{w*32+m*2+1}")
    A("s_waitcnt lgkmcnt(0)")
    for k in (4, 2, 1):
        for q in range(2):
            for i in range(k): A(f"v_add_f32 v{XP+8*q+i}, v{XP+8*q+i}, v{XP+8*q+k+i}")
    rnd(A, XP); rnd(A, XP + 8)
    A(f"v_mul_f32 v{XP+4}, {hex(f32bits(-math.log2(math.e)))}, v{XP}\nv_exp_f32 v{XP+4}, v{XP+4}\nv_add_f32 v{XP+4}, 1.0, v{XP+4}\nv_rcp_f32 v{XP+4}, v{XP+4}")
    A(f"v_mul_f32 v{XP}, v{XP}, v{XP+4}")
    rnd(A, XP)
    A(f"v_mul_f32 v{XP}, v{XP}, v{XP+8}\nv_cvt_pk_bf16_f32 v{XP}, v{XP}, v{XP}")
    A(f"s_lshl_b32 s{sTmp}, s{sW}, 8\ns_add_u32 s{sTmp}, s{sTmp}, {L_H}\nv_add_u32 v{qT2}, s{sTmp}, v{qL4}\nds_write_b32 v{qT2}, v{XP}")
    A(f"v_mul_u32_u24 v{qT2}, 56, v{qT0}\nv_add_u32 v{qT2}, s{sTmp}, v{qT2}")
    for q in range(7): A(f"ds_read_b64 v[{XP+2*q}:{XP+2*q+1}], v{qT2} offset:{8*q}")
    A("s_waitcnt lgkmcnt(0)")
    for j in range(14):
        a = (AOP, DG + 4)[j % 2]
        for r in range(4): A(f"v_and_b32 v{a+r}, v{MSK+r}, v{XP+j}")
        vm.wait(tok[32 + j])
        A(mfd(DG, a, RING + 4 + 4 * j, DG if j else None))
    A(f"""
    v_lshrrev_b32 v{qT1}, 1, v{qT1}
    s_lshl_b32 s{sTmp}, s{inst}, 7
    s_add_u32 s{sTmp}, s{sTmp}, s{sHW}
    s_lshl_b32 s{sTmp}, s{sTmp}, 8
    s_add_u32 s{sTmp}, s{sTmp}, {MLPY - 64*32768}
    v_cvt_pk_bf16_f32 v{DG}, v{DG}, v{DG+1}
    v_cvt_pk_bf16_f32 v{DG+1}, v{DG+2}, v{DG+3}
    v_min_u32 v{DG}, -2, v{DG}
    v_min_u32 v{DG+1}, -2, v{DG+1}
    s_mov_b32 exec_hi, 0
    buffer_store_dwordx2 v[{DG}:{DG+1}], v{qT1}, {W}, s{sTmp} offen sc1
    s_mov_b32 exec_hi, -1
    """)

def gather(A, FAIL, inst, finish, keep=False):
    W = f"s[{sWS}:{sWS+3}]"
    DONE, L1 = A.label("m_done"), A.label("m_w")
    SEL, S0, XR, YR, XF, YF, RB = 20, 28, 36, 40, 44, 52, 60
    A(f"""
    s_lshl_b32 s{sTmp}, s{sKind}, 21
    s_lshl_b32 s{sTmp+1}, s{sRow}, 10
    s_add_u32 s{sTmp}, s{sTmp}, s{sTmp+1}
    s_add_u32 s{sTmp+1}, s{sTmp}, {XA}
    s_add_u32 s{sTmp+2}, s{sTmp}, {XB_}
    s_lshl_b32 s{sTmp}, s{inst}, 7
    s_add_u32 s{sTmp}, s{sTmp}, s{sW}
    s_lshl_b32 s{sTmp}, s{sTmp}, 8
    s_add_u32 s{sTmp}, s{sTmp}, {MLPY - 64*32768}
    v_lshrrev_b32 v{qT0}, 8, v{qL16}
    v_and_b32 v{qT1}, 0xf0, v{qL16}
    v_lshl_add_u32 v{qT2}, v{qT0}, 10, v{qT1}
    buffer_load_dwordx4 v[{XR}:{XR+3}], v{qL16}, {W}, s{sTmp+1} offen sc1
    buffer_load_dwordx4 v[{YR}:{YR+3}], v{qL16}, {W}, s{sTmp+2} offen sc1
    s_mov_b32 s{sSpin}, 0
    {L1}:
    """)
    for p in range(8):
        A(f"s_add_u32 s{sTmp+1}, s{sTmp}, {p*4096}\nbuffer_load_dwordx4 v[{RB+4*p}:{RB+4*p+3}], v{qT2}, {W}, s{sTmp+1} offen sc1")
    spin(A, FAIL)
    selmats(A, SEL, 4, S0)
    for p in range(8):
        r = RB + 4 * p
        A(f"s_waitcnt vmcnt({7-p})")
        A(mfd(S0, SEL, r, S0 if p else None))
        A(f"v_max3_u32 v{XF}, v{r}, v{r+1}, " + (f"v{XF}" if p else "0"))
        A(f"v_max3_u32 v{XF}, v{r+2}, v{r+3}, v{XF}")
    A(f"v_cmp_eq_u32 vcc, -1, v{XF}\ns_cbranch_vccnz {L1}")
    A(f"""
    v_lshlrev_b32 v{qT1}, 1, v{qT1}
    v_lshl_add_u32 v{qT1}, v{qT0}, 4, v{qT1}
    s_lshl_b32 s{sTmp}, s{sW}, 9
    s_add_u32 s{sTmp}, s{sTmp}, {L_PS}
    v_add_u32 v{qT1}, s{sTmp}, v{qT1}
    s_mov_b32 exec_hi, 0
    ds_write_b128 v{qT1}, v[{S0}:{S0+3}]
    s_mov_b32 exec_hi, -1
    v_lshlrev_b32 v{qT1}, 1, v{qL16}
    v_add_u32 v{qT1}, {L_PS}, v{qT1}
    """)
    unpack(A, XR, XF); unpack(A, YR, YF)
    TM = XR
    A(f"""
    s_waitcnt lgkmcnt(0)
    s_barrier
    s_cmp_lg_u32 s{sW}, 0
    s_cbranch_scc1 {DONE}
    ds_read_b128 v[{S0}:{S0+3}], v{qT1}
    ds_read_b128 v[{S0+4}:{S0+7}], v{qT1} offset:16
    s_and_b32 s{sTmp+3}, s{sKey}, 0xffff0000
    s_xor_b32 s{sTmp+1}, s{sTmp+3}, 0x80000000
    s_xor_b32 s{sTmp+2}, s{sTmp+3}, 0xffff0000
    s_bitcmp1_b32 s{sTmp+3}, 31
    s_cselect_b32 s{sTmp+3}, s{sTmp+1}, s{sTmp+2}
    v_mov_b32 v{TM}, s{sTmp+3}
    v_mul_f32 v{TM}, {hex(f32bits(-math.log2(math.e)))}, v{TM}
    v_exp_f32 v{TM}, v{TM}
    v_add_f32 v{TM}, 1.0, v{TM}
    v_rcp_f32 v{TM}, v{TM}
    """)
    rnd(A, TM)
    if keep:
        for i in range(8): A(f"v_add_f32 v{RB+i}, v{XF+i}, v{YF+i}")
        pack(A, RB, RB + 8)
        for i in range(4): A(f"v_accvgpr_write_b32 a{i}, v{RB+8+i}")
    A("s_waitcnt lgkmcnt(0)")
    for i in range(8): rnd(A, S0 + i)
    for i in range(8): A(f"v_mul_f32 v{S0+i}, v{S0+i}, v{TM}")
    for i in range(8): rnd(A, S0 + i)
    for i in range(8): A(f"v_add_f32 v{S0+i}, v{S0+i}, v{YF+i}")
    for i in range(8): rnd(A, S0 + i)
    for i in range(8): A(f"v_add_f32 v{XF+i}, v{XF+i}, v{S0+i}")
    pack(A, XF, YR); unpack(A, YR, XF)
    finish(XF, YR, RB)
    A(f"{DONE}:")

def qkv_role(A, P, first={}, after_weights=None, before_mlp=None, hold=None):
    W = f"s[{sWS}:{sWS+3}]"
    n, g = 6, 7
    A(f"""
    v_and_b32 v19, 63, v0
    v_and_b32 v{n}, 15, v19
    v_lshrrev_b32 v{g}, 4, v19
    v_lshlrev_b32 v{qL4}, 2, v19
    v_lshlrev_b32 v{qL16}, 4, v19
    v_lshlrev_b32 v{qLK}, {KSH}, v19
    s_mov_b32 s{sC}, {hex(f32bits(128 ** -0.5 * math.log2(math.e)))}
    s_lshl_b32 s{sHW}, s{sJ}, 2
    s_add_u32 s{sHW}, s{sHW}, s{sW}
    """)
    def tile_addr():
        A(f"v_lshrrev_b32 v24, 9, v{qL16}\nv_lshlrev_b32 v24, 4, v24\nv_and_b32 v25, 0xf0, v{qL16}\nv_xor_b32 v24, v24, v25\nv_and_b32 v25, 0x1f0, v{qL16}\nv_lshl_add_u32 v24, v25, 6, v24")
        for cl in range(8): A(f"v_xor_b32 v{qRD+cl}, {cl*32}, v24")
        A(f"s_and_b32 s{sTmp}, s{sW}, 1\ns_lshl_b32 s{sTmp}, s{sTmp}, 7\nv_xor_b32 v24, s{sTmp}, v{qL16}")
        for i in range(8): A(f"v_xor_b32 v{qSRC+i}, {i*16}, v24")
    A(f"v_and_b32 v24, 1, v{g}\nv_lshlrev_b32 v24, 10, v24\nv_lshl_add_u32 v24, v{n}, 4, v24\nv_lshrrev_b32 v25, 1, v{g}\nv_lshl_add_u32 v{qST}, v25, 8, v24")
    tile_addr()
    A(f"s_lshl_b32 s{sTmp}, s{sW}, 2\ns_add_u32 s{sTmp}, s{sTmp}, {L_VT}\nv_lshrrev_b32 v24, 7, v{qL16}\nv_lshl_add_u32 v{qVT}, v24, 4, s{sTmp}")
    A(f"v_and_b32 v24, 48, v{qL16}\nv_add_u32 v{qVT+1}, {L_VT}, v24")
    qkv_load_weights(A, n, g, first, P.get('orders', ('kvq', 'vqk', 'qkv')), P.get('dep', 5))
    if after_weights: after_weights()
    def key_addr():
        A(f"v_lshrrev_b32 v{qKA}, 7, v{qL16}\nv_lshlrev_b32 v{qKA}, {KSH+5}, v{qKA}\nv_and_b32 v{qT0}, {(8 << KSH) - 1}, v{qLK}\ns_lshl_b32 s{sTmp}, s{sW}, {KSH+3}")
        A(f"v_add3_u32 v{qKA}, v{qKA}, v{qT0}, s{sTmp}\nv_mov_b32 v{KEY}, 0")
    key_addr()
    N0, NPRE = P.get("n0", 6), P.get("npre", 3)
    A(f"""
    s_mov_b32 s{sNxt}, s{sRep}
    s_add_u32 s{sN2}, s{sRep}, 3
    s_add_u32 s{sI2}, s{sRep}, 64
    s_mov_b32 s{sLead}, {3 * N0}
    s_mov_b32 s{sPre}, 0
    s_mov_b32 s{sPend}, {WS_BYTES}
    s_mov_b32 s{sQB}, {WS_BYTES}
    s_mov_b32 s{sPar}, 32768
    s_mov_b32 s{sRun}, 1
    s_mov_b32 s{sKind}, 0
    s_mov_b32 s{sMode}, 0
    s_lshl_b32 s{sDm}, s{sW}, 13
    """)
    SLOW, END, HAVE, POLL, FAIL, PATCH, NOPRE, FORK, COLD = [A.label("q_" + x) for x in
        ("slow", "end", "have", "poll", "fail", "patch", "nopre", "fork", "cold")]
    FORKW, NXT = A.label("q_forkw"), A.label("q_nxt")
    MF = P.get("mfirst", 1)
    CE = [A.label("q_c0"), A.label("q_c1")]; WE = [A.label("q_w0"), A.label("q_w1")]
    def post(A, off, val):
        A(f"s_mov_b64 exec, 1\nbuffer_store_dword v{val}, off, {W}, s{off} sc1\ns_mov_b64 exec, -1")
    def key_loads(A):
        A.append(("grp", [f"s_cmp_lt_u32 s{sNxt}, 64", f"s_cselect_b32 s{sTmp}, 2, 0"]))
        A(f"s_add_u32 s{sTmp}, s{sTmp}, s{sNxt}\ns_lshl_b32 s{sTmp}, s{sTmp}, {KSH+5}\ns_add_u32 s{sTmp}, s{sTmp}, {F_XN - 2*KSEG}")
        A.append(("grp", ["s_mov_b64 exec, 0xffffff", f"buffer_load_dword v{KEY}, v{qKA}, {W}, s{sTmp} offen sc1", "s_mov_b64 exec, -1"]))
    def key_eval(A):
        A(f"v_cmp_eq_u32 vcc, 0, v{KEY}\nv_max_u32_dpp v{KEY+1}, v{KEY}, v{KEY} quad_perm:[1,0,3,2] row_mask:0xf bank_mask:0xf")
        A.append(("grp", [f"s_and_b32 s{sPre}, vcc_lo, 0xffffff", f"s_cselect_b32 s{sPre}, 0, -1"]))
        A(f"v_max_u32_dpp v{KEY+1}, v{KEY+1}, v{KEY+1} quad_perm:[2,3,0,1] row_mask:0xf bank_mask:0xf\ns_nop 1")
        A(f"v_max_u32_dpp v{KEY+1}, v{KEY+1}, v{KEY+1} row_half_mirror row_mask:0xf bank_mask:0xf\nv_and_b32 v{KEY+1}, s{sPre}, v{KEY+1}")
    def vote_eval(A, V):
        A(f"v_min3_u32 v{V+4}, v{V}, v{V+1}, v{V+2}\nv_max3_u32 v{V}, v{V}, v{V+1}, v{V+2}\nv_min_u32 v{V+4}, v{V+4}, v{V+3}\nv_max_u32 v{V}, v{V}, v{V+3}")
        A(f"v_readfirstlane_b32 s{sGo}, v{V+4}")
        for i in range(3): A(f"v_readlane_b32 s{sTmp+2+i}, v{V}, {i}")
    def fold(A):
        for i in range(3):
            A(f"s_cmp_gt_u32 s{sTmp+2+i}, s{sRun}\ns_cselect_b32 s{sTmp}, s{sLead}, 0\ns_max_u32 s{sRun}, s{sRun}, s{sTmp+2+i}")
            if i == 2: A(f"s_add_u32 s{sN2}, s{sNxt}, s{sLead}\ns_add_u32 s{sI2}, s{sNxt}, 3\ns_sub_u32 s{sN2}, s{sN2}, 64")
            A(f"s_cmp_gt_u32 s{sTmp}, {P.get('lmin', 12)}")
            if i == 2: A(f"s_cselect_b32 s{sN2}, 64, s{sN2}")
            A(f"s_subb_u32 s{sLead}, s{sLead}, 0")
        A(f"s_cmp_lt_u32 s{sN2}, 64\ns_cselect_b32 s{sN2}, s{sN2}, s{sI2}\ns_cmp_lg_u32 s{sTmp}, 0")
    def dma(A, sid):
        A(f"s_and_b32 s{sSrc}, s{sid}, 127\ns_lshl_b32 s{sSrc}, s{sSrc}, 15\ns_xor_b32 s{sTmp+1}, s{sPar}, 32768")
        A(f"s_add_u32 m0, s{sTmp+1}, s{sDm}\ns_add_u32 s{sSrc}, s{sSrc}, s{sDm}\ns_add_u32 s{sSrc}, s{sSrc}, {XN}")
        for i in range(8):
            if i == 4: A(f"s_add_u32 m0, m0, 4096\ns_add_u32 s{sSrc}, s{sSrc}, 4096")
            A(f"buffer_load_dwordx4 v{qSRC+i}, {W}, s{sSrc} offen offset:{(i%4)*1024} sc1 lds")
    def advance(A):
        A.append(("grp", [f"s_add_u32 s{sN2}, s{sNxt}, 3", f"s_cmp_lt_u32 s{sN2}, {3 * N0}", f"s_cselect_b32 s{sN2}, s{sN2}, s{sI2}"]))
    def epi(a0, pk, base, off, scale):
        f = L()
        if scale:
            for r in range(16): f(f"v_mul_f32 v{a0+r}, s{sC}, v{a0+r}")
        for p in range(2):
            for d, r in enumerate((4*p, 4*p+2, 4*p+8, 4*p+10)): f(f"v_cvt_pk_bf16_f32 v{pk+4*p+d}, v{a0+r}, v{a0+r+1}")
            f(f"buffer_store_dwordx4 v[{pk+4*p}:{pk+4*p+3}], v{qST}, {W}, s{base} offen offset:{off+p*512} sc1")
        return f
    def emit(items):
        for x in items:
            if isinstance(x, str): A(x)
            else:
                for y in x[1]: A(y)
    NW_ = 3
    def rdtxt(i, par):
        k = i % 32
        r = XB + (i % 8) * 4
        return f"ds_read_b128 v[{r}:{r+3}], v{qRD+k%8} offset:{par*32768+(k//8)*256}"
    steps = [(m, k, k) for k in range(32) for m in "kv"] + [("q", k, 32 + k) for k in range(32)]
    last_use = {f: i for i, (_, _, f) in enumerate(steps)}
    def block(par):
        ld = Cnt(A, "lgkmcnt", 15)
        A(f"{CE[par]}:")
        tok = {}
        for i in range(NW_): tok[i] = ld.issue(rdtxt(i, par))
        A(f"{WE[par]}:")
        trace(A, 2, 10, sNxt)
        trace_clk(A, 10)
        f0 = L(); f0(f"s_mov_b32 s{sCur}, s{sNxt}\ns_mov_b32 s{sNxt}, s{sN2}")
        f0(f"s_lshl_b32 s{sOut}, s{sCur}, 7\ns_add_u32 s{sOut}, s{sOut}, s{sHW}\ns_lshl_b32 s{sB}, s{sOut}, 12\ns_add_u32 s{sB}, s{sB}, {KV}")
        f0 += epi(ACC + 32, PK, sQB, 0, False)
        f0(f"s_lshl_b32 s{sQB}, s{sOut}, 11\ns_add_u32 s{sQB}, s{sQB}, {QX}\ns_lshl_b32 s{sKF}, s{sOut}, 5\ns_add_u32 s{sKF}, s{sKF}, {F_KV}")
        f0(f"s_lshr_b32 s{sFk}, s{sNxt}, 7\ns_or_b32 s{sFk}, s{sFk}, s{sMode}\ns_sub_u32 s{sTmp+1}, s{sNxt}, s{sRep}")
        f0.append(("grp", [f"s_cmp_eq_u32 s{sTmp+1}, {3*NPRE}", f"s_cselect_b32 s{sFk}, 1, s{sFk}"]))
        if hold: f0.append(("grp", [f"s_cmp_eq_u32 s{sTmp+1}, {3*P.get('hat', 1)}", f"s_cselect_b32 s{sFk}, 1, s{sFk}"]))
        advance(f0)
        fk = L(); key_loads(fk)
        f1 = L(); f1("s_waitcnt vmcnt(0)"); post(f1, sPend, qFV); key_eval(f1)
        f1.append(("grp", [f"s_cmp_lg_u32 s{sPre}, 0", f"s_cselect_b32 s{sTmp+2}, s{sNxt}, s{sCur}"]))
        dma(f1, sTmp + 2)
        f1(f"s_add_u32 s{sPend}, s{sKF}, 16\ns_add_u32 s{sTmp}, s{sMode}, 1\nv_mov_b32 v{qFV}, s{sTmp}")
        f1.append(("ds", f"ds_write_b32 v{qVT}, v{KEY+1} offset:{par*128}"))
        ek = epi(ACC, PK + 8, sB, 0, True)
        fills = {0: f0, P.get("p0", 12): fk, P.get("p1", 38): f1, 65: ek[:6] + epi(ACC + 16, PK, sB, 2048, False) + ek[6:]}
        q = []
        def fill(budget, vmok):
            while q and budget > 0:
                x = q[0]
                if not isinstance(x, str):
                    q.pop(0)
                    if x[0] == "ds": ld.issue(x[1]); budget -= 1
                    else:
                        for y in x[1]: A(y)
                        budget -= len(x[1])
                    continue
                if x.startswith("buffer_"):
                    if not vmok: break
                    vmok = False; budget -= 2
                budget -= 1
                A(q.pop(0))
                if x.startswith("s_mov_b64 exec, 1"):
                    A(q.pop(0)); A(q.pop(0)); budget -= 3
        nrd = NW_
        BAR = 90
        ve = L(); vote_eval(ve, PK)
        for i, (m, k, f) in enumerate(steps):
            a0 = ACC + 16 * "kvq".index(m)
            q += fills.get(i, [])
            if i == BAR:
                assert not q and nrd == 64
                A("s_waitcnt vmcnt(4) lgkmcnt(0)\ns_barrier"); ld.reset()
                tv = ld.issue(f"ds_read_b128 v[{PK}:{PK+3}], v{qVT+1} offset:{par*128}")
            elif i % 2 == 0 and i < BAR: ld.wait(tok[steps[i + 1][2]])
            x = XB + (f % 8) * 4
            cc = a0 if k else None
            A(mf32(a0, x, wop(m, k), cc) if m == "v" else mf32(a0, wop(m, k), x, cc))
            want = steps[min(95, i + 6 + max(0, i - 83))][2] + 1
            b = 6
            while nrd < want and (nrd < 8 or last_use[nrd - 8] <= i):
                tok[nrd] = ld.issue(rdtxt(nrd, par)); nrd += 1; b -= 1
            if BAR <= i < BAR + NW_: ld.issue(rdtxt(i - BAR, par ^ 1))
            if i == BAR + 1: A(f"s_xor_b32 s{sPar}, s{sPar}, 32768")
            if i == BAR + 3:
                ld.wait(tv); emit(ve[:5])
            if i == BAR + 4:
                emit(ve[5:]); A(f"s_cmp_gt_u32 s{sFk}, 0\ns_cselect_b32 s{sGo}, 0, s{sGo}")
            if i == P.get("pk", BAR + 2):
                A("s_waitcnt vmcnt(0)"); post(A, sKF, qFV)
            fill(b, i % 2 == 0 or i >= 64)
        A(f"s_cmp_eq_u32 s{sGo}, 0\ns_cbranch_scc1 {SLOW}\ns_cmp_lt_u32 s{sNxt}, 64\ns_cbranch_scc1 {WE[par ^ 1]}")
        fold(A)
        if MF: A(f"s_cbranch_scc0 {WE[par ^ 1]}\ns_branch {FORKW}")
        else: A(f"s_cselect_b32 s{sMode}, 1, 0\ns_branch {WE[par ^ 1]}")
    A(f"s_mov_b32 s{sPar}, 0\nv_mov_b32 v{qFV}, 1")
    A(f"{SLOW}:")
    trace(A, 1, 10)
    emit(epi(ACC + 32, PK, sQB, 0, False))
    A(f"""
    s_mov_b32 s{sQB}, {WS_BYTES}
    s_xor_b32 s{sPar}, s{sPar}, 32768
    s_cmp_lg_u32 s{sMode}, 0
    s_cbranch_scc1 {PATCH}
    {NXT}:
    s_cmp_ge_u32 s{sNxt}, 128
    s_cbranch_scc1 {END}
    s_cmp_lg_u32 s{sPre}, 0
    s_cbranch_scc1 {HAVE}
    s_mov_b32 s{sSpin}, 0
    {POLL}:
    """)
    f = L(); key_loads(f); emit(f)
    spin(A, FAIL)
    A("s_waitcnt vmcnt(0)")
    post(A, sPend, qFV)
    A(f"s_mov_b32 s{sPend}, {WS_BYTES}\nv_cmp_eq_u32 vcc, 0, v{KEY}\ns_nop 0\ns_and_b32 s{sTmp}, vcc_lo, 0xffffff\ns_cbranch_scc1 {POLL}")
    dma(A, sNxt)
    f = L(); key_eval(f); emit(f)
    A(f"""
    {HAVE}:
    ds_write_b32 v{qVT}, v{KEY+1} offset:256
    s_xor_b32 s{sPar}, s{sPar}, 32768
    s_waitcnt lgkmcnt(0)
    s_barrier
    ds_read_b128 v[{PK+8}:{PK+11}], v{qVT+1} offset:256
    s_cmp_lt_u32 s{sNxt}, 64
    s_cbranch_scc1 {NOPRE}
    s_waitcnt lgkmcnt(0)
    """)
    vote_eval(A, PK + 8)
    fold(A)
    A((f"s_cbranch_scc1 {FORK}" if MF else f"s_cselect_b32 s{sMode}, 1, 0") + f"\n{NOPRE}:")
    if hold:
        NH = A.label("q_nh")
        A(f"s_sub_u32 s{sTmp}, s{sNxt}, s{sRep}\ns_cmp_lg_u32 s{sTmp}, {3*P.get('hat', 1)}\ns_cbranch_scc1 {NH}\ns_waitcnt vmcnt(0)")
        post(A, sPend, qFV); A(f"s_mov_b32 s{sPend}, {WS_BYTES}")
        hold(); A(f"{NH}:")
    A(f"s_waitcnt vmcnt(0)\ns_sub_u32 s{sTmp}, s{sNxt}, s{sRep}\ns_cmp_lg_u32 s{sTmp}, {3*NPRE}\ns_cbranch_scc1 {COLD}")
    if before_mlp: before_mlp()
    mlp_preload(A)
    key_addr()
    A(f"{COLD}:\ns_waitcnt lgkmcnt(0)\ns_barrier\ns_cmp_lg_u32 s{sPar}, 0\ns_cbranch_scc1 {CE[1]}")
    block(0); block(1)
    if MF:
        A(f"{FORKW}:")
        emit(epi(ACC + 32, PK, sQB, 0, False))
        A(f"s_mov_b32 s{sQB}, {WS_BYTES}\ns_waitcnt lgkmcnt(0)\n{FORK}:")
        A(f"s_mov_b32 s{sKey}, s{sRun}\ns_mov_b32 s{sMode}, 1")
        trace(A, 3, 10, sNxt)
        mlp(A, FAIL, None, sNxt)
        key_addr(); tile_addr()
        trace(A, 4, 10)
        A(f"s_branch {COLD}")
    A(f"{PATCH}:")
    sQ2 = 77
    A(f"s_add_u32 s{sB}, s{sB}, {32*MB}\ns_lshl_b32 s{sQ2}, s{sOut}, 11\ns_add_u32 s{sQ2}, s{sQ2}, {QX + 16*MB}\ns_add_u32 s{sKF}, s{sKF}, {256*KB}")
    for p in range(2): A(f"buffer_store_dwordx4 v[{PK+4*p}:{PK+4*p+3}], v{qST}, {W}, s{sQ2} offen offset:{p*512} sc1")
    for p in range(2): A(f"buffer_store_dwordx4 v[{PK+8+4*p}:{PK+8+4*p+3}], v{qST}, {W}, s{sB} offen offset:{p*512} sc1")
    emit(epi(ACC + 16, ACC, sB, 2048, False))
    if not MF:
        A(f"s_mov_b32 s{sKey}, s{sRun}\ns_waitcnt lgkmcnt(0)")
        trace(A, 3, 10, sCur)
        mlp(A, FAIL, None, sCur, 0)
        post(A, sPend, qFV)
        A(f"s_mov_b32 s{sPend}, {WS_BYTES}")
        key_addr(); tile_addr()
        trace(A, 4, 10)
    def fin_fork(XF, PKr, TM):
        A(f"s_lshl_b32 s{sTmp+1}, s{sCur}, 5\ns_add_u32 s{sTmp+1}, s{sTmp+1}, s{sJ}\ns_lshl_b32 s{sTmp+1}, s{sTmp+1}, 10\ns_add_u32 s{sTmp+1}, s{sTmp+1}, {XM - 64*32768}")
        A(f"buffer_store_dwordx4 v[{PKr}:{PKr+3}], v{qL16}, {W}, s{sTmp+1} offen sc1")
        layernorm1(A, XF, None, TM + 12, TM)
        A(f"v_lshl_add_u32 v{qT1}, v{qL16}, 2, s{sPar}\nv_mov_b64 v[{TM}:{TM+1}], 0\nv_mov_b64 v[{TM+4}:{TM+5}], 0\nv_mov_b64 v[{TM+8}:{TM+9}], 0")
        for h in range(2):
            A(f"v_mov_b32 v{TM+2+4*h}, v{TM+12+h}\nv_mov_b32 v{TM+3+4*h}, v{TM+14+h}")
        for h in range(2):
            A(f"ds_write_b128 v{qT1}, v[{TM+2+4*h}:{TM+5+4*h}] offset:{4096+32*h}\nds_write_b128 v{qT1}, v[{TM+4*h}:{TM+3+4*h}] offset:{4096+32*h+16}")
    f = L(); key_loads(f); emit(f)
    gather(A, FAIL, sCur, fin_fork)
    NB_ = A.label("q_nb")
    A(f"s_cmp_lg_u32 s{sPre}, 0\ns_cbranch_scc1 {NB_}")
    f = L(); key_eval(f); emit(f)
    A(f"s_cmp_eq_u32 s{sPre}, 0\ns_cbranch_scc1 {NB_}")
    dma(A, sNxt)
    A(f"{NB_}:")
    D, IX, XA_ = 20, 32, 36
    A(f"""
    v_lshrrev_b32 v{qT0}, 8, v{qL16}
    v_and_b32 v{qT1}, 48, v{qL16}
    v_lshl_add_u32 v{qT1}, v{qT0}, 6, v{qT1}
    v_add_u32 v{qT1}, s{sPar}, v{qT1}
    s_mov_b32 vcc_lo, 0xcccccccc
    s_mov_b32 vcc_hi, 0xcccccccc
    v_mov_b32 v{IX}, 0x4444
    v_mov_b32 v{IX+1}, 0xeeee
    v_cndmask_b32 v{IX}, v{IX}, v{IX+1}, vcc
    s_waitcnt lgkmcnt(0)
    s_barrier
    """)
    trace(A, 7, 10)
    ld = Cnt(A, "lgkmcnt", 15); tk = {}
    def rd(t): tk[t] = ld.issue(f"ds_read_b128 v[{XA_+4*t}:{XA_+4*t+3}], v{qT1} offset:{4096+t*256}")
    for t in range(8): rd(t)
    for r in range(D, D + 12, 2): A(f"v_mov_b64 v[{r}:{r+1}], 0")
    sal = L()
    sal(f"s_and_b32 s{sTmp}, s{sRow}, 16\ns_lshl_b32 s{sTmp+1}, s{sTmp}, 6\ns_and_b32 s{sTmp+2}, s{sRow}, 15\ns_lshl4_add_u32 s{sTmp+1}, s{sTmp+2}, s{sTmp+1}")
    sal(f"s_add_u32 s{sQ2}, s{sQ2}, s{sTmp+1}\ns_add_u32 s{sTmp+1}, s{sTmp+1}, s{sB}\ns_lshr_b32 s{sTmp}, s{sTmp}, 1\ns_and_b32 s{sTmp+2}, s{sRow}, 3")
    sal(f"s_lshl1_add_u32 s{sTmp}, s{sTmp+2}, s{sTmp}\ns_and_b32 s{sTmp+2}, s{sRow}, 12\ns_lshl_b32 s{sTmp+2}, s{sTmp+2}, 6\ns_add_u32 s{sTmp}, s{sTmp}, s{sTmp+2}")
    sal(f"s_add_u32 s{sTmp}, s{sTmp}, s{sB}\nv_and_b32 v{qT0}, 0xc0, v{qL16}\nv_and_b32 v{qT2}, 12, v{qL4}\nv_lshrrev_b32 v{qT2}, 1, v{qT2}\nv_lshl_add_u32 v{qT0}, v{qT0}, 2, v{qT2}")
    for t in range(16):
        ld.wait(tk[t])
        for i, m in enumerate("kvq"):
            A(f"v_smfmac_f32_16x16x64_bf16 {v(D+4*i,4)}, {v(XA_+4*t,4)}, {reg(wop(m, 2*t),8)}, v{IX}")
            if i == 0 and t + 8 < 16: rd(t + 8)
            elif sal: A(sal.pop(0))
    for i in range(3): A(f"v_add_f32 v{D+4*i}, v{D+4*i}, v{D+4*i+2}\nv_add_f32 v{D+4*i+1}, v{D+4*i+1}, v{D+4*i+3}")
    A(f"v_mul_f32 v{D}, s{sC}, v{D}\nv_mul_f32 v{D+1}, s{sC}, v{D+1}")
    for i in range(3): A(f"v_cvt_pk_bf16_f32 v{D+4*i}, v{D+4*i}, v{D+4*i+1}")
    A(f"""
    s_mov_b64 exec, 0xffff
    buffer_store_short v{D}, v{qT0}, {W}, s{sTmp+1} offen sc1
    buffer_store_short_d16_hi v{D}, v{qT0}, {W}, s{sTmp+1} offen offset:8 sc1
    buffer_store_short v{D+4}, v{qL16}, {W}, s{sTmp} offen offset:2048 sc1
    buffer_store_short_d16_hi v{D+4}, v{qL16}, {W}, s{sTmp} offen offset:3072 sc1
    buffer_store_short v{D+8}, v{qT0}, {W}, s{sQ2} offen sc1
    buffer_store_short_d16_hi v{D+8}, v{qT0}, {W}, s{sQ2} offen offset:8 sc1
    s_mov_b64 exec, 3
    s_mov_b32 s{sMode}, 0
    s_waitcnt vmcnt(0)
    buffer_store_dword v{qFV}, v{qL16}, {W}, s{sKF} offen sc1
    s_mov_b64 exec, -1
    """)
    trace(A, 8, 10)
    A(f"s_branch {NXT}")
    A(f"{END}:")
    A("s_waitcnt vmcnt(0)")
    post(A, sPend, qFV)
    A(f"s_cmp_lg_u32 s{sRep}, 0\ns_cbranch_scc1 {FAIL}")
    if P.get("nofinal"): A(f"s_branch {FAIL}")
    A(f"s_load_dwordx2 s[{sO}:{sO+1}], s[0:1], {KA['out']}\ns_mov_b32 s{sO+2}, {2*MB}\ns_mov_b32 s{sO+3}, 0x20000")
    FIN, NX = A.label("k_fin"), A.label("k_nx")
    A(f"s_mov_b32 s{sKey}, 0\ns_cmp_eq_u32 s{sW}, 3\ns_cselect_b32 s{sPre}, 7, 15\n{FIN}:")
    def getkey():
        Lw, Lx, Lr = A.label("k_w"), A.label("k_x"), A.label("k_r")
        sM, sI = sTmp + 6, sTmp + 7
        A(f"s_andn2_b32 s{sTmp+2}, 0xfe0, s{sRun}\ns_lshl_b32 s{sTmp+2}, s{sTmp+2}, {KSH}\ns_mov_b32 s{sTmp+3}, {F_XN + 2*KST}\nv_mov_b32 v24, {KST}")
        A(f"s_mov_b32 s{sSpin}, 0\ns_mov_b32 s{sI}, 3\nv_mov_b32 v53, s{sKey}\ns_and_b32 s{sM}, s{sPre}, 15\ns_cbranch_scc0 {Lx}\n{Lw}:")
        A(f"s_add_u32 s{sI}, s{sI}, 1\ns_and_b32 s{sI}, s{sI}, 3\ns_bitcmp1_b32 s{sM}, s{sI}\ns_cbranch_scc0 {Lw}")
        A(f"s_lshl2_add_u32 s{sTmp}, s{sI}, s{sW}\ns_lshl_b32 s{sTmp}, s{sTmp}, {KSH+7}\ns_add_u32 s{sTmp+1}, s{sTmp}, {2*KSEG}")
        for i in range(2):
            A(f"v_add_u32 v{22+i}, s{sTmp+i}, v{qLK}\nv_cmp_le_u32 vcc, s{sTmp+2}, v{22+i}\nv_cndmask_b32 v25, 0, v24, vcc\nv_add_u32 v{22+i}, v{22+i}, v25")
            A(f"buffer_load_dword v{20+i}, v{22+i}, {W}, s{sTmp+3} offen sc1")
        spin(A, FAIL)
        A(f"s_waitcnt vmcnt(0)\nv_min_u32 v52, v20, v21\nv_max3_u32 v53, v20, v21, v53\nv_cmp_eq_u32 vcc, 0, v52")
        A(f"s_cbranch_vccnz {Lw}\ns_bitset0_b32 s{sM}, s{sI}\ns_cmp_lg_u32 s{sM}, 0\ns_cbranch_scc1 {Lw}")
        for rot in (8, 4, 2, 1): A(f"v_max_u32_dpp v53, v53, v53 row_ror:{rot} row_mask:0xf bank_mask:0xf")
        for sw in ("16", "32"): A(f"v_mov_b32 v52, v53\nv_permlane{sw}_swap_b32 v53, v52\nv_max_u32 v53, v53, v52")
        A(f"{Lx}:\nds_write_b32 v{qVT}, v53 offset:256\ns_waitcnt vmcnt(0) lgkmcnt(0)\ns_barrier\nds_read_b128 v[20:23], v{qVT+1} offset:256\ns_waitcnt lgkmcnt(0)")
        A(f"v_max3_u32 v20, v20, v21, v22\nv_max_u32 v20, v20, v23\nv_readfirstlane_b32 s{sTmp}, v20")
        trace(A, 5, 10)
        A(f"s_cmp_eq_u32 s{sTmp}, s{sKey}\ns_cbranch_scc1 {FAIL}\ns_cmp_eq_u32 s{sKey}, 0\ns_mov_b32 s{sKey}, s{sTmp}\ns_cbranch_scc1 {Lr}")
        A(f"s_cmp_lg_u32 s{sHW}, 0\ns_cbranch_scc1 {Lr}\ns_lshl_b32 s{sTmp}, s{sRow}, 10\nbuffer_store_dwordx4 a[0:3], v{qL16}, s[{sO}:{sO+3}], s{sTmp} offen sc1\n{Lr}:")
        A(f"s_andn2_b32 s{sTmp}, 0xfe0, s{sRun}\ns_andn2_b32 s{sTmp+1}, 0xfe0, s{sKey}\ns_cmp_lt_u32 s{sTmp+1}, s{sTmp}\ns_cselect_b32 s{sKind}, 1, 2")
    def fin_out(XF, PKr, TM):
        A(f"s_lshl_b32 s{sTmp}, s{sRow}, 10\nbuffer_store_dwordx4 v[{PKr}:{PKr+3}], v{qL16}, s[{sO}:{sO+3}], s{sTmp} offen sc1")
    mlp(A, FAIL, getkey, sNxt)
    A(f"s_cmp_lg_u32 s{sJ}, 0\ns_cbranch_scc1 {NX}\ns_barrier")
    gather(A, FAIL, sNxt, fin_out, keep=True)
    trace(A, 6, 10)
    A(f"{NX}:\ns_add_u32 s{sNxt}, s{sNxt}, 3\ns_xor_b32 s{sPre}, s{sPre}, 31\ns_waitcnt vmcnt(0)\ns_barrier\ns_bitcmp1_b32 s{sPre}, 4\ns_cbranch_scc1 {FIN}")
    A(f"{FAIL}:")
```

```python
import sys
from asmlib import *
from layout import *
import common
import chain as C, qkv as Q, orole as O
from chain import sWS, sT, sJ, sW, sTmp

NAME = "interleave_layers__memory_aug_recurrent_mem_tr__moe_arch_mod__prompt"
KN = NAME + "_kernel"
sDbg = 12
sSlot = 90
sXcd = 91
sReal = 89
D_GO = 128

def wait_go(A, team, nw, fail, vt=20):
    L = A.label("g_wt")
    A(f"v_mbcnt_lo_u32_b32 v{vt}, -1, 0\nv_and_b32 v{vt}, {nw-1}, v{vt}\nv_add_lshl_u32 v{vt}, v{vt}, {team}, 2")
    A(f"s_mov_b32 s{sTmp}, 0\n{L}:\nglobal_load_dword v{vt+1}, v{vt}, s[{sDbg}:{sDbg+1}] offset:{D_GO} sc1")
    A(f"s_add_u32 s{sTmp}, s{sTmp}, 1\ns_cmp_gt_u32 s{sTmp}, {SPIN_MAX}\ns_cbranch_scc1 {fail}\ns_waitcnt vmcnt(0)")
    A(f"v_cmp_eq_u32 vcc, 0, v{vt+1}\nv_readfirstlane_b32 s{sTmp+1}, v{vt+1}\ns_cbranch_vccnz {L}")

def arrive(A, team, vt=20, st=sTmp + 10):
    L = A.label("g_ar")
    A(f"s_cmp_lg_u32 s{sW}, 0\ns_cbranch_scc1 {L}\ns_lshl_b32 s{st}, s{sReal}, 3\ns_lshl_b64 s[{st}:{st+1}], 1, s{st}")
    A(f"v_lshlrev_b32 v{vt+4}, 3, {team}\nv_mov_b32 v{vt}, s{st}\nv_mov_b32 v{vt+1}, s{st+1}\ns_mov_b64 exec, 1")
    A(f"global_atomic_add_x2 v[{vt+2}:{vt+3}], v{vt+4}, v[{vt}:{vt+1}], s[{sDbg}:{sDbg+1}] sc0\ns_mov_b64 exec, -1\n{L}:")

def arrive_fin(A, n, vt=20, st=sTmp + 10):
    L = A.label("g_af")
    A(f"""
    s_cmp_lg_u32 s{sW}, 0
    s_cbranch_scc1 {L}
    v_readfirstlane_b32 s{st}, v{vt+2}
    v_readfirstlane_b32 s{st+1}, v{vt+3}
    s_add_u32 s{st+2}, s{st}, s{st+1}
    s_mul_i32 s{st+2}, s{st+2}, 0x01010101
    s_lshr_b32 s{st+2}, s{st+2}, 24
    s_cmp_lg_u32 s{st+2}, {n-1}
    s_cbranch_scc1 {L}
    s_lshl_b32 s{st+2}, s{sReal}, 3
    s_lshr_b64 s[{st}:{st+1}], s[{st}:{st+1}], s{st+2}
    s_and_b32 s{st}, s{st}, 0xff
    s_cmp_eq_u32 s{st}, {n-1}
    s_cselect_b32 s{st}, 1, 2
    v_mov_b32 v{vt}, s{st}
    v_lshrrev_b32 v{vt+4}, 1, v{vt+4}
    s_mov_b64 exec, 1
    global_store_dword v{vt+4}, v{vt}, s[{sDbg}:{sDbg+1}] offset:{D_GO} sc1
    s_mov_b64 exec, -1
    {L}:
    """)

def entry(A, P):
    A(f"""
    s_cmp_ge_u32 s2, 256
    s_cbranch_scc1 L_end
    s_mov_b32 s{sWS+2}, {WS_BYTES}
    s_mov_b32 s{sWS+3}, 0x20000
    s_mov_b32 s{sT+3}, 0x20000
    s_getreg_b32 s{sReal}, hwreg(HW_REG_XCC_ID)
    s_and_b32 s{sReal}, s{sReal}, 7
    v_lshrrev_b32 v1, 6, v0
    s_and_b32 s{sXcd}, s2, 7
    s_lshr_b32 s{sSlot}, s2, 3
    v_readfirstlane_b32 s{sW}, v1
    """)
    if P.get("gmap"):
        A(f"s_lshl_b32 s{sXcd}, s{sXcd}, 2\ns_lshr_b32 s{sXcd}, {hex(sum(g << (4*i) for i, g in enumerate(P['gmap'])))}, s{sXcd}\ns_and_b32 s{sXcd}, s{sXcd}, 7")
    if P.get("fake_xcc"): A(P["fake_xcc"])
    A(f"""
    s_lshl_b32 s100, s{sXcd}, 5
    s_add_u32 s100, s100, s{sSlot}
    s_lshl_b32 s100, s100, 2
    s_add_u32 s100, s100, s{sW}
    s_lshl_b32 s100, s100, 12
    s_add_u32 s100, s100, {TRACE}
    s_cmp_lt_u32 s{sXcd}, 3
    s_cbranch_scc1 L_chain
    s_cmp_eq_u32 s{sXcd}, 7
    s_cbranch_scc1 L_qkv
    s_bitcmp1_b32 s{sSlot}, 4
    s_cbranch_scc1 L_qkv
    s_branch L_o
    """)

def late_args(A):
    A(f"s_load_dwordx2 s[{sWS}:{sWS+1}], s[0:1], {KA['ws']}\ns_load_dwordx2 s[{sDbg}:{sDbg+1}], s[0:1], {KA['dbg']}")

def hold(A, head, vt):
    L = A.label("g_h")
    A(f"s_lshl_b32 s{sTmp+1}, s{head}, 6\ns_add_u32 s{sTmp+1}, s{sTmp+1}, {F_KM}\ns_mov_b32 s{sTmp}, 0\n{L}:\nbuffer_load_dwordx2 v[{vt}:{vt+1}], off, s[{sWS}:{sWS+3}], s{sTmp+1} sc1")
    A(f"s_add_u32 s{sTmp}, s{sTmp}, 1\ns_cmp_gt_u32 s{sTmp}, {SPIN_MAX}\ns_cbranch_scc1 L_end\ns_waitcnt vmcnt(0)")
    A(f"v_or_b32 v{vt}, v{vt}, v{vt+1}\nv_cmp_eq_u32 vcc, 0, v{vt}\ns_cbranch_vccnz {L}")

def chain_role(A, P):
    A("L_chain:")
    if "a" in P.get("kill", ""): A(f"s_cmp_lg_u32 s{sXcd}, 0\ns_cbranch_scc1 L_end")
    late_args(A)
    A(f"s_mov_b32 s{sJ}, s{sSlot}\ns_mov_b32 s{C.sChain}, s{sXcd}\ns_min_u32 s{C.sLayer}, s{sXcd}, 1")
    C.lane_consts(A)
    def sync():
        common.trace(A, 0, 28)
        A(f"s_lshl_b32 s{sTmp}, s{sJ}, 12\ns_cmp_eq_u32 s{sXcd}, 0\ns_cbranch_scc1 L_ch0\ns_cmp_eq_u32 s{sXcd}, 2\ns_cbranch_scc1 L_ch2")
        A(f"v_mov_b64 v[28:29], 0\nv_mov_b64 v[30:31], 0")
        for base, n, r in ((FLAGS, 17, 28), (MEMH, 22, 24)):
            if r == 24: A("s_branch L_ch0\nL_ch2:")
            for i in range(n):
                A(f"s_add_u32 s{sTmp+1}, s{sTmp}, {base + i*128*KB}\nbuffer_store_dwordx4 v[{r}:{r+3}], v{C.vW16}, s[{sWS}:{sWS+3}], s{sTmp+1} offen sc1")
        A("L_ch0:\ns_waitcnt vmcnt(0)\ns_barrier")
        arrive(A, f"s{sXcd}", 120)
        A(f"s_cmp_lg_u32 s{sXcd}, 1\ns_cbranch_scc1 L_ch1\ns_waitcnt vmcnt(0)")
        arrive_fin(A, 32, 120)
        A("v_mov_b64 v[122:123], 0\nL_ch1:")
    assert MLPY == MEMH + 512*KB
    vm, fin = C.chain_prologue(A, sync)
    hooks = {-1: lambda: arrive_fin(A, 32, 120)}
    def sig():
        A(f"s_or_b32 s{sTmp+10}, s{sXcd}, s{sW}\ns_cbranch_scc1 L_sig\ns_lshl_b32 s{sTmp+10}, s{sJ}, 6\ns_add_u32 s{sTmp+10}, s{sTmp+10}, {F_KM + 4}\nv_mov_b32 v120, 1")
        A(f"s_mov_b64 exec, 1\nbuffer_store_dword v120, off, s[{sWS}:{sWS+3}], s{sTmp+10} sc1\ns_mov_b64 exec, -1\nL_sig:")
    if P.get("sig"): hooks[P["sig"]] = sig
    def peek1():
        A(f"v_mbcnt_lo_u32_b32 v116, -1, 0\nv_and_b32 v116, 1, v116\nv_lshlrev_b32 v118, 2, v116\nglobal_load_dword v117, v118, s[{sDbg}:{sDbg+1}] offset:{D_GO} sc1")
    def peek2():
        A(f"v_cmp_eq_u32 vcc, 0, v117\nv_lshlrev_b32 v116, 12, v116\ns_or_b32 s{C.sPk}, vcc_lo, s{sXcd}\ns_cselect_b32 s{C.sPk}, 0, 1")
        A(f"s_lshl2_add_u32 s{sTmp+10}, s{sJ}, s{sW}\ns_lshl_b32 s{sTmp+10}, s{sTmp+10}, 5\ns_add_u32 s{sTmp+10}, s{sTmp+10}, {F_KV}")
        A(f"buffer_load_dword v118, v116, s[{sWS}:{sWS+3}], s{sTmp+10} offen sc1")
    hooks[4] = peek1; hooks[10] = peek2; hooks[12] = lambda: A("s_waitcnt vmcnt(0)")
    assert P.get("cdep", 5) <= 4 and P.get("sig") not in (4, 10)
    def hold_a():
        A(f"s_cmp_eq_u32 s{sXcd}, 0\ns_cbranch_scc1 L_ha\ns_waitcnt vmcnt(0)")
        arrive_fin(A, 32, 120)
        A("v_mov_b64 v[122:123], 0")
        wait_go(A, 1, 1, "L_end", 116)
        A(f"s_and_b32 s{sTmp+2}, s{sJ}, {P.get('hmask', 28)}\ns_or_b32 s{sTmp+2}, s{sTmp+2}, {1 if P.get('hmask', 28) == 28 else 0}")
        hold(A, sTmp + 2, 116)
        A("L_ha:")
    if "a" in P.get("hold", ""): hooks[-3] = hold_a
    if "b" in P.get("hold", ""): hooks[-2] = hold_a
    C.chain_load_weights(A, vm, fin, hooks, P.get("order", "kqv"), warm=P.get("warm", ""), early=P.get("early", 1), depth=P.get("cdep", 5))
    A(f"v_readlane_b32 s{C.sPk+1}, v118, 1\nv_readlane_b32 s{sTmp}, v118, 0\nv_mov_b32 v21, v117\ns_and_b32 s{C.sPk}, s{C.sPk}, s{sTmp}\ns_cbranch_scc1 L_pk")
    wait_go(A, f"s{C.sLayer}", 2, "L_end")
    A("L_pk:")
    A(f"s_lshr_b32 s{sTmp}, s{sXcd}, 1\ns_nop 3\nv_readlane_b32 s{sTmp+1}, v21, s{sTmp}")
    A(f"s_cmp_lg_u32 s{sTmp+1}, 1\ns_cbranch_scc1 L_chain_x")
    CP = dict(P.get("chain", {}), steady=0, done="L_chdone", peek=1)
    C.chain_loop(A, CP)
    A("s_endpgm\nL_chain_x:")
    C.chain_loop(A, dict(CP, st="sc1"))
    A("s_endpgm")
    A(f"L_chdone:\ns_cmp_lg_u32 s{sXcd}, {0 if P.get('help', 1) else 9}\ns_cbranch_scc1 L_end")
    A(f"s_lshr_b32 s{sXcd}, s{sSlot}, 4\ns_add_u32 s{sXcd}, s{sXcd}, 7\nv_lshrrev_b32 v0, 4, v{C.vL16}\ns_waitcnt vmcnt(0) lgkmcnt(0)\ns_branch L_o")

def qkv_role(A, P):
    A("L_qkv:")
    if "q" in P.get("kill", ""): A("s_endpgm")
    A(f"""
    s_mul_i32 s{sTmp}, s{sXcd}, 15
    s_add_u32 s{sTmp}, s{sTmp}, s{sSlot}
    s_sub_u32 s{sTmp}, s{sTmp}, 61
    s_add_u32 s{sTmp+1}, s{sXcd}, 89
    s_cmp_eq_u32 s{sSlot}, 31
    s_cselect_b32 s{sTmp}, s{sTmp+1}, s{sTmp}
    s_add_u32 s{sTmp+1}, s{sSlot}, 60
    s_cmp_eq_u32 s{sXcd}, 7
    s_cselect_b32 s{sTmp}, s{sTmp+1}, s{sTmp}
    s_mul_i32 s{sJ}, s{sTmp}, 171
    s_lshr_b32 s{sJ}, s{sJ}, 9
    s_mul_i32 s{sTmp+1}, s{sJ}, 3
    s_sub_u32 s60, s{sTmp}, s{sTmp+1}
    s_add_u32 s{sJ}, s{sJ}, 4
    s_and_b32 s{sJ}, s{sJ}, 31
    """)
    Q.qkv_role(A, P.get("qkv", {}), {-1: lambda: late_args(A)}, after_weights=lambda: wait_go(A, 1, 1, "L_end"), before_mlp=lambda: wait_go(A, 2, 1, "L_end"),
               hold=(lambda: hold(A, sJ, 20)) if "q" in P.get("hold", "") else None)
    A("s_endpgm")

def o_body(A, P):
    LR = P.get("lr", 4)
    ROUND, TASK, NOFL, FL, PICK = [A.label("o_" + x) for x in ("round", "task", "nofl", "fl", "pick")]
    GA, GB, GD, NONE, NN, ADV = [A.label("o_" + x) for x in ("ga", "gb", "gd", "none", "nn", "adv")]
    sP, sBn, sBel, smA, smB, sSh, sAv, sLeft = 52, 53, 54, 55, 56, 57, 58, 59
    HELP, DL, DL1, DL2 = [A.label('o_' + x) for x in ('help', 'dl', 'dl1', 'dl2')]
    sThr = 89
    t = sTmp
    KV_ = (3 << O.B_KIND) | (1 << O.B_VALID)
    A(f"""
    s_mov_b32 s{O.sTask}, 1
    s_mov_b32 s{O.sTag}, 0
    s_mov_b32 s{O.sNk}, 0
    s_mov_b32 s{O.sRun}, 0
    s_mov_b32 s{O.sPrev}, 0
    s_mov_b32 s{O.sPre}, 0
    s_mov_b32 s{O.sPreK}, 0
    s_mov_b32 s{smA}, 0
    s_mov_b32 s{smB}, 0
    s_mov_b32 s{O.sKp}, {WS_BYTES}
    s_mov_b32 s{O.sBox}, s{O.cBX}
    s_mov_b32 s{O.sS}, s{O.sRep}
    s_mul_i32 s{O.sCur}, s{O.sS}, 257
    s_or_b32 s{O.sCur}, s{O.sCur}, {O.desc(0, 0, 1)}
    s_lshr_b32 s{sSh}, s{O.sRep}, 2
    s_cbranch_scc1 {HELP}
    {ROUND}:
    """)
    O.decide(A, "L_end")
    A(f"""
    s_lshr_b32 s{t+1}, s{O.sS}, 2
    s_andn2_b32 s{sP}, 0xfff, s{O.sRun}
    s_lshr_b32 s{sP}, s{sP}, 5
    s_min_u32 s{sP}, s{sP}, 64
    s_add_u32 s{t}, s{sP}, 3
    v_readlane_b32 s{sThr}, v{O.oTHR}, s{t+1}
    s_sub_u32 s{t}, s{t}, s{O.sRep}
    s_lshr_b32 s{t}, s{t}, 2
    s_bfm_b32 s{sBel}, s{t}, 0
    s_add_u32 s{sBn}, s{O.sCur}, {4*257}
    s_cmp_lt_u32 s{O.sS}, 60
    s_cselect_b32 s{sBn}, s{sBn}, 0
    s_cmp_lt_u32 s{O.sS}, 64
    s_cselect_b32 s{t}, {LR - 1}, 1
    s_sub_i32 s{t}, s{t+1}, s{t}
    s_max_i32 s{t}, s{t}, 0
    s_min_u32 s{t}, s{t}, 16
    s_bfm_b32 s{sAv}, s{t}, 0
    s_cmp_eq_u32 s{t+1}, 16
    s_cselect_b32 s{sLeft}, {P.get("b16", LR - 2)}, 1
    s_cmp_eq_u32 s{t+1}, 18
    s_cselect_b32 s{sLeft}, 64, s{sLeft}
    s_cselect_b32 s{O.sFin}, 0, -1
    s_cselect_b32 s{sThr}, 0, s{sThr}
    s_cbranch_scc1 {DL}
    {PICK}:
    s_cmp_eq_u32 s{sLeft}, 0
    s_cbranch_scc1 {NONE}
    s_sub_u32 s{sLeft}, s{sLeft}, 1
    s_andn2_b32 s{t}, s{sAv}, s{smA}
    s_and_b32 s{t}, s{t}, s{sBel}
    s_cbranch_scc1 {GA}
    s_and_b32 s{t}, s{smA}, s{O.sFin}
    s_or_b32 s{t}, s{t}, s{smB}
    s_or_b32 s{t}, s{t}, s{sBel}
    s_andn2_b32 s{t}, s{sAv}, s{t}
    s_cbranch_scc0 {NONE}
    s_cmp_ge_u32 s{O.sRun}, s{sThr}
    s_cbranch_scc1 {GB}
    {GA}:
    s_ff1_i32_b32 s{t}, s{t}
    s_bitset1_b32 s{smA}, s{t}
    s_mov_b32 s{O.sNxt}, {O.desc(1, 1, 2)}
    s_mov_b32 s{t+1}, s{O.sNxt}
    s_branch {GD}
    {NONE}:
    s_cmp_lt_u32 s{O.sS}, 60
    s_cbranch_scc1 {NN}
    s_cmp_eq_u32 s{O.sFin}, 0
    s_cbranch_scc1 {NN}
    s_and_b32 s{t}, s{O.sCur}, {KV_}
    s_cmp_eq_u32 s{t}, {1 << O.B_VALID}
    s_cbranch_scc1 {NN}
    s_cmp_lt_u32 s{O.sS}, 64
    s_cbranch_scc1 {ADV}
    s_and_b32 s{t}, s{O.sPrev}, {KV_}
    s_cmp_lg_u32 s{t}, {1 << O.B_VALID}
    s_cbranch_scc1 {ADV}
    {NN}:
    s_mov_b32 s{O.sNxt}, s{sBn}
    s_mov_b32 s{O.sRet}, 0
    s_branch {TASK}
    {GB}:
    s_ff1_i32_b32 s{t}, s{t}
    s_bitset1_b32 s{smB}, s{t}
    s_andn2_b32 s{t+1}, 31, s{O.sRun}
    s_or_b32 s{t+1}, s{t+1}, 32
    s_lshl_b32 s{t+1}, s{t+1}, {O.B_ROW}
    s_or_b32 s{t+1}, s{t+1}, {O.desc(2, 2, 3)}
    s_mov_b32 s{O.sNxt}, {O.desc(1, 2, 3)}
    {GD}:
    s_and_b32 s{t+2}, s{t}, s{sSh}                 ; helpers hold two replicas' tasks interleaved
    s_lshr_b32 s{t}, s{t}, s{sSh}
    s_lshl2_add_u32 s{t}, s{t}, s{O.sRep}
    s_add_u32 s{t}, s{t}, s{t+2}
    s_cmp_eq_u32 s{t}, s{sP}
    s_cselect_b32 s{O.sNxt}, s{t+1}, s{O.sNxt}
    s_mul_i32 s{t}, s{t}, 257
    s_or_b32 s{O.sNxt}, s{O.sNxt}, s{t}
    s_mov_b32 s{O.sRet}, 1
    {TASK}:
    s_cmp_eq_u32 s{O.sCur}, 0
    s_cbranch_scc1 {NOFL}
    """)
    O.o_task(A, P, "L_end")
    A(f"s_cmp_lg_u32 s{O.sPreK}, 0\ns_cbranch_scc1 {NOFL}\ns_and_b32 s{t}, s{O.sCur}, {3 << O.B_KIND}\ns_cbranch_scc0 {FL}")
    A(f"s_and_b32 s{t}, s{O.sNxt}, {'s%d' % O.sFin if P.get('finfl', 1) else -1}\ns_cbranch_scc1 {NOFL}\n{FL}:")
    O.r_flush(A, P, "L_end")
    A(f"""
    {NOFL}:
    s_mov_b32 s{O.sCur}, s{O.sNxt}
    s_cmp_lg_u32 s{O.sRet}, 0
    s_cbranch_scc1 {PICK}
    s_cmp_eq_u32 s{O.sFin}, 0
    s_cbranch_scc1 {'L_wb' if P.get('wb') else 'L_end'}
    {ADV}:
    s_add_u32 s{O.sS}, s{O.sS}, 4
    s_branch {ROUND}
    {DL}:
    s_and_b32 s{t}, s{smA}, s{sBel}
    s_andn2_b32 s{t+1}, s{smB}, s{sBel}
    s_or_b32 s{t}, s{t}, s{t+1}
    s_andn2_b32 s{t}, s{sAv}, s{t}
    s_bcnt1_i32_b32 s{t+1}, s{t}
    s_add_u32 s{t+1}, s{t+1}, {P.get('dla', 0)}
    s_mul_i32 s{t+1}, s{t+1}, {86 if P.get('help', 1) else 0}
    s_lshr_b32 s{t+1}, s{t+1}, 8
    {DL1}:
    s_cbranch_scc0 {DL2}
    s_ff1_i32_b32 s{t+2}, s{t}
    s_bitset0_b32 s{t}, s{t+2}
    s_bitset0_b32 s{sAv}, s{t+2}
    s_sub_u32 s{t+1}, s{t+1}, 1
    s_cmp_lg_u32 s{t+1}, 0
    s_branch {DL1}
    {DL2}:
    s_xor_b32 s{t}, s{sAv}, 0x8000ffff
    s_lshl_b32 s{t+1}, s{O.sRep}, 7
    s_add_u32 s{t+1}, s{t+1}, {F_DL}
    s_cmp_lg_u32 s{O.cTK}, 0
    s_cbranch_scc1 {PICK}
    v_mov_b32 v162, s{t}
    v_mov_b32 v163, s{O.sRun}
    s_mov_b64 exec, 1
    buffer_store_dwordx2 v[162:163], off, s[{sWS}:{sWS+3}], s{t+1} sc1
    s_mov_b64 exec, -1
    s_branch {PICK}
    {HELP}:
    s_lshl_b32 s{O.sRep}, s{O.sRep}, 1
    s_and_b32 s{O.sRep}, s{O.sRep}, 2
    s_lshl_b32 s{t+1}, s{O.sRep}, 7
    s_add_u32 s{t+1}, s{t+1}, {F_DL}
    s_mov_b32 s{O.sSpin}, 0
    {HELP}_w:
    buffer_load_dwordx2 v[162:163], off, s[{sWS}:{sWS+3}], s{t+1} sc1
    buffer_load_dword v164, off, s[{sWS}:{sWS+3}], s{t+1} offset:128 sc1
    s_add_u32 s{O.sSpin}, s{O.sSpin}, 1
    s_cmp_gt_u32 s{O.sSpin}, {SPIN_MAX}
    s_cbranch_scc1 L_end
    s_waitcnt vmcnt(0)
    v_readfirstlane_b32 s{t+2}, v162
    v_readfirstlane_b32 s{t+4}, v164
    v_readfirstlane_b32 s{O.sRun}, v163
    s_and_b32 s{t}, s{t+2}, s{t+4}
    s_bitcmp1_b32 s{t}, 31
    s_cbranch_scc0 {HELP}_w
    s_bitreplicate_b64_b32 s[{t+2}:{t+3}], s{t+2}
    s_bitreplicate_b64_b32 s[{t+4}:{t+5}], s{t+4}
    s_and_b32 s{t+2}, s{t+2}, 0x55555555
    s_and_b32 s{t+4}, s{t+4}, 0xaaaaaaaa
    s_or_b32 s{sAv}, s{t+2}, s{t+4}
    s_andn2_b32 s{sP}, 0xfff, s{O.sRun}
    s_lshr_b32 s{sP}, s{sP}, 5
    s_sub_u32 s{t}, s{sP}, s{O.sRep}
    s_add_u32 s{t+1}, s{t}, 3
    s_add_u32 s{t}, s{t}, 2
    s_lshr_b32 s{t+1}, s{t+1}, 2
    s_lshr_b32 s{t}, s{t}, 2
    s_add_u32 s{t}, s{t}, s{t+1}
    s_bfm_b64 s[{t+2}:{t+3}], s{t}, 0
    s_mov_b32 s{sBel}, s{t+2}
    s_mov_b32 s{sBn}, 0
    s_mov_b32 s{O.sCur}, 0
    s_mov_b32 s{O.sS}, 72
    s_mov_b32 s{sLeft}, 64
    s_mov_b32 s{O.sFin}, 0
    s_mov_b32 s{sThr}, 0
    s_branch {PICK}
    """)

def o_role(A, P):
    W = f"s[{sWS}:{sWS+3}]"
    A("L_o:")
    if "o" in P.get("kill", ""): A("s_endpgm")
    A(f"s_sub_u32 s{O.sRep}, s{sXcd}, 3\ns_and_b32 s{O.sU}, s{sSlot}, 15")
    O.o_prologue(A, lambda: late_args(A), lambda: wait_go(A, 1, 1, "L_end", 60), P.get("o", {}), (lambda: hold(A, O.sHd, 60)) if "o" in P.get("hold", "") else None)
    arrive(A, f"s{sXcd}", 48)
    A("s_waitcnt vmcnt(0)")
    arrive_fin(A, 16, 48)
    if P.get("owarm"):
        A(f"s_lshr_b32 s{sTmp}, s{O.sRep}, 1\ns_cmp_lg_u32 s{sTmp}, 1\ns_cbranch_scc1 L_ow\ns_and_b32 s{sTmp+2}, s{O.sHd}, 28\ns_or_b32 s{sTmp+2}, s{sTmp+2}, 1")
        if P["owarm"] == 1: hold(A, sTmp + 2, 60)
        A(f"s_mov_b32 s{sT+2}, {512*1792*2}")
        for m in ("wg", "wu", "wd"):
            A(f"s_load_dwordx2 s[{sT}:{sT+1}], s[0:1], {KA[m]}\ns_mul_i32 s{sTmp}, s{O.sRow}, 14336\ns_sub_u32 s{sTmp}, s{sTmp}, {128*14336}\ns_waitcnt lgkmcnt(0)")
            for i in range(14):
                A(f"buffer_load_dwordx4 v[64:67], v{O.oL16}, s[{sT}:{sT+3}], s{sTmp} offen offset:{(i%4)*1024}")
                if i % 4 == 3: A(f"s_add_u32 s{sTmp}, s{sTmp}, 4096")
        A("L_ow:")
    wait_go(A, f"s{sXcd}", 1, "L_end", 60)
    A(f"s_cmp_lg_u32 s{sTmp+1}, 1\ns_cbranch_scc1 L_o_x")
    OP = dict(P.get("o", {}), help=P.get("help", 1))
    o_body(A, OP)
    A("L_o_x:")
    o_body(A, dict(OP, st="sc1"))

HEAD = open("cdna_kernels/" + NAME + ".s.ref").read().split("; Override launch")[0] if True else ""

def generate(P):
    common.TRACE_ON[0] = P.get("trace", 0)
    A = Asm()
    entry(A, P)
    A("L_end:\ns_endpgm")
    if P.get("o", {}).get("wb"): A(f"L_wb:\ns_cmp_lg_u32 s{O.cTK}, 0\ns_cbranch_scc1 L_end\nbuffer_wbl2 sc1\ns_waitcnt vmcnt(0)\ns_endpgm")
    chain_role(A, P); qkv_role(A, P); o_role(A, P)
    body = A.text(verbose=P.get("verbose", False))
    return (HEAD + "; @launch grid=(256,1,1) block=(256,1,1) lds=163840\n"
            + f'.amdgcn_target "amdgcn-amd-amdhsa--gfx950"\n.text\n.globl {KN}\n.p2align 8\n.type {KN},@function\n{KN}:\n'
            + body + f"""
.section .rodata,"a"
.p2align 6
.amdhsa_kernel {KN}
  .amdhsa_next_free_vgpr 512
  .amdhsa_next_free_sgpr 102
  .amdhsa_accum_offset 256
  .amdhsa_group_segment_fixed_size 0
  .amdhsa_kernarg_size 120
  .amdhsa_user_sgpr_count 2
  .amdhsa_user_sgpr_kernarg_segment_ptr 1
  .amdhsa_system_sgpr_workgroup_id_x 1
  .amdhsa_float_denorm_mode_32 3
.end_amdhsa_kernel
""")

DEFAULT = dict(chain=dict(kearly=1), cdep=3, early=0, warm=None, owarm=1, sig=9, hold='a', qkv=dict(dep=3, n0=6, npre=5, lmin=10), o=dict(dmaskip=3))
if __name__ == "__main__":
    P = dict(DEFAULT)
    if len(sys.argv) > 2: P.update(eval(sys.argv[2]))
    out = sys.argv[1] if len(sys.argv) > 1 else "/code/" + NAME + ".s"
    txt = generate(P)
    open(out, "w").write(txt)
    print("wrote", out, len(txt), "bytes", txt.count("\n"), "lines")
```

```python
from asmlib import *
from layout import *
from common import *
from chain import Cnt, sWS, sT, sJ, sW, sC, sTmp, sLo, sHi

qL16, qL4, qT0, qT1, qFV, qT2 = range(6)
qST, qLK = 8, 9
qKA = 7
qRD = 120
qSRC = 12
ACC = 20
XB = 68
PK = 100
KEY = 116
qVT = 118
WB = dict(k=128, v=256, q=384)
def wop(m, k): return WB[m] + k * 4
def mf32(d, a, b, c): return f"v_mfma_f32_32x32x16_bf16 {v(d,16)}, {reg(a,4)}, {reg(b,4)}, {v(c,16) if c is not None else '0'}"
sLead, sI2, _, sQB, sB, sGo = range(40, 46)
sCur, sNxt, sPre, sPend, sPar, sKF, sOut, sSpin, sDm, sFk, sRun, sHW, sKey, sRow = range(46, 60)
sRep, sKind, sMode, sSrc = 60, 61, 62, 63
sG, sUp, sO = 64, 68, 72
sN2 = 76
NPL = 23
L_ML, L_PS, L_H, L_VT = 65536, 159744, 161792, 162816

def qkv_load_weights(A, n, g, first, orders, depth):
    NS = 5
    SRC, RD = 20, 22
    w_src_regs(A, qL16, SRC, 25)
    A(f"""
    s_load_dwordx2 s[{sG}:{sG+1}], s[0:1], {KA['wk']}
    s_load_dwordx2 s[{sUp}:{sUp+1}], s[0:1], {KA['wv']}
    s_load_dwordx2 s[{sT}:{sT+1}], s[0:1], {KA['wq']}
    s_mov_b32 s{sT+2}, {4*MB}
    s_mov_b32 s{sT+3}, 0x20000
    s_mov_b32 s{sG+2}, {4*MB}
    s_mov_b32 s{sG+3}, 0x20000
    s_mov_b32 s{sUp+2}, {4*MB}
    s_mov_b32 s{sUp+3}, 0x20000
    v_lshrrev_b32 v25, 2, v{n}
    v_lshrrev_b32 v26, 1, v{g}
    v_lshl_add_u32 v27, v26, 3, v25
    v_lshlrev_b32 v27, 8, v27
    v_lshl_add_u32 v26, v25, 1, v26
    v_and_b32 v25, 1, v{g}
    v_xor_b32 v26, v26, v25
    s_lshl_b32 s{sTmp}, s{sW}, 1
    v_xor_b32 v26, s{sTmp}, v26
    v_lshl_add_u32 v27, v26, 5, v27
    v_and_b32 v25, 3, v{n}
    v_lshl_add_u32 v{RD}, v25, 3, v27
    v_add_u32 v{RD+1}, 65536, v{RD}
    v_add_u32 v{RD+2}, 131072, v{RD}
    s_lshl_b32 s{sTmp+2}, s{sW}, 13
    s_lshl_b32 s{sTmp}, s{sW}, 18
    s_lshl_b32 s{sTmp+1}, s{sJ}, 8
    s_add_u32 s{sTmp}, s{sTmp}, s{sTmp+1}
    s_waitcnt lgkmcnt(0)
    """)
    srd = dict(k=sG, v=sUp, q=sT)
    LB = [A.label("q_ld") for _ in range(4)]
    if len(orders) > 1: A(f"s_cmp_eq_u32 s{sRep}, 1\ns_cbranch_scc1 {LB[1]}\ns_cmp_eq_u32 s{sRep}, 2\ns_cbranch_scc1 {LB[2]}")
    for c, order in enumerate(orders):
        A(f"{LB[c]}:")
        vm = Cnt(A, "vmcnt", 63)
        jobs = [(m, b) for m in order for b in range(4)]
        tk = {}
        def issue(i):
            m, b = jobs[i]
            A(f"s_add_u32 s{sTmp+1}, s{sTmp}, {b * 128 * 8192}")
            tk[i] = w_stage_dma(A, vm, srd[m], SRC, sTmp + 1, sTmp + 2, (i % NS) * 32768, 8)
        for i in range(depth): issue(i)
        if -1 in first: first[-1]()
        for i, (m, b) in enumerate(jobs):
            vm.wait(tk[i])
            A("s_barrier")
            if depth < NS and i + depth < len(jobs): issue(i + depth)
            base = (i % NS) * 32768
            for kl in range(8):
                for hq in range(2):
                    off = base + kl * 4096 + hq * 1024
                    A(f"ds_read_b64_tr_b16 {reg(wop(m, b*8+kl) + 2*hq, 2)}, v{RD + off // 65536} offset:{off % 65536}")
            if depth < NS: A("s_waitcnt lgkmcnt(0)")
            elif i + NS < len(jobs):
                A("s_waitcnt lgkmcnt(0)\ns_barrier")
                issue(i + NS)
        if c + 1 < len(orders): A(f"s_branch {LB[3]}")
    A(f"{LB[3]}:\ns_waitcnt lgkmcnt(0)\ns_barrier")

def spin(A, fail):
    A(f"s_add_u32 s{sSpin}, s{sSpin}, 1\ns_cmp_gt_u32 s{sSpin}, {SPIN_MAX}\ns_cbranch_scc1 {fail}")

VG, VD = 6, 7
def mlp_setup(A):
    A(f"""
    s_load_dwordx2 s[{sG}:{sG+1}], s[0:1], {KA['wg']}
    s_load_dwordx2 s[{sUp}:{sUp+1}], s[0:1], {KA['wu']}
    s_load_dwordx2 s[{sT}:{sT+1}], s[0:1], {KA['wd']}
    s_mov_b32 s{sG+2}, {512*1792*2}
    s_mov_b32 s{sUp+2}, {512*1792*2}
    s_mov_b32 s{sT+2}, {512*1792*2}
    v_lshrrev_b32 v{qT0}, 7, v{qL16}
    v_and_b32 v{qT1}, 0x70, v{qL16}
    v_mul_u32_u24 v{VG}, {16*3584}, v{qT0}
    v_add_u32 v{VG}, v{VG}, v{qT1}
    v_cmp_eq_u32 vcc, 0x70, v{qT1}
    v_mov_b32 v{qT1}, 0x7ff00000
    v_cndmask_b32 v{VG}, v{VG}, v{qT1}, vcc
    v_lshrrev_b32 v{qT0}, 8, v{qL16}
    v_mul_u32_u24 v{VD}, {14*1024}, v{qT0}
    v_and_b32 v{qT1}, 0xf0, v{qL16}
    v_add_u32 v{VD}, v{VD}, v{qT1}
    s_mul_i32 s{sTmp+8}, s{sW}, {128*3584}
    s_mul_i32 s{sTmp+1}, s{sJ}, 112
    s_add_u32 s{sTmp+8}, s{sTmp+8}, s{sTmp+1}
    s_mul_i32 s{sTmp+9}, s{sJ}, {56*1024}
    s_lshl_b32 s{sTmp+1}, s{sW}, 8
    s_add_u32 s{sTmp+9}, s{sTmp+9}, s{sTmp+1}
    s_waitcnt lgkmcnt(0)
    """)

def gu_load(A, vm, i, dst):
    srd = sUp if i % 2 else sG
    A(f"s_add_u32 s{sTmp+10}, s{sTmp+8}, {(i // 2) * 3584}")
    if dst is not None: return vm.issue(f"buffer_load_dwordx4 {v(dst, 4)}, v{VG}, s[{srd}:{srd+3}], s{sTmp+10} offen")
    t = vm.issue(f"buffer_load_dwordx4 v{VG}, s[{srd}:{srd+3}], s{sTmp+10} offen lds")
    A("s_add_u32 m0, m0, 1024")
    return t

def mlp_preload(A):
    mlp_setup(A)
    A(f"s_mul_i32 s{sTmp}, s{sW}, {NPL*1024}\ns_add_u32 m0, s{sTmp}, {L_ML}")
    vm = Cnt(A, "vmcnt", 63)
    for i in range(NPL): gu_load(A, vm, i, None)

def mlp(A, FAIL, getkey, inst, bx=32768, mid=None, mid2=None):
    W = f"s[{sWS}:{sWS+3}]"
    AOP, MSK, DG, XP, RING, TG = 20, 24, 28, 52, 60, 36
    LB = [36, 40, 44, qSRC, qSRC + 4, qRD, qRD + 4]
    DR = [RING + 4 + 4 * j for j in range(13)] + [48]
    HR = list(range(36, 48)) + [52, 53]
    vm = Cnt(A, "vmcnt", 63)
    tok = {}
    def xload():
        A(f"""
        s_andn2_b32 s{sRow}, 0xfff, s{sKey}
        s_lshl_b32 s{sTmp}, s{sKind}, 21
        s_lshl_b32 s{sTmp+1}, s{sRow}, 10
        s_add_u32 s{sTmp}, s{sTmp}, s{sTmp+1}
        s_lshl_b32 s{sTmp+1}, s{sW}, 8
        s_add_u32 s{sTmp}, s{sTmp}, s{sTmp+1}
        s_add_u32 s{sTmp}, s{sTmp}, {XB_}
        v_lshrrev_b32 v{qT2}, 7, v{qL16}
        v_lshlrev_b32 v{qT2}, 5, v{qT2}
        """)
        for i in range(2): t = vm.issue(f"buffer_load_dwordx4 v[{XP+4*i}:{XP+4*i+3}], v{qT2}, {W}, s{sTmp} offen offset:{16*i} sc1")
        return t
    if getkey is None: tx = xload()
    mlp_setup(A)
    A(f"s_xor_b32 s{sTmp+11}, s{sPar}, {bx}\ns_add_u32 s{sTmp+11}, s{sTmp+11}, s{sDm}\ns_mov_b32 m0, s{sTmp+11}")
    for i in range(NPL, 31): tok[i] = gu_load(A, vm, i, None)
    tok[31] = gu_load(A, vm, 31, RING)
    for j in range(14):
        if j == 1 and mid: tmid = mid(vm)
        tok[32 + j] = vm.issue(f"buffer_load_dwordx4 {v(DR[j], 4)}, v{VD}, s[{sT}:{sT+3}], s{sTmp+9} offen offset:{(j%4)*1024}")
        if j % 4 == 3: A(f"s_add_u32 s{sTmp+9}, s{sTmp+9}, 4096")
    if getkey is not None:
        getkey(); vm.reset()
        tx = xload()
    A(f"s_mov_b32 vcc_lo, 0xaaaaaaaa\ns_mov_b32 vcc_hi, 0xaaaaaaaa\nv_mov_b32 v{qT1}, 0xffff\nv_mov_b32 v{MSK}, 0xffff0000\nv_cndmask_b32 v{qT1}, v{qT1}, v{MSK}, vcc")
    for r in range(4):
        A(f"s_mov_b32 vcc_lo, {hex(0x03030303 << (2*r))}\ns_mov_b32 vcc_hi, {hex(0x03030303 << (2*r))}\nv_cndmask_b32 v{MSK+r}, 0, v{qT1}, vcc")
    A(f"s_mov_b32 s{sTmp+4}, 0x01000100\ns_mov_b32 s{sTmp+5}, 0x03020302")
    A(f"s_mul_i32 s{sTmp}, s{sW}, {NPL*1024}\ns_add_u32 s{sTmp}, s{sTmp}, {L_ML}\nv_add_u32 v{qT2}, s{sTmp}, v{qL16}\nv_add_u32 v{qT0}, s{sTmp+11}, v{qL16}")
    ld = Cnt(A, "lgkmcnt", 15); lt = {}
    def lrd(i):
        if i >= 31: return
        if i >= NPL: vm.wait(tok[i])
        lt[i] = ld.issue(f"ds_read_b128 {v(LB[i % 7], 4)}, v{qT2 if i < NPL else qT0} offset:{(i % NPL)*1024}")
    for i in range(7): lrd(i)
    vm.wait(tx)
    if mid:
        vm.wait(tmid); mid2(vm)
    for j in range(16):
        A(f"v_perm_b32 v{qT1}, v{XP+j//2}, v{XP+j//2}, s{sTmp+4+j%2}")
        for r in range(4): A(f"v_and_b32 v{AOP+r}, v{MSK+r}, v{qT1}")
        if j < 15: ld.wait(lt[2 * j + 1])
        else: ld.wait(lt[30]); vm.wait(tok[31])
        for m in range(2):
            i = 2 * j + m
            A(mfd(DG + 4 * m, AOP, LB[i % 7] if i < 31 else RING, DG + 4 * m if j else None))
            lrd(i + 7)
    A(f"""
    v_lshrrev_b32 v{qT0}, 8, v{qL16}
    v_and_b32 v{qT1}, 0xf0, v{qL16}
    v_lshlrev_b32 v{qT1}, 1, v{qT1}
    v_and_b32 v{qT2}, 1, v{qT0}
    v_lshl_add_u32 v{qT2}, v{qT2}, 4, v{qT1}
    v_add_u32 v{qT2}, s{sTmp+11}, v{qT2}
    s_mov_b32 exec_lo, 0x00ff00ff
    s_mov_b32 exec_hi, 0xff00ff00
    ds_write_b128 v{qT2}, v[{DG}:{DG+3}]
    ds_write_b128 v{qT2}, v[{DG+4}:{DG+7}] offset:512
    s_mov_b64 exec, -1
    s_xor_b32 s{sTmp}, s{sPar}, {bx}
    v_add_u32 v{qT2}, s{sTmp}, v{qL4}
    v_lshl_add_u32 v{qT1}, v{qT0}, 4, v{qT1}
    s_waitcnt lgkmcnt(0)
    s_barrier
    """)
    for w in range(4):
        for m in range(2): A(f"ds_read2st64_b32 v[{(TG, XP)[m]+2*w}:{(TG, XP)[m]+2*w+1}], v{qT2} offset0:{w*32+m*2} offset1:{w*32+m*2+1}")
    A("s_waitcnt lgkmcnt(0)")
    for k in (4, 2, 1):
        for q in (TG, XP):
            for i in range(k): A(f"v_add_f32 v{q+i}, v{q+i}, v{q+k+i}")
    rnd(A, TG); rnd(A, XP)
    A(f"v_mul_f32 v{TG+4}, {hex(f32bits(-math.log2(math.e)))}, v{TG}\nv_exp_f32 v{TG+4}, v{TG+4}\nv_add_f32 v{TG+4}, 1.0, v{TG+4}\nv_rcp_f32 v{TG+4}, v{TG+4}")
    A(f"v_mul_f32 v{TG}, v{TG}, v{TG+4}")
    rnd(A, TG)
    A(f"v_mul_f32 v{TG}, v{TG}, v{XP}\nv_cvt_pk_bf16_f32 v{TG}, v{TG}, v{TG}")
    A(f"s_lshl_b32 s{sTmp}, s{sW}, 8\ns_add_u32 s{sTmp}, s{sTmp}, {L_H}\nv_add_u32 v{qT2}, s{sTmp}, v{qL4}\nds_write_b32 v{qT2}, v{TG}")
    A(f"v_mul_u32_u24 v{qT2}, 56, v{qT0}\nv_add_u32 v{qT2}, s{sTmp}, v{qT2}")
    for q in range(7): A(f"ds_read_b64 v[{HR[2*q]}:{HR[2*q]+1}], v{qT2} offset:{8*q}")
    A("s_waitcnt lgkmcnt(0)")
    for j in range(14):
        a = (AOP, DG + 4)[j % 2]
        for r in range(4): A(f"v_and_b32 v{a+r}, v{MSK+r}, v{HR[j]}")
        vm.wait(tok[32 + j])
        A(mfd(DG, a, DR[j], DG if j else None))
    A(f"""
    v_lshrrev_b32 v{qT1}, 1, v{qT1}
    s_lshl_b32 s{sTmp}, s{inst}, 7
    s_add_u32 s{sTmp}, s{sTmp}, s{sHW}
    s_lshl_b32 s{sTmp}, s{sTmp}, 8
    s_add_u32 s{sTmp}, s{sTmp}, {MLPY - 64*32768}
    v_cvt_pk_bf16_f32 v{DG}, v{DG}, v{DG+1}
    v_cvt_pk_bf16_f32 v{DG+1}, v{DG+2}, v{DG+3}
    v_min_u32 v{DG}, -2, v{DG}
    v_min_u32 v{DG+1}, -2, v{DG+1}
    s_mov_b32 exec_hi, 0
    buffer_store_dwordx2 v[{DG}:{DG+1}], v{qT1}, {W}, s{sTmp} offen sc1
    s_mov_b32 exec_hi, -1
    """)

def gather(A, FAIL, inst, finish, keep=False):
    W = f"s[{sWS}:{sWS+3}]"
    DONE, L1 = A.label("m_done"), A.label("m_w")
    SEL, S0, XR, YR, XF, YF, RB = 20, 28, 36, 40, 44, 52, 60
    A(f"""
    s_lshl_b32 s{sTmp}, s{sKind}, 21
    s_lshl_b32 s{sTmp+1}, s{sRow}, 10
    s_add_u32 s{sTmp}, s{sTmp}, s{sTmp+1}
    s_add_u32 s{sTmp+1}, s{sTmp}, {XA}
    s_add_u32 s{sTmp+2}, s{sTmp}, {XB_}
    s_lshl_b32 s{sTmp}, s{inst}, 7
    s_add_u32 s{sTmp}, s{sTmp}, s{sW}
    s_lshl_b32 s{sTmp}, s{sTmp}, 8
    s_add_u32 s{sTmp}, s{sTmp}, {MLPY - 64*32768}
    v_lshrrev_b32 v{qT0}, 8, v{qL16}
    v_and_b32 v{qT1}, 0xf0, v{qL16}
    v_lshl_add_u32 v{qT2}, v{qT0}, 10, v{qT1}
    buffer_load_dwordx4 v[{XR}:{XR+3}], v{qL16}, {W}, s{sTmp+1} offen sc1
    buffer_load_dwordx4 v[{YR}:{YR+3}], v{qL16}, {W}, s{sTmp+2} offen sc1
    s_mov_b32 s{sSpin}, 0
    {L1}:
    """)
    for p in range(8):
        A(f"s_add_u32 s{sTmp+1}, s{sTmp}, {p*4096}\nbuffer_load_dwordx4 v[{RB+4*p}:{RB+4*p+3}], v{qT2}, {W}, s{sTmp+1} offen sc1")
    spin(A, FAIL)
    selmats(A, SEL, 4, S0)
    for p in range(8):
        r = RB + 4 * p
        A(f"s_waitcnt vmcnt({7-p})")
        A(mfd(S0, SEL, r, S0 if p else None))
        A(f"v_max3_u32 v{XF}, v{r}, v{r+1}, " + (f"v{XF}" if p else "0"))
        A(f"v_max3_u32 v{XF}, v{r+2}, v{r+3}, v{XF}")
    A(f"v_cmp_eq_u32 vcc, -1, v{XF}\ns_cbranch_vccnz {L1}")
    A(f"""
    v_lshlrev_b32 v{qT1}, 1, v{qT1}
    v_lshl_add_u32 v{qT1}, v{qT0}, 4, v{qT1}
    s_lshl_b32 s{sTmp}, s{sW}, 9
    s_add_u32 s{sTmp}, s{sTmp}, {L_PS}
    v_add_u32 v{qT1}, s{sTmp}, v{qT1}
    s_mov_b32 exec_hi, 0
    ds_write_b128 v{qT1}, v[{S0}:{S0+3}]
    s_mov_b32 exec_hi, -1
    v_lshlrev_b32 v{qT1}, 1, v{qL16}
    v_add_u32 v{qT1}, {L_PS}, v{qT1}
    """)
    unpack(A, XR, XF); unpack(A, YR, YF)
    TM = XR
    A(f"""
    s_waitcnt lgkmcnt(0)
    s_barrier
    s_cmp_lg_u32 s{sW}, 0
    s_cbranch_scc1 {DONE}
    ds_read_b128 v[{S0}:{S0+3}], v{qT1}
    ds_read_b128 v[{S0+4}:{S0+7}], v{qT1} offset:16
    s_and_b32 s{sTmp+3}, s{sKey}, 0xffff0000
    s_xor_b32 s{sTmp+1}, s{sTmp+3}, 0x80000000
    s_xor_b32 s{sTmp+2}, s{sTmp+3}, 0xffff0000
    s_bitcmp1_b32 s{sTmp+3}, 31
    s_cselect_b32 s{sTmp+3}, s{sTmp+1}, s{sTmp+2}
    v_mov_b32 v{TM}, s{sTmp+3}
    v_mul_f32 v{TM}, {hex(f32bits(-math.log2(math.e)))}, v{TM}
    v_exp_f32 v{TM}, v{TM}
    v_add_f32 v{TM}, 1.0, v{TM}
    v_rcp_f32 v{TM}, v{TM}
    """)
    rnd(A, TM)
    if keep:
        for i in range(8): A(f"v_add_f32 v{RB+i}, v{XF+i}, v{YF+i}")
        pack(A, RB, RB + 8)
        for i in range(4): A(f"v_accvgpr_write_b32 a{i}, v{RB+8+i}")
    A("s_waitcnt lgkmcnt(0)")
    for i in range(8): rnd(A, S0 + i)
    for i in range(8): A(f"v_mul_f32 v{S0+i}, v{S0+i}, v{TM}")
    for i in range(8): rnd(A, S0 + i)
    for i in range(8): A(f"v_add_f32 v{S0+i}, v{S0+i}, v{YF+i}")
    for i in range(8): rnd(A, S0 + i)
    for i in range(8): A(f"v_add_f32 v{XF+i}, v{XF+i}, v{S0+i}")
    pack(A, XF, YR); unpack(A, YR, XF)
    finish(XF, YR, RB)
    A(f"{DONE}:")

def qkv_role(A, P, first={}, after_weights=None, before_mlp=None, hold=None):
    W = f"s[{sWS}:{sWS+3}]"
    n, g = 6, 7
    A(f"""
    v_and_b32 v19, 63, v0
    v_and_b32 v{n}, 15, v19
    v_lshrrev_b32 v{g}, 4, v19
    v_lshlrev_b32 v{qL4}, 2, v19
    v_lshlrev_b32 v{qL16}, 4, v19
    v_lshlrev_b32 v{qLK}, {KSH}, v19
    s_mov_b32 s{sC}, {hex(f32bits(128 ** -0.5 * math.log2(math.e)))}
    s_lshl_b32 s{sHW}, s{sJ}, 2
    s_add_u32 s{sHW}, s{sHW}, s{sW}
    """)
    def tile_addr(par=False):
        A(f"v_lshrrev_b32 v24, 9, v{qL16}\nv_lshlrev_b32 v24, 4, v24\nv_and_b32 v25, 0xf0, v{qL16}\nv_xor_b32 v24, v24, v25\nv_and_b32 v25, 0x1f0, v{qL16}\nv_lshl_add_u32 v24, v25, 6, v24")
        if par: A(f"v_add_u32 v24, s{sPar}, v24")
        for cl in range(8): A(f"v_xor_b32 v{qRD+cl}, {cl*32}, v24")
        A(f"s_and_b32 s{sTmp}, s{sW}, 1\ns_lshl_b32 s{sTmp}, s{sTmp}, 7\nv_xor_b32 v24, s{sTmp}, v{qL16}")
        for i in range(8): A(f"v_xor_b32 v{qSRC+i}, {i*16}, v24")
    A(f"v_and_b32 v24, 1, v{g}\nv_lshlrev_b32 v24, 10, v24\nv_lshl_add_u32 v24, v{n}, 4, v24\nv_lshrrev_b32 v25, 1, v{g}\nv_lshl_add_u32 v{qST}, v25, 8, v24")
    tile_addr()
    A(f"s_lshl_b32 s{sTmp}, s{sW}, 2\ns_add_u32 s{sTmp}, s{sTmp}, {L_VT}\nv_lshrrev_b32 v24, 7, v{qL16}\nv_lshl_add_u32 v{qVT}, v24, 4, s{sTmp}")
    A(f"v_and_b32 v24, 48, v{qL16}\nv_add_u32 v{qVT+1}, {L_VT}, v24")
    qkv_load_weights(A, n, g, first, P.get('orders', ('kvq', 'vqk', 'qkv')), P.get('dep', 5))
    if after_weights: after_weights()
    def key_addr():
        A(f"v_lshrrev_b32 v{qKA}, 7, v{qL16}\nv_lshlrev_b32 v{qKA}, {KSH+5}, v{qKA}\nv_and_b32 v{qT0}, {(8 << KSH) - 1}, v{qLK}\ns_lshl_b32 s{sTmp}, s{sW}, {KSH+3}")
        A(f"v_add3_u32 v{qKA}, v{qKA}, v{qT0}, s{sTmp}\nv_mov_b32 v{KEY}, 0")
    key_addr()
    N0, NPRE = P.get("n0", 6), P.get("npre", 3)
    A(f"""
    s_mov_b32 s{sNxt}, s{sRep}
    s_add_u32 s{sN2}, s{sRep}, 3
    s_add_u32 s{sI2}, s{sRep}, 64
    s_mov_b32 s{sLead}, {3 * N0}
    s_mov_b32 s{sPre}, 0
    s_mov_b32 s{sPend}, {WS_BYTES}
    s_mov_b32 s{sQB}, {WS_BYTES}
    s_mov_b32 s{sPar}, 32768
    s_mov_b32 s{sRun}, 1
    s_mov_b32 s{sKind}, 0
    s_mov_b32 s{sMode}, 0
    s_lshl_b32 s{sDm}, s{sW}, 13
    """)
    SLOW, END, HAVE, POLL, FAIL, PATCH, NOPRE, FORK, COLD = [A.label("q_" + x) for x in
        ("slow", "end", "have", "poll", "fail", "patch", "nopre", "fork", "cold")]
    FORKW, NXT = A.label("q_forkw"), A.label("q_nxt")
    MF = P.get("mfirst", 1)
    CE = [A.label("q_c0"), A.label("q_c1")]; WE = [A.label("q_w0"), A.label("q_w1")]
    def post(A, off, val):
        A(f"s_mov_b64 exec, 1\nbuffer_store_dword v{val}, off, {W}, s{off} sc1\ns_mov_b64 exec, -1")
    def key_loads(A):
        A.append(("grp", [f"s_cmp_lt_u32 s{sNxt}, 64", f"s_cselect_b32 s{sTmp}, 2, 0"]))
        A(f"s_add_u32 s{sTmp}, s{sTmp}, s{sNxt}\ns_lshl_b32 s{sTmp}, s{sTmp}, {KSH+5}\ns_add_u32 s{sTmp}, s{sTmp}, {F_XN - 2*KSEG}")
        A.append(("grp", ["s_mov_b64 exec, 0xffffff", f"buffer_load_dword v{KEY}, v{qKA}, {W}, s{sTmp} offen sc1", "s_mov_b64 exec, -1"]))
    def key_eval(A):
        A(f"v_cmp_eq_u32 vcc, 0, v{KEY}\nv_max_u32_dpp v{KEY+1}, v{KEY}, v{KEY} quad_perm:[1,0,3,2] row_mask:0xf bank_mask:0xf")
        A.append(("grp", [f"s_and_b32 s{sPre}, vcc_lo, 0xffffff", f"s_cselect_b32 s{sPre}, 0, -1"]))
        A(f"v_max_u32_dpp v{KEY+1}, v{KEY+1}, v{KEY+1} quad_perm:[2,3,0,1] row_mask:0xf bank_mask:0xf\ns_nop 1")
        A(f"v_max_u32_dpp v{KEY+1}, v{KEY+1}, v{KEY+1} row_half_mirror row_mask:0xf bank_mask:0xf\nv_and_b32 v{KEY+1}, s{sPre}, v{KEY+1}")
    def vote_eval(A, V):
        A(f"v_min3_u32 v{V+4}, v{V}, v{V+1}, v{V+2}\nv_max3_u32 v{V}, v{V}, v{V+1}, v{V+2}\nv_min_u32 v{V+4}, v{V+4}, v{V+3}\nv_max_u32 v{V}, v{V}, v{V+3}")
        A(f"v_readfirstlane_b32 s{sGo}, v{V+4}")
        for i in range(3): A(f"v_readlane_b32 s{sTmp+2+i}, v{V}, {i}")
    def fold(A):
        for i in range(3):
            A(f"s_cmp_gt_u32 s{sTmp+2+i}, s{sRun}\ns_cselect_b32 s{sTmp}, s{sLead}, 0\ns_max_u32 s{sRun}, s{sRun}, s{sTmp+2+i}")
            if i == 2: A(f"s_add_u32 s{sN2}, s{sNxt}, s{sLead}\ns_add_u32 s{sI2}, s{sNxt}, 3\ns_sub_u32 s{sN2}, s{sN2}, 64")
            A(f"s_cmp_gt_u32 s{sTmp}, {P.get('lmin', 12)}")
            if i == 2: A(f"s_cselect_b32 s{sN2}, 64, s{sN2}")
            A(f"s_subb_u32 s{sLead}, s{sLead}, 0")
        A(f"s_cmp_lt_u32 s{sN2}, 64\ns_cselect_b32 s{sN2}, s{sN2}, s{sI2}\ns_cmp_lg_u32 s{sTmp}, 0")
    def dma(A, sid):
        A(f"s_and_b32 s{sSrc}, s{sid}, 127\ns_lshl_b32 s{sSrc}, s{sSrc}, 15\ns_xor_b32 s{sTmp+1}, s{sPar}, 32768")
        A(f"s_add_u32 m0, s{sTmp+1}, s{sDm}\ns_add_u32 s{sSrc}, s{sSrc}, s{sDm}\ns_add_u32 s{sSrc}, s{sSrc}, {XN}")
        for i in range(8):
            if i == 4: A(f"s_add_u32 m0, m0, 4096\ns_add_u32 s{sSrc}, s{sSrc}, 4096")
            A(f"buffer_load_dwordx4 v{qSRC+i}, {W}, s{sSrc} offen offset:{(i%4)*1024} sc1 lds")
    def advance(A):
        A.append(("grp", [f"s_add_u32 s{sN2}, s{sNxt}, 3", f"s_cmp_lt_u32 s{sN2}, {3 * N0}", f"s_cselect_b32 s{sN2}, s{sN2}, s{sI2}"]))
    def epi(a0, pk, base, off, scale):
        f = L()
        if scale:
            for r in range(16): f(f"v_mul_f32 v{a0+r}, s{sC}, v{a0+r}")
        for p in range(2):
            for d, r in enumerate((4*p, 4*p+2, 4*p+8, 4*p+10)): f(f"v_cvt_pk_bf16_f32 v{pk+4*p+d}, v{a0+r}, v{a0+r+1}")
            f(f"buffer_store_dwordx4 v[{pk+4*p}:{pk+4*p+3}], v{qST}, {W}, s{base} offen offset:{off+p*512} sc1")
        return f
    def emit(items):
        for x in items:
            if isinstance(x, str): A(x)
            else:
                for y in x[1]: A(y)
    NW_ = 3
    def rdtxt(i, par):
        k = i % 32
        r = XB + (i % 8) * 4
        return f"ds_read_b128 v[{r}:{r+3}], v{qRD+k%8} offset:{par*32768+(k//8)*256}"
    steps = [(m, k, k) for k in range(32) for m in "kv"] + [("q", k, 32 + k) for k in range(32)]
    last_use = {f: i for i, (_, _, f) in enumerate(steps)}
    def block(par):
        ld = Cnt(A, "lgkmcnt", 15)
        A(f"{CE[par]}:")
        tok = {}
        for i in range(NW_): tok[i] = ld.issue(rdtxt(i, par))
        A(f"{WE[par]}:")
        trace(A, 2, 10, sNxt)
        trace_clk(A, 10)
        f0 = L(); f0(f"s_mov_b32 s{sCur}, s{sNxt}\ns_mov_b32 s{sNxt}, s{sN2}")
        f0(f"s_lshl_b32 s{sOut}, s{sCur}, 7\ns_add_u32 s{sOut}, s{sOut}, s{sHW}\ns_lshl_b32 s{sB}, s{sOut}, 12\ns_add_u32 s{sB}, s{sB}, {KV}")
        f0 += epi(ACC + 32, PK, sQB, 0, False)
        f0(f"s_lshl_b32 s{sQB}, s{sOut}, 11\ns_add_u32 s{sQB}, s{sQB}, {QX}\ns_lshl_b32 s{sKF}, s{sOut}, 5\ns_add_u32 s{sKF}, s{sKF}, {F_KV}")
        f0(f"s_lshr_b32 s{sFk}, s{sNxt}, 7\ns_sub_u32 s{sTmp+1}, s{sNxt}, s{sRep}")
        f0.append(("grp", [f"s_cmp_eq_u32 s{sTmp+1}, {3*NPRE}", f"s_cselect_b32 s{sFk}, 1, s{sFk}"]))
        if hold: f0.append(("grp", [f"s_cmp_eq_u32 s{sTmp+1}, {3*P.get('hat', 1)}", f"s_cselect_b32 s{sFk}, 1, s{sFk}"]))
        advance(f0)
        fk = L(); key_loads(fk)
        f1 = L(); f1("s_waitcnt vmcnt(0)"); post(f1, sPend, qFV); key_eval(f1)
        f1.append(("grp", [f"s_cmp_lg_u32 s{sPre}, 0", f"s_cselect_b32 s{sTmp+2}, s{sNxt}, s{sCur}"]))
        dma(f1, sTmp + 2)
        f1(f"s_add_u32 s{sPend}, s{sKF}, 16")
        f1.append(("ds", f"ds_write_b32 v{qVT}, v{KEY+1} offset:{par*128}"))
        ek = epi(ACC, PK + 8, sB, 0, True)
        fills = {0: f0, P.get("p0", 12): fk, P.get("p1", 38): f1, 65: ek[:6] + epi(ACC + 16, PK, sB, 2048, False) + ek[6:]}
        q = []
        def fill(budget, vmok):
            while q and budget > 0:
                x = q[0]
                if not isinstance(x, str):
                    q.pop(0)
                    if x[0] == "ds": ld.issue(x[1]); budget -= 1
                    else:
                        for y in x[1]: A(y)
                        budget -= len(x[1])
                    continue
                if x.startswith("buffer_"):
                    if not vmok: break
                    vmok = False; budget -= 2
                budget -= 1
                A(q.pop(0))
                if x.startswith("s_mov_b64 exec, 1"):
                    A(q.pop(0)); A(q.pop(0)); budget -= 3
        nrd = NW_
        BAR = 90
        ve = L(); vote_eval(ve, PK)
        for i, (m, k, f) in enumerate(steps):
            a0 = ACC + 16 * "kvq".index(m)
            q += fills.get(i, [])
            if i == BAR:
                assert not q and nrd == 64
                A("s_waitcnt vmcnt(4) lgkmcnt(0)\ns_barrier"); ld.reset()
                tv = ld.issue(f"ds_read_b128 v[{PK}:{PK+3}], v{qVT+1} offset:{par*128}")
            elif i % 2 == 0 and i < BAR: ld.wait(tok[steps[i + 1][2]])
            x = XB + (f % 8) * 4
            cc = a0 if k else None
            A(mf32(a0, x, wop(m, k), cc) if m == "v" else mf32(a0, wop(m, k), x, cc))
            want = steps[min(95, i + 6 + max(0, i - 83))][2] + 1
            b = 6
            while nrd < want and (nrd < 8 or last_use[nrd - 8] <= i):
                tok[nrd] = ld.issue(rdtxt(nrd, par)); nrd += 1; b -= 1
            if BAR <= i < BAR + NW_: ld.issue(rdtxt(i - BAR, par ^ 1))
            if i == BAR + 1: A(f"s_xor_b32 s{sPar}, s{sPar}, 32768")
            if i == BAR + 3:
                ld.wait(tv); emit(ve[:5])
            if i == BAR + 4:
                emit(ve[5:]); A(f"s_cmp_gt_u32 s{sFk}, 0\ns_cselect_b32 s{sGo}, 0, s{sGo}")
            if i == P.get("pk", BAR + 2):
                A("s_waitcnt vmcnt(0)"); post(A, sKF, qFV)
            fill(b, i % 2 == 0 or i >= 64)
        A(f"s_cmp_eq_u32 s{sGo}, 0\ns_cbranch_scc1 {SLOW}\ns_cmp_lt_u32 s{sNxt}, 64\ns_cbranch_scc1 {WE[par ^ 1]}")
        fold(A)
        if MF: A(f"s_cbranch_scc0 {WE[par ^ 1]}\ns_branch {FORKW}")
        else: A(f"s_cselect_b32 s{sMode}, 1, 0\ns_branch {WE[par ^ 1]}")
    A(f"s_mov_b32 s{sPar}, 0\nv_mov_b32 v{qFV}, 1")
    A(f"{SLOW}:")
    trace(A, 1, 10)
    emit(epi(ACC + 32, PK, sQB, 0, False))
    A(f"""
    s_mov_b32 s{sQB}, {WS_BYTES}
    s_xor_b32 s{sPar}, s{sPar}, 32768
    {NXT}:
    s_cmp_ge_u32 s{sNxt}, 128
    s_cbranch_scc1 {END}
    s_cmp_lg_u32 s{sPre}, 0
    s_cbranch_scc1 {HAVE}
    s_mov_b32 s{sSpin}, 0
    {POLL}:
    """)
    f = L(); key_loads(f); emit(f)
    spin(A, FAIL)
    A("s_waitcnt vmcnt(0)")
    post(A, sPend, qFV)
    A(f"s_mov_b32 s{sPend}, {WS_BYTES}\nv_cmp_eq_u32 vcc, 0, v{KEY}\ns_nop 0\ns_and_b32 s{sTmp}, vcc_lo, 0xffffff\ns_cbranch_scc1 {POLL}")
    dma(A, sNxt)
    f = L(); key_eval(f); emit(f)
    A(f"""
    {HAVE}:
    ds_write_b32 v{qVT}, v{KEY+1} offset:256
    s_xor_b32 s{sPar}, s{sPar}, 32768
    s_waitcnt lgkmcnt(0)
    s_barrier
    ds_read_b128 v[{PK+8}:{PK+11}], v{qVT+1} offset:256
    s_cmp_lt_u32 s{sNxt}, 64
    s_cbranch_scc1 {NOPRE}
    s_waitcnt lgkmcnt(0)
    """)
    vote_eval(A, PK + 8)
    fold(A)
    A((f"s_cbranch_scc1 {FORK}" if MF else f"s_cselect_b32 s{sMode}, 1, 0") + f"\n{NOPRE}:")
    if hold:
        NH = A.label("q_nh")
        A(f"s_sub_u32 s{sTmp}, s{sNxt}, s{sRep}\ns_cmp_lg_u32 s{sTmp}, {3*P.get('hat', 1)}\ns_cbranch_scc1 {NH}\ns_waitcnt vmcnt(0)")
        post(A, sPend, qFV); A(f"s_mov_b32 s{sPend}, {WS_BYTES}")
        hold(); A(f"{NH}:")
    A(f"s_waitcnt vmcnt(0)\ns_sub_u32 s{sTmp}, s{sNxt}, s{sRep}\ns_cmp_lg_u32 s{sTmp}, {3*NPRE}\ns_cbranch_scc1 {COLD}")
    if before_mlp: before_mlp()
    mlp_preload(A)
    key_addr()
    A(f"{COLD}:\ns_waitcnt lgkmcnt(0)\ns_barrier\ns_cmp_lg_u32 s{sPar}, 0\ns_cbranch_scc1 {CE[1]}")
    block(0); block(1)
    sQ2 = 77
    def mini(lo, hi):
        ld = Cnt(A, "lgkmcnt", 15); tok = {}
        f0_ = steps[lo][2]; nrd = f0_
        for _ in range(4): tok[nrd] = ld.issue(rdtxt(nrd, 0)); nrd += 1
        for i in range(lo, hi):
            m, k, f = steps[i]
            a0 = ACC + 16 * "kvq".index(m)
            if i % 2 == 0: ld.wait(tok[steps[i + 1][2]])
            x = XB + (f % 8) * 4
            A(mf32(a0, x, wop(m, k), a0 if k else None) if m == "v" else mf32(a0, wop(m, k), x, a0 if k else None))
            want = steps[min(hi - 1, i + 6)][2] + 1
            while nrd < want: tok[nrd] = ld.issue(rdtxt(nrd, 0)); nrd += 1
    def both(vm, items, b1, b2):
        for x in items:
            if x.startswith("buffer_"): t = vm.issue(x); t = vm.issue(x.replace(f" s{b1} offen", f" s{b2} offen"))
            else: A(x)
        return t
    A(f"{FORKW}:")
    emit(epi(ACC + 32, PK, sQB, 0, False))
    A(f"s_mov_b32 s{sQB}, {WS_BYTES}\ns_waitcnt lgkmcnt(0)\n{FORK}:")
    A(f"s_mov_b32 s{sKey}, s{sRun}\ns_mov_b32 s{sCur}, s{sNxt}\ns_mov_b32 s{sNxt}, s{sN2}")
    f = L(); advance(f); emit(f)
    trace(A, 3, 10, sCur)
    def kv_part(vm):
        for cl in range(8): A(f"v_add_u32 v{qRD+cl}, s{sPar}, v{qRD+cl}")
        A(f"s_lshl_b32 s{sOut}, s{sCur}, 7\ns_add_u32 s{sOut}, s{sOut}, s{sHW}\ns_lshl_b32 s{sQ2}, s{sOut}, 12\ns_add_u32 s{sB}, s{sQ2}, {KV + 32*MB}\ns_add_u32 s{sQ2}, s{sQ2}, {KV}")
        A(f"s_lshl_b32 s{sKF}, s{sOut}, 5\ns_add_u32 s{sKF}, s{sKF}, {F_KV}\ns_waitcnt vmcnt({len(vm.q)})\ns_barrier")
        f = L(); post(f, sPend, qFV); A(f[0]); vm.issue(f[1]); A(f[2])
        A(f"v_mov_b32 v{qFV}, 2\ns_add_u32 s{sPend}, s{sKF}, 16")
        mini(0, 64)
        e = epi(ACC, PK + 8, sQ2, 0, True) + epi(ACC + 16, PK, sQ2, 2048, False)
        for x in e:
            if x.startswith("buffer_"): t = vm.issue(x)
            else: A(x)
        for x in e:
            if x.startswith("buffer_"): vm.issue(x.replace(f" s{sQ2} offen", f" s{sB} offen"))
        return t
    def kv_flag(vm):
        f = L(); post(f, sKF, qFV); A(f[0]); vm.issue(f[1]); A(f[2])
        trace(A, 2, 10, sCur)
    mlp(A, FAIL, None, sCur, mid=kv_part, mid2=kv_flag)
    key_addr(); tile_addr(True)
    trace(A, 4, 10)
    mini(64, 96)
    A(f"s_lshl_b32 s{sTmp+2}, s{sOut}, 11\ns_add_u32 s{sQ2}, s{sTmp+2}, {QX + 16*MB}\ns_add_u32 s{sTmp+2}, s{sTmp+2}, {QX}\ns_add_u32 s{sKF}, s{sKF}, {256*KB}\ns_mov_b32 s{sPre}, 0")
    tile_addr()
    both(Cnt(A, "vmcnt", 63), epi(ACC + 32, PK, sTmp + 2, 0, False), sTmp + 2, sQ2)
    def fin_fork(XF, PKr, TM):
        A(f"s_lshl_b32 s{sTmp+1}, s{sCur}, 5\ns_add_u32 s{sTmp+1}, s{sTmp+1}, s{sJ}\ns_lshl_b32 s{sTmp+1}, s{sTmp+1}, 10\ns_add_u32 s{sTmp+1}, s{sTmp+1}, {XM - 64*32768}")
        A(f"buffer_store_dwordx4 v[{PKr}:{PKr+3}], v{qL16}, {W}, s{sTmp+1} offen sc1")
        layernorm1(A, XF, None, TM + 12, TM)
        A(f"v_lshl_add_u32 v{qT1}, v{qL16}, 2, s{sPar}\nv_mov_b64 v[{TM}:{TM+1}], 0\nv_mov_b64 v[{TM+4}:{TM+5}], 0\nv_mov_b64 v[{TM+8}:{TM+9}], 0")
        for h in range(2):
            A(f"v_mov_b32 v{TM+2+4*h}, v{TM+12+h}\nv_mov_b32 v{TM+3+4*h}, v{TM+14+h}")
        for h in range(2):
            A(f"ds_write_b128 v{qT1}, v[{TM+2+4*h}:{TM+5+4*h}] offset:{4096+32*h}\nds_write_b128 v{qT1}, v[{TM+4*h}:{TM+3+4*h}] offset:{4096+32*h+16}")
    f = L(); key_loads(f); emit(f)
    gather(A, FAIL, sCur, fin_fork)
    NB_ = A.label("q_nb")
    post(A, sPend, qFV)
    A(f"s_mov_b32 s{sPend}, {WS_BYTES}\nv_mov_b32 v{qFV}, 1")
    f = L(); key_eval(f); emit(f)
    A(f"s_cmp_eq_u32 s{sPre}, 0\ns_cbranch_scc1 {NB_}")
    dma(A, sNxt)
    A(f"{NB_}:")
    D, IX, XA_ = 20, 32, 36
    A(f"""
    v_lshrrev_b32 v{qT0}, 8, v{qL16}
    v_and_b32 v{qT1}, 48, v{qL16}
    v_lshl_add_u32 v{qT1}, v{qT0}, 6, v{qT1}
    v_add_u32 v{qT1}, s{sPar}, v{qT1}
    s_mov_b32 vcc_lo, 0xcccccccc
    s_mov_b32 vcc_hi, 0xcccccccc
    v_mov_b32 v{IX}, 0x4444
    v_mov_b32 v{IX+1}, 0xeeee
    v_cndmask_b32 v{IX}, v{IX}, v{IX+1}, vcc
    s_waitcnt lgkmcnt(0)
    s_barrier
    """)
    trace(A, 7, 10)
    ld = Cnt(A, "lgkmcnt", 15); tk = {}
    def rd(t): tk[t] = ld.issue(f"ds_read_b128 v[{XA_+4*t}:{XA_+4*t+3}], v{qT1} offset:{4096+t*256}")
    for t in range(8): rd(t)
    for r in range(D, D + 12, 2): A(f"v_mov_b64 v[{r}:{r+1}], 0")
    sal = L()
    sal(f"s_and_b32 s{sTmp}, s{sRow}, 16\ns_lshl_b32 s{sTmp+1}, s{sTmp}, 6\ns_and_b32 s{sTmp+2}, s{sRow}, 15\ns_lshl4_add_u32 s{sTmp+1}, s{sTmp+2}, s{sTmp+1}")
    sal(f"s_add_u32 s{sQ2}, s{sQ2}, s{sTmp+1}\ns_add_u32 s{sTmp+1}, s{sTmp+1}, s{sB}\ns_lshr_b32 s{sTmp}, s{sTmp}, 1\ns_and_b32 s{sTmp+2}, s{sRow}, 3")
    sal(f"s_lshl1_add_u32 s{sTmp}, s{sTmp+2}, s{sTmp}\ns_and_b32 s{sTmp+2}, s{sRow}, 12\ns_lshl_b32 s{sTmp+2}, s{sTmp+2}, 6\ns_add_u32 s{sTmp}, s{sTmp}, s{sTmp+2}")
    sal(f"s_add_u32 s{sTmp}, s{sTmp}, s{sB}\nv_and_b32 v{qT0}, 0xc0, v{qL16}\nv_and_b32 v{qT2}, 12, v{qL4}\nv_lshrrev_b32 v{qT2}, 1, v{qT2}\nv_lshl_add_u32 v{qT0}, v{qT0}, 2, v{qT2}")
    for t in range(16):
        ld.wait(tk[t])
        for i, m in enumerate("kvq"):
            A(f"v_smfmac_f32_16x16x64_bf16 {v(D+4*i,4)}, {v(XA_+4*t,4)}, {reg(wop(m, 2*t),8)}, v{IX}")
            if i == 0 and t + 8 < 16: rd(t + 8)
            elif sal: A(sal.pop(0))
    for i in range(3): A(f"v_add_f32 v{D+4*i}, v{D+4*i}, v{D+4*i+2}\nv_add_f32 v{D+4*i+1}, v{D+4*i+1}, v{D+4*i+3}")
    A(f"v_mul_f32 v{D}, s{sC}, v{D}\nv_mul_f32 v{D+1}, s{sC}, v{D+1}")
    for i in range(3): A(f"v_cvt_pk_bf16_f32 v{D+4*i}, v{D+4*i}, v{D+4*i+1}")
    A(f"""
    s_mov_b64 exec, 0xffff
    buffer_store_short v{D}, v{qT0}, {W}, s{sTmp+1} offen sc1
    buffer_store_short_d16_hi v{D}, v{qT0}, {W}, s{sTmp+1} offen offset:8 sc1
    buffer_store_short v{D+4}, v{qL16}, {W}, s{sTmp} offen offset:2048 sc1
    buffer_store_short_d16_hi v{D+4}, v{qL16}, {W}, s{sTmp} offen offset:3072 sc1
    buffer_store_short v{D+8}, v{qT0}, {W}, s{sQ2} offen sc1
    buffer_store_short_d16_hi v{D+8}, v{qT0}, {W}, s{sQ2} offen offset:8 sc1
    s_mov_b64 exec, 3
    s_waitcnt vmcnt(0)
    buffer_store_dword v{qFV}, v{qL16}, {W}, s{sKF} offen sc1
    s_mov_b64 exec, -1
    """)
    trace(A, 8, 10)
    A(f"s_branch {NXT}")
    A(f"{END}:")
    A("s_waitcnt vmcnt(0)")
    post(A, sPend, qFV)
    A(f"s_cmp_lg_u32 s{sRep}, 0\ns_cbranch_scc1 {FAIL}")
    if P.get("nofinal"): A(f"s_branch {FAIL}")
    A(f"s_load_dwordx2 s[{sO}:{sO+1}], s[0:1], {KA['out']}\ns_mov_b32 s{sO+2}, {2*MB}\ns_mov_b32 s{sO+3}, 0x20000")
    FIN, NX = A.label("k_fin"), A.label("k_nx")
    A(f"s_mov_b32 s{sKey}, 0\ns_cmp_eq_u32 s{sW}, 3\ns_cselect_b32 s{sPre}, 7, 15\n{FIN}:")
    def getkey():
        Lw, Lx, Lr = A.label("k_w"), A.label("k_x"), A.label("k_r")
        sM, sI = sTmp + 6, sTmp + 7
        A(f"s_andn2_b32 s{sTmp+2}, 0xfe0, s{sRun}\ns_lshl_b32 s{sTmp+2}, s{sTmp+2}, {KSH}\ns_mov_b32 s{sTmp+3}, {F_XN + 2*KST}\nv_mov_b32 v24, {KST}")
        A(f"s_mov_b32 s{sSpin}, 0\ns_mov_b32 s{sI}, 3\nv_mov_b32 v53, s{sKey}\ns_and_b32 s{sM}, s{sPre}, 15\ns_cbranch_scc0 {Lx}\n{Lw}:")
        A(f"s_add_u32 s{sI}, s{sI}, 1\ns_and_b32 s{sI}, s{sI}, 3\ns_bitcmp1_b32 s{sM}, s{sI}\ns_cbranch_scc0 {Lw}")
        A(f"s_lshl2_add_u32 s{sTmp}, s{sI}, s{sW}\ns_lshl_b32 s{sTmp}, s{sTmp}, {KSH+7}\ns_add_u32 s{sTmp+1}, s{sTmp}, {2*KSEG}")
        for i in range(2):
            A(f"v_add_u32 v{22+i}, s{sTmp+i}, v{qLK}\nv_cmp_le_u32 vcc, s{sTmp+2}, v{22+i}\nv_cndmask_b32 v25, 0, v24, vcc\nv_add_u32 v{22+i}, v{22+i}, v25")
            A(f"buffer_load_dword v{20+i}, v{22+i}, {W}, s{sTmp+3} offen sc1")
        spin(A, FAIL)
        A(f"s_waitcnt vmcnt(0)\nv_min_u32 v52, v20, v21\nv_max3_u32 v53, v20, v21, v53\nv_cmp_eq_u32 vcc, 0, v52")
        A(f"s_cbranch_vccnz {Lw}\ns_bitset0_b32 s{sM}, s{sI}\ns_cmp_lg_u32 s{sM}, 0\ns_cbranch_scc1 {Lw}")
        for rot in (8, 4, 2, 1): A(f"v_max_u32_dpp v53, v53, v53 row_ror:{rot} row_mask:0xf bank_mask:0xf")
        for sw in ("16", "32"): A(f"v_mov_b32 v52, v53\nv_permlane{sw}_swap_b32 v53, v52\nv_max_u32 v53, v53, v52")
        A(f"{Lx}:\nds_write_b32 v{qVT}, v53 offset:256\ns_waitcnt vmcnt(0) lgkmcnt(0)\ns_barrier\nds_read_b128 v[20:23], v{qVT+1} offset:256\ns_waitcnt lgkmcnt(0)")
        A(f"v_max3_u32 v20, v20, v21, v22\nv_max_u32 v20, v20, v23\nv_readfirstlane_b32 s{sTmp}, v20")
        trace(A, 5, 10)
        A(f"s_cmp_eq_u32 s{sTmp}, s{sKey}\ns_cbranch_scc1 {FAIL}\ns_cmp_eq_u32 s{sKey}, 0\ns_mov_b32 s{sKey}, s{sTmp}\ns_cbranch_scc1 {Lr}")
        A(f"s_cmp_lg_u32 s{sHW}, 0\ns_cbranch_scc1 {Lr}\ns_lshl_b32 s{sTmp}, s{sRow}, 10\nbuffer_store_dwordx4 a[0:3], v{qL16}, s[{sO}:{sO+3}], s{sTmp} offen sc1\n{Lr}:")
        A(f"s_andn2_b32 s{sTmp}, 0xfe0, s{sRun}\ns_andn2_b32 s{sTmp+1}, 0xfe0, s{sKey}\ns_cmp_lt_u32 s{sTmp+1}, s{sTmp}\ns_cselect_b32 s{sKind}, 1, 2")
    def fin_out(XF, PKr, TM):
        A(f"s_lshl_b32 s{sTmp}, s{sRow}, 10\nbuffer_store_dwordx4 v[{PKr}:{PKr+3}], v{qL16}, s[{sO}:{sO+3}], s{sTmp} offen sc1")
    mlp(A, FAIL, getkey, sNxt)
    A(f"s_cmp_lg_u32 s{sJ}, 0\ns_cbranch_scc1 {NX}\ns_barrier")
    gather(A, FAIL, sNxt, fin_out, keep=True)
    trace(A, 6, 10)
    A(f"{NX}:\ns_add_u32 s{sNxt}, s{sNxt}, 3\ns_xor_b32 s{sPre}, s{sPre}, 31\ns_waitcnt vmcnt(0)\ns_barrier\ns_bitcmp1_b32 s{sPre}, 4\ns_cbranch_scc1 {FIN}")
    A(f"{FAIL}:")
```

```python
import sys
from asmlib import *
from layout import *
import common
import chain as C, qkv as Q, orole as O
from chain import sWS, sT, sJ, sW, sTmp

NAME = "interleave_layers__memory_aug_recurrent_mem_tr__moe_arch_mod__prompt"
KN = NAME + "_kernel"
sDbg = 12
sSlot = 90
sXcd = 91
sReal = 89
D_GO = 128

def wait_go(A, team, nw, fail, vt=20):
    L = A.label("g_wt")
    A(f"v_mbcnt_lo_u32_b32 v{vt}, -1, 0\nv_and_b32 v{vt}, {nw-1}, v{vt}\nv_add_lshl_u32 v{vt}, v{vt}, {team}, 2")
    A(f"s_mov_b32 s{sTmp}, 0\n{L}:\nglobal_load_dword v{vt+1}, v{vt}, s[{sDbg}:{sDbg+1}] offset:{D_GO} sc1")
    A(f"s_add_u32 s{sTmp}, s{sTmp}, 1\ns_cmp_gt_u32 s{sTmp}, {SPIN_MAX}\ns_cbranch_scc1 {fail}\ns_waitcnt vmcnt(0)")
    A(f"v_cmp_eq_u32 vcc, 0, v{vt+1}\nv_readfirstlane_b32 s{sTmp+1}, v{vt+1}\ns_cbranch_vccnz {L}")

def arrive(A, team, vt=20, st=sTmp + 10):
    L = A.label("g_ar")
    A(f"s_cmp_lg_u32 s{sW}, 0\ns_cbranch_scc1 {L}\ns_lshl_b32 s{st}, s{sReal}, 3\ns_lshl_b64 s[{st}:{st+1}], 1, s{st}")
    A(f"v_lshlrev_b32 v{vt+4}, 3, {team}\nv_mov_b32 v{vt}, s{st}\nv_mov_b32 v{vt+1}, s{st+1}\ns_mov_b64 exec, 1")
    A(f"global_atomic_add_x2 v[{vt+2}:{vt+3}], v{vt+4}, v[{vt}:{vt+1}], s[{sDbg}:{sDbg+1}] sc0\ns_mov_b64 exec, -1\n{L}:")

def arrive_fin(A, n, vt=20, st=sTmp + 10):
    L = A.label("g_af")
    A(f"""
    s_cmp_lg_u32 s{sW}, 0
    s_cbranch_scc1 {L}
    v_readfirstlane_b32 s{st}, v{vt+2}
    v_readfirstlane_b32 s{st+1}, v{vt+3}
    s_add_u32 s{st+2}, s{st}, s{st+1}
    s_mul_i32 s{st+2}, s{st+2}, 0x01010101
    s_lshr_b32 s{st+2}, s{st+2}, 24
    s_cmp_lg_u32 s{st+2}, {n-1}
    s_cbranch_scc1 {L}
    s_lshl_b32 s{st+2}, s{sReal}, 3
    s_lshr_b64 s[{st}:{st+1}], s[{st}:{st+1}], s{st+2}
    s_and_b32 s{st}, s{st}, 0xff
    s_cmp_eq_u32 s{st}, {n-1}
    s_cselect_b32 s{st}, 1, 2
    v_mov_b32 v{vt}, s{st}
    v_lshrrev_b32 v{vt+4}, 1, v{vt+4}
    s_mov_b64 exec, 1
    global_store_dword v{vt+4}, v{vt}, s[{sDbg}:{sDbg+1}] offset:{D_GO} sc1
    s_mov_b64 exec, -1
    {L}:
    """)

def entry(A, P):
    A(f"""
    s_cmp_ge_u32 s2, 256
    s_cbranch_scc1 L_end
    s_mov_b32 s{sWS+2}, {WS_BYTES}
    s_mov_b32 s{sWS+3}, 0x20000
    s_mov_b32 s{sT+3}, 0x20000
    s_getreg_b32 s{sReal}, hwreg(HW_REG_XCC_ID)
    s_and_b32 s{sReal}, s{sReal}, 7
    v_lshrrev_b32 v1, 6, v0
    s_and_b32 s{sXcd}, s2, 7
    s_lshr_b32 s{sSlot}, s2, 3
    v_readfirstlane_b32 s{sW}, v1
    """)
    if P.get("gmap"):
        A(f"s_lshl_b32 s{sXcd}, s{sXcd}, 2\ns_lshr_b32 s{sXcd}, {hex(sum(g << (4*i) for i, g in enumerate(P['gmap'])))}, s{sXcd}\ns_and_b32 s{sXcd}, s{sXcd}, 7")
    if P.get("fake_xcc"): A(P["fake_xcc"])
    A(f"""
    s_lshl_b32 s100, s{sXcd}, 5
    s_add_u32 s100, s100, s{sSlot}
    s_lshl_b32 s100, s100, 2
    s_add_u32 s100, s100, s{sW}
    s_lshl_b32 s100, s100, 12
    s_add_u32 s100, s100, {TRACE}
    s_cmp_lt_u32 s{sXcd}, 3
    s_cbranch_scc1 L_chain
    s_cmp_eq_u32 s{sXcd}, 7
    s_cbranch_scc1 L_qkv
    s_bitcmp1_b32 s{sSlot}, 4
    s_cbranch_scc1 L_qkv
    s_branch L_o
    """)

def late_args(A):
    A(f"s_load_dwordx2 s[{sWS}:{sWS+1}], s[0:1], {KA['ws']}\ns_load_dwordx2 s[{sDbg}:{sDbg+1}], s[0:1], {KA['dbg']}")

def hold(A, head, vt, mask=-1):
    L = A.label("g_h")
    A(f"s_lshl_b32 s{sTmp+1}, s{head}, 6\ns_add_u32 s{sTmp+1}, s{sTmp+1}, {F_KM}\ns_mov_b32 s{sTmp}, 0\n{L}:\nbuffer_load_dwordx2 v[{vt}:{vt+1}], off, s[{sWS}:{sWS+3}], s{sTmp+1} sc1")
    A(f"s_add_u32 s{sTmp}, s{sTmp}, 1\ns_cmp_gt_u32 s{sTmp}, {SPIN_MAX}\ns_cbranch_scc1 L_end\ns_waitcnt vmcnt(0)")
    A(f"v_and_or_b32 v{vt}, v{vt+1}, {mask}, v{vt}\nv_cmp_eq_u32 vcc, 0, v{vt}\ns_cbranch_vccnz {L}")

def chain_role(A, P):
    A("L_chain:")
    if "a" in P.get("kill", ""): A(f"s_cmp_lg_u32 s{sXcd}, 0\ns_cbranch_scc1 L_end")
    late_args(A)
    A(f"s_mov_b32 s{sJ}, s{sSlot}\ns_mov_b32 s{C.sChain}, s{sXcd}\ns_min_u32 s{C.sLayer}, s{sXcd}, 1")
    C.lane_consts(A)
    def sync():
        common.trace(A, 0, 28)
        A(f"s_lshl_b32 s{sTmp}, s{sJ}, 12\ns_cmp_eq_u32 s{sXcd}, 0\ns_cbranch_scc1 L_ch1\ns_cmp_eq_u32 s{sXcd}, 2\ns_cbranch_scc1 L_ch2")
        A(f"v_mov_b64 v[28:29], 0\nv_mov_b64 v[30:31], 0")
        for base, n, r in ((FLAGS, 17, 28), (MEMH, 22, 24)):
            if r == 24: A("s_branch L_ch0\nL_ch2:")
            for i in range(n):
                A(f"s_add_u32 s{sTmp+1}, s{sTmp}, {base + i*128*KB}\nbuffer_store_dwordx4 v[{r}:{r+3}], v{C.vW16}, s[{sWS}:{sWS+3}], s{sTmp+1} offen sc1")
        A("L_ch0:\ns_waitcnt vmcnt(0)\ns_barrier")
        arrive(A, f"s{sXcd}", 120)
        A("s_waitcnt vmcnt(0)")
        arrive_fin(A, 32, 120)
        A("L_ch1:")
    assert MLPY == MEMH + 512*KB
    vm, fin = C.chain_prologue(A, sync)
    def only0(f):
        L = A.label("g_o0")
        A(f"s_cmp_lg_u32 s{sXcd}, 0\ns_cbranch_scc1 {L}"); f(); A(f"{L}:")
    hooks = {0: lambda: only0(lambda: arrive(A, 0, 120)), 4: lambda: only0(lambda: arrive_fin(A, 32, 120))}
    def sig():
        A(f"s_or_b32 s{sTmp+10}, s{sXcd}, s{sW}\ns_cbranch_scc1 L_sig\ns_lshl_b32 s{sTmp+10}, s{sJ}, 6\ns_add_u32 s{sTmp+10}, s{sTmp+10}, {F_KM + 4}\nv_mov_b32 v120, 1")
        A(f"s_mov_b64 exec, 1\nbuffer_store_dword v120, off, s[{sWS}:{sWS+3}], s{sTmp+10} sc1\ns_mov_b64 exec, -1\nL_sig:")
    if P.get("sig"): hooks[P["sig"]] = sig
    def peek1():
        A(f"v_mbcnt_lo_u32_b32 v116, -1, 0\nv_and_b32 v116, 1, v116\nv_lshlrev_b32 v118, 2, v116\nglobal_load_dword v117, v118, s[{sDbg}:{sDbg+1}] offset:{D_GO} sc1")
    def peek2():
        A(f"v_cmp_eq_u32 vcc, 0, v117\nv_lshlrev_b32 v116, 12, v116\ns_or_b32 s{C.sPk}, vcc_lo, s{sXcd}\ns_cselect_b32 s{C.sPk}, 0, 1")
        A(f"s_lshl2_add_u32 s{sTmp+10}, s{sJ}, s{sW}\ns_lshl_b32 s{sTmp+10}, s{sTmp+10}, 5\ns_add_u32 s{sTmp+10}, s{sTmp+10}, {F_KV}")
        A(f"buffer_load_dword v118, v116, s[{sWS}:{sWS+3}], s{sTmp+10} offen sc1")
    hooks[6] = peek1; hooks[10] = peek2; hooks[12] = lambda: A("s_waitcnt vmcnt(0)")
    assert P.get("cdep", 5) <= 3 and P.get("sig") not in (0, 4, 6, 10)
    def hold_a():
        A(f"s_cmp_eq_u32 s{sXcd}, 0\ns_cbranch_scc1 L_ha")
        wait_go(A, 1, 1, "L_end", 116)
        A(f"s_and_b32 s{sTmp+2}, s{sJ}, {P.get('hmask', 28)}\ns_or_b32 s{sTmp+2}, s{sTmp+2}, {1 if P.get('hmask', 28) == 28 else 0}")
        hold(A, sTmp + 2, 116, f's{sXcd}' if P.get('blate', 0) else -1)
        A("L_ha:")
    if "a" in P.get("hold", ""): hooks[-3] = hold_a
    if "b" in P.get("hold", ""): hooks[-2] = hold_a
    C.chain_load_weights(A, vm, fin, hooks, P.get("order", "kqv"), warm=P.get("warm", ""), early=P.get("early", 1), depth=P.get("cdep", 5))
    A(f"v_readlane_b32 s{C.sPk+1}, v118, 1\nv_readlane_b32 s{sTmp}, v118, 0\nv_mov_b32 v21, v117\ns_and_b32 s{C.sPk}, s{C.sPk}, s{sTmp}\ns_cbranch_scc1 L_pk")
    wait_go(A, f"s{C.sLayer}", 2, "L_end")
    A("L_pk:")
    A(f"s_lshr_b32 s{sTmp}, s{sXcd}, 1\ns_nop 3\nv_readlane_b32 s{sTmp+1}, v21, s{sTmp}")
    A(f"s_cmp_lg_u32 s{sTmp+1}, 1\ns_cbranch_scc1 L_chain_x")
    CP = dict(P.get("chain", {}), steady=0, done="L_chdone", peek=1)
    C.chain_loop(A, CP)
    A("s_endpgm\nL_chain_x:")
    C.chain_loop(A, dict(CP, st="sc1"))
    A("s_endpgm")
    A(f"L_chdone:\ns_cmp_lg_u32 s{sXcd}, {0 if P.get('help', 1) else 9}\ns_cbranch_scc1 L_end")
    A(f"s_lshr_b32 s{sXcd}, s{sSlot}, 4\ns_add_u32 s{sXcd}, s{sXcd}, 7\nv_lshrrev_b32 v0, 4, v{C.vL16}\ns_waitcnt vmcnt(0) lgkmcnt(0)\ns_branch L_o")

def qkv_role(A, P):
    A("L_qkv:")
    if "q" in P.get("kill", ""): A("s_endpgm")
    A(f"""
    s_mul_i32 s{sTmp}, s{sXcd}, 15
    s_add_u32 s{sTmp}, s{sTmp}, s{sSlot}
    s_sub_u32 s{sTmp}, s{sTmp}, 61
    s_add_u32 s{sTmp+1}, s{sXcd}, 89
    s_cmp_eq_u32 s{sSlot}, 31
    s_cselect_b32 s{sTmp}, s{sTmp+1}, s{sTmp}
    s_add_u32 s{sTmp+1}, s{sSlot}, 60
    s_cmp_eq_u32 s{sXcd}, 7
    s_cselect_b32 s{sTmp}, s{sTmp+1}, s{sTmp}
    s_mul_i32 s{sJ}, s{sTmp}, 171
    s_lshr_b32 s{sJ}, s{sJ}, 9
    s_mul_i32 s{sTmp+1}, s{sJ}, 3
    s_sub_u32 s60, s{sTmp}, s{sTmp+1}
    s_add_u32 s{sJ}, s{sJ}, 4
    s_and_b32 s{sJ}, s{sJ}, 31
    """)
    Q.qkv_role(A, P.get("qkv", {}), {-1: lambda: late_args(A)}, after_weights=lambda: wait_go(A, 1, 1, "L_end"), before_mlp=lambda: wait_go(A, 2, 1, "L_end"),
               hold=(lambda: hold(A, sJ, 20)) if "q" in P.get("hold", "") else None)
    A("s_endpgm")

def o_body(A, P):
    LR = P.get("lr", 4)
    ROUND, TASK, NOFL, FL, PICK = [A.label("o_" + x) for x in ("round", "task", "nofl", "fl", "pick")]
    GA, GB, GD, NONE, NN, ADV = [A.label("o_" + x) for x in ("ga", "gb", "gd", "none", "nn", "adv")]
    sP, sBn, sBel, smA, smB, sSh, sAv, sLeft = 52, 53, 54, 55, 56, 57, 58, 59
    HELP, DL, DL1, DL2 = [A.label('o_' + x) for x in ('help', 'dl', 'dl1', 'dl2')]
    sThr = 89
    t = sTmp
    KV_ = (3 << O.B_KIND) | (1 << O.B_VALID)
    A(f"""
    s_mov_b32 s{O.sTask}, 1
    s_mov_b32 s{O.sTag}, 0
    s_mov_b32 s{O.sNk}, 0
    s_mov_b32 s{O.sRun}, 0
    s_mov_b32 s{O.sPrev}, 0
    s_mov_b32 s{O.sPre}, 0
    s_mov_b32 s{O.sPreK}, 0
    s_mov_b32 s{smA}, 0
    s_mov_b32 s{smB}, 0
    s_mov_b32 s{O.sKp}, {WS_BYTES}
    s_mov_b32 s{O.sBox}, s{O.cBX}
    s_mov_b32 s{O.sS}, s{O.sRep}
    s_mul_i32 s{O.sCur}, s{O.sS}, 257
    s_or_b32 s{O.sCur}, s{O.sCur}, {O.desc(0, 0, 1)}
    s_lshr_b32 s{sSh}, s{O.sRep}, 2
    s_cbranch_scc1 {HELP}
    {ROUND}:
    """)
    O.decide(A, "L_end")
    A(f"""
    s_lshr_b32 s{t+1}, s{O.sS}, 2
    s_andn2_b32 s{sP}, 0xfff, s{O.sRun}
    s_lshr_b32 s{sP}, s{sP}, 5
    s_min_u32 s{sP}, s{sP}, 64
    s_add_u32 s{t}, s{sP}, 3
    v_readlane_b32 s{sThr}, v{O.oTHR}, s{t+1}
    s_sub_u32 s{t}, s{t}, s{O.sRep}
    s_lshr_b32 s{t}, s{t}, 2
    s_bfm_b32 s{sBel}, s{t}, 0
    s_add_u32 s{sBn}, s{O.sCur}, {4*257}
    s_cmp_lt_u32 s{O.sS}, 60
    s_cselect_b32 s{sBn}, s{sBn}, 0
    s_cmp_lt_u32 s{O.sS}, 64
    s_cselect_b32 s{t}, {LR - 1}, 1
    s_sub_i32 s{t}, s{t+1}, s{t}
    s_max_i32 s{t}, s{t}, 0
    s_min_u32 s{t}, s{t}, 16
    s_bfm_b32 s{sAv}, s{t}, 0
    s_cmp_eq_u32 s{t+1}, 16
    s_cselect_b32 s{sLeft}, {P.get("b16", LR - 2)}, 1
    s_cmp_eq_u32 s{t+1}, 18
    s_cselect_b32 s{sLeft}, 64, s{sLeft}
    s_cselect_b32 s{O.sFin}, 0, -1
    s_cselect_b32 s{sThr}, 0, s{sThr}
    s_cbranch_scc1 {DL}
    {PICK}:
    s_cmp_eq_u32 s{sLeft}, 0
    s_cbranch_scc1 {NONE}
    s_sub_u32 s{sLeft}, s{sLeft}, 1
    s_andn2_b32 s{t}, s{sAv}, s{smA}
    s_and_b32 s{t}, s{t}, s{sBel}
    s_cbranch_scc1 {GA}
    s_and_b32 s{t}, s{smA}, s{O.sFin}
    s_or_b32 s{t}, s{t}, s{smB}
    s_or_b32 s{t}, s{t}, s{sBel}
    s_andn2_b32 s{t}, s{sAv}, s{t}
    s_cbranch_scc0 {NONE}
    s_cmp_ge_u32 s{O.sRun}, s{sThr}
    s_cbranch_scc1 {GB}
    {GA}:
    s_ff1_i32_b32 s{t}, s{t}
    s_bitset1_b32 s{smA}, s{t}
    s_mov_b32 s{O.sNxt}, {O.desc(1, 1, 2)}
    s_mov_b32 s{t+1}, s{O.sNxt}
    s_branch {GD}
    {NONE}:
    s_cmp_lt_u32 s{O.sS}, 60
    s_cbranch_scc1 {NN}
    s_cmp_eq_u32 s{O.sFin}, 0
    s_cbranch_scc1 {NN}
    s_and_b32 s{t}, s{O.sCur}, {KV_}
    s_cmp_eq_u32 s{t}, {1 << O.B_VALID}
    s_cbranch_scc1 {NN}
    s_cmp_lt_u32 s{O.sS}, 64
    s_cbranch_scc1 {ADV}
    s_and_b32 s{t}, s{O.sPrev}, {KV_}
    s_cmp_lg_u32 s{t}, {1 << O.B_VALID}
    s_cbranch_scc1 {ADV}
    {NN}:
    s_mov_b32 s{O.sNxt}, s{sBn}
    s_mov_b32 s{O.sRet}, 0
    s_branch {TASK}
    {GB}:
    s_ff1_i32_b32 s{t}, s{t}
    s_bitset1_b32 s{smB}, s{t}
    s_andn2_b32 s{t+1}, 31, s{O.sRun}
    s_or_b32 s{t+1}, s{t+1}, 32
    s_lshl_b32 s{t+1}, s{t+1}, {O.B_ROW}
    s_or_b32 s{t+1}, s{t+1}, {O.desc(2, 2, 3)}
    s_mov_b32 s{O.sNxt}, {O.desc(1, 2, 3)}
    {GD}:
    s_and_b32 s{t+2}, s{t}, s{sSh}                 ; helpers hold two replicas' tasks interleaved
    s_lshr_b32 s{t}, s{t}, s{sSh}
    s_lshl2_add_u32 s{t}, s{t}, s{O.sRep}
    s_add_u32 s{t}, s{t}, s{t+2}
    s_cmp_eq_u32 s{t}, s{sP}
    s_cselect_b32 s{O.sNxt}, s{t+1}, s{O.sNxt}
    s_mul_i32 s{t}, s{t}, 257
    s_or_b32 s{O.sNxt}, s{O.sNxt}, s{t}
    s_mov_b32 s{O.sRet}, 1
    {TASK}:
    s_cmp_eq_u32 s{O.sCur}, 0
    s_cbranch_scc1 {NOFL}
    """)
    O.o_task(A, P, "L_end")
    A(f"s_cmp_lg_u32 s{O.sPreK}, 0\ns_cbranch_scc1 {NOFL}\ns_and_b32 s{t}, s{O.sCur}, {3 << O.B_KIND}\ns_cbranch_scc0 {FL}")
    A(f"s_and_b32 s{t}, s{O.sNxt}, {'s%d' % O.sFin if P.get('finfl', 1) else -1}\ns_cbranch_scc1 {NOFL}\n{FL}:")
    O.r_flush(A, P, "L_end")
    A(f"""
    {NOFL}:
    s_mov_b32 s{O.sCur}, s{O.sNxt}
    s_cmp_lg_u32 s{O.sRet}, 0
    s_cbranch_scc1 {PICK}
    s_cmp_eq_u32 s{O.sFin}, 0
    s_cbranch_scc1 {'L_wb' if P.get('wb') else 'L_end'}
    {ADV}:
    s_add_u32 s{O.sS}, s{O.sS}, 4
    s_branch {ROUND}
    {DL}:
    s_and_b32 s{t}, s{smA}, s{sBel}
    s_andn2_b32 s{t+1}, s{smB}, s{sBel}
    s_or_b32 s{t}, s{t}, s{t+1}
    s_andn2_b32 s{t}, s{sAv}, s{t}
    s_bcnt1_i32_b32 s{t+1}, s{t}
    s_add_u32 s{t+1}, s{t+1}, {P.get('dla', 0)}
    s_mul_i32 s{t+1}, s{t+1}, {86 if P.get('help', 1) else 0}
    s_lshr_b32 s{t+1}, s{t+1}, 8
    {DL1}:
    s_cbranch_scc0 {DL2}
    s_ff1_i32_b32 s{t+2}, s{t}
    s_bitset0_b32 s{t}, s{t+2}
    s_bitset0_b32 s{sAv}, s{t+2}
    s_sub_u32 s{t+1}, s{t+1}, 1
    s_cmp_lg_u32 s{t+1}, 0
    s_branch {DL1}
    {DL2}:
    s_xor_b32 s{t}, s{sAv}, 0x8000ffff
    s_lshl_b32 s{t+1}, s{O.sRep}, 7
    s_add_u32 s{t+1}, s{t+1}, {F_DL}
    s_cmp_lg_u32 s{O.cTK}, 0
    s_cbranch_scc1 {PICK}
    v_mov_b32 v162, s{t}
    v_mov_b32 v163, s{O.sRun}
    s_mov_b64 exec, 1
    buffer_store_dwordx2 v[162:163], off, s[{sWS}:{sWS+3}], s{t+1} sc1
    s_mov_b64 exec, -1
    s_branch {PICK}
    {HELP}:
    s_lshl_b32 s{O.sRep}, s{O.sRep}, 1
    s_and_b32 s{O.sRep}, s{O.sRep}, 2
    s_lshl_b32 s{t+1}, s{O.sRep}, 7
    s_add_u32 s{t+1}, s{t+1}, {F_DL}
    s_mov_b32 s{O.sSpin}, 0
    {HELP}_w:
    buffer_load_dwordx2 v[162:163], off, s[{sWS}:{sWS+3}], s{t+1} sc1
    buffer_load_dword v164, off, s[{sWS}:{sWS+3}], s{t+1} offset:128 sc1
    s_add_u32 s{O.sSpin}, s{O.sSpin}, 1
    s_cmp_gt_u32 s{O.sSpin}, {SPIN_MAX}
    s_cbranch_scc1 L_end
    s_waitcnt vmcnt(0)
    v_readfirstlane_b32 s{t+2}, v162
    v_readfirstlane_b32 s{t+4}, v164
    v_readfirstlane_b32 s{O.sRun}, v163
    s_and_b32 s{t}, s{t+2}, s{t+4}
    s_bitcmp1_b32 s{t}, 31
    s_cbranch_scc0 {HELP}_w
    s_bitreplicate_b64_b32 s[{t+2}:{t+3}], s{t+2}
    s_bitreplicate_b64_b32 s[{t+4}:{t+5}], s{t+4}
    s_and_b32 s{t+2}, s{t+2}, 0x55555555
    s_and_b32 s{t+4}, s{t+4}, 0xaaaaaaaa
    s_or_b32 s{sAv}, s{t+2}, s{t+4}
    s_andn2_b32 s{sP}, 0xfff, s{O.sRun}
    s_lshr_b32 s{sP}, s{sP}, 5
    s_sub_u32 s{t}, s{sP}, s{O.sRep}
    s_add_u32 s{t+1}, s{t}, 3
    s_add_u32 s{t}, s{t}, 2
    s_lshr_b32 s{t+1}, s{t+1}, 2
    s_lshr_b32 s{t}, s{t}, 2
    s_add_u32 s{t}, s{t}, s{t+1}
    s_bfm_b64 s[{t+2}:{t+3}], s{t}, 0
    s_mov_b32 s{sBel}, s{t+2}
    s_mov_b32 s{sBn}, 0
    s_mov_b32 s{O.sCur}, 0
    s_mov_b32 s{O.sS}, 72
    s_mov_b32 s{sLeft}, 64
    s_mov_b32 s{O.sFin}, 0
    s_mov_b32 s{sThr}, 0
    s_branch {PICK}
    """)

def o_role(A, P):
    W = f"s[{sWS}:{sWS+3}]"
    A("L_o:")
    if "o" in P.get("kill", ""): A("s_endpgm")
    A(f"s_sub_u32 s{O.sRep}, s{sXcd}, 3\ns_and_b32 s{O.sU}, s{sSlot}, 15")
    O.o_prologue(A, lambda: late_args(A), lambda: wait_go(A, 1, 1, "L_end", 60), P.get("o", {}), (lambda: hold(A, O.sHd, 60)) if "o" in P.get("hold", "") else None)
    arrive(A, f"s{sXcd}", 48)
    A("s_waitcnt vmcnt(0)")
    arrive_fin(A, 16, 48)
    if P.get("owarm"):
        A(f"s_lshr_b32 s{sTmp}, s{O.sRep}, 1\ns_cmp_lg_u32 s{sTmp}, 1\ns_cbranch_scc1 L_ow\ns_and_b32 s{sTmp+2}, s{O.sHd}, 28\ns_or_b32 s{sTmp+2}, s{sTmp+2}, 1")
        if P["owarm"] in (1, 3): hold(A, sTmp + 2, 60, -1 if P["owarm"] == 1 else 0)
        A(f"s_mov_b32 s{sT+2}, {512*1792*2}")
        for m in ("wg", "wu", "wd"):
            A(f"s_load_dwordx2 s[{sT}:{sT+1}], s[0:1], {KA[m]}\ns_mul_i32 s{sTmp}, s{O.sRow}, 14336\ns_sub_u32 s{sTmp}, s{sTmp}, {128*14336}\ns_waitcnt lgkmcnt(0)")
            for i in range(14):
                A(f"buffer_load_dwordx4 v[64:67], v{O.oL16}, s[{sT}:{sT+3}], s{sTmp} offen offset:{(i%4)*1024}")
                if i % 4 == 3: A(f"s_add_u32 s{sTmp}, s{sTmp}, 4096")
        A("L_ow:")
    wait_go(A, f"s{sXcd}", 1, "L_end", 60)
    A(f"s_cmp_lg_u32 s{sTmp+1}, 1\ns_cbranch_scc1 L_o_x")
    OP = dict(P.get("o", {}), help=P.get("help", 1))
    o_body(A, OP)
    A("L_o_x:")
    o_body(A, dict(OP, st="sc1"))

HEAD = open("cdna_kernels/" + NAME + ".s.ref").read().split("; Override launch")[0] if True else ""

def generate(P):
    common.TRACE_ON[0] = P.get("trace", 0)
    A = Asm()
    entry(A, P)
    A("L_end:\ns_endpgm")
    if P.get("o", {}).get("wb"): A(f"L_wb:\ns_cmp_lg_u32 s{O.cTK}, 0\ns_cbranch_scc1 L_end\nbuffer_wbl2 sc1\ns_waitcnt vmcnt(0)\ns_endpgm")
    chain_role(A, P); qkv_role(A, P); o_role(A, P)
    body = A.text(verbose=P.get("verbose", False))
    return (HEAD + "; @launch grid=(256,1,1) block=(256,1,1) lds=163840\n"
            + f'.amdgcn_target "amdgcn-amd-amdhsa--gfx950"\n.text\n.globl {KN}\n.p2align 8\n.type {KN},@function\n{KN}:\n'
            + body + f"""
.section .rodata,"a"
.p2align 6
.amdhsa_kernel {KN}
  .amdhsa_next_free_vgpr 512
  .amdhsa_next_free_sgpr 102
  .amdhsa_accum_offset 256
  .amdhsa_group_segment_fixed_size 0
  .amdhsa_kernarg_size 120
  .amdhsa_user_sgpr_count 2
  .amdhsa_user_sgpr_kernarg_segment_ptr 1
  .amdhsa_system_sgpr_workgroup_id_x 1
  .amdhsa_float_denorm_mode_32 3
.end_amdhsa_kernel
""")

DEFAULT = dict(chain=dict(kearly=1, fp=1, z1=15), cdep=3, early=0, warm=None, owarm=1, sig=8, hold='a', qkv=dict(dep=3, n0=6, npre=5, lmin=10), o=dict(dmaskip=3))
if __name__ == "__main__":
    P = dict(DEFAULT)
    if len(sys.argv) > 2: P.update(eval(sys.argv[2]))
    out = sys.argv[1] if len(sys.argv) > 1 else "/code/" + NAME + ".s"
    txt = generate(P)
    open(out, "w").write(txt)
    print("wrote", out, len(txt), "bytes", txt.count("\n"), "lines")
```

```python
from asmlib import *
from layout import *
from common import *
from chain import Cnt, sWS, sT, sJ, sW, sC, sTmp, sLo, sHi

qL16, qL4, qT0, qT1, qFV, qT2 = range(6)
qST, qLK = 8, 9
qKA = 7
qRD = 120
qSRC = 12
ACC = 20
XB = 68
PK = 100
KEY = 116
qVT = 118
WB = dict(k=128, v=256, q=384)
def wop(m, k): return WB[m] + k * 4
def mf32(d, a, b, c): return f"v_mfma_f32_32x32x16_bf16 {v(d,16)}, {reg(a,4)}, {reg(b,4)}, {v(c,16) if c is not None else '0'}"
sLead, sI2, _, sQB, sB, sGo = range(40, 46)
sCur, sNxt, sPre, sPend, sPar, sKF, sOut, sSpin, sDm, sFk, sRun, sHW, sKey, sRow = range(46, 60)
sRep, sKind, sMode, sSrc = 60, 61, 62, 63
sG, sUp, sO = 64, 68, 72
sN2 = 76
NPL = 23
L_ML, L_PS, L_H, L_VT = 65536, 159744, 161792, 162816

def qkv_load_weights(A, n, g, first, orders, depth):
    NS = 5
    SRC, RD = 20, 22
    w_src_regs(A, qL16, SRC, 25)
    A(f"""
    s_load_dwordx2 s[{sG}:{sG+1}], s[0:1], {KA['wk']}
    s_load_dwordx2 s[{sUp}:{sUp+1}], s[0:1], {KA['wv']}
    s_load_dwordx2 s[{sT}:{sT+1}], s[0:1], {KA['wq']}
    s_mov_b32 s{sT+2}, {4*MB}
    s_mov_b32 s{sT+3}, 0x20000
    s_mov_b32 s{sG+2}, {4*MB}
    s_mov_b32 s{sG+3}, 0x20000
    s_mov_b32 s{sUp+2}, {4*MB}
    s_mov_b32 s{sUp+3}, 0x20000
    v_lshrrev_b32 v25, 2, v{n}
    v_lshrrev_b32 v26, 1, v{g}
    v_lshl_add_u32 v27, v26, 3, v25
    v_lshlrev_b32 v27, 8, v27
    v_lshl_add_u32 v26, v25, 1, v26
    v_and_b32 v25, 1, v{g}
    v_xor_b32 v26, v26, v25
    s_lshl_b32 s{sTmp}, s{sW}, 1
    v_xor_b32 v26, s{sTmp}, v26
    v_lshl_add_u32 v27, v26, 5, v27
    v_and_b32 v25, 3, v{n}
    v_lshl_add_u32 v{RD}, v25, 3, v27
    v_add_u32 v{RD+1}, 65536, v{RD}
    v_add_u32 v{RD+2}, 131072, v{RD}
    s_lshl_b32 s{sTmp+2}, s{sW}, 13
    s_lshl_b32 s{sTmp}, s{sW}, 18
    s_lshl_b32 s{sTmp+1}, s{sJ}, 8
    s_add_u32 s{sTmp}, s{sTmp}, s{sTmp+1}
    s_waitcnt lgkmcnt(0)
    """)
    srd = dict(k=sG, v=sUp, q=sT)
    LB = [A.label("q_ld") for _ in range(4)]
    if len(orders) > 1: A(f"s_cmp_eq_u32 s{sRep}, 1\ns_cbranch_scc1 {LB[1]}\ns_cmp_eq_u32 s{sRep}, 2\ns_cbranch_scc1 {LB[2]}")
    for c, order in enumerate(orders):
        A(f"{LB[c]}:")
        vm = Cnt(A, "vmcnt", 63)
        jobs = [(m, b) for m in order for b in range(4)]
        tk = {}
        def issue(i):
            m, b = jobs[i]
            A(f"s_add_u32 s{sTmp+1}, s{sTmp}, {b * 128 * 8192}")
            tk[i] = w_stage_dma(A, vm, srd[m], SRC, sTmp + 1, sTmp + 2, (i % NS) * 32768, 8)
        for i in range(depth): issue(i)
        if -1 in first: first[-1]()
        for i, (m, b) in enumerate(jobs):
            vm.wait(tk[i])
            A("s_barrier")
            if depth < NS and i + depth < len(jobs): issue(i + depth)
            base = (i % NS) * 32768
            for kl in range(8):
                for hq in range(2):
                    off = base + kl * 4096 + hq * 1024
                    A(f"ds_read_b64_tr_b16 {reg(wop(m, b*8+kl) + 2*hq, 2)}, v{RD + off // 65536} offset:{off % 65536}")
            if depth < NS: A("s_waitcnt lgkmcnt(0)")
            elif i + NS < len(jobs):
                A("s_waitcnt lgkmcnt(0)\ns_barrier")
                issue(i + NS)
        if c + 1 < len(orders): A(f"s_branch {LB[3]}")
    A(f"{LB[3]}:\ns_waitcnt lgkmcnt(0)\ns_barrier")

def spin(A, fail):
    A(f"s_add_u32 s{sSpin}, s{sSpin}, 1\ns_cmp_gt_u32 s{sSpin}, {SPIN_MAX}\ns_cbranch_scc1 {fail}")

VG, VD = 6, 7
def mlp_setup(A):
    A(f"""
    s_load_dwordx2 s[{sG}:{sG+1}], s[0:1], {KA['wg']}
    s_load_dwordx2 s[{sUp}:{sUp+1}], s[0:1], {KA['wu']}
    s_load_dwordx2 s[{sT}:{sT+1}], s[0:1], {KA['wd']}
    s_mov_b32 s{sG+2}, {512*1792*2}
    s_mov_b32 s{sUp+2}, {512*1792*2}
    s_mov_b32 s{sT+2}, {512*1792*2}
    v_lshrrev_b32 v{qT0}, 7, v{qL16}
    v_and_b32 v{qT1}, 0x70, v{qL16}
    v_mul_u32_u24 v{VG}, {16*3584}, v{qT0}
    v_add_u32 v{VG}, v{VG}, v{qT1}
    v_cmp_eq_u32 vcc, 0x70, v{qT1}
    v_mov_b32 v{qT1}, 0x7ff00000
    v_cndmask_b32 v{VG}, v{VG}, v{qT1}, vcc
    v_lshrrev_b32 v{qT0}, 8, v{qL16}
    v_mul_u32_u24 v{VD}, {14*1024}, v{qT0}
    v_and_b32 v{qT1}, 0xf0, v{qL16}
    v_add_u32 v{VD}, v{VD}, v{qT1}
    s_mul_i32 s{sTmp+8}, s{sW}, {128*3584}
    s_mul_i32 s{sTmp+1}, s{sJ}, 112
    s_add_u32 s{sTmp+8}, s{sTmp+8}, s{sTmp+1}
    s_mul_i32 s{sTmp+9}, s{sJ}, {56*1024}
    s_lshl_b32 s{sTmp+1}, s{sW}, 8
    s_add_u32 s{sTmp+9}, s{sTmp+9}, s{sTmp+1}
    s_waitcnt lgkmcnt(0)
    """)

def gu_load(A, vm, i, dst):
    srd = sUp if i % 2 else sG
    A(f"s_add_u32 s{sTmp+10}, s{sTmp+8}, {(i // 2) * 3584}")
    if dst is not None: return vm.issue(f"buffer_load_dwordx4 {v(dst, 4)}, v{VG}, s[{srd}:{srd+3}], s{sTmp+10} offen")
    t = vm.issue(f"buffer_load_dwordx4 v{VG}, s[{srd}:{srd+3}], s{sTmp+10} offen lds")
    A("s_add_u32 m0, m0, 1024")
    return t

def mlp_preload(A):
    mlp_setup(A)
    A(f"s_mul_i32 s{sTmp}, s{sW}, {NPL*1024}\ns_add_u32 m0, s{sTmp}, {L_ML}")
    vm = Cnt(A, "vmcnt", 63)
    for i in range(NPL): gu_load(A, vm, i, None)

def mlp(A, FAIL, getkey, inst, bx=32768, mid=None, mid2=None):
    W = f"s[{sWS}:{sWS+3}]"
    AOP, MSK, DG, XP, RING, TG = 20, 24, 28, 52, 60, 36
    LB = [36, 40, 44, qSRC, qSRC + 4, qRD, qRD + 4]
    DR = [RING + 4 + 4 * j for j in range(13)] + [48]
    HR = list(range(36, 48)) + [52, 53]
    vm = Cnt(A, "vmcnt", 63)
    tok = {}
    def xload():
        A(f"""
        s_andn2_b32 s{sRow}, 0xfff, s{sKey}
        s_lshl_b32 s{sTmp}, s{sKind}, 21
        s_lshl_b32 s{sTmp+1}, s{sRow}, 10
        s_add_u32 s{sTmp}, s{sTmp}, s{sTmp+1}
        s_lshl_b32 s{sTmp+1}, s{sW}, 8
        s_add_u32 s{sTmp}, s{sTmp}, s{sTmp+1}
        s_add_u32 s{sTmp}, s{sTmp}, {XB_}
        v_lshrrev_b32 v{qT2}, 7, v{qL16}
        v_lshlrev_b32 v{qT2}, 5, v{qT2}
        """)
        for i in range(2): t = vm.issue(f"buffer_load_dwordx4 v[{XP+4*i}:{XP+4*i+3}], v{qT2}, {W}, s{sTmp} offen offset:{16*i} sc1")
        return t
    if getkey is None: tx = xload()
    mlp_setup(A)
    A(f"s_xor_b32 s{sTmp+11}, s{sPar}, {bx}\ns_add_u32 s{sTmp+11}, s{sTmp+11}, s{sDm}\ns_mov_b32 m0, s{sTmp+11}")
    for i in range(NPL, 31): tok[i] = gu_load(A, vm, i, None)
    tok[31] = gu_load(A, vm, 31, RING)
    for j in range(14):
        if j == 1 and mid: tmid = mid(vm)
        tok[32 + j] = vm.issue(f"buffer_load_dwordx4 {v(DR[j], 4)}, v{VD}, s[{sT}:{sT+3}], s{sTmp+9} offen offset:{(j%4)*1024}")
        if j % 4 == 3: A(f"s_add_u32 s{sTmp+9}, s{sTmp+9}, 4096")
    if getkey is not None:
        getkey(); vm.reset()
        tx = xload()
    A(f"s_mov_b32 vcc_lo, 0xaaaaaaaa\ns_mov_b32 vcc_hi, 0xaaaaaaaa\nv_mov_b32 v{qT1}, 0xffff\nv_mov_b32 v{MSK}, 0xffff0000\nv_cndmask_b32 v{qT1}, v{qT1}, v{MSK}, vcc")
    for r in range(4):
        A(f"s_mov_b32 vcc_lo, {hex(0x03030303 << (2*r))}\ns_mov_b32 vcc_hi, {hex(0x03030303 << (2*r))}\nv_cndmask_b32 v{MSK+r}, 0, v{qT1}, vcc")
    A(f"s_mov_b32 s{sTmp+4}, 0x01000100\ns_mov_b32 s{sTmp+5}, 0x03020302")
    A(f"s_mul_i32 s{sTmp}, s{sW}, {NPL*1024}\ns_add_u32 s{sTmp}, s{sTmp}, {L_ML}\nv_add_u32 v{qT2}, s{sTmp}, v{qL16}\nv_add_u32 v{qT0}, s{sTmp+11}, v{qL16}")
    ld = Cnt(A, "lgkmcnt", 15); lt = {}
    def lrd(i):
        if i >= 31: return
        if i >= NPL: vm.wait(tok[i])
        lt[i] = ld.issue(f"ds_read_b128 {v(LB[i % 7], 4)}, v{qT2 if i < NPL else qT0} offset:{(i % NPL)*1024}")
    for i in range(7): lrd(i)
    vm.wait(tx)
    if mid:
        vm.wait(tmid); mid2(vm)
    for j in range(16):
        A(f"v_perm_b32 v{qT1}, v{XP+j//2}, v{XP+j//2}, s{sTmp+4+j%2}")
        for r in range(4): A(f"v_and_b32 v{AOP+r}, v{MSK+r}, v{qT1}")
        if j < 15: ld.wait(lt[2 * j + 1])
        else: ld.wait(lt[30]); vm.wait(tok[31])
        for m in range(2):
            i = 2 * j + m
            A(mfd(DG + 4 * m, AOP, LB[i % 7] if i < 31 else RING, DG + 4 * m if j else None))
            lrd(i + 7)
    A(f"""
    v_lshrrev_b32 v{qT0}, 8, v{qL16}
    v_and_b32 v{qT1}, 0xf0, v{qL16}
    v_lshlrev_b32 v{qT1}, 1, v{qT1}
    v_and_b32 v{qT2}, 1, v{qT0}
    v_lshl_add_u32 v{qT2}, v{qT2}, 4, v{qT1}
    v_add_u32 v{qT2}, s{sTmp+11}, v{qT2}
    s_mov_b32 exec_lo, 0x00ff00ff
    s_mov_b32 exec_hi, 0xff00ff00
    ds_write_b128 v{qT2}, v[{DG}:{DG+3}]
    ds_write_b128 v{qT2}, v[{DG+4}:{DG+7}] offset:512
    s_mov_b64 exec, -1
    s_xor_b32 s{sTmp}, s{sPar}, {bx}
    v_add_u32 v{qT2}, s{sTmp}, v{qL4}
    v_lshl_add_u32 v{qT1}, v{qT0}, 4, v{qT1}
    s_waitcnt lgkmcnt(0)
    s_barrier
    """)
    for w in range(4):
        for m in range(2): A(f"ds_read2st64_b32 v[{(TG, XP)[m]+2*w}:{(TG, XP)[m]+2*w+1}], v{qT2} offset0:{w*32+m*2} offset1:{w*32+m*2+1}")
    A("s_waitcnt lgkmcnt(0)")
    for k in (4, 2, 1):
        for q in (TG, XP):
            for i in range(k): A(f"v_add_f32 v{q+i}, v{q+i}, v{q+k+i}")
    rnd(A, TG); rnd(A, XP)
    A(f"v_mul_f32 v{TG+4}, {hex(f32bits(-math.log2(math.e)))}, v{TG}\nv_exp_f32 v{TG+4}, v{TG+4}\nv_add_f32 v{TG+4}, 1.0, v{TG+4}\nv_rcp_f32 v{TG+4}, v{TG+4}")
    A(f"v_mul_f32 v{TG}, v{TG}, v{TG+4}")
    rnd(A, TG)
    A(f"v_mul_f32 v{TG}, v{TG}, v{XP}\nv_cvt_pk_bf16_f32 v{TG}, v{TG}, v{TG}")
    A(f"s_lshl_b32 s{sTmp}, s{sW}, 8\ns_add_u32 s{sTmp}, s{sTmp}, {L_H}\nv_add_u32 v{qT2}, s{sTmp}, v{qL4}\nds_write_b32 v{qT2}, v{TG}")
    A(f"v_mul_u32_u24 v{qT2}, 56, v{qT0}\nv_add_u32 v{qT2}, s{sTmp}, v{qT2}")
    for q in range(7): A(f"ds_read_b64 v[{HR[2*q]}:{HR[2*q]+1}], v{qT2} offset:{8*q}")
    A("s_waitcnt lgkmcnt(0)")
    for j in range(14):
        a = (AOP, DG + 4)[j % 2]
        for r in range(4): A(f"v_and_b32 v{a+r}, v{MSK+r}, v{HR[j]}")
        vm.wait(tok[32 + j])
        A(mfd(DG, a, DR[j], DG if j else None))
    A(f"""
    v_lshrrev_b32 v{qT1}, 1, v{qT1}
    s_lshl_b32 s{sTmp}, s{inst}, 7
    s_add_u32 s{sTmp}, s{sTmp}, s{sHW}
    s_lshl_b32 s{sTmp}, s{sTmp}, 8
    s_add_u32 s{sTmp}, s{sTmp}, {MLPY - 64*32768}
    v_cvt_pk_bf16_f32 v{DG}, v{DG}, v{DG+1}
    v_cvt_pk_bf16_f32 v{DG+1}, v{DG+2}, v{DG+3}
    v_min_u32 v{DG}, -2, v{DG}
    v_min_u32 v{DG+1}, -2, v{DG+1}
    s_mov_b32 exec_hi, 0
    buffer_store_dwordx2 v[{DG}:{DG+1}], v{qT1}, {W}, s{sTmp} offen sc1
    s_mov_b32 exec_hi, -1
    """)

def gather(A, FAIL, inst, finish, keep=False):
    W = f"s[{sWS}:{sWS+3}]"
    DONE, L1 = A.label("m_done"), A.label("m_w")
    SEL, S0, XR, YR, XF, YF, RB = 20, 28, 36, 40, 44, 52, 60
    A(f"""
    s_lshl_b32 s{sTmp}, s{sKind}, 21
    s_lshl_b32 s{sTmp+1}, s{sRow}, 10
    s_add_u32 s{sTmp}, s{sTmp}, s{sTmp+1}
    s_add_u32 s{sTmp+1}, s{sTmp}, {XA}
    s_add_u32 s{sTmp+2}, s{sTmp}, {XB_}
    s_lshl_b32 s{sTmp}, s{inst}, 7
    s_add_u32 s{sTmp}, s{sTmp}, s{sW}
    s_lshl_b32 s{sTmp}, s{sTmp}, 8
    s_add_u32 s{sTmp}, s{sTmp}, {MLPY - 64*32768}
    v_lshrrev_b32 v{qT0}, 8, v{qL16}
    v_and_b32 v{qT1}, 0xf0, v{qL16}
    v_lshl_add_u32 v{qT2}, v{qT0}, 10, v{qT1}
    buffer_load_dwordx4 v[{XR}:{XR+3}], v{qL16}, {W}, s{sTmp+1} offen sc1
    buffer_load_dwordx4 v[{YR}:{YR+3}], v{qL16}, {W}, s{sTmp+2} offen sc1
    s_mov_b32 s{sSpin}, 0
    {L1}:
    """)
    for p in range(8):
        A(f"s_add_u32 s{sTmp+1}, s{sTmp}, {p*4096}\nbuffer_load_dwordx4 v[{RB+4*p}:{RB+4*p+3}], v{qT2}, {W}, s{sTmp+1} offen sc1")
    spin(A, FAIL)
    selmats(A, SEL, 4, S0)
    for p in range(8):
        r = RB + 4 * p
        A(f"s_waitcnt vmcnt({7-p})")
        A(mfd(S0, SEL, r, S0 if p else None))
        A(f"v_max3_u32 v{XF}, v{r}, v{r+1}, " + (f"v{XF}" if p else "0"))
        A(f"v_max3_u32 v{XF}, v{r+2}, v{r+3}, v{XF}")
    A(f"v_cmp_eq_u32 vcc, -1, v{XF}\ns_cbranch_vccnz {L1}")
    A(f"""
    v_lshlrev_b32 v{qT1}, 1, v{qT1}
    v_lshl_add_u32 v{qT1}, v{qT0}, 4, v{qT1}
    s_lshl_b32 s{sTmp}, s{sW}, 9
    s_add_u32 s{sTmp}, s{sTmp}, {L_PS}
    v_add_u32 v{qT1}, s{sTmp}, v{qT1}
    s_mov_b32 exec_hi, 0
    ds_write_b128 v{qT1}, v[{S0}:{S0+3}]
    s_mov_b32 exec_hi, -1
    v_lshlrev_b32 v{qT1}, 1, v{qL16}
    v_add_u32 v{qT1}, {L_PS}, v{qT1}
    """)
    unpack(A, XR, XF); unpack(A, YR, YF)
    TM = XR
    A(f"""
    s_waitcnt lgkmcnt(0)
    s_barrier
    s_cmp_lg_u32 s{sW}, 0
    s_cbranch_scc1 {DONE}
    ds_read_b128 v[{S0}:{S0+3}], v{qT1}
    ds_read_b128 v[{S0+4}:{S0+7}], v{qT1} offset:16
    s_and_b32 s{sTmp+3}, s{sKey}, 0xffff0000
    s_xor_b32 s{sTmp+1}, s{sTmp+3}, 0x80000000
    s_xor_b32 s{sTmp+2}, s{sTmp+3}, 0xffff0000
    s_bitcmp1_b32 s{sTmp+3}, 31
    s_cselect_b32 s{sTmp+3}, s{sTmp+1}, s{sTmp+2}
    v_mov_b32 v{TM}, s{sTmp+3}
    v_mul_f32 v{TM}, {hex(f32bits(-math.log2(math.e)))}, v{TM}
    v_exp_f32 v{TM}, v{TM}
    v_add_f32 v{TM}, 1.0, v{TM}
    v_rcp_f32 v{TM}, v{TM}
    """)
    rnd(A, TM)
    if keep:
        for i in range(8): A(f"v_add_f32 v{RB+i}, v{XF+i}, v{YF+i}")
        pack(A, RB, RB + 8)
        for i in range(4): A(f"v_accvgpr_write_b32 a{i}, v{RB+8+i}")
    A("s_waitcnt lgkmcnt(0)")
    for i in range(8): rnd(A, S0 + i)
    for i in range(8): A(f"v_mul_f32 v{S0+i}, v{S0+i}, v{TM}")
    for i in range(8): rnd(A, S0 + i)
    for i in range(8): A(f"v_add_f32 v{S0+i}, v{S0+i}, v{YF+i}")
    for i in range(8): rnd(A, S0 + i)
    for i in range(8): A(f"v_add_f32 v{XF+i}, v{XF+i}, v{S0+i}")
    pack(A, XF, YR); unpack(A, YR, XF)
    finish(XF, YR, RB)
    A(f"{DONE}:")

def qkv_role(A, P, first={}, after_weights=None, before_mlp=None, hold=None):
    W = f"s[{sWS}:{sWS+3}]"
    n, g = 6, 7
    A(f"""
    v_and_b32 v19, 63, v0
    v_and_b32 v{n}, 15, v19
    v_lshrrev_b32 v{g}, 4, v19
    v_lshlrev_b32 v{qL4}, 2, v19
    v_lshlrev_b32 v{qL16}, 4, v19
    v_lshlrev_b32 v{qLK}, {KSH}, v19
    s_mov_b32 s{sC}, {hex(f32bits(128 ** -0.5 * math.log2(math.e)))}
    s_lshl_b32 s{sHW}, s{sJ}, 2
    s_add_u32 s{sHW}, s{sHW}, s{sW}
    """)
    def tile_addr(par=False):
        A(f"v_lshrrev_b32 v24, 9, v{qL16}\nv_lshlrev_b32 v24, 4, v24\nv_and_b32 v25, 0xf0, v{qL16}\nv_xor_b32 v24, v24, v25\nv_and_b32 v25, 0x1f0, v{qL16}\nv_lshl_add_u32 v24, v25, 6, v24")
        if par: A(f"v_add_u32 v24, s{sPar}, v24")
        for cl in range(8): A(f"v_xor_b32 v{qRD+cl}, {cl*32}, v24")
        A(f"s_and_b32 s{sTmp}, s{sW}, 1\ns_lshl_b32 s{sTmp}, s{sTmp}, 7\nv_xor_b32 v24, s{sTmp}, v{qL16}")
        for i in range(8): A(f"v_xor_b32 v{qSRC+i}, {i*16}, v24")
    A(f"v_and_b32 v24, 1, v{g}\nv_lshlrev_b32 v24, 10, v24\nv_lshl_add_u32 v24, v{n}, 4, v24\nv_lshrrev_b32 v25, 1, v{g}\nv_lshl_add_u32 v{qST}, v25, 8, v24")
    tile_addr()
    A(f"s_lshl_b32 s{sTmp}, s{sW}, 2\ns_add_u32 s{sTmp}, s{sTmp}, {L_VT}\nv_lshrrev_b32 v24, 7, v{qL16}\nv_lshl_add_u32 v{qVT}, v24, 4, s{sTmp}")
    A(f"v_and_b32 v24, 48, v{qL16}\nv_add_u32 v{qVT+1}, {L_VT}, v24")
    qkv_load_weights(A, n, g, first, P.get('orders', ('kvq', 'vqk', 'qkv')), P.get('dep', 5))
    if after_weights: after_weights()
    def key_addr():
        A(f"v_lshrrev_b32 v{qKA}, 7, v{qL16}\nv_lshlrev_b32 v{qKA}, {KSH+5}, v{qKA}\nv_and_b32 v{qT0}, {(8 << KSH) - 1}, v{qLK}\ns_lshl_b32 s{sTmp}, s{sW}, {KSH+3}")
        A(f"v_add3_u32 v{qKA}, v{qKA}, v{qT0}, s{sTmp}\nv_mov_b32 v{KEY}, 0")
    key_addr()
    N0, NPRE = P.get("n0", 6), P.get("npre", 3)
    A(f"""
    s_mov_b32 s{sNxt}, s{sRep}
    s_add_u32 s{sN2}, s{sRep}, 3
    s_add_u32 s{sI2}, s{sRep}, 64
    s_mov_b32 s{sLead}, {3 * N0}
    s_mov_b32 s{sPre}, 0
    s_mov_b32 s{sPend}, {WS_BYTES}
    s_mov_b32 s{sQB}, {WS_BYTES}
    s_mov_b32 s{sPar}, 32768
    s_mov_b32 s{sRun}, 1
    s_mov_b32 s{sKind}, 0
    s_mov_b32 s{sMode}, 0
    s_lshl_b32 s{sDm}, s{sW}, 13
    """)
    SLOW, END, HAVE, POLL, FAIL, PATCH, NOPRE, FORK, COLD = [A.label("q_" + x) for x in
        ("slow", "end", "have", "poll", "fail", "patch", "nopre", "fork", "cold")]
    FORKW, NXT = A.label("q_forkw"), A.label("q_nxt")
    MF = P.get("mfirst", 1)
    CE = [A.label("q_c0"), A.label("q_c1")]; WE = [A.label("q_w0"), A.label("q_w1")]
    def post(A, off, val):
        A(f"s_mov_b64 exec, 1\nbuffer_store_dword v{val}, off, {W}, s{off} sc1\ns_mov_b64 exec, -1")
    def key_loads(A):
        A.append(("grp", [f"s_cmp_lt_u32 s{sNxt}, 64", f"s_cselect_b32 s{sTmp}, 2, 0"]))
        A(f"s_add_u32 s{sTmp}, s{sTmp}, s{sNxt}\ns_lshl_b32 s{sTmp}, s{sTmp}, {KSH+5}\ns_add_u32 s{sTmp}, s{sTmp}, {F_XN - 2*KSEG}")
        A.append(("grp", ["s_mov_b64 exec, 0xffffff", f"buffer_load_dword v{KEY}, v{qKA}, {W}, s{sTmp} offen sc1", "s_mov_b64 exec, -1"]))
    def key_eval(A):
        A(f"v_cmp_eq_u32 vcc, 0, v{KEY}\nv_max_u32_dpp v{KEY+1}, v{KEY}, v{KEY} quad_perm:[1,0,3,2] row_mask:0xf bank_mask:0xf")
        A.append(("grp", [f"s_and_b32 s{sPre}, vcc_lo, 0xffffff", f"s_cselect_b32 s{sPre}, 0, -1"]))
        A(f"v_max_u32_dpp v{KEY+1}, v{KEY+1}, v{KEY+1} quad_perm:[2,3,0,1] row_mask:0xf bank_mask:0xf\ns_nop 1")
        A(f"v_max_u32_dpp v{KEY+1}, v{KEY+1}, v{KEY+1} row_half_mirror row_mask:0xf bank_mask:0xf\nv_and_b32 v{KEY+1}, s{sPre}, v{KEY+1}")
    def vote_eval(A, V):
        A(f"v_min3_u32 v{V+4}, v{V}, v{V+1}, v{V+2}\nv_max3_u32 v{V}, v{V}, v{V+1}, v{V+2}\nv_min_u32 v{V+4}, v{V+4}, v{V+3}\nv_max_u32 v{V}, v{V}, v{V+3}")
        A(f"v_readfirstlane_b32 s{sGo}, v{V+4}")
        for i in range(3): A(f"v_readlane_b32 s{sTmp+2+i}, v{V}, {i}")
    def fold(A):
        for i in range(3):
            A(f"s_cmp_gt_u32 s{sTmp+2+i}, s{sRun}\ns_cselect_b32 s{sTmp}, s{sLead}, 0\ns_max_u32 s{sRun}, s{sRun}, s{sTmp+2+i}")
            if i == 2: A(f"s_add_u32 s{sN2}, s{sNxt}, s{sLead}\ns_add_u32 s{sI2}, s{sNxt}, 3\ns_sub_u32 s{sN2}, s{sN2}, 64")
            A(f"s_cmp_gt_u32 s{sTmp}, {P.get('lmin', 12)}")
            if i == 2: A(f"s_cselect_b32 s{sN2}, 64, s{sN2}")
            A(f"s_subb_u32 s{sLead}, s{sLead}, 0")
        A(f"s_cmp_lt_u32 s{sN2}, 64\ns_cselect_b32 s{sN2}, s{sN2}, s{sI2}\ns_cmp_lg_u32 s{sTmp}, 0")
    def dma(A, sid):
        A(f"s_and_b32 s{sSrc}, s{sid}, 127\ns_lshl_b32 s{sSrc}, s{sSrc}, 15\ns_xor_b32 s{sTmp+1}, s{sPar}, 32768")
        A(f"s_add_u32 m0, s{sTmp+1}, s{sDm}\ns_add_u32 s{sSrc}, s{sSrc}, s{sDm}\ns_add_u32 s{sSrc}, s{sSrc}, {XN}")
        for i in range(8):
            if i == 4: A(f"s_add_u32 m0, m0, 4096\ns_add_u32 s{sSrc}, s{sSrc}, 4096")
            A(f"buffer_load_dwordx4 v{qSRC+i}, {W}, s{sSrc} offen offset:{(i%4)*1024} sc1 lds")
    def advance(A):
        A.append(("grp", [f"s_add_u32 s{sN2}, s{sNxt}, 3", f"s_cmp_lt_u32 s{sN2}, {3 * N0}", f"s_cselect_b32 s{sN2}, s{sN2}, s{sI2}"]))
    def epi(a0, pk, base, off, scale):
        f = L()
        if scale:
            for r in range(16): f(f"v_mul_f32 v{a0+r}, s{sC}, v{a0+r}")
        for p in range(2):
            for d, r in enumerate((4*p, 4*p+2, 4*p+8, 4*p+10)): f(f"v_cvt_pk_bf16_f32 v{pk+4*p+d}, v{a0+r}, v{a0+r+1}")
            f(f"buffer_store_dwordx4 v[{pk+4*p}:{pk+4*p+3}], v{qST}, {W}, s{base} offen offset:{off+p*512} sc1")
        return f
    def emit(items):
        for x in items:
            if isinstance(x, str): A(x)
            else:
                for y in x[1]: A(y)
    NW_ = 3
    def rdtxt(i, par):
        k = i % 32
        r = XB + (i % 8) * 4
        return f"ds_read_b128 v[{r}:{r+3}], v{qRD+k%8} offset:{par*32768+(k//8)*256}"
    steps = [(m, k, k) for k in range(32) for m in "kv"] + [("q", k, 32 + k) for k in range(32)]
    last_use = {f: i for i, (_, _, f) in enumerate(steps)}
    def block(par):
        ld = Cnt(A, "lgkmcnt", 15)
        A(f"{CE[par]}:")
        tok = {}
        for i in range(NW_): tok[i] = ld.issue(rdtxt(i, par))
        A(f"{WE[par]}:")
        trace(A, 2, 10, sNxt)
        trace_clk(A, 10)
        f0 = L(); f0(f"s_mov_b32 s{sCur}, s{sNxt}\ns_mov_b32 s{sNxt}, s{sN2}")
        f0(f"s_lshl_b32 s{sOut}, s{sCur}, 7\ns_add_u32 s{sOut}, s{sOut}, s{sHW}\ns_lshl_b32 s{sB}, s{sOut}, 12\ns_add_u32 s{sB}, s{sB}, {KV}")
        f0 += epi(ACC + 32, PK, sQB, 0, False)
        f0(f"s_lshl_b32 s{sQB}, s{sOut}, 11\ns_add_u32 s{sQB}, s{sQB}, {QX}\ns_lshl_b32 s{sKF}, s{sOut}, 5\ns_add_u32 s{sKF}, s{sKF}, {F_KV}")
        f0(f"s_lshr_b32 s{sFk}, s{sNxt}, 7\ns_sub_u32 s{sTmp+1}, s{sNxt}, s{sRep}")
        f0.append(("grp", [f"s_cmp_eq_u32 s{sTmp+1}, {3*NPRE}", f"s_cselect_b32 s{sFk}, 1, s{sFk}"]))
        if hold: f0.append(("grp", [f"s_cmp_eq_u32 s{sTmp+1}, {3*P.get('hat', 1)}", f"s_cselect_b32 s{sFk}, 1, s{sFk}"]))
        advance(f0)
        fk = L(); key_loads(fk)
        f1 = L(); f1("s_waitcnt vmcnt(0)"); post(f1, sPend, qFV); key_eval(f1)
        f1.append(("grp", [f"s_cmp_lg_u32 s{sPre}, 0", f"s_cselect_b32 s{sTmp+2}, s{sNxt}, s{sCur}"]))
        dma(f1, sTmp + 2)
        f1(f"s_add_u32 s{sPend}, s{sKF}, 16")
        f1.append(("ds", f"ds_write_b32 v{qVT}, v{KEY+1} offset:{par*128}"))
        ek = epi(ACC, PK + 8, sB, 0, True)
        fills = {0: f0, P.get("p0", 12): fk, P.get("p1", 38): f1, 65: ek[:6] + epi(ACC + 16, PK, sB, 2048, False) + ek[6:]}
        q = []
        def fill(budget, vmok):
            while q and budget > 0:
                x = q[0]
                if not isinstance(x, str):
                    q.pop(0)
                    if x[0] == "ds": ld.issue(x[1]); budget -= 1
                    else:
                        for y in x[1]: A(y)
                        budget -= len(x[1])
                    continue
                if x.startswith("buffer_"):
                    if not vmok: break
                    vmok = False; budget -= 2
                budget -= 1
                A(q.pop(0))
                if x.startswith("s_mov_b64 exec, 1"):
                    A(q.pop(0)); A(q.pop(0)); budget -= 3
        nrd = NW_
        BAR = 90
        ve = L(); vote_eval(ve, PK)
        for i, (m, k, f) in enumerate(steps):
            a0 = ACC + 16 * "kvq".index(m)
            q += fills.get(i, [])
            if i == BAR:
                assert not q and nrd == 64
                A("s_waitcnt vmcnt(4) lgkmcnt(0)\ns_barrier"); ld.reset()
                tv = ld.issue(f"ds_read_b128 v[{PK}:{PK+3}], v{qVT+1} offset:{par*128}")
            elif i % 2 == 0 and i < BAR: ld.wait(tok[steps[i + 1][2]])
            x = XB + (f % 8) * 4
            cc = a0 if k else None
            A(mf32(a0, x, wop(m, k), cc) if m == "v" else mf32(a0, wop(m, k), x, cc))
            want = steps[min(95, i + 6 + max(0, i - 83))][2] + 1
            b = 6
            while nrd < want and (nrd < 8 or last_use[nrd - 8] <= i):
                tok[nrd] = ld.issue(rdtxt(nrd, par)); nrd += 1; b -= 1
            if BAR <= i < BAR + NW_: ld.issue(rdtxt(i - BAR, par ^ 1))
            if i == BAR + 1: A(f"s_xor_b32 s{sPar}, s{sPar}, 32768")
            if i == BAR + 3:
                ld.wait(tv); emit(ve[:5])
            if i == BAR + 4:
                emit(ve[5:]); A(f"s_cmp_gt_u32 s{sFk}, 0\ns_cselect_b32 s{sGo}, 0, s{sGo}")
            if i == P.get("pk", BAR + 2):
                A("s_waitcnt vmcnt(0)"); post(A, sKF, qFV)
            fill(b, i % 2 == 0 or i >= 64)
        A(f"s_cmp_eq_u32 s{sGo}, 0\ns_cbranch_scc1 {SLOW}\ns_cmp_lt_u32 s{sNxt}, 64\ns_cbranch_scc1 {WE[par ^ 1]}")
        fold(A)
        if MF: A(f"s_cbranch_scc0 {WE[par ^ 1]}\ns_branch {FORKW}")
        else: A(f"s_cselect_b32 s{sMode}, 1, 0\ns_branch {WE[par ^ 1]}")
    A(f"s_mov_b32 s{sPar}, 0\nv_mov_b32 v{qFV}, 1")
    A(f"{SLOW}:")
    trace(A, 1, 10)
    emit(epi(ACC + 32, PK, sQB, 0, False))
    A(f"""
    s_mov_b32 s{sQB}, {WS_BYTES}
    s_xor_b32 s{sPar}, s{sPar}, 32768
    {NXT}:
    s_cmp_ge_u32 s{sNxt}, 128
    s_cbranch_scc1 {END}
    s_cmp_lg_u32 s{sPre}, 0
    s_cbranch_scc1 {HAVE}
    s_mov_b32 s{sSpin}, 0
    {POLL}:
    """)
    f = L(); key_loads(f); emit(f)
    spin(A, FAIL)
    A("s_waitcnt vmcnt(0)")
    post(A, sPend, qFV)
    A(f"s_mov_b32 s{sPend}, {WS_BYTES}\nv_cmp_eq_u32 vcc, 0, v{KEY}\ns_nop 0\ns_and_b32 s{sTmp}, vcc_lo, 0xffffff\ns_cbranch_scc1 {POLL}")
    dma(A, sNxt)
    f = L(); key_eval(f); emit(f)
    A(f"""
    {HAVE}:
    ds_write_b32 v{qVT}, v{KEY+1} offset:256
    s_xor_b32 s{sPar}, s{sPar}, 32768
    s_waitcnt lgkmcnt(0)
    s_barrier
    ds_read_b128 v[{PK+8}:{PK+11}], v{qVT+1} offset:256
    s_cmp_lt_u32 s{sNxt}, 64
    s_cbranch_scc1 {NOPRE}
    s_waitcnt lgkmcnt(0)
    """)
    vote_eval(A, PK + 8)
    fold(A)
    A((f"s_cbranch_scc1 {FORK}" if MF else f"s_cselect_b32 s{sMode}, 1, 0") + f"\n{NOPRE}:")
    if hold:
        NH = A.label("q_nh")
        A(f"s_sub_u32 s{sTmp}, s{sNxt}, s{sRep}\ns_cmp_lg_u32 s{sTmp}, {3*P.get('hat', 1)}\ns_cbranch_scc1 {NH}\ns_waitcnt vmcnt(0)")
        post(A, sPend, qFV); A(f"s_mov_b32 s{sPend}, {WS_BYTES}")
        hold(); A(f"{NH}:")
    A(f"s_waitcnt vmcnt(0)\ns_sub_u32 s{sTmp}, s{sNxt}, s{sRep}\ns_cmp_lg_u32 s{sTmp}, {3*NPRE}\ns_cbranch_scc1 {COLD}")
    if before_mlp: before_mlp()
    mlp_preload(A)
    key_addr()
    A(f"{COLD}:\ns_waitcnt lgkmcnt(0)\ns_barrier\ns_cmp_lg_u32 s{sPar}, 0\ns_cbranch_scc1 {CE[1]}")
    block(0); block(1)
    sQ2 = 77
    def mini(lo, hi):
        ld = Cnt(A, "lgkmcnt", 15); tok = {}
        f0_ = steps[lo][2]; nrd = f0_
        for _ in range(4): tok[nrd] = ld.issue(rdtxt(nrd, 0)); nrd += 1
        for i in range(lo, hi):
            m, k, f = steps[i]
            a0 = ACC + 16 * "kvq".index(m)
            if i % 2 == 0: ld.wait(tok[steps[i + 1][2]])
            x = XB + (f % 8) * 4
            A(mf32(a0, x, wop(m, k), a0 if k else None) if m == "v" else mf32(a0, wop(m, k), x, a0 if k else None))
            want = steps[min(hi - 1, i + 6)][2] + 1
            while nrd < want: tok[nrd] = ld.issue(rdtxt(nrd, 0)); nrd += 1
    def both(vm, items, b1, b2):
        for x in items:
            if x.startswith("buffer_"): t = vm.issue(x); t = vm.issue(x.replace(f" s{b1} offen", f" s{b2} offen"))
            else: A(x)
        return t
    A(f"{FORKW}:")
    emit(epi(ACC + 32, PK, sQB, 0, False))
    A(f"s_mov_b32 s{sQB}, {WS_BYTES}\ns_waitcnt lgkmcnt(0)\n{FORK}:")
    A(f"s_mov_b32 s{sKey}, s{sRun}\ns_mov_b32 s{sCur}, s{sNxt}\ns_mov_b32 s{sNxt}, s{sN2}")
    f = L(); advance(f); emit(f)
    trace(A, 3, 10, sCur)
    def kv_part(vm):
        for cl in range(8): A(f"v_add_u32 v{qRD+cl}, s{sPar}, v{qRD+cl}")
        A(f"s_lshl_b32 s{sOut}, s{sCur}, 7\ns_add_u32 s{sOut}, s{sOut}, s{sHW}\ns_lshl_b32 s{sQ2}, s{sOut}, 12\ns_add_u32 s{sB}, s{sQ2}, {KV + 32*MB}\ns_add_u32 s{sQ2}, s{sQ2}, {KV}")
        A(f"s_lshl_b32 s{sKF}, s{sOut}, 5\ns_add_u32 s{sKF}, s{sKF}, {F_KV}\ns_waitcnt vmcnt({len(vm.q)})\ns_barrier")
        f = L(); post(f, sPend, qFV); A(f[0]); vm.issue(f[1]); A(f[2])
        A(f"v_mov_b32 v{qFV}, 2\ns_add_u32 s{sPend}, s{sKF}, 16")
        mini(0, 64)
        e = epi(ACC, PK + 8, sQ2, 0, True) + epi(ACC + 16, PK, sQ2, 2048, False)
        for x in e:
            if x.startswith("buffer_"): t = vm.issue(x)
            else: A(x)
        for x in e:
            if x.startswith("buffer_"): vm.issue(x.replace(f" s{sQ2} offen", f" s{sB} offen"))
        return t
    def kv_flag(vm):
        f = L(); post(f, sKF, qFV); A(f[0]); vm.issue(f[1]); A(f[2])
        trace(A, 2, 10, sCur)
    mlp(A, FAIL, None, sCur, mid=kv_part, mid2=kv_flag)
    key_addr(); tile_addr(True)
    trace(A, 4, 10)
    mini(64, 96)
    A(f"s_lshl_b32 s{sTmp+2}, s{sOut}, 11\ns_add_u32 s{sQ2}, s{sTmp+2}, {QX + 16*MB}\ns_add_u32 s{sTmp+2}, s{sTmp+2}, {QX}\ns_add_u32 s{sKF}, s{sKF}, {256*KB}\ns_mov_b32 s{sPre}, 0")
    tile_addr()
    both(Cnt(A, "vmcnt", 63), epi(ACC + 32, PK, sTmp + 2, 0, False), sTmp + 2, sQ2)
    def fin_fork(XF, PKr, TM):
        A(f"s_lshl_b32 s{sTmp+1}, s{sCur}, 5\ns_add_u32 s{sTmp+1}, s{sTmp+1}, s{sJ}\ns_lshl_b32 s{sTmp+1}, s{sTmp+1}, 10\ns_add_u32 s{sTmp+1}, s{sTmp+1}, {XM - 64*32768}")
        A(f"buffer_store_dwordx4 v[{PKr}:{PKr+3}], v{qL16}, {W}, s{sTmp+1} offen sc1")
        layernorm1(A, XF, None, TM + 12, TM)
        A(f"v_lshl_add_u32 v{qT1}, v{qL16}, 2, s{sPar}\nv_mov_b64 v[{TM}:{TM+1}], 0\nv_mov_b64 v[{TM+4}:{TM+5}], 0\nv_mov_b64 v[{TM+8}:{TM+9}], 0")
        for h in range(2):
            A(f"v_mov_b32 v{TM+2+4*h}, v{TM+12+h}\nv_mov_b32 v{TM+3+4*h}, v{TM+14+h}")
        for h in range(2):
            A(f"ds_write_b128 v{qT1}, v[{TM+2+4*h}:{TM+5+4*h}] offset:{4096+32*h}\nds_write_b128 v{qT1}, v[{TM+4*h}:{TM+3+4*h}] offset:{4096+32*h+16}")
    f = L(); key_loads(f); emit(f)
    gather(A, FAIL, sCur, fin_fork)
    NB_ = A.label("q_nb")
    post(A, sPend, qFV)
    A(f"s_mov_b32 s{sPend}, {WS_BYTES}\nv_mov_b32 v{qFV}, 1")
    f = L(); key_eval(f); emit(f)
    A(f"s_cmp_eq_u32 s{sPre}, 0\ns_cbranch_scc1 {NB_}")
    dma(A, sNxt)
    A(f"{NB_}:")
    D, IX, XA_ = 20, 32, 36
    A(f"""
    v_lshrrev_b32 v{qT0}, 8, v{qL16}
    v_and_b32 v{qT1}, 48, v{qL16}
    v_lshl_add_u32 v{qT1}, v{qT0}, 6, v{qT1}
    v_add_u32 v{qT1}, s{sPar}, v{qT1}
    s_mov_b32 vcc_lo, 0xcccccccc
    s_mov_b32 vcc_hi, 0xcccccccc
    v_mov_b32 v{IX}, 0x4444
    v_mov_b32 v{IX+1}, 0xeeee
    v_cndmask_b32 v{IX}, v{IX}, v{IX+1}, vcc
    s_waitcnt lgkmcnt(0)
    s_barrier
    """)
    trace(A, 7, 10)
    ld = Cnt(A, "lgkmcnt", 15); tk = {}
    def rd(t): tk[t] = ld.issue(f"ds_read_b128 v[{XA_+4*t}:{XA_+4*t+3}], v{qT1} offset:{4096+t*256}")
    for t in range(8): rd(t)
    for r in range(D, D + 12, 2): A(f"v_mov_b64 v[{r}:{r+1}], 0")
    sal = L()
    sal(f"s_and_b32 s{sTmp}, s{sRow}, 16\ns_lshl_b32 s{sTmp+1}, s{sTmp}, 6\ns_and_b32 s{sTmp+2}, s{sRow}, 15\ns_lshl4_add_u32 s{sTmp+1}, s{sTmp+2}, s{sTmp+1}")
    sal(f"s_add_u32 s{sQ2}, s{sQ2}, s{sTmp+1}\ns_add_u32 s{sTmp+1}, s{sTmp+1}, s{sB}\ns_lshr_b32 s{sTmp}, s{sTmp}, 1\ns_and_b32 s{sTmp+2}, s{sRow}, 3")
    sal(f"s_lshl1_add_u32 s{sTmp}, s{sTmp+2}, s{sTmp}\ns_and_b32 s{sTmp+2}, s{sRow}, 12\ns_lshl_b32 s{sTmp+2}, s{sTmp+2}, 6\ns_add_u32 s{sTmp}, s{sTmp}, s{sTmp+2}")
    sal(f"s_add_u32 s{sTmp}, s{sTmp}, s{sB}\nv_and_b32 v{qT0}, 0xc0, v{qL16}\nv_and_b32 v{qT2}, 12, v{qL4}\nv_lshrrev_b32 v{qT2}, 1, v{qT2}\nv_lshl_add_u32 v{qT0}, v{qT0}, 2, v{qT2}")
    for t in range(16):
        ld.wait(tk[t])
        for i, m in enumerate("kvq"):
            A(f"v_smfmac_f32_16x16x64_bf16 {v(D+4*i,4)}, {v(XA_+4*t,4)}, {reg(wop(m, 2*t),8)}, v{IX}")
            if i == 0 and t + 8 < 16: rd(t + 8)
            elif sal: A(sal.pop(0))
    for i in range(3): A(f"v_add_f32 v{D+4*i}, v{D+4*i}, v{D+4*i+2}\nv_add_f32 v{D+4*i+1}, v{D+4*i+1}, v{D+4*i+3}")
    A(f"v_mul_f32 v{D}, s{sC}, v{D}\nv_mul_f32 v{D+1}, s{sC}, v{D+1}")
    for i in range(3): A(f"v_cvt_pk_bf16_f32 v{D+4*i}, v{D+4*i}, v{D+4*i+1}")
    A(f"""
    s_mov_b64 exec, 0xffff
    buffer_store_short v{D}, v{qT0}, {W}, s{sTmp+1} offen sc1
    buffer_store_short_d16_hi v{D}, v{qT0}, {W}, s{sTmp+1} offen offset:8 sc1
    buffer_store_short v{D+4}, v{qL16}, {W}, s{sTmp} offen offset:2048 sc1
    buffer_store_short_d16_hi v{D+4}, v{qL16}, {W}, s{sTmp} offen offset:3072 sc1
    buffer_store_short v{D+8}, v{qT0}, {W}, s{sQ2} offen sc1
    buffer_store_short_d16_hi v{D+8}, v{qT0}, {W}, s{sQ2} offen offset:8 sc1
    s_mov_b64 exec, 3
    s_waitcnt vmcnt(0)
    buffer_store_dword v{qFV}, v{qL16}, {W}, s{sKF} offen sc1
    s_mov_b64 exec, -1
    """)
    trace(A, 8, 10)
    A(f"s_branch {NXT}")
    A(f"{END}:")
    A("s_waitcnt vmcnt(0)")
    post(A, sPend, qFV)
    A(f"s_cmp_lg_u32 s{sRep}, 0\ns_cbranch_scc1 {FAIL}")
    if P.get("nofinal"): A(f"s_branch {FAIL}")
    A(f"s_load_dwordx2 s[{sO}:{sO+1}], s[0:1], {KA['out']}\ns_mov_b32 s{sO+2}, {2*MB}\ns_mov_b32 s{sO+3}, 0x20000")
    FIN, NX = A.label("k_fin"), A.label("k_nx")
    A(f"s_mov_b32 s{sKey}, 0\ns_cmp_eq_u32 s{sW}, 3\ns_cselect_b32 s{sPre}, 7, 15\n{FIN}:")
    def getkey():
        Lw, Lx, Lr = A.label("k_w"), A.label("k_x"), A.label("k_r")
        sM, sI = sTmp + 6, sTmp + 7
        A(f"s_andn2_b32 s{sTmp+2}, 0xfe0, s{sRun}\ns_lshl_b32 s{sTmp+2}, s{sTmp+2}, {KSH}\ns_mov_b32 s{sTmp+3}, {F_XN + 2*KST}\nv_mov_b32 v24, {KST}")
        A(f"s_mov_b32 s{sSpin}, 0\ns_mov_b32 s{sI}, 3\nv_mov_b32 v53, s{sKey}\ns_and_b32 s{sM}, s{sPre}, 15\ns_cbranch_scc0 {Lx}\n{Lw}:")
        A(f"s_add_u32 s{sI}, s{sI}, 1\ns_and_b32 s{sI}, s{sI}, 3\ns_bitcmp1_b32 s{sM}, s{sI}\ns_cbranch_scc0 {Lw}")
        A(f"s_lshl2_add_u32 s{sTmp}, s{sI}, s{sW}\ns_lshl_b32 s{sTmp}, s{sTmp}, {KSH+7}\ns_add_u32 s{sTmp+1}, s{sTmp}, {2*KSEG}")
        for i in range(2):
            A(f"v_add_u32 v{22+i}, s{sTmp+i}, v{qLK}\nv_cmp_le_u32 vcc, s{sTmp+2}, v{22+i}\nv_cndmask_b32 v25, 0, v24, vcc\nv_add_u32 v{22+i}, v{22+i}, v25")
            A(f"buffer_load_dword v{20+i}, v{22+i}, {W}, s{sTmp+3} offen sc1")
        spin(A, FAIL)
        A(f"s_waitcnt vmcnt(0)\nv_min_u32 v52, v20, v21\nv_max3_u32 v53, v20, v21, v53\nv_cmp_eq_u32 vcc, 0, v52")
        A(f"s_cbranch_vccnz {Lw}\ns_bitset0_b32 s{sM}, s{sI}\ns_cmp_lg_u32 s{sM}, 0\ns_cbranch_scc1 {Lw}")
        for rot in (8, 4, 2, 1): A(f"v_max_u32_dpp v53, v53, v53 row_ror:{rot} row_mask:0xf bank_mask:0xf")
        for sw in ("16", "32"): A(f"v_mov_b32 v52, v53\nv_permlane{sw}_swap_b32 v53, v52\nv_max_u32 v53, v53, v52")
        A(f"{Lx}:\nds_write_b32 v{qVT}, v53 offset:256\ns_waitcnt vmcnt(0) lgkmcnt(0)\ns_barrier\nds_read_b128 v[20:23], v{qVT+1} offset:256\ns_waitcnt lgkmcnt(0)")
        A(f"v_max3_u32 v20, v20, v21, v22\nv_max_u32 v20, v20, v23\nv_readfirstlane_b32 s{sTmp}, v20")
        trace(A, 5, 10)
        A(f"s_cmp_eq_u32 s{sTmp}, s{sKey}\ns_cbranch_scc1 {FAIL}\ns_cmp_eq_u32 s{sKey}, 0\ns_mov_b32 s{sKey}, s{sTmp}\ns_cbranch_scc1 {Lr}")
        A(f"s_cmp_lg_u32 s{sHW}, 0\ns_cbranch_scc1 {Lr}\ns_lshl_b32 s{sTmp}, s{sRow}, 10\nbuffer_store_dwordx4 a[0:3], v{qL16}, s[{sO}:{sO+3}], s{sTmp} offen sc1\n{Lr}:")
        A(f"s_andn2_b32 s{sTmp}, 0xfe0, s{sRun}\ns_andn2_b32 s{sTmp+1}, 0xfe0, s{sKey}\ns_cmp_lt_u32 s{sTmp+1}, s{sTmp}\ns_cselect_b32 s{sKind}, 1, 2")
    def fin_out(XF, PKr, TM):
        A(f"s_lshl_b32 s{sTmp}, s{sRow}, 10\nbuffer_store_dwordx4 v[{PKr}:{PKr+3}], v{qL16}, s[{sO}:{sO+3}], s{sTmp} offen sc1")
    mlp(A, FAIL, getkey, sNxt)
    A(f"s_cmp_lg_u32 s{sJ}, 0\ns_cbranch_scc1 {NX}\ns_barrier")
    gather(A, FAIL, sNxt, fin_out, keep=True)
    trace(A, 6, 10)
    A(f"{NX}:\ns_add_u32 s{sNxt}, s{sNxt}, 3\ns_xor_b32 s{sPre}, s{sPre}, 31")
    getkey()
    mlp(A, FAIL, None, sNxt)
    A(f"s_cmp_lg_u32 s{sJ}, 0\ns_cbranch_scc1 {FAIL}\ns_barrier")
    gather(A, FAIL, sNxt, fin_out)
    trace(A, 6, 10)
    A(f"{FAIL}:")
```

```python
import sys
from asmlib import *
from layout import *
import common
import chain as C, qkv as Q, orole as O
from chain import sWS, sT, sJ, sW, sTmp

NAME = "interleave_layers__memory_aug_recurrent_mem_tr__moe_arch_mod__prompt"
KN = NAME + "_kernel"
sDbg = 12
sSlot = 90
sXcd = 91
sReal = 89
D_GO = 128

def wait_go(A, team, nw, fail, vt=20):
    L = A.label("g_wt")
    A(f"v_mbcnt_lo_u32_b32 v{vt}, -1, 0\nv_and_b32 v{vt}, {nw-1}, v{vt}\nv_add_lshl_u32 v{vt}, v{vt}, {team}, 2")
    A(f"s_mov_b32 s{sTmp}, 0\n{L}:\nglobal_load_dword v{vt+1}, v{vt}, s[{sDbg}:{sDbg+1}] offset:{D_GO} sc1")
    A(f"s_add_u32 s{sTmp}, s{sTmp}, 1\ns_cmp_gt_u32 s{sTmp}, {SPIN_MAX}\ns_cbranch_scc1 {fail}\ns_waitcnt vmcnt(0)")
    A(f"v_cmp_eq_u32 vcc, 0, v{vt+1}\nv_readfirstlane_b32 s{sTmp+1}, v{vt+1}\ns_cbranch_vccnz {L}")

def arrive(A, team, vt=20, st=sTmp + 10):
    L = A.label("g_ar")
    A(f"s_cmp_lg_u32 s{sW}, 0\ns_cbranch_scc1 {L}\ns_lshl_b32 s{st}, s{sReal}, 3\ns_lshl_b64 s[{st}:{st+1}], 1, s{st}")
    A(f"v_lshlrev_b32 v{vt+4}, 3, {team}\nv_mov_b32 v{vt}, s{st}\nv_mov_b32 v{vt+1}, s{st+1}\ns_mov_b64 exec, 1")
    A(f"global_atomic_add_x2 v[{vt+2}:{vt+3}], v{vt+4}, v[{vt}:{vt+1}], s[{sDbg}:{sDbg+1}] sc0\ns_mov_b64 exec, -1\n{L}:")

def arrive_fin(A, n, vt=20, st=sTmp + 10):
    L = A.label("g_af")
    A(f"""
    s_cmp_lg_u32 s{sW}, 0
    s_cbranch_scc1 {L}
    v_readfirstlane_b32 s{st}, v{vt+2}
    v_readfirstlane_b32 s{st+1}, v{vt+3}
    s_add_u32 s{st+2}, s{st}, s{st+1}
    s_mul_i32 s{st+2}, s{st+2}, 0x01010101
    s_lshr_b32 s{st+2}, s{st+2}, 24
    s_cmp_lg_u32 s{st+2}, {n-1}
    s_cbranch_scc1 {L}
    s_lshl_b32 s{st+2}, s{sReal}, 3
    s_lshr_b64 s[{st}:{st+1}], s[{st}:{st+1}], s{st+2}
    s_and_b32 s{st}, s{st}, 0xff
    s_cmp_eq_u32 s{st}, {n-1}
    s_cselect_b32 s{st}, 1, 2
    v_mov_b32 v{vt}, s{st}
    v_lshrrev_b32 v{vt+4}, 1, v{vt+4}
    s_mov_b64 exec, 1
    global_store_dword v{vt+4}, v{vt}, s[{sDbg}:{sDbg+1}] offset:{D_GO} sc1
    s_mov_b64 exec, -1
    {L}:
    """)

def entry(A, P):
    A(f"""
    s_cmp_ge_u32 s2, 256
    s_cbranch_scc1 L_end
    s_mov_b32 s{sWS+2}, {WS_BYTES}
    s_mov_b32 s{sWS+3}, 0x20000
    s_mov_b32 s{sT+3}, 0x20000
    s_getreg_b32 s{sReal}, hwreg(HW_REG_XCC_ID)
    s_and_b32 s{sReal}, s{sReal}, 7
    v_lshrrev_b32 v1, 6, v0
    s_and_b32 s{sXcd}, s2, 7
    s_lshr_b32 s{sSlot}, s2, 3
    v_readfirstlane_b32 s{sW}, v1
    """)
    if P.get("gmap"):
        A(f"s_lshl_b32 s{sXcd}, s{sXcd}, 2\ns_lshr_b32 s{sXcd}, {hex(sum(g << (4*i) for i, g in enumerate(P['gmap'])))}, s{sXcd}\ns_and_b32 s{sXcd}, s{sXcd}, 7")
    if P.get("fake_xcc"): A(P["fake_xcc"])
    A(f"""
    s_lshl_b32 s100, s{sXcd}, 5
    s_add_u32 s100, s100, s{sSlot}
    s_lshl_b32 s100, s100, 2
    s_add_u32 s100, s100, s{sW}
    s_lshl_b32 s100, s100, 12
    s_add_u32 s100, s100, {TRACE}
    s_cmp_lt_u32 s{sXcd}, 3
    s_cbranch_scc1 L_chain
    s_cmp_eq_u32 s{sXcd}, 7
    s_cbranch_scc1 L_qkv
    s_bitcmp1_b32 s{sSlot}, 4
    s_cbranch_scc1 L_qkv
    s_branch L_o
    """)

def late_args(A):
    A(f"s_load_dwordx2 s[{sWS}:{sWS+1}], s[0:1], {KA['ws']}\ns_load_dwordx2 s[{sDbg}:{sDbg+1}], s[0:1], {KA['dbg']}")

def hold(A, head, vt, mask=-1):
    L = A.label("g_h")
    A(f"s_lshl_b32 s{sTmp+1}, s{head}, 6\ns_add_u32 s{sTmp+1}, s{sTmp+1}, {F_KM}\ns_mov_b32 s{sTmp}, 0\n{L}:\nbuffer_load_dwordx2 v[{vt}:{vt+1}], off, s[{sWS}:{sWS+3}], s{sTmp+1} sc1")
    A(f"s_add_u32 s{sTmp}, s{sTmp}, 1\ns_cmp_gt_u32 s{sTmp}, {SPIN_MAX}\ns_cbranch_scc1 L_end\ns_waitcnt vmcnt(0)")
    A(f"v_and_or_b32 v{vt}, v{vt+1}, {mask}, v{vt}\nv_cmp_eq_u32 vcc, 0, v{vt}\ns_cbranch_vccnz {L}")

def chain_role(A, P):
    A("L_chain:")
    if "a" in P.get("kill", ""): A(f"s_cmp_lg_u32 s{sXcd}, 0\ns_cbranch_scc1 L_end")
    late_args(A)
    A(f"s_mov_b32 s{sJ}, s{sSlot}\ns_mov_b32 s{C.sChain}, s{sXcd}\ns_min_u32 s{C.sLayer}, s{sXcd}, 1")
    C.lane_consts(A)
    def sync():
        common.trace(A, 0, 28)
        A(f"v_mov_b64 v[28:29], 0\nv_mov_b64 v[30:31], 0")
        A(f"s_lshl_b32 s{sTmp}, s{sJ}, 12\ns_cmp_eq_u32 s{sXcd}, 0\ns_cbranch_scc1 L_ch1\ns_cmp_eq_u32 s{sXcd}, 2\ns_cbranch_scc1 L_ch2")
        for base, n, r in ((FLAGS, 17, 28), (MEMH, 22, 24), (OBOX + 4*MB, 16, 28)):
            if r == 24: A("s_branch L_ch0\nL_ch2:")
            for i in range(n):
                A(f"s_add_u32 s{sTmp+1}, s{sTmp}, {base + i*128*KB}\nbuffer_store_dwordx4 v[{r}:{r+3}], v{C.vW16}, s[{sWS}:{sWS+3}], s{sTmp+1} offen sc1")
        A("L_ch0:\ns_waitcnt vmcnt(0)\ns_barrier")
        arrive(A, f"s{sXcd}", 120)
        A("s_waitcnt vmcnt(0)")
        arrive_fin(A, 32, 120)
        A("L_ch1:")
    assert MLPY == MEMH + 512*KB
    vm, fin = C.chain_prologue(A, sync)
    def only0(f):
        L = A.label("g_o0")
        A(f"s_cmp_lg_u32 s{sXcd}, 0\ns_cbranch_scc1 {L}"); f(); A(f"{L}:")
    hooks = {0: lambda: only0(lambda: arrive(A, 0, 120)), 4: lambda: only0(lambda: arrive_fin(A, 32, 120))}
    def sig():
        A(f"s_or_b32 s{sTmp+10}, s{sXcd}, s{sW}\ns_cbranch_scc1 L_sig\ns_lshl_b32 s{sTmp+10}, s{sJ}, 6\ns_add_u32 s{sTmp+10}, s{sTmp+10}, {F_KM + 4}\nv_mov_b32 v120, 1")
        A(f"s_mov_b64 exec, 1\nbuffer_store_dword v120, off, s[{sWS}:{sWS+3}], s{sTmp+10} sc1\ns_mov_b64 exec, -1\nL_sig:")
    if P.get("sig"): hooks[P["sig"]] = sig
    def peek1():
        A(f"v_mbcnt_lo_u32_b32 v116, -1, 0\nv_and_b32 v116, 1, v116\nv_lshlrev_b32 v118, 2, v116\nglobal_load_dword v117, v118, s[{sDbg}:{sDbg+1}] offset:{D_GO} sc1")
    def peek2():
        A(f"v_cmp_eq_u32 vcc, 0, v117\nv_lshlrev_b32 v116, 12, v116\ns_or_b32 s{C.sPk}, vcc_lo, s{sXcd}\ns_cselect_b32 s{C.sPk}, 0, 1")
        A(f"s_lshl2_add_u32 s{sTmp+10}, s{sJ}, s{sW}\ns_lshl_b32 s{sTmp+10}, s{sTmp+10}, 5\ns_add_u32 s{sTmp+10}, s{sTmp+10}, {F_KV}")
        A(f"buffer_load_dword v118, v116, s[{sWS}:{sWS+3}], s{sTmp+10} offen sc1")
    hooks[6] = peek1; hooks[10] = peek2; hooks[12] = lambda: A("s_waitcnt vmcnt(0)")
    assert P.get("cdep", 5) <= 3 and P.get("sig") not in (0, 4, 6, 10)
    def hold_a():
        A(f"s_cmp_eq_u32 s{sXcd}, 0\ns_cbranch_scc1 L_ha")
        wait_go(A, 1, 1, "L_end", 116)
        A(f"s_and_b32 s{sTmp+2}, s{sJ}, {P.get('hmask', 28)}\ns_or_b32 s{sTmp+2}, s{sTmp+2}, {1 if P.get('hmask', 28) == 28 else 0}")
        hold(A, sTmp + 2, 116, f's{sXcd}' if P.get('blate', 0) else -1)
        A("L_ha:")
    if "a" in P.get("hold", ""): hooks[-3] = hold_a
    if "b" in P.get("hold", ""): hooks[-2] = hold_a
    C.chain_load_weights(A, vm, fin, hooks, P.get("order", "kqv"), warm=P.get("warm", ""), early=P.get("early", 1), depth=P.get("cdep", 5))
    A(f"v_readlane_b32 s{C.sPk+1}, v118, 1\nv_readlane_b32 s{sTmp}, v118, 0\nv_mov_b32 v21, v117\ns_and_b32 s{C.sPk}, s{C.sPk}, s{sTmp}\ns_cbranch_scc1 L_pk")
    wait_go(A, f"s{C.sLayer}", 2, "L_end")
    A("L_pk:")
    A(f"s_lshr_b32 s{sTmp}, s{sXcd}, 1\ns_nop 3\nv_readlane_b32 s{sTmp+1}, v21, s{sTmp}")
    A(f"s_cmp_lg_u32 s{sTmp+1}, 1\ns_cbranch_scc1 L_chain_x")
    CP = dict(P.get("chain", {}), steady=0, done="L_chdone", peek=1)
    C.chain_loop(A, CP)
    A("s_endpgm\nL_chain_x:")
    C.chain_loop(A, dict(CP, st="sc1"))
    A("s_endpgm")
    A(f"L_chdone:\ns_cmp_lg_u32 s{sXcd}, {0 if P.get('help', 1) else 9}\ns_cbranch_scc1 L_end")
    A(f"s_lshr_b32 s{sXcd}, s{sSlot}, 4\ns_add_u32 s{sXcd}, s{sXcd}, 7\nv_lshrrev_b32 v0, 4, v{C.vL16}\ns_waitcnt vmcnt(0) lgkmcnt(0)")
    wait_go(A, 0, 4, "L_end")
    A(f"s_mov_b32 s{sReal}, s{sTmp+1}\ns_branch L_o")

def qkv_role(A, P):
    A("L_qkv:")
    if "q" in P.get("kill", ""): A("s_endpgm")
    A(f"""
    s_mul_i32 s{sTmp}, s{sXcd}, 15
    s_add_u32 s{sTmp}, s{sTmp}, s{sSlot}
    s_sub_u32 s{sTmp}, s{sTmp}, 61
    s_add_u32 s{sTmp+1}, s{sXcd}, 89
    s_cmp_eq_u32 s{sSlot}, 31
    s_cselect_b32 s{sTmp}, s{sTmp+1}, s{sTmp}
    s_add_u32 s{sTmp+1}, s{sSlot}, 60
    s_cmp_eq_u32 s{sXcd}, 7
    s_cselect_b32 s{sTmp}, s{sTmp+1}, s{sTmp}
    s_mul_i32 s{sJ}, s{sTmp}, 171
    s_lshr_b32 s{sJ}, s{sJ}, 9
    s_mul_i32 s{sTmp+1}, s{sJ}, 3
    s_sub_u32 s60, s{sTmp}, s{sTmp+1}
    s_add_u32 s{sJ}, s{sJ}, 4
    s_and_b32 s{sJ}, s{sJ}, 31
    """)
    Q.qkv_role(A, P.get("qkv", {}), {-1: lambda: late_args(A)}, after_weights=lambda: wait_go(A, 1, 1, "L_end"), before_mlp=lambda: wait_go(A, 2, 1, "L_end"),
               hold=(lambda: hold(A, sJ, 20)) if "q" in P.get("hold", "") else None)
    A("s_endpgm")

def o_body(A, P):
    LR = P.get("lr", 4)
    H1 = P.get("help", 1) and P.get("h1", 0)
    ROUND, TASK, NOFL, FL, PICK = [A.label("o_" + x) for x in ("round", "task", "nofl", "fl", "pick")]
    GA, GB, GD, NONE, NN, ADV = [A.label("o_" + x) for x in ("ga", "gb", "gd", "none", "nn", "adv")]
    sP, sBn, sBel, smA, smB, sSh, sAv, sLeft = 52, 53, 54, 55, 56, 57, 58, 59
    HELP, DL, DL1, DL2 = [A.label('o_' + x) for x in ('help', 'dl', 'dl1', 'dl2')]
    sD1 = 47
    sRec = 48
    sThr = 89
    t = sTmp
    KV_ = (3 << O.B_KIND) | (1 << O.B_VALID)
    A(f"""
    s_mov_b32 s{O.sTask}, 1
    s_mov_b32 s{O.sTag}, 0
    s_mov_b32 s{O.sNk}, 0
    s_mov_b32 s{O.sRun}, 0
    s_mov_b32 s{O.sPrev}, 0
    s_mov_b32 s{O.sPre}, 0
    s_mov_b32 s{O.sPreK}, 0
    s_mov_b32 s{smA}, 0
    s_mov_b32 s{sRec}, 0
    s_mov_b32 s{smB}, 0
    s_mov_b32 s{O.sKp}, {WS_BYTES}
    s_mov_b32 s{O.sBox}, s{O.cBX}
    s_mov_b32 s{O.sS}, s{O.sRep}
    s_mul_i32 s{O.sCur}, s{O.sS}, 257
    s_or_b32 s{O.sCur}, s{O.sCur}, {O.desc(0, 0, 1)}
    s_lshr_b32 s{sSh}, s{O.sRep}, 2
    s_cbranch_scc1 {HELP}
    {ROUND}:
    """)
    O.decide(A, "L_end")
    A(f"""
    s_lshr_b32 s{t+1}, s{O.sS}, 2
    s_andn2_b32 s{sP}, 0xfff, s{O.sRun}
    s_lshr_b32 s{sP}, s{sP}, 5
    s_min_u32 s{sP}, s{sP}, 64
    s_add_u32 s{t}, s{sP}, 3
    v_readlane_b32 s{sThr}, v{O.oTHR}, s{t+1}
    s_sub_u32 s{t}, s{t}, s{O.sRep}
    s_lshr_b32 s{t}, s{t}, 2
    s_bfm_b32 s{sBel}, s{t}, 0
    s_add_u32 s{sBn}, s{O.sCur}, {4*257}
    s_cmp_lt_u32 s{O.sS}, 60
    s_cselect_b32 s{sBn}, s{sBn}, 0
    s_cmp_lt_u32 s{O.sS}, 64
    s_cselect_b32 s{t}, {LR - 1}, 1
    s_sub_i32 s{t}, s{t+1}, s{t}
    s_max_i32 s{t}, s{t}, 0
    s_min_u32 s{t}, s{t}, 16
    s_bfm_b32 s{sAv}, s{t}, 0
    s_cmp_eq_u32 s{t+1}, 16
    s_cselect_b32 s{sLeft}, {P.get("b16", LR - 3 if H1 else LR - 2)}, 1
    s_cmp_eq_u32 s{t+1}, 17
    s_cselect_b32 s{sLeft}, {P.get("b17", 0)}, s{sLeft}
    s_cmp_eq_u32 s{t+1}, 18
    s_cselect_b32 s{sLeft}, 64, s{sLeft}
    s_cselect_b32 s{O.sFin}, 0, -1
    s_cselect_b32 s{sThr}, 0, s{sThr}
    s_cbranch_scc1 {DL}
    s_cmp_eq_u32 s{t+1}, 16
    s_cbranch_scc1 {DL}_a
    {PICK}:
    s_cmp_eq_u32 s{sLeft}, 0
    s_cbranch_scc1 {NONE}
    s_sub_u32 s{sLeft}, s{sLeft}, 1
    s_andn2_b32 s{t}, s{sAv}, s{smA}
    s_and_b32 s{t}, s{t}, s{sBel}
    s_cbranch_scc1 {GA}
    s_and_b32 s{t}, s{smA}, s{O.sFin}
    s_or_b32 s{t}, s{t}, s{smB}
    s_or_b32 s{t}, s{t}, s{sBel}
    s_andn2_b32 s{t}, s{sAv}, s{t}
    s_cbranch_scc0 {NONE}
    s_cmp_ge_u32 s{O.sRun}, s{sThr}
    s_cbranch_scc1 {GB}
    {GA}:
    s_ff1_i32_b32 s{t}, s{t}
    s_bitset1_b32 s{smA}, s{t}
    s_mov_b32 s{O.sNxt}, {O.desc(1, 1, 2)}
    s_mov_b32 s{t+1}, s{O.sNxt}
    s_branch {GD}
    {NONE}:
    s_cmp_lt_u32 s{O.sS}, 60
    s_cbranch_scc1 {NN}
    s_cmp_eq_u32 s{O.sFin}, 0
    s_cbranch_scc1 {NN}
    s_and_b32 s{t}, s{O.sCur}, {KV_}
    s_cmp_eq_u32 s{t}, {1 << O.B_VALID}
    s_cbranch_scc1 {NN}
    s_cmp_lt_u32 s{O.sS}, 64
    s_cbranch_scc1 {ADV}
    s_and_b32 s{t}, s{O.sPrev}, {KV_}
    s_cmp_lg_u32 s{t}, {1 << O.B_VALID}
    s_cbranch_scc1 {ADV}
    {NN}:
    s_mov_b32 s{O.sNxt}, s{sBn}
    s_mov_b32 s{O.sRet}, 0
    s_branch {TASK}
    {GB}:
    s_ff1_i32_b32 s{t}, s{t}
    s_bitset1_b32 s{smB}, s{t}
    s_andn2_b32 s{t+1}, 31, s{O.sRun}
    s_or_b32 s{t+1}, s{t+1}, 32
    s_lshl_b32 s{t+1}, s{t+1}, {O.B_ROW}
    s_or_b32 s{t+1}, s{t+1}, {O.desc(2, 2, 3)}
    s_mov_b32 s{O.sNxt}, {O.desc(1, 2, 3)}
    {GD}:
    s_lshl4_add_u32 s{sRec}, s{sRec}, s{t}
    s_and_b32 s{t+2}, s{t}, s{sSh}                 ; helpers hold two replicas' tasks interleaved
    s_lshr_b32 s{t}, s{t}, s{sSh}
    s_lshl2_add_u32 s{t}, s{t}, s{O.sRep}
    s_add_u32 s{t}, s{t}, s{t+2}
    s_cmp_eq_u32 s{t}, s{sP}
    s_cselect_b32 s{O.sNxt}, s{t+1}, s{O.sNxt}
    s_mul_i32 s{t}, s{t}, 257
    s_or_b32 s{O.sNxt}, s{O.sNxt}, s{t}
    s_mov_b32 s{O.sRet}, 1
    {TASK}:
    s_cmp_eq_u32 s{O.sCur}, 0
    s_cbranch_scc1 {NOFL}
    """)
    O.o_task(A, P, "L_end")
    A(f"s_cmp_lg_u32 s{O.sPreK}, 0\ns_cbranch_scc1 {NOFL}\ns_and_b32 s{t}, s{O.sCur}, {3 << O.B_KIND}\ns_cbranch_scc0 {FL}")
    A(f"s_and_b32 s{t}, s{O.sNxt}, {'s%d' % O.sFin if P.get('finfl', 1) else -1}\ns_cbranch_scc1 {NOFL}\n{FL}:")
    O.r_flush(A, P, "L_end")
    A(f"""
    {NOFL}:
    s_mov_b32 s{O.sCur}, s{O.sNxt}
    s_cmp_lg_u32 s{O.sRet}, 0
    s_cbranch_scc1 {PICK}
    s_cmp_eq_u32 s{O.sFin}, 0
    s_cbranch_scc1 {HELP}_n
    {ADV}:
    s_add_u32 s{O.sS}, s{O.sS}, 4
    s_branch {ROUND}
    {DL}_a:
    s_andn2_b32 s{t}, s{sAv}, s{smA}
    s_and_b32 s{t+3}, s{t}, s{sBel}
    s_bcnt1_i32_b32 s{t+1}, s{t+3}
    s_add_u32 s{t+1}, s{t+1}, {P.get('dl1', 2)}
    s_max_u32 s{t+1}, s{t+1}, 4
    s_andn2_b32 s{t}, s{t}, s{smB}
    s_and_b32 s{t}, s{t}, 0x3fff
    s_or_b32 s{t}, s{t}, s{t+3}
    s_cselect_b32 s{t+1}, s{t+1}, 0
    s_mul_i32 s{t+1}, s{t+1}, {74 if H1 else 0}
    s_cmp_ge_u32 s{O.sRun}, s{sThr}
    s_cselect_b32 s{t+4}, s{sBel}, -1
    s_mov_b32 s{t+5}, {F_DL}
    s_branch {DL}_b
    {DL}:
    s_and_b32 s{t}, s{smA}, s{sBel}
    s_andn2_b32 s{t+1}, s{smB}, s{sBel}
    s_or_b32 s{t}, s{t}, s{t+1}
    s_andn2_b32 s{t}, s{sAv}, s{t}
    s_bcnt1_i32_b32 s{t+1}, s{t}
    s_bcnt1_i32_b32 s{t+2}, s{sD1}
    s_mul_i32 s{t+2}, s{t+2}, {-P.get('dlk', 5)}
    s_lshl1_add_u32 s{t+1}, s{t+1}, s{t+2}
    s_add_i32 s{t+1}, s{t+1}, {P.get('dla', 1)}
    s_max_i32 s{t+1}, s{t+1}, 0
    s_mul_i32 s{t+1}, s{t+1}, {37 if P.get('help', 1) else 0}
    s_mov_b32 s{t+4}, s{sBel}
    s_mov_b32 s{t+5}, {F_DL + 8}
    s_and_b32 s{t+3}, s{t}, s{sD1}
    s_andn2_b32 s{t}, s{t}, s{t+3}
    s_branch {DL}_c
    {DL}_b:
    s_mov_b32 s{t+3}, 0
    {DL}_c:
    s_bfe_u32 s{t+2}, s{sRec}, 262144
    s_bitset0_b32 s{t}, s{t+2}
    s_bfe_u32 s{t+2}, s{sRec}, 262148
    s_bitset0_b32 s{t}, s{t+2}
    s_bfe_u32 s{t+2}, s{sRec}, 262152
    s_bitset0_b32 s{t}, s{t+2}
    s_bfe_u32 s{t+2}, s{sRec}, 262156
    s_bitset0_b32 s{t}, s{t+2}
    s_lshr_b32 s{t+1}, s{t+1}, 8
    {DL1}:
    s_cbranch_scc0 {DL2}
    s_ff1_i32_b32 s{t+2}, s{t}
    s_bitset0_b32 s{t}, s{t+2}
    s_bitset1_b32 s{t+3}, s{t+2}
    s_sub_u32 s{t+1}, s{t+1}, 1
    s_cmp_lg_u32 s{t+1}, 0
    s_branch {DL1}
    {DL2}:
    s_and_b32 s{sD1}, s{t+3}, 0xffff
    s_and_b32 s{t+4}, s{t+4}, s{sD1}
    s_or_b32 s{smA}, s{smA}, s{t+4}
    s_andn2_b32 s{t}, s{sD1}, s{t+4}
    s_or_b32 s{smB}, s{smB}, s{t}
    s_pack_ll_b32_b16 s{t}, s{sD1}, s{t+4}
    s_lshl_b32 s{t+1}, s{O.sRep}, 7
    s_add_u32 s{t+1}, s{t+1}, s{t+5}
    s_cmp_lg_u32 s{O.cTK}, 0
    s_cbranch_scc1 {PICK}
    v_mov_b32 v162, s{t}
    v_mov_b32 v163, s{O.sRun}
    s_mov_b64 exec, 1
    buffer_store_dwordx2 v[162:163], off, s[{sWS}:{sWS+3}], s{t+1} sc1
    s_mov_b64 exec, -1
    s_branch {PICK}
    {HELP}:
    s_lshl_b32 s{O.sRep}, s{O.sRep}, 1
    s_and_b32 s{O.sRep}, s{O.sRep}, 2
    s_lshl_b32 s{sD1}, s{O.sRep}, 7
    s_add_u32 s{sD1}, s{sD1}, {F_DL - 8}
    {HELP}_n:
    s_add_u32 s{sD1}, s{sD1}, 8
    s_lshr_b32 s{t}, s{sD1}, 4
    s_andn2_b32 s{t}, s{sSh}, s{t}
    s_cbranch_scc0 L_end
    s_mov_b32 s{O.sSpin}, 0
    {HELP}_w:
    buffer_load_dwordx2 v[162:163], off, s[{sWS}:{sWS+3}], s{sD1} sc1
    buffer_load_dwordx2 v[164:165], off, s[{sWS}:{sWS+3}], s{sD1} offset:128 sc1
    s_add_u32 s{O.sSpin}, s{O.sSpin}, 1
    s_cmp_gt_u32 s{O.sSpin}, {SPIN_MAX}
    s_cbranch_scc1 L_end
    s_waitcnt vmcnt(0)
    v_readfirstlane_b32 s{t+2}, v162
    v_readfirstlane_b32 s{t+4}, v164
    v_readfirstlane_b32 s{O.sRun}, v163
    v_readfirstlane_b32 s{t+1}, v165
    s_min_u32 s{t}, s{O.sRun}, s{t+1}
    s_cmp_eq_u32 s{t}, 0
    s_cbranch_scc1 {HELP}_w
    s_max_u32 s{O.sRun}, s{O.sRun}, s{t+1}
    s_bitreplicate_b64_b32 s[{t+2}:{t+3}], s{t+2}
    s_bitreplicate_b64_b32 s[{t+4}:{t+5}], s{t+4}
    s_mov_b32 s{t}, 0x55555555
    s_mov_b32 s{t+1}, 0x55555555
    s_and_b64 s[{t+2}:{t+3}], s[{t+2}:{t+3}], s[{t}:{t+1}]
    s_andn2_b64 s[{t+4}:{t+5}], s[{t+4}:{t+5}], s[{t}:{t+1}]
    s_or_b32 s{sAv}, s{t+2}, s{t+4}
    s_or_b32 s{sBel}, s{t+3}, s{t+5}
    s_andn2_b32 s{sP}, 0xfff, s{O.sRun}
    s_lshr_b32 s{sP}, s{sP}, 5
    s_mov_b32 s{sBn}, 0
    s_mov_b32 s{O.sCur}, 0
    s_mov_b32 s{O.sS}, 72
    s_mov_b32 s{sLeft}, 64
    s_mov_b32 s{O.sFin}, 0
    s_mov_b32 s{sThr}, 0
    s_branch {PICK}
    """)

def o_role(A, P):
    W = f"s[{sWS}:{sWS+3}]"
    A("L_o:")
    if "o" in P.get("kill", ""): A("s_endpgm")
    A(f"s_sub_u32 s{O.sRep}, s{sXcd}, 3\ns_and_b32 s{O.sU}, s{sSlot}, 15")
    O.o_prologue(A, lambda: late_args(A), lambda: wait_go(A, 1, 1, "L_end", 60), P.get("o", {}), (lambda: hold(A, O.sHd, 60)) if "o" in P.get("hold", "") else None)
    A(f"s_cmp_ge_u32 s{O.sRep}, 4\ns_cbranch_scc1 L_oh")
    arrive(A, f"s{sXcd}", 48)
    A("s_waitcnt vmcnt(0)")
    arrive_fin(A, 16, 48)
    if P.get("owarm"):
        A(f"s_lshr_b32 s{sTmp}, s{O.sRep}, 1\ns_cmp_lg_u32 s{sTmp}, 1\ns_cbranch_scc1 L_ow\ns_and_b32 s{sTmp+2}, s{O.sHd}, 28\ns_or_b32 s{sTmp+2}, s{sTmp+2}, 1")
        if P["owarm"] in (1, 3): hold(A, sTmp + 2, 60, -1 if P["owarm"] == 1 else 0)
        A(f"s_mov_b32 s{sT+2}, {512*1792*2}")
        for m in ("wg", "wu", "wd"):
            A(f"s_load_dwordx2 s[{sT}:{sT+1}], s[0:1], {KA[m]}\ns_mul_i32 s{sTmp}, s{O.sRow}, 14336\ns_sub_u32 s{sTmp}, s{sTmp}, {128*14336}\ns_waitcnt lgkmcnt(0)")
            for i in range(14):
                A(f"buffer_load_dwordx4 v[64:67], v{O.oL16}, s[{sT}:{sT+3}], s{sTmp} offen offset:{(i%4)*1024}")
                if i % 4 == 3: A(f"s_add_u32 s{sTmp}, s{sTmp}, 4096")
        A("L_ow:")
    wait_go(A, f"s{sXcd}", 1, "L_end", 60)
    A(f"s_mov_b32 s{sReal}, s{sTmp+1}\nL_oh:\ns_cmp_lg_u32 s{sReal}, 1\ns_cbranch_scc1 L_o_x")
    OP = dict(P.get("o", {}), help=P.get("help", 1))
    o_body(A, OP)
    A("L_o_x:")
    o_body(A, dict(OP, st="sc1"))

HEAD = open("cdna_kernels/" + NAME + ".s.ref").read().split("; Override launch")[0] if True else ""

def generate(P):
    common.TRACE_ON[0] = P.get("trace", 0)
    A = Asm()
    Q.SLP[0] = P.get('qslp', 0); O.SLP[0] = P.get('oslp', 0)
    entry(A, P)
    A("L_end:\ns_endpgm")
    chain_role(A, P); qkv_role(A, P); o_role(A, P)
    body = A.text(verbose=P.get("verbose", False))
    return (HEAD + "; @launch grid=(256,1,1) block=(256,1,1) lds=163840\n"
            + f'.amdgcn_target "amdgcn-amd-amdhsa--gfx950"\n.text\n.globl {KN}\n.p2align 8\n.type {KN},@function\n{KN}:\n'
            + body + f"""
.section .rodata,"a"
.p2align 6
.amdhsa_kernel {KN}
  .amdhsa_next_free_vgpr 512
  .amdhsa_next_free_sgpr 102
  .amdhsa_accum_offset 256
  .amdhsa_group_segment_fixed_size 0
  .amdhsa_kernarg_size 120
  .amdhsa_user_sgpr_count 2
  .amdhsa_user_sgpr_kernarg_segment_ptr 1
  .amdhsa_system_sgpr_workgroup_id_x 1
  .amdhsa_float_denorm_mode_32 3
.end_amdhsa_kernel
""")

DEFAULT = dict(chain=dict(kearly=1, fp=1, z1=15, n1=2), cdep=3, early=0, warm=None, owarm=1, sig=8, hold='a', qkv=dict(dep=3, n0=6, npre=5, lmin=10), o=dict(dmaskip=3, lr=4, zs=0.945))
if __name__ == "__main__":
    P = dict(DEFAULT)
    if len(sys.argv) > 2: P.update(eval(sys.argv[2]))
    out = sys.argv[1] if len(sys.argv) > 1 else "/code/" + NAME + ".s"
    txt = generate(P)
    open(out, "w").write(txt)
    print("wrote", out, len(txt), "bytes", txt.count("\n"), "lines")
```

```python
from asmlib import *
from layout import *
from common import trace, trace_clk, w_src_regs, w_stage_dma
import math, struct
def f32bits(x): return struct.unpack("<I", struct.pack("<f", x))[0]

class Cnt:
    def __init__(self, A, name, mx):
        self.A, self.name, self.mx, self.q = A, name, mx, []
        self.n = 0
    def issue(self, txt):
        if self.mx == 63 and len(self.q) >= 62: self.wait(self.q[7])
        self.A(txt); self.n += 1; self.q.append(self.n); return self.n
    def wait(self, tok):
        if tok not in self.q: return
        after = len(self.q) - 1 - self.q.index(tok)
        self.A(f"s_waitcnt {self.name}({min(after, self.mx)})")
        self.q = self.q[self.q.index(tok) + 1:]
    def drain(self):
        self.A(f"s_waitcnt {self.name}(0)"); self.q = []
    def reset(self): self.q = []

def delay(A, cyc):
    n = cyc // 4
    while n > 0:
        k = min(n, 16); A(f"s_nop {k-1}"); n -= k

L_MEM, L_QK, L_PS, L_O, L_WO, L_W = 4096, 0, 12288, 4096, 16384, 65536
L_KV = 20480
vL16, vLW, vCQ, vCR, vPS, vAGS, vIDX, T0 = range(8)
vW16 = 8
vCRW = 12
T1, T2, T3 = 17, 18, 19
MEMA = 16
LAMPOS = {0: 0, 4: 1, 1: 2, 2: 3, 3: 4, 5: 5, 6: 6, 7: 7}
def mema(lam): return MEMA + 4 * LAMPOS[lam]
QA, KA_, VA = 48, 56, 64
ST = [72 + 8 * i for i in range(7)]
KXR, VX, SOP = 72, 80, 88
OWN = [("q", 0, 0), ("q", 1, 0), ("k", 0, 0), ("k", 1, 0), ("q", 0, 4), ("q", 1, 4), ("k", 0, 4), ("k", 1, 4),
       ("v", 0, 0), ("v", 1, 0), ("v", 0, 4), ("v", 1, 4)]
NE = 10
ESLOT = [MEMA + 8, MEMA + 16, MEMA + 24] + ST
WO_ORDER = [(T, ko) for T in range(8) for ko in range(2)]
WSLOT = [104, 112, 120, MEMA, SOP, SOP + 8]
NO_REG = 10
LOC = {}
for i, k in enumerate(OWN[:NE]): LOC[k] = ("l", i)
for i, (T, ko) in enumerate(WO_ORDER[NO_REG:]): LOC[("o", T, ko)] = ("l", NE + i)
_r = 504
for (T, ko) in WO_ORDER[:NO_REG]:
    LOC[("o", T, ko)] = ("r", _r); _r -= 8
for m in "qkv":
    for tau in range(2):
        for lam in range(8):
            if (m, tau, lam) not in LOC:
                LOC[(m, tau, lam)] = ("r", _r); _r -= 8
assert _r == 120
sWS = 4
sT = 8
sJ, sW = 16, 17
sHALF = 18
sONE = 14
sStep = 22
sKV = 23
sC = 24
sKM = 25
sTmp = 26
sIn = 40
sAG = 42
sLo, sHi = 44, 45
sCnt = 46
sBox = 38
sPar = 3
sFo = 20
sPk = 66
sIt = 21
sFm = 2
sChain, sLayer, sAgr, sFkv, sFkm, sRdy = 60, 61, 62, 63, 64, 65
sFg, sFgS, sG, sFork, sKVd, sMH = 92, 93, 94, 95, 96, 97
sSt = 66
sAcc = 48

def lane_consts(A):
    A(f"""
    v_lshrrev_b32 v{T2}, 6, v0
    v_and_b32 v{T3}, 63, v0
    v_readfirstlane_b32 s{sW}, v{T2}
    v_and_b32 v{T0}, 15, v{T3}
    v_lshrrev_b32 v{T1}, 4, v{T3}
    v_lshlrev_b32 v{vL16}, 4, v{T3}
    """)

def put(A, dst_loc, regidx, src_txt, tmp):
    raise NotImplementedError

def chain_prologue(A, sync):
    n, g = T0, T1
    sM = 56
    vm = Cnt(A, "vmcnt", 63)
    A(f"s_load_dwordx2 s[{sM}:{sM+1}], s[0:1], {KA['mem0']}")
    A(f"""
    s_mov_b32 s{sLo}, 0x05040100
    s_mov_b32 s{sHi}, 0x07060302
    s_mov_b32 s{sHALF}, 0xcccccccc
    s_mov_b32 s{sHALF+1}, 0xcccccccc
    s_mov_b32 s{sC}, {hex(f32bits(128 ** -0.5 * math.log2(math.e)))}
    s_lshl_b32 s{sTmp}, s{sW}, 10
    v_add_u32 v{vW16}, s{sTmp}, v{vL16}
    v_xor_b32 v{vW16+1}, 1024, v{vW16}
    v_xor_b32 v{vW16+2}, 2048, v{vW16}
    v_xor_b32 v{vW16+3}, 3072, v{vW16}
    s_mov_b32 s{sONE}, 0x3f803f80
    s_mov_b32 s{sONE+1}, 0x3f803f80
    s_mul_i32 s{sTmp+1}, s{sW}, 24576
    s_add_u32 s{sTmp+1}, s{sTmp+1}, {L_W}
    v_add_u32 v{vLW}, s{sTmp+1}, v{vL16}
    v_lshrrev_b32 v20, 2, v{n}
    v_xor_b32 v21, v{g}, v20
    v_lshlrev_b32 v22, 5, v{n}
    v_add_u32 v22, s{sTmp}, v22
    v_lshl_add_u32 v{vCQ}, v21, 3, v22
    v_and_b32 v21, 3, v{n}
    v_xor_b32 v21, v21, v{g}
    v_lshl_add_u32 v22, v{g}, 2, v20
    v_lshlrev_b32 v22, 5, v22
    v_lshl_add_u32 v{vCR}, v21, 3, v22
    v_add_u32 v{vCRW}, s{sTmp}, v{vCR}
    v_xor_b32 v{vCRW+1}, 1024, v{vCRW}
    v_xor_b32 v{vCRW+2}, 2048, v{vCRW}
    v_xor_b32 v{vCRW+3}, 3072, v{vCRW}
    ; partial store offset: consumer (8w + n/4)*8192 + j*256 + (4g + n%4)*16
    v_lshlrev_b32 v21, 13, v20
    v_and_b32 v22, 3, v{n}
    v_lshl_add_u32 v22, v{g}, 2, v22
    v_lshl_add_u32 v21, v22, 4, v21
    s_lshl_b32 s{sTmp+1}, s{sW}, 15
    s_lshl_b32 s{sTmp+2}, s{sJ}, 8
    s_add_u32 s{sTmp+1}, s{sTmp+1}, s{sTmp+2}
    v_add_u32 v{vPS}, s{sTmp+1}, v21
    v_and_b32 v21, 1, v{n}
    v_lshl_add_u32 v21, v{g}, 2, v21
    v_bfe_u32 v22, v{n}, 2, 1
    v_lshl_add_u32 v21, v22, 1, v21
    v_lshlrev_b32 v21, 4, v21
    v_bfe_u32 v22, v{n}, 1, 1
    v_lshl_add_u32 v21, v22, 3, v21
    v_add_u32 v{vAGS}, s{sTmp+2}, v21
    v_cmp_lt_u32 vcc, 7, v{n}
    v_mov_b32 v22, 0x7ff00000
    v_cndmask_b32 v{vAGS}, v{vAGS}, v22, vcc
    v_mov_b32 v21, 0x4444
    v_mov_b32 v22, 0xeeee
    v_cndmask_b32 v{vIDX}, v21, v22, s[{sHALF}:{sHALF+1}]
    """)
    A(f"s_lshl_b32 s{sIn}, s{sChain}, 20\ns_add_u32 s{sIn}, s{sIn}, {INBOX}\ns_add_u32 s{sIn+1}, s{sIn}, 131072")
    A(f"s_lshl_b32 s{sAgr}, s{sChain}, 16\ns_add_u32 s{sAgr}, s{sAgr}, {AGR}")
    A("v_mov_b32 v24, -1\nv_mov_b32 v25, -1\nv_mov_b32 v26, -1\nv_mov_b32 v27, -1\ns_waitcnt lgkmcnt(0)")
    for st in range(2):
        vm.issue(f"buffer_store_dwordx4 v[24:27], v{vPS}, s[{sWS}:{sWS+3}], s{sIn+st} offen sc1")
    for slot in range(4):
        A(f"s_add_u32 s{sTmp+1}, s{sAgr}, {slot * 8192}")
        vm.issue(f"buffer_store_dwordx2 v[24:25], v{vAGS}, s[{sWS}:{sWS+3}], s{sTmp+1} offen sc1")
    sync()
    trace(A, 10, 112)
    A(f"""
    s_mov_b32 s{sM+2}, 8192
    s_mov_b32 s{sM+3}, 0x20000
    v_and_b32 v21, 1, v{n}
    v_lshl_add_u32 v21, v{g}, 1, v21
    v_lshlrev_b32 v21, 10, v21
    v_bfe_u32 v22, v{n}, 1, 2
    v_lshl_add_u32 v21, v22, 1, v21
    s_and_b32 s{sTmp+1}, s{sJ}, 15
    s_lshl_b32 s{sTmp+1}, s{sTmp+1}, 6
    s_lshr_b32 s{sTmp+2}, s{sJ}, 4
    s_lshl_b32 s{sTmp+2}, s{sTmp+2}, 3
    s_add_u32 s{sTmp+1}, s{sTmp+1}, s{sTmp+2}
    s_waitcnt lgkmcnt(0)
    """)
    for i in range(4): tm = vm.issue(f"buffer_load_ushort v{28+i}, v21, s[{sM}:{sM+3}], s{sTmp+1} offen offset:{16*i}")
    def fin(vm):
        vm.wait(tm)
        A("v_lshl_or_b32 v28, v29, 16, v28\nv_lshl_or_b32 v29, v31, 16, v30\nv_min_u32 v28, -2, v28\nv_min_u32 v29, -2, v29")
        vm.issue(f"buffer_store_dwordx2 v[28:29], v{vAGS}, s[{sWS}:{sWS+3}], s{sAgr} offen sc1")
    return vm, fin

def emit_quad(A, loc, u, perms, tmp):
    kind, x = loc
    for rho, (s1, s0, sel) in enumerate(perms):
        if kind == "r" and x < 256:
            A(f"v_perm_b32 v{x+u*4+rho}, v{s1}, v{s0}, s{sel}")
        else:
            A(f"v_perm_b32 v{tmp+rho}, v{s1}, v{s0}, s{sel}")
    if kind == "r" and x >= 256:
        for rho in range(4): A(f"v_accvgpr_write_b32 a{x-256+u*4+rho}, v{tmp+rho}")
    if kind == "l":
        A(f"ds_write_b128 v{vW16}, v[{tmp}:{tmp+3}] offset:{L_WO+((x-NE)*2+u)*4096}\ns_waitcnt lgkmcnt(0)")

def chain_load_weights(A, vm0, fin, hooks, order="qkv", warm=None, early=0, depth=5):
    n, g = T0, T1
    vm = Cnt(A, "vmcnt", 63); vm.q = list(vm0.q); vm.n = vm0.n
    def warm_up():
        LW = A.label("c_nw")
        A(f"s_cmp_eq_u32 s{sChain}, 0\ns_cbranch_scc1 {LW}")
        A(f"s_lshl_b32 s{sTmp}, s{sChain}, 5\ns_add_u32 s{sTmp}, s{sTmp}, s{sJ}\ns_lshl_b32 s{sTmp}, s{sTmp}, 2\ns_add_u32 s{sTmp}, s{sTmp}, s{sW}")
        A(f"s_mul_i32 s{sTmp}, s{sTmp}, 7168\ns_sub_u32 s{sTmp}, s{sTmp}, {128*7168}\ns_add_u32 s{sTmp+1}, s{sTmp}, 4096\ns_mov_b32 s{sT+2}, {512*1792*2}")
        for m in ("wg", "wu", "wd"):
            A(f"s_load_dwordx2 s[{sT}:{sT+1}], s[0:1], {KA[m]}\ns_waitcnt lgkmcnt(0)")
            for i in range(7): A(f"buffer_load_dwordx4 v[116:119], v{vL16}, s[{sT}:{sT+3}], s{sTmp+i//4} offen offset:{(i%4)*1024} {warm}")
        if early: A(f"s_waitcnt vmcnt({early-1})")
        A(f"{LW}:")
    if -3 in hooks: hooks[-3]()
    if early: warm_up()
    if -2 in hooks: hooks[-2]()
    sK, sV = sTmp + 6, 48
    sQ = 52
    SRC, RD, HOLD, NS = 22, 104, 24, 5
    assert order[-1] == 'v'
    PARK = list(range(132, 132 + 96, 8))
    A(f"""
    s_load_dwordx2 s[{sT}:{sT+1}], s[0:1], {KA['wo']}
    s_load_dwordx2 s[{sQ}:{sQ+1}], s[0:1], {KA['wq']}
    s_load_dwordx2 s[{sK}:{sK+1}], s[0:1], {KA['wk']}
    s_load_dwordx2 s[{sV}:{sV+1}], s[0:1], {KA['wv']}
    s_mov_b32 s{sT+2}, {4*MB}
    s_mov_b32 s{sT+3}, 0x20000
    s_mov_b32 s{sQ+2}, {4*MB}
    s_mov_b32 s{sQ+3}, 0x20000
    s_mov_b32 s{sK+2}, {4*MB}
    s_mov_b32 s{sK+3}, 0x20000
    s_mov_b32 s{sV+2}, {4*MB}
    s_mov_b32 s{sV+3}, 0x20000
    v_and_b32 v20, 1, v{g}
    v_lshlrev_b32 v20, 5, v20
    v_lshrrev_b32 v21, 1, v{g}
    v_lshl_add_u32 v20, v21, 2, v20        ; 32*(g%2) + 4*(g/2)
    v_lshlrev_b32 v20, 10, v20
    v_lshl_add_u32 v20, v{n}, 4, v20
    s_lshl_b32 s{sTmp}, s{sJ}, 17
    s_lshl_b32 s{sTmp+1}, s{sW}, 8
    s_add_u32 s{sTmp}, s{sTmp}, s{sTmp+1}
    s_waitcnt lgkmcnt(0)
    """)
    toks = []
    for ko in range(2):
        for u in range(2):
            for sg in range(8):
                e = 64 * ko + 8 * u + 2 * (sg // 4) + sg % 2 + 16 * ((sg % 4) // 2)
                r = 128 + ((ko * 2 + u) * 8 + sg) * 4
                A(f"s_add_u32 s{sTmp+1}, s{sTmp}, {e * 1024}")
                tk = vm.issue(f"buffer_load_dwordx4 v[{r}:{r+3}], v20, s[{sT}:{sT+3}], s{sTmp+1} offen")
            toks.append(tk)
    if -1 in hooks:
        A(f"s_waitcnt vmcnt({len(vm.q)})"); hooks[-1]()
    w_src_regs(A, vL16, SRC, 20)
    A(f"""
    s_lshl_b32 s{sTmp}, s{sW}, 20
    s_lshl_b32 s{sTmp+1}, s{sJ}, 8
    s_add_u32 s{sTmp}, s{sTmp}, s{sTmp+1}
    s_lshl_b32 s{sTmp+2}, s{sW}, 13
    """)
    srd = dict(q=sQ, k=sK, v=sV)
    jobs = [(m, u, q) for m in order for u in range(2) for q in range(2)]
    tk = {}
    def issue(i):
        m, u, q = jobs[i]
        for h in range(2):
            A(f"s_add_u32 s{sTmp+1}, s{sTmp}, {(64 * u + 16 * q + 32 * h) * 8192}")
            tk[i] = w_stage_dma(A, vm, srd[m], SRC, sTmp + 1, sTmp + 2, ((i + 2) % NS) * 32768 + h * 4096, 4)
    for i in range(depth):
        if i == depth - 1: fin(vm)
        issue(i)
    A(f"""
    v_bfe_u32 v20, v{n}, 2, 1
    v_lshrrev_b32 v21, 3, v{n}
    v_and_b32 v{RD}, 1, v{g}
    v_lshl_add_u32 v21, v21, 1, v{RD}              ; row & 3
    v_lshl_add_u32 v{RD}, v20, 3, v21
    v_lshrrev_b32 v{RD+1}, 1, v{g}
    v_lshl_add_u32 v{RD}, v{RD+1}, 4, v{RD}
    v_lshl_add_u32 v20, v21, 1, v20                ; phi
    s_lshl_b32 s{sTmp+3}, s{sW}, 1
    v_xor_b32 v20, s{sTmp+3}, v20
    v_lshlrev_b32 v20, 5, v20
    v_lshl_add_u32 v20, v{RD}, 8, v20
    v_and_b32 v21, 3, v{n}
    v_lshl_add_u32 v20, v21, 3, v20
    s_lshl_b32 s{sTmp+3}, s{sW}, 13
    s_add_u32 s{sTmp+3}, s{sTmp+3}, 65536
    v_add_u32 v20, s{sTmp+3}, v20
    """)
    for x in range(4):
        for tau in range(2):
            A(f"v_xor_b32 v{RD+2*x+tau}, {x * 8192 + tau * 32}, v20")
    for ko in range(2):
        for u in range(2):
            vm.wait(toks[ko * 2 + u])
            for T in range(8):
                assert LOC[("o", T, ko)][0] == "l" or LOC[("o", T, ko)][1] >= 256
                b = 128 + (ko * 2 + u) * 32 + T // 2
                loc = LOC[("o", T, ko)]
                if loc[0] == "l": loc = ("r", HOLD + 8 * (loc[1] - NE))
                emit_quad(A, loc, u, [(b + 8 * rho + 4, b + 8 * rho, sHi if T % 2 else sLo) for rho in range(4)], 120 + 4 * (T % 2))
    for i, r in enumerate(PARK): A(f"v_mov_b64 v[{r}:{r+1}], v[{HOLD+4*i}:{HOLD+4*i+1}]\nv_mov_b64 v[{r+2}:{r+3}], v[{HOLD+4*i+2}:{HOLD+4*i+3}]")
    cur = 1
    trace(A, 11, 112)
    for i, (m, u, q) in enumerate(jobs):
        st = (i + 2) % NS
        if st // 2 != cur:
            for x in range(8): A(f"v_add_u32 v{RD+x}, {(st // 2 - cur) * 65536}, v{RD+x}")
            cur = st // 2
        if i == 10:
            for k, r in enumerate(PARK): A(f"ds_write_b128 v{vW16}, v[{r}:{r+3}] offset:{L_WO+k*4096}")
            A("s_waitcnt lgkmcnt(0)")
        vm.wait(tk[i])
        A("s_barrier")
        if i % 2 == 1: trace(A, 12 + i // 2, 112)
        if depth < NS and i + depth < len(jobs): issue(i + depth)
        if i in hooks: hooks[i]()
        for x in range(4):
            for tau in range(2):
                for lh in range(2):
                    kind, r = LOC[(m, tau, 4 * lh + x)]
                    if kind == "l": r = HOLD + 8 * r
                    A(f"ds_read_b64_tr_b16 {reg(r + 4*u + 2*q, 2)}, v{RD + 2*x + tau} offset:{(st % 2) * 32768 + lh * 1024}")
        if depth == NS or i == 9 or i == 11: A("s_waitcnt lgkmcnt(0)\ns_barrier")
        else: A("s_waitcnt lgkmcnt(0)")
        if depth == NS and i + NS < len(jobs): issue(i + NS)
    if 12 in hooks: hooks[12]()
    if warm is not None and not early: warm_up()
    A(f"s_lshl_b32 s{sTmp}, s{sJ}, 13\ns_add_u32 s{sTmp}, s{sTmp}, s{sIn}\ns_add_u32 s{sTmp+1}, s{sTmp}, 4096\ns_lshl_b32 s{sTmp+2}, s{sW}, 13\ns_add_u32 s{sTmp+2}, s{sTmp+2}, s{sAgr}")
    A(f"buffer_load_dwordx4 v[104:107], v{vW16}, s[{sWS}:{sWS+3}], s{sTmp} offen sc1\nbuffer_load_dwordx4 v[104:107], v{vW16}, s[{sWS}:{sWS+3}], s{sTmp+1} offen sc1")
    A(f"buffer_load_dwordx2 v[104:105], v{vAGS}, s[{sWS}:{sWS+3}], s{sTmp+2} offen sc1")
    for i in range(2 * NE): A(f"ds_write_b128 v{vLW}, v[{HOLD+4*i}:{HOLD+4*i+3}] offset:{i*1024}")
    A(f"s_mul_i32 s{sTmp+1}, s{sW}, 24576\ns_add_u32 m0, s{sTmp+1}, {L_W + L_KV}\ns_waitcnt lgkmcnt(0)")

def smf(acc, a, b, abid=False):
    return f"v_smfmac_f32_16x16x64_bf16 {v(acc,4)}, {v(a,4)}, {reg(b,8)}, v{vIDX}" + (" abid:1" if abid else "")
def mf(acc, a, b, c=None):
    return f"v_mfma_f32_16x16x32_bf16 {v(acc,4)}, {v(a,4)}, {v(b,4)}, {v(c,4) if c is not None else '0'}"

def xlane(A, op, r, t):
    A(f"{op}_dpp v{r}, v{r}, v{r} quad_perm:[2,3,0,1] row_mask:0xf bank_mask:0xf")
    A(f"v_mov_b32 v{t}, v{r}\nv_permlane16_swap_b32 v{r}, v{t}\n{op} v{r}, v{r}, v{t}")
    A(f"v_mov_b32 v{t}, v{r}\nv_permlane32_swap_b32 v{r}, v{t}\n{op} v{r}, v{r}, v{t}")

NOP16 = [""]
def mf16(acc, a, b, c):
    return NOP16[0] + f"v_mfma_f32_16x16x16_bf16 {v(acc,4)}, {v(a,2)}, {v(b,2)}, {v(c,4)}"
def z64(r): return f"v_mov_b64 v[{r}:{r+1}], 0"

def chain_loop(A, P):
    STF = P.get("st", "")
    stamps = P.get("stamps", False)
    NOP16[0] = P.get("nop16", "")
    W = f"s[{sWS}:{sWS+3}]"
    H = f"s[{sHALF}:{sHALF+1}]"
    LOOP, RETRY, GOT, HOP2, FB, FBR, FAIL = [A.label(x) for x in ("c_loop", "c_retry", "c_got", "c_hop2", "c_fb", "c_fbr", "c_fail")]
    def snap(i):
        if P.get("snap"): A(f"s_memrealtime s[{sSt+2*i}:{sSt+2*i+1}]")
    LAST = A.label("c_last")
    acc = dict(q=QA, k=KA_, v=VA)
    def M(m, tau, lam):
        kind, x = LOC[(m, tau, lam)]
        A(smf(acc[m] + 4 * tau, mema(lam), x if kind == "r" else ESLOT[x]))
    ld = Cnt(A, "lgkmcnt", 15); vm = Cnt(A, "vmcnt", 63)
    def stage(lo, hi):
        for i in range(lo, hi):
            A(f"ds_read_b128 v[{ESLOT[i]}:{ESLOT[i]+3}], v{vLW} offset:{i*2048}")
            A(f"ds_read_b128 v[{ESLOT[i]+4}:{ESLOT[i]+7}], v{vLW} offset:{i*2048+1024}")
    wo_tok = {}
    def wof(i, h):
        r = WSLOT[i] + 4 * h
        wo_tok[i] = ld.issue(f"ds_read_b128 v[{r}:{r+3}], v{vW16} offset:{L_WO+(2*i+h)*4096}")
    A(f"""
    s_mov_b32 s{sStep}, 0
    s_mov_b32 s{sIt}, 0
    s_mov_b32 s{sAG}, s{sAgr}
    s_add_u32 s{sAG+1}, s{sAgr}, 4096
    s_mov_b32 s{sCnt}, 0
    s_mov_b32 s{sCnt+1}, 0
    s_lshl_b32 s{sTmp}, s{sJ}, 2
    s_add_u32 s{sTmp}, s{sTmp}, s{sW}
    s_lshl_b32 s{sTmp+1}, s{sChain}, 13
    s_add_u32 s{sTmp+1}, s{sTmp+1}, s{sTmp}
    s_lshr_b32 s{sKM}, s{sTmp+1}, 2
    s_lshl_b32 s{sKM}, s{sKM}, 13
    s_add_u32 s{sKM}, s{sKM}, {KM}
    s_lshr_b32 s{sFkm}, s{sTmp+1}, 2
    s_lshl_b32 s{sFkm}, s{sFkm}, 6
    s_add_u32 s{sFkm}, s{sFkm}, {F_KM - 2048 + WS_BYTES}
    s_cmp_eq_u32 s{sW}, {P.get("fw", 3)}
    s_cselect_b32 s{sFm}, {WS_BYTES}, 0
    s_lshl_b32 s{sTmp+1}, s{sLayer}, 13
    s_add_u32 s{sTmp+1}, s{sTmp+1}, s{sTmp}
    s_lshl_b32 s{sKV}, s{sTmp+1}, 12
    s_add_u32 s{sKV}, s{sKV}, {KV}
    s_lshl_b32 s{sFkv}, s{sTmp+1}, 5
    s_add_u32 s{sFkv}, s{sFkv}, {F_KV}
    """)
    A(f"""
    s_mov_b32 s{sMH}, {WS_BYTES}
    s_cmp_eq_u32 s{sChain}, 2
    s_cselect_b32 s{sFo}, {256*KB}, s{sMH}
    s_cselect_b32 s{sFgS}, 1, 3
    s_lshl_b32 s{sTmp}, s{sW}, 2
    s_add_u32 s{sTmp}, s{sTmp}, s{sChain}
    s_cmp_eq_u32 s{sTmp}, {9 if P.get('nomh') else 1}
    s_cselect_b32 s{sMH}, {MEMH}, s{sMH}
    s_mov_b32 s{sFork}, 0
    s_mov_b32 s{sKVd}, s{sKV}
    """)
    FL = P.get("flags", 1)
    SK_ = P.get("skip", 1)
    def kv_dma(p):
        vm.issue(f"buffer_load_dwordx4 v{vL16}, {W}, s{sKVd} offen offset:{p*1024} {P.get('kvf','')} lds")
    KVS = 0 if P.get("samekv") else 32*16384
    def kv_wait(fork=False):
        L0, L, LX = A.label("c_gw"), A.label("c_kvw"), A.label("c_kvx")
        def poll(lab):
            A(f"{lab}:\nbuffer_load_dword v{T0}, off, {W}, s{sFg} sc1")
            A(f"s_add_u32 s{sTmp+3}, s{sTmp+3}, 1\ns_cmp_gt_u32 s{sTmp+3}, {SPIN_MAX}\ns_cbranch_scc1 {FAIL}")
            A(f"s_waitcnt vmcnt(0) lgkmcnt(0)\nv_readfirstlane_b32 s{sRdy}, v{T0}\ns_cmp_eq_u32 s{sRdy}, 0\ns_cbranch_scc1 {lab}")
        A(f"s_mov_b32 s{sTmp+3}, 0\ns_sub_u32 s{sFg}, s{sFkv}, 4096\ns_sub_u32 s{sKVd}, s{sKV}, {KVS}\ns_mov_b32 s{sFork}, 0")
        if not fork:
            poll(L0)
            A(f"s_and_b32 s{sRdy}, s{sRdy}, s{sFgS}\ns_cbranch_scc1 {LX}")
        A(f"s_mov_b32 s{sFork}, 1\ns_add_u32 s{sKVd}, s{sKVd}, {32*MB}\ns_add_u32 s{sFg}, s{sFg}, {256*KB}")
        poll(L)
        A(f"{LX}:\nbuffer_load_dword v{T0}, off, {W}, s{sFkv} sc1")
        for p in range(4): kv_dma(p)
        A(f"s_waitcnt vmcnt(4)\nv_readfirstlane_b32 s{sRdy}, v{T0}\ns_mov_b32 s{sG}, 0")
    A(f"s_add_u32 s{sKV}, s{sKV}, {KVS}\ns_add_u32 s{sFkv}, s{sFkv}, 4096")
    trace(A, 2, MEMA)
    if P.get("peek"):
        PK, PK2 = A.label("c_pk"), A.label("c_pk2")
        A(f"s_cmp_eq_u32 s{sPk}, 0\ns_cbranch_scc1 {PK}\ns_sub_u32 s{sKVd}, s{sKV}, {KVS}\ns_mov_b32 s{sRdy}, s{sPk+1}\ns_mov_b32 s{sG}, 0")
        for p in range(4): kv_dma(p)
        A(f"s_branch {PK2}\n{PK}:")
    kv_wait()
    if P.get("peek"): A(f"{PK2}:")
    trace(A, 3, MEMA)
    if stamps:
        for i in range(12): A(f"s_mov_b32 s{sAcc+i}, 0")
    vm.reset()
    A("s_waitcnt vmcnt(4)")
    stage(3, 10)
    for r in range(QA, QA + 24, 2): A(z64(r))
    A(f"s_lshl_b32 s{sBox}, s{sJ}, 13\ns_add_u32 s{sBox}, s{sBox}, s{sIn}\ns_add_u32 s{sBox+1}, s{sBox}, 4096")
    stage(0, 3)
    A("s_waitcnt lgkmcnt(0)")
    A(f"{LOOP}:")
    m0, m4 = mema(0), mema(4)
    def ag_loads():
        A(f"buffer_load_dwordx4 v[{m0}:{m0+3}], v{vW16}, {W}, s{sAG} offen sc1")
        A(f"buffer_load_dwordx4 v[{m4}:{m4+3}], v{vW16}, {W}, s{sAG+1} offen sc1")
    NSH = P.get("nsh", 2)
    W0A, W0B = A.label("c_w0a"), A.label("c_w0b")
    ag_loads()
    snap(0)
    if stamps and P.get("ref", 0) == 0: A(f"s_memtime s[{sSt}:{sSt+1}]")
    A(f"s_mov_b32 s{sTmp+2}, 0")
    ZL = P.get("zl", 1)
    if ZL:
        for r in range(QA, QA + 24, 2): A(z64(r))
    for k in range(1, NSH):
        delay(A, P.get("g2", 0)); ag_loads()
    if not ZL: A(z64(VA))
    npo = 2 * (NSH - 2)
    A("s_waitcnt lgkmcnt(0)")
    XB, XR = A.label("c_xb"), A.label("c_xr")
    if P.get("skip", 1): A(f"s_and_b32 s{sTmp+3}, s{sRdy}, s{sFgS}\ns_cbranch_scc0 {XB}\n{XR}:")
    A(f"s_waitcnt vmcnt({3+npo})")
    snap(1)
    A(f"v_max3_u32 v{T0}, v{m0}, v{m0+1}, v{m0+2}")
    A(f"v_max_u32 v{T0}, v{T0}, v{m0+3}")
    A(f"ds_write_b128 v{vW16}, v[{m0}:{m0+3}] offset:{L_MEM}")
    M(*OWN[0])
    A(f"s_waitcnt vmcnt({2+npo})")
    A(f"v_max3_u32 v{T0}, v{m4}, v{m4+1}, v{T0}")
    A(f"v_max3_u32 v{T0}, v{m4+2}, v{m4+3}, v{T0}")
    A(f"ds_write_b128 v{vW16}, v[{m4}:{m4+3}] offset:{L_MEM+4096}")
    M(*OWN[1])
    A(f"v_cmp_eq_u32 vcc, -1, v{T0}")
    M(*OWN[2])
    A(f"s_cbranch_vccnz {RETRY}\n{GOT}:")
    NB = P.get("nb", 7)
    KVW, KVR = A.label("c_kvs"), A.label("c_kvr")
    tkv = {}
    def rdkv(p): tkv[p] = ld.issue(f"ds_read_b128 v[{KXR+4*p}:{KXR+4*p+3}], v{vLW} offset:{L_KV+p*1024}")
    EK = P.get("ek", 1)
    for i in range(3, NB):
        M(*OWN[i])
        if EK:
            for p in {7: [[0], [1], [2], [3]], 6: [[0], [1, 2], [3]], 5: [[0, 1], [2, 3]]}[NB][i - 3]: rdkv(p)
        if i == 3: A(f"s_and_b32 s{sRdy}, s{sRdy}, s{sFgS}\ns_cselect_b32 s{sKVd}, s{sKV}, {WS_BYTES}")
        if SK_: pass
        elif i == 4: A(f"s_cselect_b32 s{sFork}, 0, s{sG}")
        elif i == 5: A(f"s_add_u32 s{sTmp+5}, s{sKV}, {32*MB}\ns_cmp_lg_u32 s{sFork}, 0")
        elif i == 6: A(f"s_cselect_b32 s{sKVd}, s{sTmp+5}, s{sKVd}")
        if i == 4 and FL: A(f"v_mov_b32 v{T0}, 1")
    A(f"s_waitcnt lgkmcnt({4 if EK else 0})\ns_barrier")
    if stamps and P.get("ref", 0) == 1: A(f"s_memtime s[{sSt}:{sSt+1}]")
    snap(2)
    if P.get("ftrace"): trace(A, 5, MEMA + 8)
    order = [1, 2, 3, 5, 6, 7]
    tm = {}
    own = OWN[NB:]
    NA = 11 - NB
    def rdm(lam): tm[lam] = ld.issue(f"ds_read_b128 v[{mema(lam)}:{mema(lam)+3}], v{vW16+lam%4} offset:{L_MEM+(lam//4)*4096}")
    rdm(order[0])
    for i in range(NA):
        if i < 5: rdm(order[1 + i])
        M(*own.pop(0))
    assert all(LOC[o][0] == "r" for o in own)
    def half_sum(a): return [f"v_add_f32 v{a}, v{a}, v{a+2}", f"v_add_f32 v{a+1}, v{a+1}, v{a+3}"]
    def kpost(a): return half_sum(a) + [f"v_cvt_pk_bf16_f32 v{a+2}, v{a}, v{a+1}"]
    def qwr(a, off): ld.issue(f"ds_write2_b32 v{vCQ}, v{a}, v{a} offset0:{off} offset1:{off+1}")
    X = QA
    PX, PM = KXR, KXR + 4
    if NA < 5: rdm(order[5])
    f = [lambda: rdkv(0), lambda: rdkv(1), lambda: rdkv(2), lambda: rdkv(3), lambda: wof(0, 0), lambda: wof(0, 1)]
    if EK: f = [lambda: kv_dma(0), lambda: wof(0, 0), lambda: kv_dma(1), lambda: wof(0, 1), lambda: kv_dma(2), lambda: None]
    FP = P.get("fp", 0)
    def kmflag(): A(f"s_mov_b64 exec, 1\nbuffer_store_dword v{T0}, off, {W}, s{sFkm} sc1\ns_mov_b64 exec, -1")
    if FP == 0: f = [kmflag] + f[:5]
    late = (lambda p: None) if EK else kv_dma
    for lam in order:
        ld.wait(tm[lam]); M("q", 0, lam); f.pop(0)()
    qp = kpost(QA)
    M("q", 1, order[0])
    if EK: kv_dma(3)
    if FL and not EK: A(f"s_mov_b64 exec, 1\nbuffer_store_dword v{T0}, off, {W}, s{sFkm} sc1\ns_mov_b64 exec, -1")
    M("q", 1, order[1]); tmh = ld.issue(f"ds_read_b64 v[{SOP+12}:{SOP+13}], v{vAGS} offset:{L_MEM}"); A(qp.pop(0))
    M("q", 1, order[2]); wof(1, 0); A(qp.pop(0))
    M("q", 1, order[3]); wof(1, 1); A(qp.pop(0))
    M("q", 1, order[4]); qwr(QA + 2, 0)
    M("q", 1, order[5]); ld.issue(f"ds_read_b64_tr_b16 v[{SOP}:{SOP+1}], v{vCRW} offset:{L_QK}")
    qp = kpost(QA + 4)
    M("k", 0, order[0]); ld.wait(tkv[3]); late(0)
    if FP == 1: kmflag()
    M("k", 0, order[1]); wof(2, 0); A(qp.pop(0))
    M("k", 0, order[2]); wof(2, 1); A(qp.pop(0)); A(qp.pop(0))
    M("k", 0, order[3]); qwr(QA + 6, 128); tq = ld.issue(f"ds_read_b64_tr_b16 v[{SOP+2}:{SOP+3}], v{vCRW} offset:{L_QK+512}")
    M("k", 0, order[4]); late(1)
    M("k", 0, order[5]); ld.wait(tmh); vm.issue(f"buffer_store_dwordx2 v[{SOP+12}:{SOP+13}], v{vAGS}, {W}, s{sMH} offen sc1")
    kp = kpost(KA_)
    M("k", 1, order[0]); late(2)
    NK = P.get("nk", 2)
    for i in range(1, NK): M("k", 1, order[i])
    ld.wait(tq); A(kp.pop(0))
    A(mf(SOP + 4, KXR, SOP)); A(kp.pop(0)); A(kp.pop(0))
    A(mf(SOP + 8, KXR + 4, SOP)); ld.issue(f"ds_write_b32 v{vCQ}, v{KA_+2}")
    sel = [f"v_cndmask_b32 v{X+i}, v{SOP+4+i}, v{SOP+8+i}, {H}" for i in range(4)]
    Vq = [("k", 1, order[i]) for i in range(NK, 6)] + own + [("v", 0, lam) for lam in order] + [("v", 1, lam) for lam in order]
    def vq(n=1):
        for _ in range(n): M(*Vq.pop(0))
    vs = [lambda: (late(3), A(f"v_mov_b32 v{PM}, 0"))] + [(lambda x=x: A(x)) for x in sel]
    for _ in range(NK, 6):
        vq(); vs.pop(0)()
    vq()
    while vs: vs.pop(0)()
    kp = kpost(KA_ + 4)
    vq(); ld.issue(f"ds_write_b128 v{vW16}, v[{X}:{X+3}] offset:{L_PS}")
    for x in kp: A(x)
    vq(); tk = ld.issue(f"ds_write_b32 v{vCQ}, v{KA_+6} offset:512"); A(f"s_waitcnt vmcnt({6 if FL else 5})"); A(f"v_mov_b32 v{PM+3}, 0")
    SM, ONES = MEMA, MEMA + 4
    on = [f"v_mov_b64 v[{ONES}:{ONES+1}], s[{sONE}:{sONE+1}]", f"v_mov_b64 v[{ONES+2}:{ONES+3}], s[{sONE}:{sONE+1}]"]
    for i in range(P.get("vq1", 3)):
        vq()
        if on and i + 1 < P.get("vq1", 3): A(on.pop(0))
    ld.wait(tk)
    A("s_barrier")
    ts = []; tp = []
    def rd_s(c, h):
        t = ld.issue(f"ds_read_b64_tr_b16 v[{SOP+4*c+2*h}:{SOP+4*c+2*h+1}], v{vCRW+c} offset:{L_QK+h*512}")
        if h: ts.append(t)
    def rd_p(x): tp.append(ld.issue(f"ds_read_b128 v[{X+4*x}:{X+4*x+3}], v{vW16+x} offset:{L_PS}"))
    vp0 = half_sum(VA) + [f"v_cvt_pk_bf16_f32 v{VA+2}, v{VA}, v{VA+1}"]
    vp1 = half_sum(VA + 4) + [f"v_cvt_pk_bf16_f32 v{VA+3}, v{VA+4}, v{VA+5}"]
    fv = on
    rd_p(1); rd_p(2); vq(); rd_p(3)
    for c in range(4):
        vq(); rd_s(c, 0); rd_s(c, 1)
        if len(Vq) == 4: fv += vp0; vp0 = []
        if c == 3: ld.wait(tp[2])
        if fv: A(fv.pop(0))
    fv += vp0
    E = MEMA + 8; CK = T0
    adds = [f"v_add_f32 v{X+i}, v{X+i}, v{X+4+i}" for i in range(4)] + [f"v_add_f32 v{X+8+i}, v{X+8+i}, v{X+12+i}" for i in range(4)] + \
           [f"v_add_f32 v{X+i}, v{X+i}, v{X+8+i}" for i in range(4)]
    while Vq:
        vq()
        if not Vq:
            ld.wait(ts[1])
            if P.get("kearly") == 2: vm.issue(f"buffer_store_dwordx4 v[{SOP}:{SOP+3}], v{vW16}, {W}, s{sKM} offen sc1")
        A(adds.pop(0))
    PUB = P.get("pub", "sc1")
    def pub(txt):
        if PUB != "none": vm.issue(txt + " " + PUB)
    A(mf(SM, SOP, SOP))
    if P.get("kearly", 0) == 1: pub(f"buffer_store_dwordx4 v[{SOP}:{SOP+3}], v{vW16}, {W}, s{sKM} offen")
    A(adds.pop(0)); A(adds.pop(0))
    A(mf(SM, SOP + 4, SOP + 4, SM)); ld.wait(ts[3]); A(adds.pop(0)); A(adds.pop(0))
    A(mf(SM, SOP + 8, SOP + 8, SM)); A(adds.pop(0)); A(adds.pop(0))
    A(mf(SM, SOP + 12, SOP + 12, SM))
    while adds: A(adds.pop(0))
    PVA, ZA = X + 4, X + 12
    for i in range(4): A(f"v_exp_f32 v{E+i}, v{X+i}")
    A(f"v_cvt_pk_bf16_f32 v{E}, v{E}, v{E+1}\nv_mul_f32 v{SM}, s{sC}, v{SM}\nv_cvt_pk_bf16_f32 v{E+1}, v{E+2}, v{E+3}")
    def selp():
        A(f"v_cndmask_b32 v{PX}, v{E}, 0, {H}\nv_cndmask_b32 v{PX+1}, v{E+1}, 0, {H}")
        A(f"v_cndmask_b32 v{PX+2}, 0, v{E}, {H}\nv_cndmask_b32 v{PX+3}, 0, v{E+1}, {H}")
    selp()
    A(f"v_mul_f32 v{SM+1}, s{sC}, v{SM+1}\nv_exp_f32 v{E+4}, v{SM}")
    A(mf(ZA, PX, ONES))
    if not P.get("kearly", 0): pub(f"buffer_store_dwordx4 v[{SOP}:{SOP+3}], v{vW16}, {W}, s{sKM} offen")
    fv += vp1
    A(f"v_exp_f32 v{E+5}, v{SM+1}"); A(fv.pop(0))
    A(mf(PVA, PX, VX))
    A(f"s_add_u32 s{sTmp+4}, s{sKM}, 4096")
    A(f"v_cvt_pk_bf16_f32 v{E+4}, v{E+4}, v{E+5}"); A(fv.pop(0))
    A(mf(PVA + 4, PX, VX + 4))
    A(f"v_cndmask_b32 v{PM+1}, 0, v{E+4}, {H}\nv_cndmask_b32 v{PM+2}, 0, v{E+4}, {H}")
    for x in fv: A(x)
    A(f"v_lshrrev_b32 v{SOP+4}, 1, v{vW16}")
    A(mf16(ZA, PM, ONES, ZA))
    VE = P.get("vearly", 1)
    if VE: pub(f"buffer_store_dwordx2 v[{VA+2}:{VA+3}], v{SOP+4}, {W}, s{sTmp+4} offen")
    A(f"v_max3_f32 v{CK}, |v{X}|, |v{X+1}|, |v{X+2}|")
    A(f"v_max_f32 v{E+2}, |v{SM}|, |v{SM+1}|")
    A(mf16(PVA, PM + 2, VA + 2, PVA))
    A(f"v_cndmask_b32 v{E+2}, 0, v{E+2}, {H}")
    A(f"v_max3_f32 v{CK}, |v{X+3}|, v{E+2}, v{CK}")
    A(f"v_cmp_lt_f32 vcc, 0x42700000, v{CK}")
    A(mf16(PVA + 4, PM, VA + 2, PVA + 4))
    WA = [MEMA + 8 + 4 * i for i in range(6)][::-1] + [VX, VX + 4]
    zl = [r for a in WA for r in (a, a + 2)]
    A(f"s_cbranch_vccnz {FB}")
    A(f"{FBR}:")
    for x in half_sum(ZA): A(x)
    A(f"v_rcp_f32 v{ZA}, v{ZA}\nv_rcp_f32 v{ZA+1}, v{ZA+1}")
    A(f"v_pk_add_f32 v[{PVA}:{PVA+1}], v[{PVA}:{PVA+1}], v[{PVA+2}:{PVA+3}]")
    A(f"v_pk_add_f32 v[{PVA+4}:{PVA+5}], v[{PVA+4}:{PVA+5}], v[{PVA+6}:{PVA+7}]")
    A(f"v_pk_mul_f32 v[{PVA}:{PVA+1}], v[{PVA}:{PVA+1}], v[{ZA}:{ZA+1}]")
    A(f"v_pk_mul_f32 v[{PVA+4}:{PVA+5}], v[{PVA+4}:{PVA+5}], v[{ZA}:{ZA+1}]")
    A(f"v_cvt_pk_bf16_f32 v{PVA+2}, v{PVA}, v{PVA+1}")
    A(f"v_cvt_pk_bf16_f32 v{PVA+3}, v{PVA+4}, v{PVA+5}")
    two = ld.issue(f"ds_write_b64 v{vCQ}, v[{PVA+2}:{PVA+3}] offset:{L_O}")
    for _ in range(P.get("z1", 12)): A(z64(zl.pop(0)))
    ld.wait(two)
    A("s_barrier")
    OOP = KXR
    to = [ld.issue(f"ds_read_b64_tr_b16 v[{OOP+2*i}:{OOP+2*i+1}], v{vCR} offset:{L_O+i*1024}") for i in range(4)]
    pubs = [f"buffer_store_dwordx4 v[{SOP}:{SOP+3}], v{vW16}, {W}, s{sKM} offen",
            f"buffer_store_dwordx2 v[{VA+2}:{VA+3}], v{SOP+4}, {W}, s{sTmp+4} offen"]
    OUT = QA
    def post(T):
        a = WA[T]
        return half_sum(a) + [f"v_cvt_pk_bf16_f32 v{OUT+T}, v{a}, v{a+1}"] + ([f"v_and_or_b32 v{OUT+T}, v{OUT+T}, -2, s{sPar}"] if T % 4 == 0 else [])
    pend = [z64(r) for r in zl]
    fq = [(3, 0), (3, 1), (4, 0), (4, 1), (5, 0), (5, 1)]
    sal = [f"s_and_b32 s{sPar}, s{sIt}, 1", f"s_add_u32 s{sIt}, s{sIt}, 1",
           f"s_add_u32 s{sStep}, s{sStep}, 1", f"s_and_b32 s{sAG}, s{sIt}, 3", f"s_lshl_b32 s{sAG}, s{sAG}, 13"]
    for x in sal: A(x)
    if not VE: pub(pubs[1])
    A(f"s_cmp_eq_u32 s{sStep}, {NSEG}\ns_cbranch_scc1 {LAST}")
    done_st0 = False
    seq = list(WO_ORDER)
    if P.get("wsw", 1): seq[1], seq[2] = seq[2], seq[1]
    for i, (T, ko) in enumerate(seq):
        kind, x = LOC[("o", T, ko)]
        if i == 0: ld.wait(to[1])
        if kind == "l": ld.wait(wo_tok[x - NE])
        A(smf(WA[T], OOP + 4 * ko, x if kind == "r" else WSLOT[x - NE]))
        if i == P.get("wsw", 1): ld.wait(to[3])
        if i == 12: ld.wait(wo_tok[5])
        if not done_st0 and i >= 10 and not any(f"v{OUT+3}," in p for p in pend):
            vm.issue(f"buffer_store_dwordx4 v[{OUT}:{OUT+3}], v{vPS}, {W}, s{sIn} offen {STF}"); done_st0 = True
        if i >= 5 and i % 2 == 1: pend += post((i - 3) // 2)
        if i == 3 + P.get("wsw", 1): pend += post(0)
        if fq and i >= P.get("wf0", 0): wof(*fq.pop(0))
        n = 0
        while pend and n < (1 if i < 3 else 2): A(pend.pop(0)); n += 1
    for x in pend: A(x)
    assert done_st0
    RA, SEL = VA, VA + 4
    a = WA[7]
    A(f"v_pk_add_f32 v[{a}:{a+1}], v[{a}:{a+1}], v[{a+2}:{a+3}]\nv_cvt_pk_bf16_f32 v{OUT+7}, v{a}, v{a+1}")
    vm.issue(f"buffer_store_dwordx4 v[{OUT+4}:{OUT+7}], v{vPS}, {W}, s{sIn+1} offen {STF}")
    snap(3)
    A(f"""
    s_add_u32 s{sAG}, s{sAG}, s{sAgr}
    s_add_u32 s{sAG+1}, s{sAG}, 4096
    s_add_u32 s{sKV}, s{sKV}, {KVS}
    s_add_u32 s{sKM}, s{sKM}, {0 if P.get("samekm") else 32*8192}
    s_add_u32 s{sFkv}, s{sFkv}, 4096
    s_add_u32 s{sFkm}, s{sFkm}, 2048
    s_andn2_b32 s{sFkm}, s{sFkm}, s{sFm}
    """)
    A(f"s_add_u32 s{sMH}, s{sMH}, 8192\ns_add_u32 s{sFg}, s{sFkv}, s{sFo}")
    if not ZL:
        for r in range(QA + 8, QA + 16, 2): A(z64(r))
        for r in range(QA, QA + 8, 2): A(z64(r))
    SETS = [MEMA, ST[0]]
    def inbox_load(b, it):
        r = SETS[b] + 4 * it
        A(f"buffer_load_dwordx4 v[{r}:{r+3}], v{vL16}, {W}, s{sBox + it // 4} offen offset:{(it % 4) * 1024} sc1")
    OTH, P1R = A.label("c_oth"), A.label("c_p1r")
    A(f"s_cmp_lg_u32 s{sW}, 0\ns_cbranch_scc1 {OTH}")
    A(f"s_mov_b32 s{sTmp+2}, 0\ns_add_u32 s{sCnt}, s{sCnt}, 1")
    PZ = RA
    N1 = P.get('n1', 3)
    A(f"v_mov_b64 v[{PZ}:{PZ+1}], -1\ns_xor_b32 s{sTmp+8}, s{sAG}, {2 << 13}")
    A(f"buffer_store_dwordx2 v[{PZ}:{PZ+1}], v{vAGS}, {W}, s{sTmp+8} offen {STF}")
    A(f"s_mov_b32 vcc_lo, 0xaaaaaaaa\ns_mov_b32 vcc_hi, 0xaaaaaaaa\nv_mov_b32 v{T0}, 0x3f80\nv_cndmask_b32 v{T0}, v{T0}, 1.0, vcc")
    for r in range(4):
        A(f"s_mov_b32 vcc_lo, {hex(0x00030003 << (2*r))}\ns_mov_b32 vcc_hi, {hex(0x00030003 << (2*r))}\nv_cndmask_b32 v{SEL+r}, 0, v{T0}, vcc")
    for lo, hi in {1: [(10 - N1, 10)], 2: [(10 - N1, 11 - N1), (11 - N1, 10)], 3: [(7, 8), (8, 9), (9, 10)]}[P.get("l1", 2)]:
        stage(lo, hi); A("s_waitcnt lgkmcnt(0)")
    if P.get("w1") is not None: A(f"s_waitcnt vmcnt({P['w1']})")
    delay(A, P.get("d1", 0))
    snap(4)
    for it in range(8): inbox_load(0, it)
    snap(5)
    delay(A, P.get("g1", 0))
    ONE = P.get("one", 0)
    if not ONE:
        for it in range(8): inbox_load(1, it)
    A(f"s_buffer_load_dword s{sRdy}, {W}, s{sFkv}" + ("" if SK_ else f"\ns_buffer_load_dword s{sG}, {W}, s{sFg}"))
    def rpass(b, fail, first=False):
        for it in range(8):
            r = SETS[b] + 4 * it
            A(f"s_waitcnt vmcnt({15-it if first and not ONE else 7-it})")
            if first and it == 0: snap(6)
            if first and it == 7: snap(7)
            A(mf(RA, r, SEL, RA if it else None))
            if it == 0: A(f"v_xor_b32 v{T0}, s{sPar}, v{r}")
            else: A(f"v_bitop3_b32 v{T0}, v{T0}, v{r}, s{sPar} bitop3:0xf6")
        A(f"v_and_b32 v{T0}, 1, v{T0}\nv_cmp_ne_u32 vcc, 0, v{T0}")
        if first: A(f"v_mov_b32 v{T0}, 0\nv_mov_b32 v{T0}, 0\ns_cbranch_vccnz {fail}")
        else: A(f"s_add_u32 s{sCnt}, s{sCnt}, 1\ns_cbranch_vccz {fail}")
    rpass(0, P1R, True)
    PUBL = A.label("c_publ")
    A(f"{PUBL}:")
    A(f"v_cvt_pk_bf16_f32 v{RA}, v{RA}, v{RA+1}\nv_cvt_pk_bf16_f32 v{RA+1}, v{RA+2}, v{RA+3}")
    A(f"v_min_u32 v{RA}, -2, v{RA}\nv_min_u32 v{RA+1}, -2, v{RA+1}")
    A(f"buffer_store_dwordx2 v[{RA}:{RA+1}], v{vAGS}, {W}, s{sAG} offen {STF}")
    if not ONE: A("s_waitcnt vmcnt(1)")
    stage(0, 10 - N1)
    if P.get("l2") is not None: A(f"s_waitcnt lgkmcnt({P['l2']})")
    for r in range(VA + 2, VA + 8 - 8 * ZL, 2): A(z64(r))
    if P.get("w2") is not None: A(f"s_waitcnt vmcnt({P['w2']})")
    A(f"{HOP2}:")
    snap(8)
    A("s_barrier")
    if P.get("ftrace"): trace(A, 4, MEMA)
    if P.get("snap"):
        SN = A.label("c_sn")
        A(f"s_cmp_lg_u32 s{sStep}, {P['snap']}\ns_cbranch_scc1 {SN}\ns_waitcnt lgkmcnt(0)")
        for i in range(9): A(f"s_mov_b32 s{sAcc+1+i}, s{sSt+2*i}")
        A(f"{SN}:")
    if stamps:
        A("s_waitcnt lgkmcnt(0)")
        A(f"s_cmp_gt_u32 s{sStep}, 16")
        i = 11
        A(f"s_cselect_b32 s{sTmp}, s{sSt+2*i}, s{sSt}\ns_sub_u32 s{sTmp}, s{sTmp}, s{sSt}\ns_add_u32 s{sAcc+i}, s{sAcc+i}, s{sTmp}")
    if P.get("steady", 1):
        SK = A.label("c_sk")
        A(f"s_cmp_lg_u32 s{sStep}, 16\ns_cbranch_scc1 {SK}\ns_memtime s[56:57]\ns_mov_b32 s{sCnt}, 0\ns_mov_b32 s{sCnt+1}, 0\n{SK}:")
    delay(A, P.get("d2", 0))
    FK0 = A.label("c_fk0")
    A(f"s_cmp_le_u32 s{sKVd}, s{sKV}\ns_cbranch_scc1 {LOOP}\ns_cmp_lg_u32 s{sKVd}, {WS_BYTES}\ns_cbranch_scc1 {FK0}")
    A(f"buffer_store_dwordx2 v[{RA}:{RA+1}], v{vAGS}, {W}, s{sMH} offen sc1")
    kv_wait()
    A(f"s_cmp_eq_u32 s{sFork}, 0\ns_cbranch_scc1 {LOOP}")
    FK = A.label("c_fk")
    A(f"{FK0}:")
    def ag_wait(lab):
        A(f"s_mov_b32 s{sTmp+3}, 0\n{lab}:")
        ag_loads()
        A(f"s_add_u32 s{sTmp+3}, s{sTmp+3}, 1\ns_cmp_gt_u32 s{sTmp+3}, {SPIN_MAX}\ns_cbranch_scc1 {FAIL}")
        A(f"s_waitcnt vmcnt(0)\nv_max3_u32 v{T0}, v{m0}, v{m0+1}, v{m0+2}\nv_max3_u32 v{T0}, v{m0+3}, v{m4}, v{T0}\nv_max3_u32 v{T0}, v{m4+1}, v{m4+2}, v{T0}\nv_max_u32 v{T0}, v{T0}, v{m4+3}")
        A(f"v_cmp_eq_u32 vcc, -1, v{T0}\ns_cbranch_vccnz {lab}")
    ag_wait(FK)
    FK1 = A.label("c_fk1")
    A(f"{FK1}:\ns_lshl_b32 s{sAG}, s{sStep}, 13\ns_add_u32 s{sAG}, s{sAG}, {MEMH}\ns_add_u32 s{sAG+1}, s{sAG}, 4096\ns_mov_b32 s{sFork}, 0")
    A(f"s_branch {LOOP}")
    if P.get("skip", 1):
        XP, XS = A.label("c_xp"), A.label("c_xs")
        A(f"{XB}:\ns_cmp_lg_u32 s{sFgS}, 1\ns_cbranch_scc1 {XR}\ns_cmp_ge_u32 s{sStep}, {NSEG-1}\ns_cbranch_scc1 {XR}\n{XP}:")
        A(f"s_cmp_lg_u32 s{sRdy}, 0\ns_cbranch_scc1 {XS}\nbuffer_load_dword v{T0}, off, {W}, s{sFkv} sc1")
        A(f"s_add_u32 s{sTmp+3}, s{sTmp+3}, 1\ns_cmp_gt_u32 s{sTmp+3}, {SPIN_MAX}\ns_cbranch_scc1 {FAIL}")
        A(f"s_waitcnt vmcnt(0)\nv_readfirstlane_b32 s{sRdy}, v{T0}\ns_branch {XP}\n{XS}:\ns_cmp_eq_u32 s{sRdy}, 1\ns_cbranch_scc1 {XR}")
        ag_wait(A.label("c_xw"))
        A(f"v_mov_b32 v{T0}, 1\ns_barrier\ns_mov_b64 exec, 1\nbuffer_store_dword v{T0}, off, {W}, s{sFkm} sc1\ns_mov_b64 exec, -1")
        A(f"s_add_u32 s{sStep}, s{sStep}, 1\ns_add_u32 s{sKV}, s{sKV}, {KVS}\ns_add_u32 s{sKM}, s{sKM}, {32*8192}\ns_add_u32 s{sFkv}, s{sFkv}, 4096")
        A(f"s_add_u32 s{sFkm}, s{sFkm}, 2048\ns_andn2_b32 s{sFkm}, s{sFkm}, s{sFm}")
        kv_wait(True)
        A(f"s_branch {FK1}")
    A(f"{LAST}:")
    if FL: A(f"s_add_u32 s{sFkm}, s{sFkm}, 2048\nv_mov_b32 v{T0}, 1\ns_waitcnt vmcnt(0)\ns_barrier\ns_mov_b64 exec, 1\nbuffer_store_dword v{T0}, off, {W}, s{sFkm} sc1\ns_mov_b64 exec, -1")
    A(f"s_branch {P.get('done', FAIL)}")
    A(f"{OTH}:")
    trace(A, 1, MEMA, sStep)
    trace_clk(A, MEMA)
    A(f"s_buffer_load_dword s{sRdy}, {W}, s{sFkv}" + ("" if SK_ else f"\ns_buffer_load_dword s{sG}, {W}, s{sFg}"))
    stage(0, 10)
    for r in range(VA + 2, VA + 8 - 8 * ZL, 2): A(z64(r))
    A(f"s_branch {HOP2}")
    A(f"{P1R}:")
    if ONE:
        for it in range(8): inbox_load(0, it)
        rpass(0, PUBL)
    else:
        rpass(1, PUBL)
        for it in range(8): inbox_load(1, it)
    A(f"s_add_u32 s{sTmp+2}, s{sTmp+2}, 1\ns_cmp_gt_u32 s{sTmp+2}, {SPIN_MAX}\ns_cbranch_scc0 {P1R}\ns_branch {FAIL}")
    RL = A.label("c_rl")
    A(f"{RETRY}:")
    for r in range(QA, QA + 12, 2): A(z64(r))
    A(f"{RL}:")
    ag_loads()
    A(f"s_add_u32 s{sTmp+2}, s{sTmp+2}, 1\ns_add_u32 s{sCnt+1}, s{sCnt+1}, 1\ns_cmp_gt_u32 s{sTmp+2}, {SPIN_MAX}\ns_cbranch_scc1 {FAIL}")
    A(f"s_waitcnt vmcnt({2+npo})")
    A(f"v_max3_u32 v{T0}, v{m0}, v{m0+1}, v{m0+2}\nv_max3_u32 v{T0}, v{m0+3}, v{m4}, v{T0}\nv_max3_u32 v{T0}, v{m4+1}, v{m4+2}, v{T0}\nv_max_u32 v{T0}, v{T0}, v{m4+3}")
    A(f"v_cmp_eq_u32 vcc, -1, v{T0}\ns_cbranch_vccnz {RL}")
    A(f"ds_write_b128 v{vW16}, v[{m0}:{m0+3}] offset:{L_MEM}")
    M(*OWN[0])
    A(f"ds_write_b128 v{vW16}, v[{m4}:{m4+3}] offset:{L_MEM+4096}")
    M(*OWN[1]); M(*OWN[2])
    A(f"s_branch {GOT}")
    A(f"{FB}:")
    A(f"v_max3_f32 v{CK}, v{X}, v{X+1}, v{X+2}\nv_max_f32 v{CK}, v{X+3}, v{CK}")
    A(f"s_mov_b64 exec, {H}\nv_max3_f32 v{CK}, v{SM}, v{SM+1}, v{CK}\ns_mov_b64 exec, -1")
    xlane(A, "v_max_f32", CK, E)
    for i in range(4): A(f"v_sub_f32 v{E+i}, v{X+i}, v{CK}")
    for i in range(2): A(f"v_sub_f32 v{E+4+i}, v{SM+i}, v{CK}")
    for i in range(6): A(f"v_exp_f32 v{E+i}, v{E+i}")
    A(f"v_cvt_pk_bf16_f32 v{E}, v{E}, v{E+1}\nv_cvt_pk_bf16_f32 v{E+1}, v{E+2}, v{E+3}\nv_cvt_pk_bf16_f32 v{E+4}, v{E+4}, v{E+5}")
    selp()
    A(f"v_cndmask_b32 v{PM+1}, 0, v{E+4}, {H}\nv_cndmask_b32 v{PM+2}, 0, v{E+4}, {H}")
    A(mf(ZA, PX, ONES)); A(mf(PVA, PX, VX)); A(mf(PVA + 4, PX, VX + 4))
    A(mf16(ZA, PM, ONES, ZA)); A(mf16(PVA, PM + 2, VA + 2, PVA)); A(mf16(PVA + 4, PM, VA + 2, PVA + 4))
    A(f"s_branch {FBR}")
    A(f"{FAIL}:")
```

```python
from asmlib import *
from layout import *
from common import *
from chain import Cnt, sWS, sT, sJ, sW, sC, sTmp, sLo, sHi

oL16, oL8, oL4, oOR, oPS, oRL, oOW, oT = range(8)
oWR0 = 8
SELA, oIDX = 16, 20
BIAS = 24
oSK, oSQ, oSM, oSV, oFO, oFL, oKEY, oVT = 32, 33, 34, 35, 36, 37, 38, 39
KR, OA, SX, SMM = 40, 72, 104, 112
QR, MR, VR = 120, 136, 152
PXR, PMR, VMR = 116, 196, 200
OP, EX = 40, 56
ACC, XO = 40, 104
RB = 120
XR, S0, XF, YF = 184, 188, 196, 204
PKO = 212
oFK = 244
oL32 = 246
oL256 = 255
oKP, oFO2, oTM = 248, 252, 253
oTHR = 247
L_O, L_ST, L_KM, L_VOTE = 0, 16384, 65536, 81920
sNk = 3
sRep, sU = 60, 61
sTask = 62
sCur, sNxt, sPrev = 63, 64, 65
sPre, sSpin = 66, 67
sOut = 68
sX = 72
sPreK, sRow, sKey = 76, 77, 78
sEx = 44
sD_ = 80
sKp, sHd, sBox, sPq, sPk = 84, 85, 86, 87, 88
sR = 90
sRun, sD, sBoth, sS, sFin, sRet = 46, 47, 48, 49, 50, 51
B_SET, B_KIND, B_DST, B_KA, B_VALID, B_SAME, B_ROW = 6, 14, 16, 17, 20, 21, 22
def desc(set_, kind, ka): return set_ << B_SET | kind << B_KIND | ka << B_KA | 1 << B_VALID
cQF, cKF, cKV, cQX, cKM, cKD, cM0, cM1, cM2, cBX, sTag, cTK = 14, 15, 18, 19, 20, 21, 22, 23, 40, 41, 42, 43
def wo_op(ks, T): return 256 + (ks * 4 + T) * 4
def mf32(d, a, b, c): return f"v_mfma_f32_32x32x16_bf16 {v(d,16)}, {reg(a,4)}, {reg(b,4)}, {v(c,16) if c is not None else '0'}"

def o_consts(A):
    n, g, l, t = 40, 41, 42, 43
    A(f"""
    v_and_b32 v{l}, 63, v0
    v_and_b32 v{n}, 15, v{l}
    v_lshrrev_b32 v{g}, 4, v{l}
    v_lshlrev_b32 v{oL8}, 3, v{l}
    v_lshlrev_b32 v{oL4}, 2, v{l}
    v_lshlrev_b32 v{oL16}, 4, v{l}
    s_mov_b32 s{sC}, {hex(f32bits(128 ** -0.5 * math.log2(math.e)))}
    s_mov_b32 s{sLo}, 0x05040100
    s_mov_b32 s{sHi}, 0x07060302
    s_and_b32 s{sTmp}, s{sW}, 1
    s_lshl_b32 s{sTmp}, s{sTmp}, 4
    v_lshlrev_b32 v{t}, 2, v{g}
    v_sub_u32 v{t}, v{n}, v{t}
    v_add_u32 v{t}, s{sTmp}, v{t}
    v_mov_b32 v{oT}, 0xfe000000
    """)
    for i in range(8):
        A(f"v_cmp_le_i32 vcc, {16*(i//4) + i%4}, v{t}\nv_cndmask_b32 v{BIAS+i}, v{oT}, 0, vcc")
    A(f"""
    ; partial store offset: token (4hf + g%2 (+8q+2p)) * 16384 + u*1024 + w*256 + n*16
    v_lshrrev_b32 v{t}, 5, v{l}
    v_lshlrev_b32 v{t}, 16, v{t}
    v_and_b32 v{oPS}, 1, v{g}
    v_lshl_add_u32 v{t}, v{oPS}, 14, v{t}
    v_lshl_add_u32 v{t}, v{n}, 4, v{t}
    s_lshl_b32 s{sTmp}, s{sU}, 10
    s_lshl_b32 s{sTmp+1}, s{sW}, 8
    s_add_u32 s{sTmp}, s{sTmp}, s{sTmp+1}
    v_add_u32 v{oPS}, s{sTmp}, v{t}
    v_lshlrev_b32 v{t}, 10, v{g}
    v_lshl_add_u32 v{oRL}, v{n}, 4, v{t}
    s_lshl_b32 s{sTmp}, s{sW}, 12
    v_add_u32 v{oOW}, s{sTmp}, v{oL16}
    v_and_b32 v{t}, 1, v{g}
    v_lshlrev_b32 v{t}, 12, v{t}
    v_lshl_add_u32 v{t}, v{n}, 4, v{t}
    v_lshrrev_b32 v{oOR}, 1, v{g}
    v_lshl_add_u32 v{oOR}, v{oOR}, 8, v{t}
    s_lshr_b32 s{sTmp}, s{sW}, 1
    s_lshl_b32 s{sTmp+1}, s{sTmp}, 14
    s_add_u32 s{sTmp+1}, s{sTmp+1}, {L_ST}
    v_add_u32 v{oSK}, s{sTmp+1}, v{oL16}
    s_lshl_b32 s{sTmp+1}, s{sTmp}, 13
    s_and_b32 s{sTmp+2}, s{sW}, 1
    s_lshl_b32 s{sTmp+2}, s{sTmp+2}, 10
    s_add_u32 s{sTmp+2}, s{sTmp+2}, s{sTmp+1}
    s_add_u32 s{sTmp+2}, s{sTmp+2}, {L_ST + 32768}
    v_add_u32 v{oSQ}, s{sTmp+2}, v{oL16}
    s_add_u32 s{sTmp+1}, s{sTmp+1}, {L_KM}
    v_add_u32 v{oSM}, s{sTmp+1}, v{oL16}
    v_add_u32 v{oSV}, s{sTmp+1}, v{oL8}
    ; flag offsets: lanes 0..3 KV words, lanes 4..7 Q words (others repeat)
    v_and_b32 v{oFO}, 0xf0, v{oL16}
    v_and_b32 v{oFO2}, 64, v{oL16}
    v_mov_b32 v{oKP}, 0
    v_lshlrev_b32 v{oL256}, 4, v{oL16}
    v_and_b32 v{t}, 1, v{l}
    v_xor_b32 v{oTM+1}, 1, v{t}
    s_lshl_b32 s{sTmp}, s{sW}, 3
    s_add_u32 s{sTmp}, s{sTmp}, {L_VOTE}
    v_mov_b32 v{oVT}, s{sTmp}
    """)
    A(f"s_mov_b32 vcc_lo, 0xaaaaaaaa\ns_mov_b32 vcc_hi, 0xaaaaaaaa\nv_mov_b32 v{t}, 0x3f80\nv_cndmask_b32 v{t}, v{t}, 1.0, vcc")
    for r in range(2):
        A(f"s_mov_b32 vcc_lo, {hex(0x000f000f << (4*r))}\ns_mov_b32 vcc_hi, {hex(0x0f000f00 << (4*r))}\nv_cndmask_b32 v{SELA+r}, 0, v{t}, vcc\nv_cndmask_b32 v{SELA+2+r}, 0, v{t}, vcc")
    A(f"s_mov_b32 vcc_lo, 0xcccccccc\ns_mov_b32 vcc_hi, 0xcccccccc\nv_mov_b32 v{t}, 0x4444\nv_mov_b32 v{oIDX}, 0xeeee\nv_cndmask_b32 v{oIDX}, v{t}, v{oIDX}, vcc")
    A(f"""
    s_mov_b32 s{sOut+2}, {2*MB}
    s_mov_b32 s{sOut+3}, 0x20000
    s_mov_b32 s{sX+2}, {2*MB}
    s_mov_b32 s{sX+3}, 0x20000
    s_mov_b32 s{sT+2}, 1024
    s_mov_b32 s{sD_+3}, 0x20000
    s_lshr_b32 s{sHd}, s{sW}, 1
    s_lshl_b32 s{sTmp}, s{sU}, 1
    s_add_u32 s{sHd}, s{sHd}, s{sTmp}
    s_add_u32 s{cTK}, s{sTmp}, s{sW}
    s_lshl_b32 s{cQF}, s{sU}, 8
    s_lshl_b32 s{cKF}, s{sU}, 7
    s_add_u32 s{cKF}, s{cKF}, {F_KM}
    s_add_u32 s{cQF}, s{cQF}, {F_KV}
    s_lshl_b32 s{sTmp}, s{sU}, 2
    s_add_u32 s{sTmp}, s{sTmp}, s{sW}
    s_lshl_b32 s{cKV}, s{sTmp}, 13
    s_add_u32 s{cKV}, s{cKV}, {KV}
    s_lshl_b32 s{cQX}, s{sTmp}, 12
    s_add_u32 s{cQX}, s{cQX}, {QX}
    s_lshl_b32 s{cKM}, s{sHd}, 13
    s_add_u32 s{cKM}, s{cKM}, {KM}
    s_and_b32 s{sTmp}, s{sW}, 1
    s_mul_i32 s{sTmp}, s{sTmp}, 3072
    s_add_u32 s{cKD}, s{cKM}, s{sTmp}
    s_lshr_b32 s{cM2}, s{sW}, 1
    s_lshl_b32 s{cM2}, s{cM2}, 13
    s_add_u32 s{cM2}, s{cM2}, s{sTmp}
    s_add_u32 s{cM2}, s{cM2}, {L_KM}
    s_lshl_b32 s{cM0}, s{sW}, 12
    s_add_u32 s{cM0}, s{cM0}, {L_ST + 32768}
    s_lshl_b32 s{cM1}, s{sW}, 13
    s_add_u32 s{cM1}, s{cM1}, {L_ST}
    s_lshl_b32 s{cBX}, s{sRep}, 20
    s_add_u32 s{cBX}, s{cBX}, {OBOX}
    v_lshlrev_b32 v{oL32}, {KSH-4}, v{oL16}
    s_mov_b32 s{sT+3}, 0x20000
    s_waitcnt lgkmcnt(0)
    """)

def o_wr(A, P):
    unpack(A, 56, oWR0)
    from statistics import NormalDist
    A(f"v_mul_f32 v56, v{oWR0}, v{oWR0}")
    for i in range(1, 8): A(f"v_fmac_f32 v56, v{oWR0+i}, v{oWR0+i}")
    allsum(A, [56], 57)
    A("v_sqrt_f32 v56, v56")
    for r in range(19):
        rem = max(2048 - 32 * max(0, 4 * r - 5), 32)
        z = -NormalDist().inv_cdf(math.log(2) / rem)
        z *= P.get("zs", 1.0)
        A(f"s_mov_b32 s{sTmp+2}, {hex(f32bits(z))}\nv_writelane_b32 v{oTHR}, s{sTmp+2}, {r}")
    A(f"v_mul_f32 v{oTHR}, v{oTHR}, v56\nv_or_b32 v{oTHR}, 0x80000000, v{oTHR}")

def o_prologue(A, late_args, wait_init, P={}, hold=None):
    W = f"s[{sWS}:{sWS+3}]"
    XL, sB_ = 176, sTmp + 4
    vm = Cnt(A, "vmcnt", 63)
    A(f"s_load_dwordx2 s[{sD_}:{sD_+1}], s[0:1], {KA['wo']}\ns_load_dwordx2 s[{sX}:{sX+1}], s[0:1], {KA['x']}\ns_mov_b32 s{sD_+2}, {4*MB}")
    o_consts(A)
    A(f"""
    s_lshl_b32 s{sRow}, s{sRep}, 4
    s_add_u32 s{sRow}, s{sRow}, s{sU}
    s_lshl_b32 s{sRow}, s{sRow}, 2
    s_add_u32 s{sRow}, s{sRow}, s{sW}
    s_lshl_b32 s{sTmp}, s{sRow}, 10
    """)
    tx = []
    for k in range(8):
        tx.append(vm.issue(f"buffer_load_dwordx4 v[{XL+4*k}:{XL+4*k+3}], v{oL16}, s[{sX}:{sX+3}], s{sTmp} offen"))
        A(f"s_add_u32 s{sTmp}, s{sTmp}, {256*1024}")
    A(f"""
    v_lshrrev_b32 v44, 9, v{oL16}
    v_lshlrev_b32 v44, 12, v44
    v_and_b32 v45, 0xf0, v{oL16}
    v_add_u32 v44, v44, v45
    v_bfe_u32 v45, v{oL16}, 8, 1
    v_lshl_add_u32 v44, v45, 3, v44                ; columns 8n + 4*(g%2) + T
    s_lshl_b32 s{sB_}, s{sU}, 18
    s_lshl_b32 s{sTmp+1}, s{sW}, 8
    s_add_u32 s{sB_}, s{sB_}, s{sTmp+1}
    """)
    tk = {}
    POOL, NP = 64, 7
    def issue(i):
        for j in range(8):
            e = 32 * (i // 2) + 8 * (i % 2) + j % 4 + 16 * (j // 4)
            r = POOL + (i % NP) * 16 + j * 2
            A(f"s_add_u32 s{sTmp+1}, s{sB_}, {e * 1024 + (P.get('nowo', 0) << 24)}")
            tk[i] = vm.issue(f"buffer_load_dwordx2 v[{r}:{r+1}], v44, s[{sD_}:{sD_+3}], s{sTmp+1} offen")
    def consume(i):
        vm.wait(tk[i])
        for T in range(4):
            b = POOL + (i % NP) * 16 + T // 2
            x = wo_op(i, T) - 256
            for rho in range(4): A(f"v_perm_b32 v{48+4*(T%2)+rho}, v{b+4*rho+2}, v{b+4*rho}, s{sHi if T % 2 else sLo}")
            for rho in range(4): A(f"v_accvgpr_write_b32 a{x+rho}, v{48+4*(T%2)+rho}")
    NF = P.get('nf', 4)
    for i in range(NF): issue(i)
    late_args()
    A(f"s_load_dwordx2 s[{sOut}:{sOut+1}], s[0:1], {KA['out']}\ns_load_dwordx2 s[{sT}:{sT+1}], s[0:1], {KA['wr']}\ns_waitcnt lgkmcnt(0)")
    vm.issue(f"buffer_load_dwordx4 v[56:59], v{oL16}, s[{sT}:{sT+3}], 0 offen")
    A(f"s_lshl_b32 s{sTmp+3}, s{sRow}, 10\ns_add_u32 s{sTmp+3}, s{sTmp+3}, {XN}")
    def ln(k):
        vm.wait(tx[k])
        unpack(A, XL + 4 * k, 212)
        layernorm(A, 212, None, XL + 4 * k, 220)
        t = vm.issue(f"buffer_store_dwordx4 v[{XL+4*k}:{XL+4*k+3}], v{oL16}, {W}, s{sTmp+3} offen sc1")
        A(f"s_add_u32 s{sTmp+3}, s{sTmp+3}, {256*1024}")
        return t
    def flags(mask):
        A(f"s_lshl_b32 s{sTmp+1}, s{sRow}, {KSH}\ns_add_u32 s{sTmp+1}, s{sTmp+1}, {F_XN}\nv_lshlrev_b32 v61, {KSH+4}, v{oL16}\nv_mov_b32 v60, 1\ns_mov_b64 exec, {mask}")
        vm.issue(f"buffer_store_dword v60, v61, {W}, s{sTmp+1} offen sc1")
        A("s_mov_b64 exec, -1")
    S1, S2, S3 = A.label("o_s1"), A.label("o_s2"), A.label("o_s3")
    A(f"s_cmp_lt_u32 s{sRep}, 4\ns_cbranch_scc1 {S1}\ns_waitcnt vmcnt(0)\ns_branch {S2}\n{S1}:")
    for k in range(8): ln(k)
    A(f"{S2}:")
    for i in range(NF): consume(i)
    A(f"s_cmp_ge_u32 s{sRep}, 4\ns_cbranch_scc1 {S3}")
    wait_init(); vm.reset()
    trace(A, 8, 250)
    flags(0xff)
    A(f"{S3}:")
    if hold: hold()
    for i in range(NF, NF + NP): issue(i)
    o_wr(A, P)
    A(f"s_lshl_b32 s{sTmp+3}, s{sU}, 2\ns_add_u32 s{sTmp+3}, s{sTmp+3}, s{sW}\ns_lshl_b32 s{sTmp+3}, s{sTmp+3}, 13\ns_add_u32 s{sTmp+3}, s{sTmp+3}, s{cBX}")
    A(f"s_cmp_ge_u32 s{sRep}, 4\ns_cselect_b32 s{sTmp+3}, {WS_BYTES}, s{sTmp+3}")
    A(f"v_mov_b64 v[208:209], 0\nv_mov_b64 v[210:211], 0")
    for i in range(NF, 16):
        consume(i)
        if i + NP < 16: issue(i + NP)
        if 9 <= i < 13:
            for k in range(4): vm.issue(f"buffer_store_dwordx4 v[208:211], v{oL16}, {W}, s{sTmp+3} offen offset:{k*1024} {P.get('clr', 'sc1')}")
            A(f"s_add_u32 s{sTmp+3}, s{sTmp+3}, {4096 if i != 10 else (1 << 19) - 4096}")
    A("s_waitcnt vmcnt(0)\ns_barrier")

SLP = [0]
def spin(A, fail):
    if SLP[0]: A(f"s_sleep {SLP[0]}")
    A(f"s_add_u32 s{sSpin}, s{sSpin}, 1\ns_cmp_gt_u32 s{sSpin}, {SPIN_MAX}\ns_cbranch_scc1 {fail}")

def post_key(A):
    W = f"s[{sWS}:{sWS+3}]"
    A(f"s_mov_b64 exec, 1\nbuffer_store_dword v{oKEY}, off, {W}, s{sKp} sc1\ns_mov_b64 exec, -1\ns_mov_b32 s{sKp}, {WS_BYTES}")

def p_store(r, STF):
    return [f"s_add_u32 s{sKey}, s{sBox}, {(8*(r//4)+r%4)*16384}",
            f"buffer_store_dwordx4 v[{PKO+2*r}:{PKO+2*r+3}], v{oPS}, s[{sWS}:{sWS+3}], s{sKey} offen {STF}"]

def probe_load(box):
    return [f"s_lshl_b32 s{sR+7}, s{cTK}, 14", f"s_add_u32 s{sR+7}, s{sR+7}, s{box}",
            f"buffer_load_dword v{oT}, v{oL256}, s[{sWS}:{sWS+3}], s{sR+7} offen sc1"]
def probe_wait(A, FAIL, n=0, post=False):
    L0, OK = A.label("o_pl"), A.label("o_pk")
    A(f"s_mov_b32 s{sSpin}, 0\ns_mov_b64 vcc, 0\ns_waitcnt vmcnt({n})\n{L0}:\nv_and_b32 v{oT}, 1, v{oT}\nv_cmp_ne_u32 vcc, s{sR+6}, v{oT}\ns_cbranch_vccz {OK}")
    if post: post_key(A)
    A(probe_load(0)[2])
    spin(A, FAIL)
    A(f"s_waitcnt vmcnt(0)\ns_branch {L0}\n{OK}:")

def r_check(A, FAIL, box):
    RT, BK = A.label("o_rt"), A.label("o_bk")
    tg = [f"v_xor_b32 v{oT}, s{sR+6}, v{RB}"] + [f"v_bitop3_b32 v{oT}, v{oT}, v{RB+4*i}, s{sR+6} bitop3:0xf6" for i in range(1, 16)]
    end = [f"v_and_b32 v{oT}, v{oTM+1}, v{oT}", f"v_cmp_ne_u32 vcc, 0, v{oT}"]
    def outl():
        L2 = A.label("o_rl")
        A(f"{RT}:\ns_mov_b32 s{sSpin}, 0\n{L2}:")
        for x in r_loads(box): A(x if isinstance(x, str) else x[1])
        spin(A, FAIL)
        A("s_waitcnt vmcnt(0)")
        for x in tg + end: A(x)
        A(f"s_cbranch_vccnz {L2}\ns_branch {BK}")
    return tg, ("grp", end + [f"s_cbranch_vccnz {RT}", f"{BK}:"]), outl

def r_loads(box):
    W = f"s[{sWS}:{sWS+3}]"
    R = L()
    sTk, sOf, sA, sB2, sBx = sR, sR + 1, sR + 2, sR + 3, sR + 4
    R(f"s_lshl_b32 s{sBx}, s{cTK}, 14\ns_add_u32 s{sBx}, s{sBx}, s{box}")
    for pg in range(4):
        for k, cg in enumerate((0, 2, 1, 3)):
            R.append(("vm", f"buffer_load_dwordx4 v[{RB+(pg*4+k)*4}:{RB+(pg*4+k)*4+3}], v{oRL}, {W}, s{sBx} offen offset:{cg*256} sc1", f"rb{pg*4+k}"))
        if pg < 3: R(f"s_add_u32 s{sBx}, s{sBx}, 4096")
    return R

def x_load():
    R = L()
    sTk, sOf, sA, sB2, sBx = sR, sR + 1, sR + 2, sR + 3, sR + 4
    R(f"s_and_b32 s{sOf}, s{sPrev}, 63\ns_lshl_b32 s{sTk}, s{sOf}, 5\ns_add_u32 s{sBx}, s{sTk}, s{sHd}\ns_add_u32 s{sTk}, s{sTk}, s{cTK}")
    R(f"s_lshl_b32 s{sBx}, s{sBx}, 10\ns_lshr_b32 s{sA}, s{sPrev}, {B_ROW}\ns_xor_b32 s{sB2}, s{cTK}, 32")
    R(f"s_lshl_b32 s{sOf}, s{sTk}, 10\ns_add_u32 s{sBx}, s{sBx}, {XM - X2}\ns_cmp_eq_u32 s{sA}, s{sB2}\ns_cselect_b32 s{sA}, s{sBx}, s{sOf}\ns_add_u32 s{sA}, s{sA}, {X2}")
    R(f"s_and_b32 s{sB2}, s{sPrev}, {3 << B_KIND}\ns_cselect_b32 s{sA}, s{sA}, s{sOf}\ns_cselect_b64 s[{sD_}:{sD_+1}], s[{sWS}:{sWS+1}], s[{sX}:{sX+1}]\ns_cselect_b32 s{sD_+2}, s{sWS+2}, s{sX+2}")
    R(f"buffer_load_dwordx4 v[{XR}:{XR+3}], v{oL16}, s[{sD_}:{sD_+3}], s{sA} offen sc1")
    return R

def r_stream(first, chk):
    W = f"s[{sWS}:{sWS+3}]"
    R = L()
    sTk, sOf, sA, sB2, sBx = sR, sR + 1, sR + 2, sR + 3, sR + 4
    for r in range(S0, S0 + 8, 2): R(f"v_mov_b64 v[{r}:{r+1}], 0")
    for i in range(16):
        if i % 4 == 0: R.append(("wait", f"rb{i+3}"))
        R(chk[0][i])
    R.append(chk[1])
    up = L(); unpack(up, XR, XF)
    for i in range(8):
        R.append(("grp", [f"v_smfmac_f32_16x16x64_bf16 {v(S0+4*(i%2),4)}, {v(SELA,4)}, {v(RB+8*i,8)}, v{oIDX}", up[i]]))
    R(f"s_bfe_u32 s{sA}, s{sPrev}, {(2 << 16) | B_KIND}\ns_lshl_b32 s{sA}, s{sA}, 21\ns_add_u32 s{sA}, s{sA}, s{sOf}\ns_add_u32 s{sB2}, s{sA}, {XB_}\ns_add_u32 s{sA}, s{sA}, {XA}")
    for r in range(4): R(f"v_permlane16_swap_b32 v{S0+r}, v{S0+4+r}")
    for i in range(8): rnd(R, S0 + i)
    for i in range(8): R(f"v_add_f32 v{XF+i}, v{XF+i}, v{S0+i}")
    PK1, PK2, PK3, PK4, TM = RB, RB + 4, RB + 8, RB + 12, RB + 16
    pack(R, XF, PK1); unpack(R, PK1, XF)
    R.append(("vm", f"buffer_store_dwordx4 v[{PK1}:{PK1+3}], v{oL16}, {W}, s{sA} offen sc1", "s1"))
    layernorm1(R, XF, YF, PK2, TM)
    R.append(("vm", f"buffer_store_dwordx4 v[{PK2}:{PK2+3}], v{oL16}, {W}, s{sB2} offen sc1", "s2"))
    RR = S0
    for i in range(8): R(f"v_add_f32 v{XF+i}, v{XF+i}, v{YF+i}")
    pack(R, XF, PK3)
    R(f"v_mul_f32 v{RR}, v{YF}, v{oWR0}\nv_mul_f32 v{RR+1}, v{YF+1}, v{oWR0+1}")
    for i in range(2, 8): R(f"v_fmac_f32 v{RR+i%2}, v{YF+i}, v{oWR0+i}")
    R(f"v_add_f32 v{RR}, v{RR}, v{RR+1}")
    if first:
        R(f"s_add_u32 s{sA}, s{sOf}, {X2}\ns_add_u32 s{sB2}, s{sOf}, {XN + 2*MB}")
        R.append(("vm", f"buffer_store_dwordx4 v[{PK3}:{PK3+3}], v{oL16}, {W}, s{sA} offen sc1", "s3"))
        unpack(R, PK3, XF)
        layernorm1(R, XF, None, PK4, TM, extra=RR)
        R.append(("vm", f"buffer_store_dwordx4 v[{PK4}:{PK4+3}], v{oL16}, {W}, s{sB2} offen sc1", "last"))
    else:
        R.append(("vm", f"buffer_store_dwordx4 v[{PK3}:{PK3+3}], v{oL16}, s[{sOut}:{sOut+3}], s{sOf} offen sc1", "last"))
        allsum(R, [RR], RR + 1)
    rnd(R, RR)
    R(f"""
    v_ashrrev_i32 v{RR+1}, 31, v{RR}
    v_or_b32 v{RR+1}, 0x80000000, v{RR+1}
    v_xor_b32 v{RR}, v{RR}, v{RR+1}
    s_sub_u32 s{sA}, 4095, s{sTk}
    v_and_b32 v{RR}, 0xffff0000, v{RR}
    v_or_b32 v{oKEY}, s{sA}, v{RR}
    s_bfe_u32 s{sA}, s{sPrev}, {(3 << 16) | B_KA}
    s_lshl_b32 s{sA}, s{sA}, {KSH+11}
    s_lshl_b32 s{sB2}, s{sTk}, {KSH}
    s_add_u32 s{sA}, s{sA}, s{sB2}
    s_add_u32 s{sKp}, s{sA}, {F_XN}
    """)
    fin = [("wait", "last"), ("grp", ["s_mov_b64 exec, 1", f"buffer_store_dword v{oKEY}, off, {W}, s{sKp} sc1", "s_mov_b64 exec, -1", f"s_mov_b32 s{sKp}, {WS_BYTES}"])]
    return R, fin

def emit_item(A, vm, toks, x):
    if isinstance(x, str): A(x)
    elif x[0] == "vm": toks[x[2]] = vm.issue(x[1])
    elif x[0] == "wait": vm.wait(toks[x[1]])
    elif x[0] == "grp":
        for y in x[1]:
            if y.startswith("buffer_"): vm.issue(y)
            else: A(y)

def r_flush(A, P, FAIL):
    STF = P.get("st", "")
    DONE, K2 = A.label("o_fd"), A.label("o_f2")
    A(f"s_cmp_ge_u32 s{sW}, 2\ns_cbranch_scc1 {DONE}\ns_cmp_eq_u32 s{sPrev}, 0\ns_cbranch_scc1 {DONE}")
    A(f"s_mov_b32 s{sR+6}, s{sTag}")
    for x in probe_load(sBox) + x_load(): A(x)
    probe_wait(A, FAIL, 1, post=True)
    A(f"s_and_b32 s{sTmp}, s{sPrev}, {3 << B_KIND}\ns_cbranch_scc1 {K2}")
    for first in (True, False):
        vm = Cnt(A, "vmcnt", 63); toks = {}
        chk = r_check(A, FAIL, sBox)
        R, fin = r_stream(first, chk)
        pk = L(); post_key(pk)
        for x in list(r_loads(sBox)) + [("grp", pk)] + list(R) + fin: emit_item(A, vm, toks, x)
        A(f"s_branch {DONE}")
        chk[2]()
        if first: A(f"{K2}:")
    A(f"{DONE}:\ns_mov_b32 s{sPrev}, 0")
    trace(A, 7, 250)

def o_task(A, P, FAIL):
    W = f"s[{sWS}:{sWS+3}]"
    STF = P.get("st", "")
    sA, sB2 = sTmp + 6, sTmp + 7
    def qflag(D, d, name, sA=sA):
        D(f"s_and_b32 s{sA}, s{d}, 0xff\ns_lshl_b32 s{sA}, s{sA}, 12\ns_add_u32 s{sA}, s{sA}, s{cQF}")
        D.append(("vm", f"buffer_load_dword v{oFL}, v{oFO}, {W}, s{sA} offen sc1", name))
    def kflag(D, d, name, dst=oFK, sA=sA):
        D(f"s_and_b32 s{sA}, s{d}, 0xff00\ns_lshl_b32 s{sA}, s{sA}, 3\ns_add_u32 s{sA}, s{sA}, s{cKF}")
        D.append(("vm", f"buffer_load_dword v{dst}, v{oFO2}, {W}, s{sA} offen sc1", name))
    def dma_items(d, sh=None):
        D = L()
        D(f"s_lshl_b32 s{sB2}, s{d}, 18\ns_lshl_b32 s{sA}, s{d}, 19\ns_add_u32 m0, s{cM0}, {('s%d' % sh) if sh else 0}\ns_add_u32 s{sB2}, s{sB2}, s{cQX}")
        for part in range(2 if sh else 1):
            if part: D(f"s_sub_u32 m0, m0, 8192\ns_sub_u32 s{sB2}, s{sB2}, 8192")
            for i in range(4): D.append(("vm", f"buffer_load_dwordx4 v{oL16}, {W}, s{sB2} offen offset:{i*1024} sc1 lds", "dma"))
        D(f"s_add_u32 m0, s{cM1}, {('s%d' % sh) if sh else 0}\ns_add_u32 s{sA}, s{sA}, s{cKV}")
        if not sh:
            for h in range(2):
                if h: D(f"s_add_u32 m0, m0, 4096\ns_add_u32 s{sA}, s{sA}, 4096")
                for i in range(4): D.append(("vm", f"buffer_load_dwordx4 v{oL16}, {W}, s{sA} offen offset:{i*1024} sc1 lds", "dma"))
            return D
        cur = 0
        for kv, offs in ((0, (0, 4096, -12288, -16384)), (1, (-16384, -12288, 4096, 0))):
            for o in offs:
                if o != cur: D(f"s_add_i32 m0, m0, {o - cur}\ns_add_i32 s{sA}, s{sA}, {o - cur}")
                cur = o
                for i in range(2): D.append(("vm", f"buffer_load_dwordx4 v{oL16}, {W}, s{sA} offen offset:{(2*kv+i)*1024} sc1 lds", "dmv" if kv else "dma"))
        return D
    def km_dma(d):
        D = L()
        D(f"s_lshl_b32 s{sA}, s{d}, 18\ns_mov_b32 m0, s{cM2}\ns_add_u32 s{sA}, s{sA}, s{cKD}")
        for part in range(2):
            if part: D(f"s_sub_u32 m0, m0, 8192\ns_sub_u32 s{sA}, s{sA}, 8192")
            for i in range(3): D.append(("vm", f"buffer_load_dwordx4 v{oL16}, {W}, s{sA} offen offset:{i*1024} sc1 lds", "dmv"))
        return D
    L1, HAVE, L2, HAVEK, KLDS, NOOB, FB, FBR = [A.label("o_" + x) for x in ("w1", "have", "w2", "havek", "klds", "noob", "fb", "fbr")]
    W0, W1, W2, WE = A.label("o_wr0"), A.label("o_wr1"), A.label("o_wr2"), A.label("o_we")
    dummy = (Cnt(A, "vmcnt", 63), {})
    def emit(items):
        for x in items: emit_item(A, *dummy, x)
    trace(A, 1, 250, sCur)
    trace_clk(A, 250)
    A(f"s_cmp_lg_u32 s{sPre}, 0\ns_cbranch_scc1 {HAVE}\ns_mov_b32 s{sSpin}, 0\n{L1}:")
    D = L(); qflag(D, sCur, "f"); emit(D)
    spin(A, FAIL)
    A("s_waitcnt vmcnt(0)")
    post_key(A)
    A(f"v_cmp_eq_u32 vcc, 0, v{oFL}\ns_cbranch_vccnz {L1}")
    A(f"s_and_b32 s{sPq}, s{sCur}, 0xff")
    emit(dma_items(sPq))
    A(f"s_waitcnt vmcnt(0)\ns_barrier\n{HAVE}:")
    trace(A, 2, 250)
    ld = Cnt(A, "lgkmcnt", 15)
    tq = []
    for c in range(4):
        ld.issue(f"ds_read_b128 v[{QR+4*c}:{QR+4*c+3}], v{oSQ} offset:{c*2048}")
        for tt in range(2): t = ld.issue(f"ds_read_b128 v[{KR+(tt*4+c)*4}:{KR+(tt*4+c)*4+3}], v{oSK} offset:{c*4096+tt*1024}")
        tq.append(t)
    A(f"s_cmp_lt_u32 s{sW}, 2\ns_cselect_b32 s{sPrev}, s{sPrev}, 0\ns_cmp_lg_u32 s{sPrev}, 0\ns_cselect_b64 s[{sEx}:{sEx+1}], -1, 0")
    A(f"s_mov_b32 s{sR+5}, s{sBox}\ns_mov_b32 s{sR+6}, s{sTag}")
    pl = probe_load(sR + 5)
    A(pl[0]); A(pl[1])
    D = L(); qflag(D, sNxt, "f", sPq); D2 = L(); kflag(D2, sCur, "f", oFK, sPk)
    xl = x_load()
    for x in D[:3] + D2[:3] + xl[:-1]: A(x)
    EX1, EX0 = f"s_mov_b64 exec, s[{sEx}:{sEx+1}]", "s_mov_b64 exec, -1"
    for c in range(4):
        ld.wait(tq[c])
        for tt in range(2):
            A(mfd(SX + 4 * tt, KR + (tt * 4 + c) * 4, QR + 4 * c, SX + 4 * tt if c else BIAS + 4 * tt))
        if c == P.get("prb", 0): A(EX1); A(pl[2]); A(xl[-1]); A("s_not_b64 exec, exec"); A(D[3][1]); A(EX0); A(D2[3][1])
    CK, ZZ, T1 = PXR, PXR + 1, PXR + 2
    xs = L()
    xs(f"v_mov_b32 v{PMR}, 0\nv_mov_b32 v{PMR+3}, 0")
    for i in range(8): xs(f"v_exp_f32 v{EX+i}, v{SX+i}")
    xs(f"v_max3_f32 v{CK}, v{SX}, v{SX+1}, v{SX+2}\nv_max3_f32 v{CK}, v{SX+3}, v{SX+4}, v{CK}\nv_max3_f32 v{CK}, v{SX+5}, v{SX+6}, v{CK}")
    xs(f"v_add_f32 v{ZZ}, v{EX}, v{EX+1}\nv_add_f32 v{T1}, v{EX+2}, v{EX+3}")
    for i in range(4, 8): xs(f"v_add_f32 v{ZZ+i%2}, v{ZZ+i%2}, v{EX+i}")
    vr = [f"ds_read_b128 v[{VR+i*4}:{VR+i*4+3}], v{oSK} offset:{(i//2)*4096+2048+(i%2)*1024}" for i in range(8)]
    A(f"s_cmp_lg_u32 s{sPreK}, 0\ns_cbranch_scc1 {KLDS}")
    KGO = A.label("o_kgo")
    for x in xs: A(x)
    A(f"s_mov_b32 s{sSpin}, 0\ns_and_b32 s{sA}, s{sCur}, 0xff00\ns_lshl_b32 s{sA}, s{sA}, 10\ns_add_u32 s{sA}, s{sA}, s{cKM}\ns_add_u32 s{sB2}, s{sA}, 4096")
    A(f"{L2}:\ns_waitcnt vmcnt(0)\nv_cmp_eq_u32 vcc, 0, v{oFK}\ns_cbranch_vccz {KGO}")
    post_key(A)
    A(D2[3][1])
    spin(A, FAIL)
    A(f"s_branch {L2}\n{KGO}:")
    for c in range(4): A(f"buffer_load_dwordx4 v[{MR+4*c}:{MR+4*c+3}], v{oL16}, {W}, s{sA} offen offset:{c*1024} sc1")
    for c in range(4): A(f"buffer_load_dwordx2 v[{VMR+2*c}:{VMR+2*c+1}], v{oL8}, {W}, s{sB2} offen offset:{c*512} sc1")
    A(D[3][1]); A(D2[3][1])
    A("s_barrier")
    for x in vr: A(x)
    for c in range(4):
        A(f"s_waitcnt vmcnt({9-c})")
        A(mfd(SMM, MR + 4 * c, QR + 4 * c, SMM if c else None))
    A(f"s_waitcnt vmcnt(2)\ns_branch {HAVEK}\n{KLDS}:")
    A("s_waitcnt vmcnt(12)\ns_barrier")
    for c in range(4): tm = ld.issue(f"ds_read_b128 v[{MR+4*c}:{MR+4*c+3}], v{oSM} offset:{c*1024}")
    for c in range(4): ld.issue(f"ds_read_b64 v[{VMR+2*c}:{VMR+2*c+1}], v{oSV} offset:{4096+c*512}")
    xq = list(xs)
    for _ in range(13): A(xq.pop(0))
    ld.wait(tm)
    for c in range(4):
        A(mfd(SMM, MR + 4 * c, QR + 4 * c, SMM if c else None))
        A(vr[2 * c]); A(vr[2 * c + 1])
    for x in xq: A(x)
    A(f"{HAVEK}:")
    trace(A, 3, 250)
    vmR = Cnt(A, "vmcnt", 63); tokR = {}
    def zred():
        for sw in ("16", "32"):
            A(f"v_mov_b32 v{T1}, v{ZZ}\nv_permlane{sw}_swap_b32 v{ZZ}, v{T1}\nv_add_f32 v{ZZ}, v{ZZ}, v{T1}")
    def att2(red):
        FB, FBR = A.label("o_fb"), A.label("o_fbr")
        RL = list(r_loads(sR + 5)) if red else []
        def rl(n):
            while n and RL:
                x = RL.pop(0); emit_item(A, vmR, tokR, x); n -= not isinstance(x, str)
        A(f"v_mul_f32 v{SMM}, s{sC}, v{SMM}\nv_mul_f32 v{SMM+1}, s{sC}, v{SMM+1}")
        A(f"v_exp_f32 v{EX+8}, v{SMM}\nv_exp_f32 v{EX+9}, v{SMM+1}")
        A(f"v_max_f32 v{CK}, v{SX+7}, v{CK}\nv_max3_f32 v{CK}, v{SMM}, v{SMM+1}, v{CK}")
        A(f"v_add_f32 v{ZZ}, v{ZZ}, v{EX+8}\nv_add_f32 v{T1}, v{T1}, v{EX+9}\nv_add_f32 v{ZZ}, v{ZZ}, v{T1}")
        A(f"s_mov_b32 s{sTmp+2}, 0x21800000")
        zred()
        if red: probe_wait(A, FAIL, 3)
        rl(1)
        A(f"v_cmp_lt_f32 vcc, 0x42700000, v{CK}")
        A(f"v_cmp_gt_f32 s[{sTmp+4}:{sTmp+5}], s{sTmp+2}, v{ZZ}\nv_rcp_f32 v{ZZ}, v{ZZ}")
        rl(1)
        A(f"s_or_b64 vcc, vcc, s[{sTmp+4}:{sTmp+5}]\ns_cbranch_vccnz {FB}\n{FBR}:")
        rl(1)
        for i in range(0, 10, 2): A(f"v_pk_mul_f32 v[{EX+i}:{EX+i+1}], v[{EX+i}:{EX+i+1}], v[{ZZ-1}:{ZZ}] op_sel:[0,1] op_sel_hi:[1,1]")
        rl(1)
        pack(A, EX, PXR)
        A("s_waitcnt lgkmcnt(0)")
        sal = [f"s_add_u32 s{sTask}, s{sTask}, 1", f"s_xor_b32 s{sBox}, s{sBox}, {1 << 19}", f"s_bfe_u32 s{sTag}, s{sTask}, 0x10001",
               f"s_bfe_u32 s{sTmp}, s{sNxt}, {(1 << 16) | B_VALID}", f"s_and_b32 s{sPq}, s{sNxt}, 0xff", f"s_bfe_u32 s{sPk}, s{sNxt}, 0x80008", "s_nop 0", "s_nop 0"]
        for i in range(8):
            A(mfd(OA + 4 * i, VR + 4 * i, PXR, None))
            if red and i % 2: rl(1)
            if not red or i < 3: A(sal[i])
            if i == 0: A(f"v_cvt_pk_bf16_f32 v{PMR+1}, v{EX+8}, v{EX+9}\nv_cvt_pk_bf16_f32 v{PMR+2}, v{EX+8}, v{EX+9}")
        pk = L()
        for c in range(4):
            pack(pk, OA + 8 * c, OP + 4 * c)
            pk(f"ds_write_b128 v{oOW}, v[{OP+4*c}:{OP+4*c+3}] offset:{L_O+c*1024}")
        for i in range(8):
            A(f"v_mfma_f32_16x16x16_bf16 {v(OA+4*i,4)}, {v(VMR+2*(i//2),2)}, {v(PMR + (0 if i % 2 else 2),2)}, {v(OA+4*i,4)}")
            if red and i % 2: rl(1)
            elif i >= 4: A("s_nop 0")
            else: A("s_nop 1")
            if i >= 4: A(pk.pop(0)); A(pk.pop(0))
        for i, x in enumerate(pk):
            A(x)
            if i % 6 == 5: rl(1)
        trace(A, 4, 250)
        def fb():
            A(f"{FB}:")
            for sw in ("16", "32"):
                A(f"v_mov_b32 v{T1}, v{CK}\nv_permlane{sw}_swap_b32 v{CK}, v{T1}\nv_max_f32 v{CK}, v{CK}, v{T1}")
            for i in range(10): A(f"v_sub_f32 v{EX+i}, v{SX+i}, v{CK}")
            for i in range(10): A(f"v_exp_f32 v{EX+i}, v{EX+i}")
            A(f"v_add_f32 v{ZZ}, v{EX}, v{EX+1}")
            for i in range(2, 10): A(f"v_add_f32 v{ZZ}, v{ZZ}, v{EX+i}")
            zred()
            A(f"v_rcp_f32 v{ZZ}, v{ZZ}\ns_branch {FBR}")
        return fb, RL
    A(f"s_cmp_lg_u32 s{sPrev}, 0\ns_cbranch_scc1 {W1}")
    fb0, _ = att2(False)
    A(f"s_cmp_lt_u32 s{sW}, 2\ns_cbranch_scc1 {W0}")
    def stage_w(R, pre, endkey=False):
        ld = Cnt(A, "lgkmcnt", 15); vm = Cnt(A, "vmcnt", 63); toks = {}
        R = list(R)
        vm.q = list(vmR.q); vm.n = vmR.n; toks = dict(tokR)
        A("s_waitcnt lgkmcnt(0)\ns_barrier")
        ST_ = P.get("stamps", ())
        def stamp(n):
            if n in ST_: r = (8, 10, 12, 48, 98)[ST_.index(n)]; A(f"s_memtime s[{r}:{r+1}]")
        stamp(0)
        tok = {}
        def rd(i):
            tok[i] = ld.issue(f"ds_read_b128 v[{XO+(i%4)*4}:{XO+(i%4)*4+3}], v{oOR} offset:{L_O+(i//8)*8192+(i%8)*512}")
        for i in range(3): rd(i)
        while R and R[0] != "mark": emit_item(A, vm, toks, R.pop(0))
        R = R[1:]
        if pre:
            own = R = L()
            own.append(("at", P.get("dmaat", 4) - 3))
            own.append(("grp", ["s_waitcnt vmcnt(0)", f"v_cmp_eq_u32 vcc, 0, v{oFL}", f"s_cmp_eq_u64 vcc, 0", f"s_cselect_b32 s{sPre}, s{sTmp}, 0", f"s_cmp_eq_u32 s{sPre}, 1",
                                f"s_cselect_b32 s{sPq}, s{sPq}, 1024", f"s_cselect_b32 s{sTmp+8}, 0, 0x28000"]))
            dm = dma_items(sPq, sTmp + 8)
            kf = L(); kflag(kf, sNxt, "kf", oFK + 1, sTmp + 3)
            k1 = [i for i, x in enumerate(dm) if not isinstance(x, str)][P.get("kfat", 12)]
            own += dm[:k1] + kf + dm[k1:]
            k0 = [i for i, x in enumerate(own) if not isinstance(x, str) and x[0] == "vm"][0]
            own[k0:k0] = [f"s_min_u32 s{sTmp+2}, s{sS}, 67", f"s_lshl1_add_u32 s{sTmp+2}, s{sW}, s{sTmp+2}", f"s_lshl_b32 s{sTmp+2}, s{sTmp+2}, {KSH+5}",
                          f"s_add_u32 s{sTmp+2}, s{sTmp+2}, {F_XN + KST - 11*KSEG}", ("vm", f"buffer_load_dword v{oKP+1}, v{oL32}, {W}, s{sTmp+2} offen sc1", "keys")]
            own.append(("at", P.get("kmat", 50))); own.append(("wait", "kf"))
            own.append(("grp", [f"v_cmp_eq_u32 vcc, 0, v{oFK+1}", f"s_cmp_eq_u64 vcc, 0", f"s_cselect_b32 s{sPreK}, s{sTmp}, 0", f"s_and_b32 s{sPreK}, s{sPreK}, 1", f"s_cselect_b32 s{sPk}, s{sPk}, 1024"]))
            own += km_dma(sPk)
            own(f"v_cmp_eq_u32 vcc, 0, v{oKP+1}")
            for rot in (8, 4, 2, 1): own(f"v_max_u32_dpp v{oKP+1}, v{oKP+1}, v{oKP+1} row_ror:{rot} row_mask:0xf bank_mask:0xf\ns_nop 0")
            for sw in ("16", "32"): own(f"v_mov_b32 v{oKP}, v{oKP+1}\ns_nop 0\nv_permlane{sw}_swap_b32 v{oKP+1}, v{oKP}\nv_max_u32 v{oKP+1}, v{oKP+1}, v{oKP}")
            own.append(("grp", [f"s_cmp_eq_u64 vcc, 0", f"s_cselect_b32 s{sTmp+2}, 4, 0"]))
            own(f"s_lshl_b32 s{sTmp}, s{sPreK}, 1\ns_or_b32 s{sTmp}, s{sTmp}, s{sPre}\ns_or_b32 s{sTmp}, s{sTmp}, s{sTmp+2}\nv_mov_b32 v{oKP}, s{sTmp}")
            own.append(("ds", f"ds_write_b64 v{oVT}, v[{oKP}:{oKP+1}]"))
        def cost(x):
            if isinstance(x, str):
                if x.startswith("v_mfma"): return 2
                if x.startswith(("v_exp", "v_rcp", "v_sqrt", "v_permlane")): return 2
                return 1
            return {"vm": 3, "wait": 1, "ds": 2}.get(x[0]) or len(x[1])
        def drain(q, budget, n, vmmax):
            while q and budget > 0:
                x = q[0]
                k = None if isinstance(x, str) else x[0]
                if k == "at":
                    if n < x[1]: return budget
                    q.pop(0); continue
                if k == "vm":
                    if vmmax <= 0: return budget
                    vmmax -= 1
                q.pop(0)
                if k == "ds": ld.issue(x[1])
                else: emit_item(A, vm, toks, x)
                budget -= cost(x)
            return budget
        n = 0
        seq = [(i, T) for i in range(12) for T in range(4)] + [(i, T) for h in range(2) for i in range(12, 16) for T in (2*h, 2*h+1)]
        def cv(r, h): return [f"v_cvt_pk_bf16_f32 v{PKO+2*(r+q)+h}, v{ACC+32*h+r+q}, v{ACC+32*h+16+r+q}" for q in range(2)]
        def sw(r, h): return f"v_permlane16_swap_b32 v{PKO+2*r+h}, v{PKO+2*r+2+h}"
        t0 = cv(0, 0)
        for r in range(0, 16, 2):
            if r + 2 < 16: t0 += cv(r + 2, 0)
            t0.append(sw(r, 0))
            if r: t0.append(f"v_bfi_b32 v{PKO+2*r-4}, v{oTM+1}, s{sTag}, v{PKO+2*r-4}")
        t0.append(f"v_bfi_b32 v{PKO+28}, v{oTM+1}, s{sTag}, v{PKO+28}")
        R += [("at", 58)] + t0
        for i, T in seq:
            ld.wait(tok[i])
            a = ACC + T * 16
            A(mf32(a, XO + (i % 4) * 4, wo_op(i, T), a if i else None))
            n += 1
            stamp(n)
            b = P.get("bud", 6)
            if T == 1 and i + 3 < 16: rd(i + 3); b -= 1
            if T == 3: b -= 1
            drain(R, b, n, 0 if (pre and n < P.get("kmat", 50) and n % P.get("dmaskip", 2) == 0) else 1)
        drain(R, 999, 999, 999)
        stamp(70)
        for x in cv(0, 1): A(x)
        for r in range(0, 16, 2):
            if r + 2 < 16:
                for x in cv(r + 2, 1): A(x)
            x = p_store(r, STF); A(x[0])
            A(sw(r, 1))
            vm.issue(x[1])
        stamp(80)
        if pre: vm.wait(toks["dma"])
        if "last" in toks and endkey:
            vm.wait(toks["last"]); post_key(A)
        stamp(90)
    stage_w([], True)
    A(f"s_branch {WE}\n{W0}:")
    stage_w([], False)
    A(f"s_branch {WE}\n{W1}:")
    fb1, RL = att2(True)
    pkey = L(); post_key(pkey)
    A(f"s_and_b32 s{sTmp}, s{sPrev}, {3 << B_KIND}\ns_cbranch_scc1 {W2}")
    def rlist(first, chk):
        R = list(r_stream(first, chk)[0])
        k = [i for i, x in enumerate(R) if x == ("wait", "rb3")][0]
        return RL + ["mark"] + R[:k] + [("grp", pkey), ("at", P.get("rat", 4))] + R[k:]
    chk1, chk2 = r_check(A, FAIL, sR + 5), r_check(A, FAIL, sR + 5)
    stage_w(rlist(True, chk1), False, P.get('endkey', 1))
    A(f"s_branch {WE}")
    chk1[2](); chk2[2]()
    fb0(); fb1()
    A(f"{W2}:")
    stage_w(rlist(False, chk2), False)
    A(f"{WE}:")
    A(f"""
    v_and_b32 v{oFL}, -32, v{oVT}
    s_waitcnt lgkmcnt(0)
    s_barrier
    ds_read_b128 v[{SX}:{SX+3}], v{oFL} offset:16
    s_mov_b32 s{sPrev}, s{sCur}
    s_waitcnt lgkmcnt(0)
    v_and_b32 v{SX}, v{SX}, v{SX+2}
    v_max_u32 v{SX+1}, v{SX+1}, v{SX+3}
    v_readfirstlane_b32 s{sTmp}, v{SX}
    v_readfirstlane_b32 s{sNk}, v{SX+1}
    s_and_b32 s{sPre}, s{sTmp}, 1
    s_and_b32 s{sPreK}, s{sTmp}, 2
    s_bitcmp1_b32 s{sTmp}, 2
    s_cselect_b32 s{sNk}, s{sNk}, 0
    """)
    trace(A, 6, 250)
    for i, r in enumerate((10, 12)[:len(P.get("stamps", (0,))) - 1]):
        A(f"s_sub_u32 s{r}, s{r}, s8"); trace(A, 20 + i, 250, r)

def decide(A, FAIL):
    W = f"s[{sWS}:{sWS+3}]"
    L, GO = A.label("d_w"), A.label("d_g")
    A(f"s_max_u32 s{sRun}, s{sRun}, s{sNk}\ns_cmp_lg_u32 s{sNk}, 0\ns_mov_b32 s{sNk}, 0\ns_cbranch_scc1 {GO}\ns_mov_b32 s{sSpin}, 0\n{L}:")
    A(f"s_min_u32 s{sTmp}, s{sS}, 71\ns_lshl_b32 s{sTmp}, s{sTmp}, {KSH+5}\ns_add_u32 s{sTmp+1}, s{sTmp}, {F_XN + KST - 9*KSEG}\ns_add_u32 s{sTmp}, s{sTmp}, {F_XN + KST - 11*KSEG}")
    A(f"buffer_load_dword v{oKP}, v{oL32}, {W}, s{sTmp} offen sc1\nbuffer_load_dword v{oKP+1}, v{oL32}, {W}, s{sTmp+1} offen sc1")
    spin(A, FAIL)
    A("s_waitcnt vmcnt(0)")
    post_key(A)
    A(f"v_min_u32 v162, v{oKP}, v{oKP+1}\nv_max_u32 v163, v{oKP}, v{oKP+1}\nv_cmp_eq_u32 vcc, 0, v162\ns_cbranch_vccnz {L}")
    for rot in (8, 4, 2, 1): A(f"v_max_u32_dpp v163, v163, v163 row_ror:{rot} row_mask:0xf bank_mask:0xf")
    for g in range(4): A(f"v_readlane_b32 s{sTmp+2+g}, v163, {16*g}")
    A(f"s_max_u32 s{sTmp+2}, s{sTmp+2}, s{sTmp+3}\ns_max_u32 s{sTmp+4}, s{sTmp+4}, s{sTmp+5}\ns_max_u32 s{sRun}, s{sRun}, s{sTmp+2}\ns_max_u32 s{sRun}, s{sRun}, s{sTmp+4}\n{GO}:")
```

```python
from asmlib import *
from layout import *
from common import *
from chain import Cnt, sWS, sT, sJ, sW, sC, sTmp, sLo, sHi

qL16, qL4, qT0, qT1, qFV, qT2 = range(6)
qST, qLK = 8, 9
qKA = 7
qRD = 120
qSRC = 12
ACC = 20
XB = 68
PK = 100
KEY = 116
qVT = 118
WB = dict(k=128, v=256, q=384)
def wop(m, k): return WB[m] + k * 4
def mf32(d, a, b, c): return f"v_mfma_f32_32x32x16_bf16 {v(d,16)}, {reg(a,4)}, {reg(b,4)}, {v(c,16) if c is not None else '0'}"
sLead, sI2, sHist, sQB, sB, sGo = range(40, 46)
sCur, sNxt, sPre, sPend, sPar, sKF, sOut, sSpin, sDm, sFk, sRun, sHW, sKey, sRow = range(46, 60)
sRep, sKind, sMode, sSrc = 60, 61, 62, 63
sG, sUp, sO = 64, 68, 72
sN2 = 76
NPL = 23
L_ML, L_PS, L_H, L_VT = 65536, 159744, 161792, 162816

def qkv_load_weights(A, n, g, first, orders, depth):
    NS = 5
    SRC, RD = 20, 22
    w_src_regs(A, qL16, SRC, 25)
    A(f"""
    s_load_dwordx2 s[{sG}:{sG+1}], s[0:1], {KA['wk']}
    s_load_dwordx2 s[{sUp}:{sUp+1}], s[0:1], {KA['wv']}
    s_load_dwordx2 s[{sT}:{sT+1}], s[0:1], {KA['wq']}
    s_mov_b32 s{sT+2}, {4*MB}
    s_mov_b32 s{sT+3}, 0x20000
    s_mov_b32 s{sG+2}, {4*MB}
    s_mov_b32 s{sG+3}, 0x20000
    s_mov_b32 s{sUp+2}, {4*MB}
    s_mov_b32 s{sUp+3}, 0x20000
    v_lshrrev_b32 v25, 2, v{n}
    v_lshrrev_b32 v26, 1, v{g}
    v_lshl_add_u32 v27, v26, 3, v25
    v_lshlrev_b32 v27, 8, v27
    v_lshl_add_u32 v26, v25, 1, v26
    v_and_b32 v25, 1, v{g}
    v_xor_b32 v26, v26, v25
    s_lshl_b32 s{sTmp}, s{sW}, 1
    v_xor_b32 v26, s{sTmp}, v26
    v_lshl_add_u32 v27, v26, 5, v27
    v_and_b32 v25, 3, v{n}
    v_lshl_add_u32 v{RD}, v25, 3, v27
    v_add_u32 v{RD+1}, 65536, v{RD}
    v_add_u32 v{RD+2}, 131072, v{RD}
    s_lshl_b32 s{sTmp+2}, s{sW}, 13
    s_lshl_b32 s{sTmp}, s{sW}, 18
    s_lshl_b32 s{sTmp+1}, s{sJ}, 8
    s_add_u32 s{sTmp}, s{sTmp}, s{sTmp+1}
    s_waitcnt lgkmcnt(0)
    """)
    srd = dict(k=sG, v=sUp, q=sT)
    LB = [A.label("q_ld") for _ in range(4)]
    if len(orders) > 1: A(f"s_cmp_eq_u32 s{sRep}, 1\ns_cbranch_scc1 {LB[1]}\ns_cmp_eq_u32 s{sRep}, 2\ns_cbranch_scc1 {LB[2]}")
    for c, order in enumerate(orders):
        A(f"{LB[c]}:")
        vm = Cnt(A, "vmcnt", 63)
        jobs = [(m, b) for m in order for b in range(4)]
        tk = {}
        def issue(i):
            m, b = jobs[i]
            A(f"s_add_u32 s{sTmp+1}, s{sTmp}, {b * 128 * 8192}")
            tk[i] = w_stage_dma(A, vm, srd[m], SRC, sTmp + 1, sTmp + 2, (i % NS) * 32768, 8)
        for i in range(depth): issue(i)
        if -1 in first: first[-1]()
        for i, (m, b) in enumerate(jobs):
            vm.wait(tk[i])
            A("s_barrier")
            if depth < NS and i + depth < len(jobs): issue(i + depth)
            base = (i % NS) * 32768
            for kl in range(8):
                for hq in range(2):
                    off = base + kl * 4096 + hq * 1024
                    A(f"ds_read_b64_tr_b16 {reg(wop(m, b*8+kl) + 2*hq, 2)}, v{RD + off // 65536} offset:{off % 65536}")
            if depth < NS: A("s_waitcnt lgkmcnt(0)")
            elif i + NS < len(jobs):
                A("s_waitcnt lgkmcnt(0)\ns_barrier")
                issue(i + NS)
        if c + 1 < len(orders): A(f"s_branch {LB[3]}")
    A(f"{LB[3]}:\ns_waitcnt lgkmcnt(0)\ns_barrier")

SLP = [0]
def spin(A, fail):
    if SLP[0]: A(f"s_sleep {SLP[0]}")
    A(f"s_add_u32 s{sSpin}, s{sSpin}, 1\ns_cmp_gt_u32 s{sSpin}, {SPIN_MAX}\ns_cbranch_scc1 {fail}")

VG, VD = 6, 7
def mlp_setup(A):
    A(f"""
    s_load_dwordx2 s[{sG}:{sG+1}], s[0:1], {KA['wg']}
    s_load_dwordx2 s[{sUp}:{sUp+1}], s[0:1], {KA['wu']}
    s_load_dwordx2 s[{sT}:{sT+1}], s[0:1], {KA['wd']}
    s_mov_b32 s{sG+2}, {512*1792*2}
    s_mov_b32 s{sUp+2}, {512*1792*2}
    s_mov_b32 s{sT+2}, {512*1792*2}
    v_lshrrev_b32 v{qT0}, 7, v{qL16}
    v_and_b32 v{qT1}, 0x70, v{qL16}
    v_mul_u32_u24 v{VG}, {16*3584}, v{qT0}
    v_add_u32 v{VG}, v{VG}, v{qT1}
    v_cmp_eq_u32 vcc, 0x70, v{qT1}
    v_mov_b32 v{qT1}, 0x7ff00000
    v_cndmask_b32 v{VG}, v{VG}, v{qT1}, vcc
    v_lshrrev_b32 v{qT0}, 8, v{qL16}
    v_mul_u32_u24 v{VD}, {14*1024}, v{qT0}
    v_and_b32 v{qT1}, 0xf0, v{qL16}
    v_add_u32 v{VD}, v{VD}, v{qT1}
    s_mul_i32 s{sTmp+8}, s{sW}, {128*3584}
    s_mul_i32 s{sTmp+1}, s{sJ}, 112
    s_add_u32 s{sTmp+8}, s{sTmp+8}, s{sTmp+1}
    s_mul_i32 s{sTmp+9}, s{sJ}, {56*1024}
    s_lshl_b32 s{sTmp+1}, s{sW}, 8
    s_add_u32 s{sTmp+9}, s{sTmp+9}, s{sTmp+1}
    s_waitcnt lgkmcnt(0)
    """)

def gu_load(A, vm, i, dst):
    srd = sUp if i % 2 else sG
    A(f"s_add_u32 s{sTmp+10}, s{sTmp+8}, {(i // 2) * 3584}")
    if dst is not None: return vm.issue(f"buffer_load_dwordx4 {v(dst, 4)}, v{VG}, s[{srd}:{srd+3}], s{sTmp+10} offen")
    t = vm.issue(f"buffer_load_dwordx4 v{VG}, s[{srd}:{srd+3}], s{sTmp+10} offen lds")
    A("s_add_u32 m0, m0, 1024")
    return t

def mlp_preload(A):
    mlp_setup(A)
    A(f"s_mul_i32 s{sTmp}, s{sW}, {NPL*1024}\ns_add_u32 m0, s{sTmp}, {L_ML}")
    vm = Cnt(A, "vmcnt", 63)
    for i in range(NPL): gu_load(A, vm, i, None)

def mlp(A, FAIL, getkey, inst, bx=32768, mid=None, mid2=None):
    W = f"s[{sWS}:{sWS+3}]"
    AOP, MSK, DG, XP, RING, TG = 20, 24, 28, 52, 60, 36
    LB = [36, 40, 44, qSRC, qSRC + 4, qRD, qRD + 4]
    DR = [RING + 4 + 4 * j for j in range(13)] + [48]
    HR = list(range(36, 48)) + [52, 53]
    vm = Cnt(A, "vmcnt", 63)
    tok = {}
    def xload():
        A(f"""
        s_andn2_b32 s{sRow}, 0xfff, s{sKey}
        s_lshl_b32 s{sTmp}, s{sKind}, 21
        s_lshl_b32 s{sTmp+1}, s{sRow}, 10
        s_add_u32 s{sTmp}, s{sTmp}, s{sTmp+1}
        s_lshl_b32 s{sTmp+1}, s{sW}, 8
        s_add_u32 s{sTmp}, s{sTmp}, s{sTmp+1}
        s_add_u32 s{sTmp}, s{sTmp}, {XB_}
        v_lshrrev_b32 v{qT2}, 7, v{qL16}
        v_lshlrev_b32 v{qT2}, 5, v{qT2}
        """)
        for i in range(2): t = vm.issue(f"buffer_load_dwordx4 v[{XP+4*i}:{XP+4*i+3}], v{qT2}, {W}, s{sTmp} offen offset:{16*i} sc1")
        return t
    if getkey is None: tx = xload()
    mlp_setup(A)
    A(f"s_xor_b32 s{sTmp+11}, s{sPar}, {bx}\ns_add_u32 s{sTmp+11}, s{sTmp+11}, s{sDm}\ns_mov_b32 m0, s{sTmp+11}")
    for i in range(NPL, 31): tok[i] = gu_load(A, vm, i, None)
    tok[31] = gu_load(A, vm, 31, RING)
    for j in range(14):
        if j == 1 and mid: tmid = mid(vm)
        tok[32 + j] = vm.issue(f"buffer_load_dwordx4 {v(DR[j], 4)}, v{VD}, s[{sT}:{sT+3}], s{sTmp+9} offen offset:{(j%4)*1024}")
        if j % 4 == 3: A(f"s_add_u32 s{sTmp+9}, s{sTmp+9}, 4096")
    if getkey is not None:
        getkey(); vm.reset()
        tx = xload()
    A(f"s_mov_b32 vcc_lo, 0xaaaaaaaa\ns_mov_b32 vcc_hi, 0xaaaaaaaa\nv_mov_b32 v{qT1}, 0xffff\nv_mov_b32 v{MSK}, 0xffff0000\nv_cndmask_b32 v{qT1}, v{qT1}, v{MSK}, vcc")
    for r in range(4):
        A(f"s_mov_b32 vcc_lo, {hex(0x03030303 << (2*r))}\ns_mov_b32 vcc_hi, {hex(0x03030303 << (2*r))}\nv_cndmask_b32 v{MSK+r}, 0, v{qT1}, vcc")
    A(f"s_mov_b32 s{sTmp+4}, 0x01000100\ns_mov_b32 s{sTmp+5}, 0x03020302")
    A(f"s_mul_i32 s{sTmp}, s{sW}, {NPL*1024}\ns_add_u32 s{sTmp}, s{sTmp}, {L_ML}\nv_add_u32 v{qT2}, s{sTmp}, v{qL16}\nv_add_u32 v{qT0}, s{sTmp+11}, v{qL16}")
    ld = Cnt(A, "lgkmcnt", 15); lt = {}
    def lrd(i):
        if i >= 31: return
        if i >= NPL: vm.wait(tok[i])
        lt[i] = ld.issue(f"ds_read_b128 {v(LB[i % 7], 4)}, v{qT2 if i < NPL else qT0} offset:{(i % NPL)*1024}")
    for i in range(7): lrd(i)
    vm.wait(tx)
    if mid:
        vm.wait(tmid); mid2(vm)
    for j in range(16):
        A(f"v_perm_b32 v{qT1}, v{XP+j//2}, v{XP+j//2}, s{sTmp+4+j%2}")
        for r in range(4): A(f"v_and_b32 v{AOP+r}, v{MSK+r}, v{qT1}")
        if j < 15: ld.wait(lt[2 * j + 1])
        else: ld.wait(lt[30]); vm.wait(tok[31])
        for m in range(2):
            i = 2 * j + m
            A(mfd(DG + 4 * m, AOP, LB[i % 7] if i < 31 else RING, DG + 4 * m if j else None))
            lrd(i + 7)
    A(f"""
    v_lshrrev_b32 v{qT0}, 8, v{qL16}
    v_and_b32 v{qT1}, 0xf0, v{qL16}
    v_lshlrev_b32 v{qT1}, 1, v{qT1}
    v_and_b32 v{qT2}, 1, v{qT0}
    v_lshl_add_u32 v{qT2}, v{qT2}, 4, v{qT1}
    v_add_u32 v{qT2}, s{sTmp+11}, v{qT2}
    s_mov_b32 exec_lo, 0x00ff00ff
    s_mov_b32 exec_hi, 0xff00ff00
    ds_write_b128 v{qT2}, v[{DG}:{DG+3}]
    ds_write_b128 v{qT2}, v[{DG+4}:{DG+7}] offset:512
    s_mov_b64 exec, -1
    s_xor_b32 s{sTmp}, s{sPar}, {bx}
    v_add_u32 v{qT2}, s{sTmp}, v{qL4}
    v_lshl_add_u32 v{qT1}, v{qT0}, 4, v{qT1}
    s_waitcnt lgkmcnt(0)
    s_barrier
    """)
    for w in range(4):
        for m in range(2): A(f"ds_read2st64_b32 v[{(TG, XP)[m]+2*w}:{(TG, XP)[m]+2*w+1}], v{qT2} offset0:{w*32+m*2} offset1:{w*32+m*2+1}")
    A("s_waitcnt lgkmcnt(0)")
    for k in (4, 2, 1):
        for q in (TG, XP):
            for i in range(k): A(f"v_add_f32 v{q+i}, v{q+i}, v{q+k+i}")
    rnd(A, TG); rnd(A, XP)
    A(f"v_mul_f32 v{TG+4}, {hex(f32bits(-math.log2(math.e)))}, v{TG}\nv_exp_f32 v{TG+4}, v{TG+4}\nv_add_f32 v{TG+4}, 1.0, v{TG+4}\nv_rcp_f32 v{TG+4}, v{TG+4}")
    A(f"v_mul_f32 v{TG}, v{TG}, v{TG+4}")
    rnd(A, TG)
    A(f"v_mul_f32 v{TG}, v{TG}, v{XP}\nv_cvt_pk_bf16_f32 v{TG}, v{TG}, v{TG}")
    A(f"s_lshl_b32 s{sTmp}, s{sW}, 8\ns_add_u32 s{sTmp}, s{sTmp}, {L_H}\nv_add_u32 v{qT2}, s{sTmp}, v{qL4}\nds_write_b32 v{qT2}, v{TG}")
    A(f"v_mul_u32_u24 v{qT2}, 56, v{qT0}\nv_add_u32 v{qT2}, s{sTmp}, v{qT2}")
    for q in range(7): A(f"ds_read_b64 v[{HR[2*q]}:{HR[2*q]+1}], v{qT2} offset:{8*q}")
    A("s_waitcnt lgkmcnt(0)")
    for j in range(14):
        a = (AOP, DG + 4)[j % 2]
        for r in range(4): A(f"v_and_b32 v{a+r}, v{MSK+r}, v{HR[j]}")
        vm.wait(tok[32 + j])
        A(mfd(DG, a, DR[j], DG if j else None))
    A(f"""
    v_lshrrev_b32 v{qT1}, 1, v{qT1}
    s_lshl_b32 s{sTmp}, s{inst}, 7
    s_add_u32 s{sTmp}, s{sTmp}, s{sHW}
    s_lshl_b32 s{sTmp}, s{sTmp}, 8
    s_add_u32 s{sTmp}, s{sTmp}, {MLPY - 64*32768}
    v_cvt_pk_bf16_f32 v{DG}, v{DG}, v{DG+1}
    v_cvt_pk_bf16_f32 v{DG+1}, v{DG+2}, v{DG+3}
    v_min_u32 v{DG}, -2, v{DG}
    v_min_u32 v{DG+1}, -2, v{DG+1}
    s_mov_b32 exec_hi, 0
    buffer_store_dwordx2 v[{DG}:{DG+1}], v{qT1}, {W}, s{sTmp} offen sc1
    s_mov_b32 exec_hi, -1
    """)

def gather(A, FAIL, inst, finish, keep=False, between=None, after=None, probe=0):
    W = f"s[{sWS}:{sWS+3}]"
    DONE, L1 = A.label("m_done"), A.label("m_w")
    SEL, S0, XR, YR, XF, YF, RB = 68, 72, 108, 112, 80, 88, 20
    A(f"""
    s_lshl_b32 s{sTmp}, s{sKind}, 21
    s_lshl_b32 s{sTmp+1}, s{sRow}, 10
    s_add_u32 s{sTmp}, s{sTmp}, s{sTmp+1}
    s_add_u32 s{sTmp+1}, s{sTmp}, {XA}
    s_add_u32 s{sTmp+2}, s{sTmp}, {XB_}
    s_lshl_b32 s{sTmp}, s{inst}, 7
    s_add_u32 s{sTmp}, s{sTmp}, s{sW}
    s_lshl_b32 s{sTmp}, s{sTmp}, 8
    s_add_u32 s{sTmp}, s{sTmp}, {MLPY - 64*32768}
    v_lshrrev_b32 v{qT0}, 8, v{qL16}
    v_and_b32 v{qT1}, 0xf0, v{qL16}
    v_lshl_add_u32 v{qT2}, v{qT0}, 10, v{qT1}
    buffer_load_dwordx4 v[{XR}:{XR+3}], v{qL16}, {W}, s{sTmp+1} offen sc1
    buffer_load_dwordx4 v[{YR}:{YR+3}], v{qL16}, {W}, s{sTmp+2} offen sc1
    s_mov_b32 s{sSpin}, 0
    """)
    if between: between()
    if probe:
        L0, L3 = A.label("m_p"), A.label("m_q")
        A(f"s_cmp_lg_u32 s{sW}, 0\ns_cbranch_scc1 {L3}\nv_lshlrev_b32 v{XF}, 6, v{qL16}\ns_mov_b32 exec_hi, 0\n{L0}:\nbuffer_load_dword v{XF+1}, v{XF}, {W}, s{sTmp} offen sc1")
        spin(A, FAIL)
        A(f"s_waitcnt vmcnt(0)\nv_cmp_eq_u32 vcc, -1, v{XF+1}\ns_cbranch_vccnz {L0}\ns_mov_b32 exec_hi, -1\n{L3}:\ns_barrier")
    A(f"{L1}:")
    for p in range(8):
        A(f"s_add_u32 s{sTmp+1}, s{sTmp}, {p*4096}\nbuffer_load_dwordx4 v[{RB+4*p}:{RB+4*p+3}], v{qT2}, {W}, s{sTmp+1} offen sc1")
    spin(A, FAIL)
    selmats(A, SEL, 4, S0)
    for p in range(8):
        r = RB + 4 * p
        A(f"s_waitcnt vmcnt({7-p})")
        A(mfd(S0, SEL, r, S0 if p else None))
        A(f"v_max3_u32 v{XF}, v{r}, v{r+1}, " + (f"v{XF}" if p else "0"))
        A(f"v_max3_u32 v{XF}, v{r+2}, v{r+3}, v{XF}")
    A(f"v_cmp_eq_u32 vcc, -1, v{XF}\ns_cbranch_vccnz {L1}")
    A(f"""
    v_lshlrev_b32 v{qT1}, 1, v{qT1}
    v_lshl_add_u32 v{qT1}, v{qT0}, 4, v{qT1}
    s_lshl_b32 s{sTmp}, s{sW}, 9
    s_add_u32 s{sTmp}, s{sTmp}, {L_PS}
    v_add_u32 v{qT1}, s{sTmp}, v{qT1}
    s_mov_b32 exec_hi, 0
    ds_write_b128 v{qT1}, v[{S0}:{S0+3}]
    s_mov_b32 exec_hi, -1
    v_lshlrev_b32 v{qT1}, 1, v{qL16}
    v_add_u32 v{qT1}, {L_PS}, v{qT1}
    """)
    if after: after()
    unpack(A, XR, XF); unpack(A, YR, YF)
    TM = XR
    A(f"""
    s_waitcnt lgkmcnt(0)
    s_barrier
    s_cmp_lg_u32 s{sW}, 0
    s_cbranch_scc1 {DONE}
    ds_read_b128 v[{S0}:{S0+3}], v{qT1}
    ds_read_b128 v[{S0+4}:{S0+7}], v{qT1} offset:16
    s_and_b32 s{sTmp+3}, s{sKey}, 0xffff0000
    s_xor_b32 s{sTmp+1}, s{sTmp+3}, 0x80000000
    s_xor_b32 s{sTmp+2}, s{sTmp+3}, 0xffff0000
    s_bitcmp1_b32 s{sTmp+3}, 31
    s_cselect_b32 s{sTmp+3}, s{sTmp+1}, s{sTmp+2}
    v_mov_b32 v{TM}, s{sTmp+3}
    v_mul_f32 v{TM}, {hex(f32bits(-math.log2(math.e)))}, v{TM}
    v_exp_f32 v{TM}, v{TM}
    v_add_f32 v{TM}, 1.0, v{TM}
    v_rcp_f32 v{TM}, v{TM}
    """)
    rnd(A, TM)
    if keep:
        for i in range(8): A(f"v_add_f32 v{RB+i}, v{XF+i}, v{YF+i}")
        pack(A, RB, RB + 8)
        for i in range(4): A(f"v_accvgpr_write_b32 a{i}, v{RB+8+i}")
    A("s_waitcnt lgkmcnt(0)")
    for i in range(8): rnd(A, S0 + i)
    for i in range(8): A(f"v_mul_f32 v{S0+i}, v{S0+i}, v{TM}")
    for i in range(8): rnd(A, S0 + i)
    for i in range(8): A(f"v_add_f32 v{S0+i}, v{S0+i}, v{YF+i}")
    for i in range(8): rnd(A, S0 + i)
    for i in range(8): A(f"v_add_f32 v{XF+i}, v{XF+i}, v{S0+i}")
    pack(A, XF, YR); unpack(A, YR, XF)
    finish(XF, YR, RB)
    A(f"{DONE}:")

def qkv_role(A, P, first={}, after_weights=None, before_mlp=None, hold=None):
    W = f"s[{sWS}:{sWS+3}]"
    n, g = 6, 7
    A(f"""
    v_and_b32 v19, 63, v0
    v_and_b32 v{n}, 15, v19
    v_lshrrev_b32 v{g}, 4, v19
    v_lshlrev_b32 v{qL4}, 2, v19
    v_lshlrev_b32 v{qL16}, 4, v19
    v_lshlrev_b32 v{qLK}, {KSH}, v19
    s_mov_b32 s{sC}, {hex(f32bits(128 ** -0.5 * math.log2(math.e)))}
    s_lshl_b32 s{sHW}, s{sJ}, 2
    s_add_u32 s{sHW}, s{sHW}, s{sW}
    """)
    def tile_addr(par=False):
        A(f"v_lshrrev_b32 v96, 9, v{qL16}\nv_lshlrev_b32 v96, 4, v96\nv_and_b32 v97, 0xf0, v{qL16}\nv_xor_b32 v96, v96, v97\nv_and_b32 v97, 0x1f0, v{qL16}\nv_lshl_add_u32 v96, v97, 6, v96")
        if par: A(f"v_add_u32 v96, s{sPar}, v96")
        for cl in range(8): A(f"v_xor_b32 v{qRD+cl}, {cl*32}, v96")
        A(f"s_and_b32 s{sTmp}, s{sW}, 1\ns_lshl_b32 s{sTmp}, s{sTmp}, 7\nv_xor_b32 v96, s{sTmp}, v{qL16}")
        for i in range(8): A(f"v_xor_b32 v{qSRC+i}, {i*16}, v96")
    A(f"v_and_b32 v24, 1, v{g}\nv_lshlrev_b32 v24, 10, v24\nv_lshl_add_u32 v24, v{n}, 4, v24\nv_lshrrev_b32 v25, 1, v{g}\nv_lshl_add_u32 v{qST}, v25, 8, v24")
    tile_addr()
    A(f"s_lshl_b32 s{sTmp}, s{sW}, 2\ns_add_u32 s{sTmp}, s{sTmp}, {L_VT}\nv_lshrrev_b32 v24, 7, v{qL16}\nv_lshl_add_u32 v{qVT}, v24, 4, s{sTmp}")
    A(f"v_and_b32 v24, 48, v{qL16}\nv_add_u32 v{qVT+1}, {L_VT}, v24")
    qkv_load_weights(A, n, g, first, P.get('orders', ('kvq', 'vqk', 'qkv')), P.get('dep', 5))
    if after_weights: after_weights()
    def key_addr():
        A(f"v_lshrrev_b32 v{qKA}, 7, v{qL16}\nv_lshlrev_b32 v{qKA}, {KSH+5}, v{qKA}\nv_and_b32 v{qT0}, {(8 << KSH) - 1}, v{qLK}\ns_lshl_b32 s{sTmp}, s{sW}, {KSH+3}")
        A(f"v_add3_u32 v{qKA}, v{qKA}, v{qT0}, s{sTmp}\nv_mov_b32 v{KEY}, 0")
    key_addr()
    N0, NPRE = P.get("n0", 6), P.get("npre", 3)
    A(f"""
    s_mov_b32 s{sNxt}, s{sRep}
    s_add_u32 s{sN2}, s{sRep}, 3
    s_add_u32 s{sI2}, s{sRep}, 64
    s_mov_b32 s{sLead}, {3 * N0}
    s_mov_b32 s{sHist}, 0
    s_mov_b32 s{sPre}, 0
    s_mov_b32 s{sPend}, {WS_BYTES}
    s_mov_b32 s{sQB}, {WS_BYTES}
    s_mov_b32 s{sPar}, 32768
    s_mov_b32 s{sRun}, 1
    s_mov_b32 s{sKind}, 0
    s_mov_b32 s{sMode}, 0
    s_lshl_b32 s{sDm}, s{sW}, 13
    """)
    SLOW, END, HAVE, POLL, FAIL, PATCH, NOPRE, FORK, COLD = [A.label("q_" + x) for x in
        ("slow", "end", "have", "poll", "fail", "patch", "nopre", "fork", "cold")]
    FORKW, NXT = A.label("q_forkw"), A.label("q_nxt")
    MF = P.get("mfirst", 1)
    CE = [A.label("q_c0"), A.label("q_c1")]; WE = [A.label("q_w0"), A.label("q_w1")]
    def post(A, off, val):
        A(f"s_mov_b64 exec, 1\nbuffer_store_dword v{val}, off, {W}, s{off} sc1\ns_mov_b64 exec, -1")
    def post2(A):
        A(f"s_mov_b64 exec, 3\nbuffer_store_dword v{qFV}, v{qL16}, {W}, s{sPend} offen sc1\ns_mov_b64 exec, -1")
    def key_loads(A):
        A.append(("grp", [f"s_cmp_lt_u32 s{sNxt}, 64", f"s_cselect_b32 s{sTmp}, 2, 0"]))
        A(f"s_add_u32 s{sTmp}, s{sTmp}, s{sNxt}\ns_lshl_b32 s{sTmp}, s{sTmp}, {KSH+5}\ns_add_u32 s{sTmp}, s{sTmp}, {F_XN - 2*KSEG}")
        A.append(("grp", ["s_mov_b64 exec, 0xffffff", f"buffer_load_dword v{KEY}, v{qKA}, {W}, s{sTmp} offen sc1", "s_mov_b64 exec, -1"]))
    def key_eval(A):
        A(f"v_cmp_eq_u32 vcc, 0, v{KEY}\nv_max_u32_dpp v{KEY+1}, v{KEY}, v{KEY} quad_perm:[1,0,3,2] row_mask:0xf bank_mask:0xf")
        A.append(("grp", [f"s_and_b32 s{sPre}, vcc_lo, 0xffffff", f"s_cselect_b32 s{sPre}, 0, -1"]))
        A(f"v_max_u32_dpp v{KEY+1}, v{KEY+1}, v{KEY+1} quad_perm:[2,3,0,1] row_mask:0xf bank_mask:0xf\ns_nop 1")
        A(f"v_max_u32_dpp v{KEY+1}, v{KEY+1}, v{KEY+1} row_half_mirror row_mask:0xf bank_mask:0xf\nv_and_b32 v{KEY+1}, s{sPre}, v{KEY+1}")
    def vote_eval(A, V):
        A(f"v_min3_u32 v{V+4}, v{V}, v{V+1}, v{V+2}\nv_max3_u32 v{V}, v{V}, v{V+1}, v{V+2}\nv_min_u32 v{V+4}, v{V+4}, v{V+3}\nv_max_u32 v{V}, v{V}, v{V+3}")
        A(f"v_readfirstlane_b32 s{sGo}, v{V+4}")
        for i in range(3): A(f"v_readlane_b32 s{sTmp+2+i}, v{V}, {i}")
    def fold(A):
        for i in range(3):
            A(f"s_cmp_gt_u32 s{sTmp+2+i}, s{sRun}\ns_addc_u32 s{sHist}, s{sHist}, s{sHist}\ns_max_u32 s{sRun}, s{sRun}, s{sTmp+2+i}")
            if i == 2: A(f"s_add_u32 s{sN2}, s{sNxt}, s{sLead}\ns_add_u32 s{sI2}, s{sNxt}, 3\ns_sub_u32 s{sN2}, s{sN2}, 64")
            A(f"s_and_b32 s{sTmp}, s{sHist}, {P.get('hm', 1)}\ns_cselect_b32 s{sTmp}, s{sLead}, 0\ns_cmp_gt_u32 s{sTmp}, {P.get('lmin', 12)}")
            if i == 2: A(f"s_cselect_b32 s{sN2}, 64, s{sN2}")
            A(f"s_subb_u32 s{sLead}, s{sLead}, 0")
        A(f"s_cmp_lt_u32 s{sN2}, 64\ns_cselect_b32 s{sN2}, s{sN2}, s{sI2}\ns_bitcmp1_b32 s{sHist}, 0")
    def dma(A, sid):
        A(f"s_and_b32 s{sSrc}, s{sid}, 127\ns_lshl_b32 s{sSrc}, s{sSrc}, 15\ns_xor_b32 s{sTmp+1}, s{sPar}, 32768")
        A(f"s_add_u32 m0, s{sTmp+1}, s{sDm}\ns_add_u32 s{sSrc}, s{sSrc}, s{sDm}\ns_add_u32 s{sSrc}, s{sSrc}, {XN}")
        for i in range(8):
            if i == 4: A(f"s_add_u32 m0, m0, 4096\ns_add_u32 s{sSrc}, s{sSrc}, 4096")
            A(f"buffer_load_dwordx4 v{qSRC+i}, {W}, s{sSrc} offen offset:{(i%4)*1024} sc1 lds")
    def advance(A):
        A.append(("grp", [f"s_add_u32 s{sN2}, s{sNxt}, 3", f"s_cmp_lt_u32 s{sN2}, {3 * N0}", f"s_cselect_b32 s{sN2}, s{sN2}, s{sI2}"]))
    def epi(a0, pk, base, off, scale):
        f = L()
        if scale:
            for r in range(16): f(f"v_mul_f32 v{a0+r}, s{sC}, v{a0+r}")
        for p in range(2):
            for d, r in enumerate((4*p, 4*p+2, 4*p+8, 4*p+10)): f(f"v_cvt_pk_bf16_f32 v{pk+4*p+d}, v{a0+r}, v{a0+r+1}")
            f(f"buffer_store_dwordx4 v[{pk+4*p}:{pk+4*p+3}], v{qST}, {W}, s{base} offen offset:{off+p*512} sc1")
        return f
    def emit(items):
        for x in items:
            if isinstance(x, str): A(x)
            else:
                for y in x[1]: A(y)
    NW_ = 3
    def rdtxt(i, par):
        k = i % 32
        r = XB + (i % 8) * 4
        return f"ds_read_b128 v[{r}:{r+3}], v{qRD+k%8} offset:{par*32768+(k//8)*256}"
    steps = [(m, k, k) for k in range(32) for m in "kv"] + [("q", k, 32 + k) for k in range(32)]
    last_use = {f: i for i, (_, _, f) in enumerate(steps)}
    def block(par):
        ld = Cnt(A, "lgkmcnt", 15)
        A(f"{CE[par]}:")
        tok = {}
        for i in range(NW_): tok[i] = ld.issue(rdtxt(i, par))
        A(f"{WE[par]}:")
        trace(A, 2, 10, sNxt)
        trace_clk(A, 10)
        f0 = L(); f0(f"s_mov_b32 s{sCur}, s{sNxt}\ns_mov_b32 s{sNxt}, s{sN2}")
        f0(f"s_lshl_b32 s{sOut}, s{sCur}, 7\ns_add_u32 s{sOut}, s{sOut}, s{sHW}\ns_lshl_b32 s{sB}, s{sOut}, 12\ns_add_u32 s{sB}, s{sB}, {KV}")
        PN = P.get("pn", 1)
        fq = epi(ACC + 32, PK, sQB, 0, False); fq(f"s_lshl_b32 s{sQB}, s{sOut}, 11\ns_add_u32 s{sQB}, s{sQB}, {QX}")
        f0(f"s_lshl_b32 s{sKF}, s{sOut}, 5\ns_add_u32 s{sKF}, s{sKF}, {F_KV}")
        f0(f"s_lshr_b32 s{sFk}, s{sNxt}, 7\ns_sub_u32 s{sTmp+1}, s{sNxt}, s{sRep}")
        f0.append(("grp", [f"s_cmp_eq_u32 s{sTmp+1}, {3*NPRE}", f"s_cselect_b32 s{sFk}, 1, s{sFk}"]))
        if hold: f0.append(("grp", [f"s_cmp_eq_u32 s{sTmp+1}, {3*P.get('hat', 1)}", f"s_cselect_b32 s{sFk}, 1, s{sFk}"]))
        advance(f0)
        fk = L(); key_loads(fk)
        f1 = L(); f1("s_waitcnt vmcnt(0)"); post2(f1); key_eval(f1)
        f1.append(("grp", [f"s_cmp_lg_u32 s{sPre}, 0", f"s_cselect_b32 s{sTmp+2}, s{sNxt}, s{sCur}"]))
        fd = L(); dma(fd, sTmp + 2)
        if P.get("oob"): fd.insert(6, ("grp", [f"s_cmp_lg_u32 s{sPre}, 0", f"s_cselect_b32 s{sSrc}, s{sSrc}, {WS_BYTES}", f"s_cselect_b32 m0, m0, 0x28000"]))
        f1 += fd
        f1(f"s_mov_b32 s{sPend}, s{sKF}")
        f1.append(("ds", f"ds_write_b32 v{qVT}, v{KEY+1} offset:{par*128}"))
        ek = epi(ACC, PK + 8, sB, 0, True)
        fills = {0: f0, PN + 1: fq, P.get("p0", 12): fk, P.get("p1", 34): f1, 65: ek[:6] + epi(ACC + 16, PK, sB, 2048, False) + ek[6:]}
        q = []
        lastvm = [-9]
        def fill(budget, vmok, i):
            while q and budget > 0:
                x = q[0]
                if not isinstance(x, str):
                    q.pop(0)
                    if x[0] == "ds": ld.issue(x[1]); budget -= 1
                    else:
                        for y in x[1]: A(y)
                        budget -= len(x[1])
                    continue
                if x.startswith("buffer_"):
                    if not vmok: break
                    vmok = False; budget -= 2; lastvm[0] = i
                budget -= 1
                A(q.pop(0))
                if x.startswith("s_mov_b64 exec, 3"):
                    A(q.pop(0)); A(q.pop(0)); budget -= 3
        nrd = NW_
        BAR = 90
        ve = L(); vote_eval(ve, PK)
        for i, (m, k, f) in enumerate(steps):
            a0 = ACC + 16 * "kvq".index(m)
            q += fills.get(i, [])
            if i == BAR:
                assert not q and nrd == 64
                A("s_waitcnt vmcnt(4) lgkmcnt(0)\ns_barrier"); ld.reset()
                tv = ld.issue(f"ds_read_b128 v[{PK}:{PK+3}], v{qVT+1} offset:{par*128}")
            elif i % 2 == 0 and i < BAR: ld.wait(tok[steps[i + 1][2]])
            x = XB + (f % 8) * 4
            cc = a0 if k else None
            A(mf32(a0, x, wop(m, k), cc) if m == "v" else mf32(a0, wop(m, k), x, cc))
            if i in P.get("stamps", ()): r = 80 + 2 * P["stamps"].index(i); A(f"s_memtime s[{r}:{r+1}]")
            want = steps[min(95, i + 6 + max(0, i - 83))][2] + 1
            b = 6
            while nrd < want and (nrd < 8 or last_use[nrd - 8] <= i):
                tok[nrd] = ld.issue(rdtxt(nrd, par)); nrd += 1; b -= 1
            if BAR <= i < BAR + NW_: ld.issue(rdtxt(i - BAR, par ^ 1))
            if i == BAR + 1: A(f"s_xor_b32 s{sPar}, s{sPar}, 32768")
            if i == BAR + 3:
                ld.wait(tv); emit(ve[:5])
            if i == BAR + 4:
                emit(ve[5:]); A(f"s_cmp_gt_u32 s{sFk}, 0\ns_cselect_b32 s{sGo}, 0, s{sGo}")
            if i == PN: A("s_waitcnt vmcnt(0)"); post(A, sPend, qFV); b -= 4
            fill(b - P.get('bm', 1), i - lastvm[0] >= (P.get('sp1', 3) if i < 64 else P.get('sp2', 2)), i)
        for k_ in range(1, len(P.get("stamps", ()))):
            A(f"s_waitcnt lgkmcnt(0)\ns_sub_u32 s{80+2*k_}, s{80+2*k_}, s80"); trace(A, 19 + k_, 10, 80 + 2 * k_)
        A(f"s_cmp_eq_u32 s{sGo}, 0\ns_cbranch_scc1 {SLOW}\ns_cmp_lt_u32 s{sNxt}, 64\ns_cbranch_scc1 {WE[par ^ 1]}")
        fold(A)
        if MF: A(f"s_cbranch_scc0 {WE[par ^ 1]}\ns_branch {FORKW}")
        else: A(f"s_cselect_b32 s{sMode}, 1, 0\ns_branch {WE[par ^ 1]}")
    A(f"s_mov_b32 s{sPar}, 0\nv_mov_b32 v{qFV}, 1")
    A(f"{SLOW}:")
    trace(A, 1, 10)
    def q_flush():
        e = epi(ACC + 32, PK, sQB, 0, False)
        emit([x for x in e if not x.startswith("buffer_")])
        A("s_waitcnt vmcnt(0)"); post(A, sPend, qFV)
        emit([x for x in e if x.startswith("buffer_")])
    q_flush()
    A(f"""
    s_mov_b32 s{sQB}, {WS_BYTES}
    s_xor_b32 s{sPar}, s{sPar}, 32768
    {NXT}:
    s_cmp_ge_u32 s{sNxt}, 128
    s_cbranch_scc1 {END}
    s_cmp_lg_u32 s{sPre}, 0
    s_cbranch_scc1 {HAVE}
    s_mov_b32 s{sSpin}, 0
    {POLL}:
    """)
    f = L(); key_loads(f); emit(f)
    spin(A, FAIL)
    A("s_waitcnt vmcnt(0)")
    post2(A)
    A(f"s_mov_b32 s{sPend}, {WS_BYTES}\nv_cmp_eq_u32 vcc, 0, v{KEY}\ns_nop 0\ns_and_b32 s{sTmp}, vcc_lo, 0xffffff\ns_cbranch_scc1 {POLL}")
    dma(A, sNxt)
    f = L(); key_eval(f); emit(f)
    A(f"""
    {HAVE}:
    ds_write_b32 v{qVT}, v{KEY+1} offset:256
    s_xor_b32 s{sPar}, s{sPar}, 32768
    s_waitcnt lgkmcnt(0)
    s_barrier
    ds_read_b128 v[{PK+8}:{PK+11}], v{qVT+1} offset:256
    s_cmp_lt_u32 s{sNxt}, 64
    s_cbranch_scc1 {NOPRE}
    s_waitcnt lgkmcnt(0)
    """)
    vote_eval(A, PK + 8)
    fold(A)
    A((f"s_cbranch_scc1 {FORK}" if MF else f"s_cselect_b32 s{sMode}, 1, 0") + f"\n{NOPRE}:")
    if hold:
        NH = A.label("q_nh")
        A(f"s_sub_u32 s{sTmp}, s{sNxt}, s{sRep}\ns_cmp_lg_u32 s{sTmp}, {3*P.get('hat', 1)}\ns_cbranch_scc1 {NH}\ns_waitcnt vmcnt(0)")
        post2(A); A(f"s_mov_b32 s{sPend}, {WS_BYTES}")
        hold(); A(f"{NH}:")
    A(f"s_waitcnt vmcnt(0)\ns_sub_u32 s{sTmp}, s{sNxt}, s{sRep}\ns_cmp_lg_u32 s{sTmp}, {3*NPRE}\ns_cbranch_scc1 {COLD}")
    if before_mlp: before_mlp()
    mlp_preload(A)
    key_addr()
    A(f"{COLD}:\ns_waitcnt lgkmcnt(0)\ns_barrier\ns_cmp_lg_u32 s{sPar}, 0\ns_cbranch_scc1 {CE[1]}")
    block(0); block(1)
    sQ2 = 77
    def mini(lo, hi, cut=None, mid=None):
        ld = Cnt(A, "lgkmcnt", 15); tok = {}
        f0_ = steps[lo][2]; nrd = f0_
        for _ in range(4): tok[nrd] = ld.issue(rdtxt(nrd, 0)); nrd += 1
        for i in range(lo, hi):
            m, k, f = steps[i]
            a0 = ACC + 16 * "kvq".index(m)
            if i % 2 == 0: ld.wait(tok[steps[i + 1][2]])
            x = XB + (f % 8) * 4
            A(mf32(a0, x, wop(m, k), a0 if k else None) if m == "v" else mf32(a0, wop(m, k), x, a0 if k else None))
            want = steps[min(hi - 1, i + 6)][2] + 1
            while nrd < want: tok[nrd] = ld.issue(rdtxt(nrd, 0)); nrd += 1
    def both(vm, items, b1, b2):
        for x in items:
            if x.startswith("buffer_"): t = vm.issue(x); t = vm.issue(x.replace(f" s{b1} offen", f" s{b2} offen"))
            else: A(x)
        return t
    A(f"{FORKW}:")
    q_flush()
    A(f"s_mov_b32 s{sQB}, {WS_BYTES}\ns_waitcnt lgkmcnt(0)\n{FORK}:")
    A(f"s_mov_b32 s{sKey}, s{sRun}\ns_mov_b32 s{sCur}, s{sNxt}\ns_mov_b32 s{sNxt}, s{sN2}")
    f = L(); advance(f); emit(f)
    trace(A, 3, 10, sCur)
    def kv_part(vm):
        for cl in range(8): A(f"v_add_u32 v{qRD+cl}, s{sPar}, v{qRD+cl}")
        A(f"s_lshl_b32 s{sOut}, s{sCur}, 7\ns_add_u32 s{sOut}, s{sOut}, s{sHW}\ns_lshl_b32 s{sQ2}, s{sOut}, 12\ns_add_u32 s{sB}, s{sQ2}, {KV + 32*MB}\ns_add_u32 s{sQ2}, s{sQ2}, {KV}")
        A(f"s_lshl_b32 s{sKF}, s{sOut}, 5\ns_add_u32 s{sKF}, s{sKF}, {F_KV}\ns_waitcnt vmcnt({len(vm.q)})\ns_barrier")
        f = L(); post2(f); A(f[0]); vm.issue(f[1]); A(f[2])
        A(f"v_mov_b32 v{qFV}, 2\ns_mov_b32 s{sPend}, s{sKF}")
        mini(0, 64)
        e = epi(ACC, PK + 8, sQ2, 0, True) + epi(ACC + 16, PK, sQ2, 2048, False)
        for x in e:
            if x.startswith("buffer_"): t = vm.issue(x)
            else: A(x)
        for x in e:
            if x.startswith("buffer_"): vm.issue(x.replace(f" s{sQ2} offen", f" s{sB} offen"))
        return t
    def kv_flag(vm):
        f = L(); post(f, sKF, qFV); A(f[0]); vm.issue(f[1]); A(f[2])
        trace(A, 2, 10, sCur)
    mlp(A, FAIL, None, sCur, mid=kv_part, mid2=kv_flag)
    key_addr(); tile_addr(True)
    trace(A, 4, 10)
    def q_rest():
        mini(64, 96)
        A(f"s_lshl_b32 s{sTmp+2}, s{sOut}, 11\ns_add_u32 s{sQ2}, s{sTmp+2}, {QX + 16*MB}\ns_add_u32 s{sTmp+2}, s{sTmp+2}, {QX}\ns_add_u32 s{sKF}, s{sKF}, {256*KB}")
        for x in epi(ACC + 32, PK, 0, 0, False):
            if not x.startswith("buffer_"): A(x)
    def fin_fork(XF, PKr, TM):
        A(f"s_lshl_b32 s{sTmp+1}, s{sCur}, 5\ns_add_u32 s{sTmp+1}, s{sTmp+1}, s{sJ}\ns_lshl_b32 s{sTmp+1}, s{sTmp+1}, 10\ns_add_u32 s{sTmp+1}, s{sTmp+1}, {XM - 64*32768}")
        A(f"buffer_store_dwordx4 v[{PKr}:{PKr+3}], v{qL16}, {W}, s{sTmp+1} offen sc1")
        layernorm1(A, XF, None, TM + 12, TM)
        A(f"v_lshl_add_u32 v{qT1}, v{qL16}, 2, s{sPar}\nv_mov_b64 v[{TM}:{TM+1}], 0\nv_mov_b64 v[{TM+4}:{TM+5}], 0\nv_mov_b64 v[{TM+8}:{TM+9}], 0")
        for h in range(2):
            A(f"v_mov_b32 v{TM+2+4*h}, v{TM+12+h}\nv_mov_b32 v{TM+3+4*h}, v{TM+14+h}")
        for h in range(2):
            A(f"ds_write_b128 v{qT1}, v[{TM+2+4*h}:{TM+5+4*h}] offset:{4096+32*h}\nds_write_b128 v{qT1}, v[{TM+4*h}:{TM+3+4*h}] offset:{4096+32*h+16}")
    f = L(); key_loads(f); emit(f)
    def q_out():
        for b_ in (sQ2, sTmp + 2):
            for x in epi(ACC + 32, PK, b_, 0, False):
                if x.startswith("buffer_"): A(x)
    gather(A, FAIL, sCur, fin_fork, between=q_rest, after=q_out, probe=P.get('probe', 0))
    NB_ = A.label("q_nb")
    tile_addr()
    f = L(); key_eval(f); emit(f)
    A(f"s_cmp_eq_u32 s{sPre}, 0\ns_cbranch_scc1 {NB_}")
    dma(A, sNxt)
    A(f"{NB_}:")
    D, IX, XA_ = 20, 32, 36
    A(f"""
    v_lshrrev_b32 v{qT0}, 8, v{qL16}
    v_and_b32 v{qT1}, 48, v{qL16}
    v_lshl_add_u32 v{qT1}, v{qT0}, 6, v{qT1}
    v_add_u32 v{qT1}, s{sPar}, v{qT1}
    s_mov_b32 vcc_lo, 0xcccccccc
    s_mov_b32 vcc_hi, 0xcccccccc
    v_mov_b32 v{IX}, 0x4444
    v_mov_b32 v{IX+1}, 0xeeee
    v_cndmask_b32 v{IX}, v{IX}, v{IX+1}, vcc
    s_waitcnt lgkmcnt(0)
    s_barrier
    """)
    trace(A, 7, 10)
    ld = Cnt(A, "lgkmcnt", 15); tk = {}
    def rd(t): tk[t] = ld.issue(f"ds_read_b128 v[{XA_+4*t}:{XA_+4*t+3}], v{qT1} offset:{4096+t*256}")
    for t in range(8): rd(t)
    for r in range(D, D + 12, 2): A(f"v_mov_b64 v[{r}:{r+1}], 0")
    sal = L()
    sal(f"s_and_b32 s{sTmp}, s{sRow}, 16\ns_lshl_b32 s{sTmp+1}, s{sTmp}, 6\ns_and_b32 s{sTmp+2}, s{sRow}, 15\ns_lshl4_add_u32 s{sTmp+1}, s{sTmp+2}, s{sTmp+1}")
    sal(f"s_add_u32 s{sQ2}, s{sQ2}, s{sTmp+1}\ns_add_u32 s{sTmp+1}, s{sTmp+1}, s{sB}\ns_lshr_b32 s{sTmp}, s{sTmp}, 1\ns_and_b32 s{sTmp+2}, s{sRow}, 3")
    sal(f"s_lshl1_add_u32 s{sTmp}, s{sTmp+2}, s{sTmp}\ns_and_b32 s{sTmp+2}, s{sRow}, 12\ns_lshl_b32 s{sTmp+2}, s{sTmp+2}, 6\ns_add_u32 s{sTmp}, s{sTmp}, s{sTmp+2}")
    sal(f"s_add_u32 s{sTmp}, s{sTmp}, s{sB}\nv_and_b32 v{qT0}, 0xc0, v{qL16}\nv_and_b32 v{qT2}, 12, v{qL4}\nv_lshrrev_b32 v{qT2}, 1, v{qT2}\nv_lshl_add_u32 v{qT0}, v{qT0}, 2, v{qT2}")
    for t in range(16):
        ld.wait(tk[t])
        for i, m in enumerate("kvq"):
            A(f"v_smfmac_f32_16x16x64_bf16 {v(D+4*i,4)}, {v(XA_+4*t,4)}, {reg(wop(m, 2*t),8)}, v{IX}")
            if i == 0 and t + 8 < 16: rd(t + 8)
            elif sal: A(sal.pop(0))
    for i in range(3): A(f"v_add_f32 v{D+4*i}, v{D+4*i}, v{D+4*i+2}\nv_add_f32 v{D+4*i+1}, v{D+4*i+1}, v{D+4*i+3}")
    A(f"v_mul_f32 v{D}, s{sC}, v{D}\nv_mul_f32 v{D+1}, s{sC}, v{D+1}")
    for i in range(3): A(f"v_cvt_pk_bf16_f32 v{D+4*i}, v{D+4*i}, v{D+4*i+1}")
    A(f"""
    s_mov_b64 exec, 0xffff
    s_waitcnt vmcnt(0)
    buffer_store_short v{D}, v{qT0}, {W}, s{sTmp+1} offen sc1
    buffer_store_short_d16_hi v{D}, v{qT0}, {W}, s{sTmp+1} offen offset:8 sc1
    buffer_store_short v{D+4}, v{qL16}, {W}, s{sTmp} offen offset:2048 sc1
    buffer_store_short_d16_hi v{D+4}, v{qL16}, {W}, s{sTmp} offen offset:3072 sc1
    buffer_store_short v{D+8}, v{qT0}, {W}, s{sQ2} offen sc1
    buffer_store_short_d16_hi v{D+8}, v{qT0}, {W}, s{sQ2} offen offset:8 sc1
    s_mov_b64 exec, 3
    s_waitcnt vmcnt(0)
    buffer_store_dword v{qFV}, v{qL16}, {W}, s{sKF} offen sc1
    """)
    post2(A)
    A(f"s_mov_b32 s{sPend}, {WS_BYTES}\nv_mov_b32 v{qFV}, 1")
    trace(A, 8, 10)
    A(f"s_branch {NXT}")
    A(f"{END}:")
    A("s_waitcnt vmcnt(0)")
    post2(A)
    A(f"s_cmp_lg_u32 s{sRep}, 0\ns_cbranch_scc1 {FAIL}")
    if P.get("nofinal"): A(f"s_branch {FAIL}")
    A(f"s_load_dwordx2 s[{sO}:{sO+1}], s[0:1], {KA['out']}\ns_mov_b32 s{sO+2}, {2*MB}\ns_mov_b32 s{sO+3}, 0x20000")
    FIN, NX = A.label("k_fin"), A.label("k_nx")
    A(f"s_mov_b32 s{sKey}, 0\ns_cmp_eq_u32 s{sW}, 3\ns_cselect_b32 s{sPre}, 7, 15\n{FIN}:")
    def getkey():
        Lw, Lx, Lr = A.label("k_w"), A.label("k_x"), A.label("k_r")
        sM, sI = sTmp + 6, sTmp + 7
        A(f"s_andn2_b32 s{sTmp+2}, 0xfe0, s{sRun}\ns_lshl_b32 s{sTmp+2}, s{sTmp+2}, {KSH}\ns_mov_b32 s{sTmp+3}, {F_XN + 2*KST}\nv_mov_b32 v24, {KST}")
        A(f"s_mov_b32 s{sSpin}, 0\ns_mov_b32 s{sI}, 3\nv_mov_b32 v53, s{sKey}\ns_and_b32 s{sM}, s{sPre}, 15\ns_cbranch_scc0 {Lx}\n{Lw}:")
        A(f"s_add_u32 s{sI}, s{sI}, 1\ns_and_b32 s{sI}, s{sI}, 3\ns_bitcmp1_b32 s{sM}, s{sI}\ns_cbranch_scc0 {Lw}")
        A(f"s_lshl2_add_u32 s{sTmp}, s{sI}, s{sW}\ns_lshl_b32 s{sTmp}, s{sTmp}, {KSH+7}\ns_add_u32 s{sTmp+1}, s{sTmp}, {2*KSEG}")
        for i in range(2):
            A(f"v_add_u32 v{22+i}, s{sTmp+i}, v{qLK}\nv_cmp_le_u32 vcc, s{sTmp+2}, v{22+i}\nv_cndmask_b32 v25, 0, v24, vcc\nv_add_u32 v{22+i}, v{22+i}, v25")
            A(f"buffer_load_dword v{20+i}, v{22+i}, {W}, s{sTmp+3} offen sc1")
        spin(A, FAIL)
        A(f"s_waitcnt vmcnt(0)\nv_min_u32 v52, v20, v21\nv_max3_u32 v53, v20, v21, v53\nv_cmp_eq_u32 vcc, 0, v52")
        A(f"s_cbranch_vccnz {Lw}\ns_bitset0_b32 s{sM}, s{sI}\ns_cmp_lg_u32 s{sM}, 0\ns_cbranch_scc1 {Lw}")
        for rot in (8, 4, 2, 1): A(f"v_max_u32_dpp v53, v53, v53 row_ror:{rot} row_mask:0xf bank_mask:0xf")
        for sw in ("16", "32"): A(f"v_mov_b32 v52, v53\nv_permlane{sw}_swap_b32 v53, v52\nv_max_u32 v53, v53, v52")
        A(f"{Lx}:\nds_write_b32 v{qVT}, v53 offset:256\ns_waitcnt vmcnt(0) lgkmcnt(0)\ns_barrier\nds_read_b128 v[20:23], v{qVT+1} offset:256\ns_waitcnt lgkmcnt(0)")
        A(f"v_max3_u32 v20, v20, v21, v22\nv_max_u32 v20, v20, v23\nv_readfirstlane_b32 s{sTmp}, v20")
        trace(A, 5, 10)
        A(f"s_cmp_eq_u32 s{sTmp}, s{sKey}\ns_cbranch_scc1 {FAIL}\ns_cmp_eq_u32 s{sKey}, 0\ns_mov_b32 s{sKey}, s{sTmp}\ns_cbranch_scc1 {Lr}")
        A(f"s_cmp_lg_u32 s{sHW}, 0\ns_cbranch_scc1 {Lr}\ns_lshl_b32 s{sTmp}, s{sRow}, 10\nbuffer_store_dwordx4 a[0:3], v{qL16}, s[{sO}:{sO+3}], s{sTmp} offen sc1\n{Lr}:")
        A(f"s_andn2_b32 s{sTmp}, 0xfe0, s{sRun}\ns_andn2_b32 s{sTmp+1}, 0xfe0, s{sKey}\ns_cmp_lt_u32 s{sTmp+1}, s{sTmp}\ns_cselect_b32 s{sKind}, 1, 2")
    def fin_out(XF, PKr, TM):
        A(f"s_lshl_b32 s{sTmp}, s{sRow}, 10\nbuffer_store_dwordx4 v[{PKr}:{PKr+3}], v{qL16}, s[{sO}:{sO+3}], s{sTmp} offen sc1")
    mlp(A, FAIL, getkey, sNxt)
    A(f"s_cmp_lg_u32 s{sJ}, 0\ns_cbranch_scc1 {NX}\ns_barrier")
    gather(A, FAIL, sNxt, fin_out, keep=True)
    trace(A, 6, 10)
    A(f"{NX}:\ns_add_u32 s{sNxt}, s{sNxt}, 3\ns_xor_b32 s{sPre}, s{sPre}, 31")
    getkey()
    mlp(A, FAIL, None, sNxt)
    A(f"s_cmp_lg_u32 s{sJ}, 0\ns_cbranch_scc1 {FAIL}\ns_barrier")
    gather(A, FAIL, sNxt, fin_out)
    trace(A, 6, 10)
    A(f"{FAIL}:")
```

```python
from asmlib import *
from layout import *
from common import *
from chain import Cnt, sWS, sT, sJ, sW, sC, sTmp, sLo, sHi

qL16, qL4, qT0, qT1, qFV, qT2 = range(6)
qST, qLK = 8, 9
qKA = 7
qRD = 120
qSRC = 12
ACC = 20
XB = 68
PK = 100
KEY = 116
qVT = 118
WB = dict(k=128, v=256, q=384)
def wop(m, k): return WB[m] + k * 4
def mf32(d, a, b, c): return f"v_mfma_f32_32x32x16_bf16 {v(d,16)}, {reg(a,4)}, {reg(b,4)}, {v(c,16) if c is not None else '0'}"
sLead, sI2, _, sQB, sB, sGo = range(40, 46)
sCur, sNxt, sPre, sPend, sPar, sKF, sOut, sSpin, sDm, sFk, sRun, sHW, sKey, sRow = range(46, 60)
sRep, sKind, sMode, sSrc = 60, 61, 62, 63
sG, sUp, sO = 64, 68, 72
sN2 = 76
NPL = 23
L_ML, L_PS, L_H, L_VT = 65536, 159744, 161792, 162816

def qkv_load_weights(A, n, g, first, orders, depth):
    NS = 5
    SRC, RD = 20, 22
    w_src_regs(A, qL16, SRC, 25)
    A(f"""
    s_load_dwordx2 s[{sG}:{sG+1}], s[0:1], {KA['wk']}
    s_load_dwordx2 s[{sUp}:{sUp+1}], s[0:1], {KA['wv']}
    s_load_dwordx2 s[{sT}:{sT+1}], s[0:1], {KA['wq']}
    s_mov_b32 s{sT+2}, {4*MB}
    s_mov_b32 s{sT+3}, 0x20000
    s_mov_b32 s{sG+2}, {4*MB}
    s_mov_b32 s{sG+3}, 0x20000
    s_mov_b32 s{sUp+2}, {4*MB}
    s_mov_b32 s{sUp+3}, 0x20000
    v_lshrrev_b32 v25, 2, v{n}
    v_lshrrev_b32 v26, 1, v{g}
    v_lshl_add_u32 v27, v26, 3, v25
    v_lshlrev_b32 v27, 8, v27
    v_lshl_add_u32 v26, v25, 1, v26
    v_and_b32 v25, 1, v{g}
    v_xor_b32 v26, v26, v25
    s_lshl_b32 s{sTmp}, s{sW}, 1
    v_xor_b32 v26, s{sTmp}, v26
    v_lshl_add_u32 v27, v26, 5, v27
    v_and_b32 v25, 3, v{n}
    v_lshl_add_u32 v{RD}, v25, 3, v27
    v_add_u32 v{RD+1}, 65536, v{RD}
    v_add_u32 v{RD+2}, 131072, v{RD}
    s_lshl_b32 s{sTmp+2}, s{sW}, 13
    s_lshl_b32 s{sTmp}, s{sW}, 18
    s_lshl_b32 s{sTmp+1}, s{sJ}, 8
    s_add_u32 s{sTmp}, s{sTmp}, s{sTmp+1}
    s_waitcnt lgkmcnt(0)
    """)
    srd = dict(k=sG, v=sUp, q=sT)
    LB = [A.label("q_ld") for _ in range(4)]
    if len(orders) > 1: A(f"s_cmp_eq_u32 s{sRep}, 1\ns_cbranch_scc1 {LB[1]}\ns_cmp_eq_u32 s{sRep}, 2\ns_cbranch_scc1 {LB[2]}")
    for c, order in enumerate(orders):
        A(f"{LB[c]}:")
        vm = Cnt(A, "vmcnt", 63)
        jobs = [(m, b) for m in order for b in range(4)]
        tk = {}
        def issue(i):
            m, b = jobs[i]
            A(f"s_add_u32 s{sTmp+1}, s{sTmp}, {b * 128 * 8192}")
            tk[i] = w_stage_dma(A, vm, srd[m], SRC, sTmp + 1, sTmp + 2, (i % NS) * 32768, 8)
        for i in range(depth): issue(i)
        if -1 in first: first[-1]()
        for i, (m, b) in enumerate(jobs):
            vm.wait(tk[i])
            A("s_barrier")
            if depth < NS and i + depth < len(jobs): issue(i + depth)
            base = (i % NS) * 32768
            for kl in range(8):
                for hq in range(2):
                    off = base + kl * 4096 + hq * 1024
                    A(f"ds_read_b64_tr_b16 {reg(wop(m, b*8+kl) + 2*hq, 2)}, v{RD + off // 65536} offset:{off % 65536}")
            if depth < NS: A("s_waitcnt lgkmcnt(0)")
            elif i + NS < len(jobs):
                A("s_waitcnt lgkmcnt(0)\ns_barrier")
                issue(i + NS)
        if c + 1 < len(orders): A(f"s_branch {LB[3]}")
    A(f"{LB[3]}:\ns_waitcnt lgkmcnt(0)\ns_barrier")

SLP = [0]
def spin(A, fail):
    if SLP[0]: A(f"s_sleep {SLP[0]}")
    A(f"s_add_u32 s{sSpin}, s{sSpin}, 1\ns_cmp_gt_u32 s{sSpin}, {SPIN_MAX}\ns_cbranch_scc1 {fail}")

VG, VD = 6, 7
def mlp_setup(A):
    A(f"""
    s_load_dwordx2 s[{sG}:{sG+1}], s[0:1], {KA['wg']}
    s_load_dwordx2 s[{sUp}:{sUp+1}], s[0:1], {KA['wu']}
    s_load_dwordx2 s[{sT}:{sT+1}], s[0:1], {KA['wd']}
    s_mov_b32 s{sG+2}, {512*1792*2}
    s_mov_b32 s{sUp+2}, {512*1792*2}
    s_mov_b32 s{sT+2}, {512*1792*2}
    v_lshrrev_b32 v{qT0}, 7, v{qL16}
    v_and_b32 v{qT1}, 0x70, v{qL16}
    v_mul_u32_u24 v{VG}, {16*3584}, v{qT0}
    v_add_u32 v{VG}, v{VG}, v{qT1}
    v_cmp_eq_u32 vcc, 0x70, v{qT1}
    v_mov_b32 v{qT1}, 0x7ff00000
    v_cndmask_b32 v{VG}, v{VG}, v{qT1}, vcc
    v_lshrrev_b32 v{qT0}, 8, v{qL16}
    v_mul_u32_u24 v{VD}, {14*1024}, v{qT0}
    v_and_b32 v{qT1}, 0xf0, v{qL16}
    v_add_u32 v{VD}, v{VD}, v{qT1}
    s_mul_i32 s{sTmp+8}, s{sW}, {128*3584}
    s_mul_i32 s{sTmp+1}, s{sJ}, 112
    s_add_u32 s{sTmp+8}, s{sTmp+8}, s{sTmp+1}
    s_mul_i32 s{sTmp+9}, s{sJ}, {56*1024}
    s_lshl_b32 s{sTmp+1}, s{sW}, 8
    s_add_u32 s{sTmp+9}, s{sTmp+9}, s{sTmp+1}
    s_waitcnt lgkmcnt(0)
    """)

def gu_load(A, vm, i, dst):
    srd = sUp if i % 2 else sG
    A(f"s_add_u32 s{sTmp+10}, s{sTmp+8}, {(i // 2) * 3584}")
    if dst is not None: return vm.issue(f"buffer_load_dwordx4 {v(dst, 4)}, v{VG}, s[{srd}:{srd+3}], s{sTmp+10} offen")
    t = vm.issue(f"buffer_load_dwordx4 v{VG}, s[{srd}:{srd+3}], s{sTmp+10} offen lds")
    A("s_add_u32 m0, m0, 1024")
    return t

def mlp_preload(A):
    mlp_setup(A)
    A(f"s_mul_i32 s{sTmp}, s{sW}, {NPL*1024}\ns_add_u32 m0, s{sTmp}, {L_ML}")
    vm = Cnt(A, "vmcnt", 63)
    for i in range(NPL): gu_load(A, vm, i, None)

def mlp(A, FAIL, getkey, inst, bx=32768, mid=None, mid2=None):
    W = f"s[{sWS}:{sWS+3}]"
    AOP, MSK, DG, XP, RING, TG = 20, 24, 28, 52, 60, 36
    LB = [36, 40, 44, qSRC, qSRC + 4, qRD, qRD + 4]
    DR = [RING + 4 + 4 * j for j in range(13)] + [48]
    HR = list(range(36, 48)) + [52, 53]
    vm = Cnt(A, "vmcnt", 63)
    tok = {}
    def xload():
        A(f"""
        s_andn2_b32 s{sRow}, 0xfff, s{sKey}
        s_lshl_b32 s{sTmp}, s{sKind}, 21
        s_lshl_b32 s{sTmp+1}, s{sRow}, 10
        s_add_u32 s{sTmp}, s{sTmp}, s{sTmp+1}
        s_lshl_b32 s{sTmp+1}, s{sW}, 8
        s_add_u32 s{sTmp}, s{sTmp}, s{sTmp+1}
        s_add_u32 s{sTmp}, s{sTmp}, {XB_}
        v_lshrrev_b32 v{qT2}, 7, v{qL16}
        v_lshlrev_b32 v{qT2}, 5, v{qT2}
        """)
        for i in range(2): t = vm.issue(f"buffer_load_dwordx4 v[{XP+4*i}:{XP+4*i+3}], v{qT2}, {W}, s{sTmp} offen offset:{16*i} sc1")
        return t
    if getkey is None: tx = xload()
    mlp_setup(A)
    A(f"s_xor_b32 s{sTmp+11}, s{sPar}, {bx}\ns_add_u32 s{sTmp+11}, s{sTmp+11}, s{sDm}\ns_mov_b32 m0, s{sTmp+11}")
    for i in range(NPL, 31): tok[i] = gu_load(A, vm, i, None)
    tok[31] = gu_load(A, vm, 31, RING)
    for j in range(14):
        if j == 1 and mid: tmid = mid(vm)
        tok[32 + j] = vm.issue(f"buffer_load_dwordx4 {v(DR[j], 4)}, v{VD}, s[{sT}:{sT+3}], s{sTmp+9} offen offset:{(j%4)*1024}")
        if j % 4 == 3: A(f"s_add_u32 s{sTmp+9}, s{sTmp+9}, 4096")
    if getkey is not None:
        getkey(); vm.reset()
        tx = xload()
    A(f"s_mov_b32 vcc_lo, 0xaaaaaaaa\ns_mov_b32 vcc_hi, 0xaaaaaaaa\nv_mov_b32 v{qT1}, 0xffff\nv_mov_b32 v{MSK}, 0xffff0000\nv_cndmask_b32 v{qT1}, v{qT1}, v{MSK}, vcc")
    for r in range(4):
        A(f"s_mov_b32 vcc_lo, {hex(0x03030303 << (2*r))}\ns_mov_b32 vcc_hi, {hex(0x03030303 << (2*r))}\nv_cndmask_b32 v{MSK+r}, 0, v{qT1}, vcc")
    A(f"s_mov_b32 s{sTmp+4}, 0x01000100\ns_mov_b32 s{sTmp+5}, 0x03020302")
    A(f"s_mul_i32 s{sTmp}, s{sW}, {NPL*1024}\ns_add_u32 s{sTmp}, s{sTmp}, {L_ML}\nv_add_u32 v{qT2}, s{sTmp}, v{qL16}\nv_add_u32 v{qT0}, s{sTmp+11}, v{qL16}")
    ld = Cnt(A, "lgkmcnt", 15); lt = {}
    def lrd(i):
        if i >= 31: return
        if i >= NPL: vm.wait(tok[i])
        lt[i] = ld.issue(f"ds_read_b128 {v(LB[i % 7], 4)}, v{qT2 if i < NPL else qT0} offset:{(i % NPL)*1024}")
    for i in range(7): lrd(i)
    vm.wait(tx)
    if mid:
        vm.wait(tmid); mid2(vm)
    for j in range(16):
        A(f"v_perm_b32 v{qT1}, v{XP+j//2}, v{XP+j//2}, s{sTmp+4+j%2}")
        for r in range(4): A(f"v_and_b32 v{AOP+r}, v{MSK+r}, v{qT1}")
        if j < 15: ld.wait(lt[2 * j + 1])
        else: ld.wait(lt[30]); vm.wait(tok[31])
        for m in range(2):
            i = 2 * j + m
            A(mfd(DG + 4 * m, AOP, LB[i % 7] if i < 31 else RING, DG + 4 * m if j else None))
            lrd(i + 7)
    A(f"""
    v_lshrrev_b32 v{qT0}, 8, v{qL16}
    v_and_b32 v{qT1}, 0xf0, v{qL16}
    v_lshlrev_b32 v{qT1}, 1, v{qT1}
    v_and_b32 v{qT2}, 1, v{qT0}
    v_lshl_add_u32 v{qT2}, v{qT2}, 4, v{qT1}
    v_add_u32 v{qT2}, s{sTmp+11}, v{qT2}
    s_mov_b32 exec_lo, 0x00ff00ff
    s_mov_b32 exec_hi, 0xff00ff00
    ds_write_b128 v{qT2}, v[{DG}:{DG+3}]
    ds_write_b128 v{qT2}, v[{DG+4}:{DG+7}] offset:512
    s_mov_b64 exec, -1
    s_xor_b32 s{sTmp}, s{sPar}, {bx}
    v_add_u32 v{qT2}, s{sTmp}, v{qL4}
    v_lshl_add_u32 v{qT1}, v{qT0}, 4, v{qT1}
    s_waitcnt lgkmcnt(0)
    s_barrier
    """)
    for w in range(4):
        for m in range(2): A(f"ds_read2st64_b32 v[{(TG, XP)[m]+2*w}:{(TG, XP)[m]+2*w+1}], v{qT2} offset0:{w*32+m*2} offset1:{w*32+m*2+1}")
    A("s_waitcnt lgkmcnt(0)")
    for k in (4, 2, 1):
        for q in (TG, XP):
            for i in range(k): A(f"v_add_f32 v{q+i}, v{q+i}, v{q+k+i}")
    rnd(A, TG); rnd(A, XP)
    A(f"v_mul_f32 v{TG+4}, {hex(f32bits(-math.log2(math.e)))}, v{TG}\nv_exp_f32 v{TG+4}, v{TG+4}\nv_add_f32 v{TG+4}, 1.0, v{TG+4}\nv_rcp_f32 v{TG+4}, v{TG+4}")
    A(f"v_mul_f32 v{TG}, v{TG}, v{TG+4}")
    rnd(A, TG)
    A(f"v_mul_f32 v{TG}, v{TG}, v{XP}\nv_cvt_pk_bf16_f32 v{TG}, v{TG}, v{TG}")
    A(f"s_lshl_b32 s{sTmp}, s{sW}, 8\ns_add_u32 s{sTmp}, s{sTmp}, {L_H}\nv_add_u32 v{qT2}, s{sTmp}, v{qL4}\nds_write_b32 v{qT2}, v{TG}")
    A(f"v_mul_u32_u24 v{qT2}, 56, v{qT0}\nv_add_u32 v{qT2}, s{sTmp}, v{qT2}")
    for q in range(7): A(f"ds_read_b64 v[{HR[2*q]}:{HR[2*q]+1}], v{qT2} offset:{8*q}")
    A("s_waitcnt lgkmcnt(0)")
    for j in range(14):
        a = (AOP, DG + 4)[j % 2]
        for r in range(4): A(f"v_and_b32 v{a+r}, v{MSK+r}, v{HR[j]}")
        vm.wait(tok[32 + j])
        A(mfd(DG, a, DR[j], DG if j else None))
    A(f"""
    v_lshrrev_b32 v{qT1}, 1, v{qT1}
    s_lshl_b32 s{sTmp}, s{inst}, 7
    s_add_u32 s{sTmp}, s{sTmp}, s{sHW}
    s_lshl_b32 s{sTmp}, s{sTmp}, 8
    s_add_u32 s{sTmp}, s{sTmp}, {MLPY - 64*32768}
    v_cvt_pk_bf16_f32 v{DG}, v{DG}, v{DG+1}
    v_cvt_pk_bf16_f32 v{DG+1}, v{DG+2}, v{DG+3}
    v_min_u32 v{DG}, -2, v{DG}
    v_min_u32 v{DG+1}, -2, v{DG+1}
    s_mov_b32 exec_hi, 0
    buffer_store_dwordx2 v[{DG}:{DG+1}], v{qT1}, {W}, s{sTmp} offen sc1
    s_mov_b32 exec_hi, -1
    """)

def gather(A, FAIL, inst, finish, keep=False, between=None, after=None, probe=0):
    W = f"s[{sWS}:{sWS+3}]"
    DONE, L1 = A.label("m_done"), A.label("m_w")
    SEL, S0, XR, YR, XF, YF, RB = 68, 72, 108, 112, 80, 88, 20
    A(f"""
    s_lshl_b32 s{sTmp}, s{sKind}, 21
    s_lshl_b32 s{sTmp+1}, s{sRow}, 10
    s_add_u32 s{sTmp}, s{sTmp}, s{sTmp+1}
    s_add_u32 s{sTmp+1}, s{sTmp}, {XA}
    s_add_u32 s{sTmp+2}, s{sTmp}, {XB_}
    s_lshl_b32 s{sTmp}, s{inst}, 7
    s_add_u32 s{sTmp}, s{sTmp}, s{sW}
    s_lshl_b32 s{sTmp}, s{sTmp}, 8
    s_add_u32 s{sTmp}, s{sTmp}, {MLPY - 64*32768}
    v_lshrrev_b32 v{qT0}, 8, v{qL16}
    v_and_b32 v{qT1}, 0xf0, v{qL16}
    v_lshl_add_u32 v{qT2}, v{qT0}, 10, v{qT1}
    buffer_load_dwordx4 v[{XR}:{XR+3}], v{qL16}, {W}, s{sTmp+1} offen sc1
    buffer_load_dwordx4 v[{YR}:{YR+3}], v{qL16}, {W}, s{sTmp+2} offen sc1
    s_mov_b32 s{sSpin}, 0
    """)
    if between: between()
    if probe:
        L0, L3 = A.label("m_p"), A.label("m_q")
        A(f"s_cmp_lg_u32 s{sW}, 0\ns_cbranch_scc1 {L3}\nv_lshlrev_b32 v{XF}, 6, v{qL16}\ns_mov_b32 exec_hi, 0\n{L0}:\nbuffer_load_dword v{XF+1}, v{XF}, {W}, s{sTmp} offen sc1")
        spin(A, FAIL)
        A(f"s_waitcnt vmcnt(0)\nv_cmp_eq_u32 vcc, -1, v{XF+1}\ns_cbranch_vccnz {L0}\ns_mov_b32 exec_hi, -1\n{L3}:\ns_barrier")
    A(f"{L1}:")
    for p in range(8):
        A(f"s_add_u32 s{sTmp+1}, s{sTmp}, {p*4096}\nbuffer_load_dwordx4 v[{RB+4*p}:{RB+4*p+3}], v{qT2}, {W}, s{sTmp+1} offen sc1")
    spin(A, FAIL)
    selmats(A, SEL, 4, S0)
    for p in range(8):
        r = RB + 4 * p
        A(f"s_waitcnt vmcnt({7-p})")
        A(mfd(S0, SEL, r, S0 if p else None))
        A(f"v_max3_u32 v{XF}, v{r}, v{r+1}, " + (f"v{XF}" if p else "0"))
        A(f"v_max3_u32 v{XF}, v{r+2}, v{r+3}, v{XF}")
    A(f"v_cmp_eq_u32 vcc, -1, v{XF}\ns_cbranch_vccnz {L1}")
    A(f"""
    v_lshlrev_b32 v{qT1}, 1, v{qT1}
    v_lshl_add_u32 v{qT1}, v{qT0}, 4, v{qT1}
    s_lshl_b32 s{sTmp}, s{sW}, 9
    s_add_u32 s{sTmp}, s{sTmp}, {L_PS}
    v_add_u32 v{qT1}, s{sTmp}, v{qT1}
    s_mov_b32 exec_hi, 0
    ds_write_b128 v{qT1}, v[{S0}:{S0+3}]
    s_mov_b32 exec_hi, -1
    v_lshlrev_b32 v{qT1}, 1, v{qL16}
    v_add_u32 v{qT1}, {L_PS}, v{qT1}
    """)
    if after: after()
    unpack(A, XR, XF); unpack(A, YR, YF)
    TM = XR
    A(f"""
    s_waitcnt lgkmcnt(0)
    s_barrier
    s_cmp_lg_u32 s{sW}, 0
    s_cbranch_scc1 {DONE}
    ds_read_b128 v[{S0}:{S0+3}], v{qT1}
    ds_read_b128 v[{S0+4}:{S0+7}], v{qT1} offset:16
    s_and_b32 s{sTmp+3}, s{sKey}, 0xffff0000
    s_xor_b32 s{sTmp+1}, s{sTmp+3}, 0x80000000
    s_xor_b32 s{sTmp+2}, s{sTmp+3}, 0xffff0000
    s_bitcmp1_b32 s{sTmp+3}, 31
    s_cselect_b32 s{sTmp+3}, s{sTmp+1}, s{sTmp+2}
    v_mov_b32 v{TM}, s{sTmp+3}
    v_mul_f32 v{TM}, {hex(f32bits(-math.log2(math.e)))}, v{TM}
    v_exp_f32 v{TM}, v{TM}
    v_add_f32 v{TM}, 1.0, v{TM}
    v_rcp_f32 v{TM}, v{TM}
    """)
    rnd(A, TM)
    if keep:
        for i in range(8): A(f"v_add_f32 v{RB+i}, v{XF+i}, v{YF+i}")
        pack(A, RB, RB + 8)
        for i in range(4): A(f"v_accvgpr_write_b32 a{i}, v{RB+8+i}")
    A("s_waitcnt lgkmcnt(0)")
    for i in range(8): rnd(A, S0 + i)
    for i in range(8): A(f"v_mul_f32 v{S0+i}, v{S0+i}, v{TM}")
    for i in range(8): rnd(A, S0 + i)
    for i in range(8): A(f"v_add_f32 v{S0+i}, v{S0+i}, v{YF+i}")
    for i in range(8): rnd(A, S0 + i)
    for i in range(8): A(f"v_add_f32 v{XF+i}, v{XF+i}, v{S0+i}")
    pack(A, XF, YR); unpack(A, YR, XF)
    finish(XF, YR, RB)
    A(f"{DONE}:")

def qkv_role(A, P, first={}, after_weights=None, before_mlp=None, hold=None):
    W = f"s[{sWS}:{sWS+3}]"
    n, g = 6, 7
    A(f"""
    v_and_b32 v19, 63, v0
    v_and_b32 v{n}, 15, v19
    v_lshrrev_b32 v{g}, 4, v19
    v_lshlrev_b32 v{qL4}, 2, v19
    v_lshlrev_b32 v{qL16}, 4, v19
    v_lshlrev_b32 v{qLK}, {KSH}, v19
    s_mov_b32 s{sC}, {hex(f32bits(128 ** -0.5 * math.log2(math.e)))}
    s_lshl_b32 s{sHW}, s{sJ}, 2
    s_add_u32 s{sHW}, s{sHW}, s{sW}
    """)
    def tile_addr(par=False):
        A(f"v_lshrrev_b32 v96, 9, v{qL16}\nv_lshlrev_b32 v96, 4, v96\nv_and_b32 v97, 0xf0, v{qL16}\nv_xor_b32 v96, v96, v97\nv_and_b32 v97, 0x1f0, v{qL16}\nv_lshl_add_u32 v96, v97, 6, v96")
        if par: A(f"v_add_u32 v96, s{sPar}, v96")
        for cl in range(8): A(f"v_xor_b32 v{qRD+cl}, {cl*32}, v96")
        A(f"s_and_b32 s{sTmp}, s{sW}, 1\ns_lshl_b32 s{sTmp}, s{sTmp}, 7\nv_xor_b32 v96, s{sTmp}, v{qL16}")
        for i in range(8): A(f"v_xor_b32 v{qSRC+i}, {i*16}, v96")
    A(f"v_and_b32 v24, 1, v{g}\nv_lshlrev_b32 v24, 10, v24\nv_lshl_add_u32 v24, v{n}, 4, v24\nv_lshrrev_b32 v25, 1, v{g}\nv_lshl_add_u32 v{qST}, v25, 8, v24")
    tile_addr()
    A(f"s_lshl_b32 s{sTmp}, s{sW}, 2\ns_add_u32 s{sTmp}, s{sTmp}, {L_VT}\nv_lshrrev_b32 v24, 7, v{qL16}\nv_lshl_add_u32 v{qVT}, v24, 4, s{sTmp}")
    A(f"v_and_b32 v24, 48, v{qL16}\nv_add_u32 v{qVT+1}, {L_VT}, v24")
    qkv_load_weights(A, n, g, first, P.get('orders', ('kvq', 'vqk', 'qkv')), P.get('dep', 5))
    if after_weights: after_weights()
    def key_addr():
        A(f"v_lshrrev_b32 v{qKA}, 7, v{qL16}\nv_lshlrev_b32 v{qKA}, {KSH+5}, v{qKA}\nv_and_b32 v{qT0}, {(8 << KSH) - 1}, v{qLK}\ns_lshl_b32 s{sTmp}, s{sW}, {KSH+3}")
        A(f"v_add3_u32 v{qKA}, v{qKA}, v{qT0}, s{sTmp}\nv_mov_b32 v{KEY}, 0")
    key_addr()
    N0, NPRE = P.get("n0", 6), P.get("npre", 3)
    A(f"""
    s_mov_b32 s{sNxt}, s{sRep}
    s_add_u32 s{sN2}, s{sRep}, 3
    s_add_u32 s{sI2}, s{sRep}, 64
    s_mov_b32 s{sLead}, {3 * N0}
    s_mov_b32 s{sPre}, 0
    s_mov_b32 s{sPend}, {WS_BYTES}
    s_mov_b32 s{sQB}, {WS_BYTES}
    s_mov_b32 s{sPar}, 32768
    s_mov_b32 s{sRun}, 1
    s_mov_b32 s{sKind}, 0
    s_mov_b32 s{sMode}, 0
    s_lshl_b32 s{sDm}, s{sW}, 13
    """)
    SLOW, END, HAVE, POLL, FAIL, PATCH, NOPRE, FORK, COLD = [A.label("q_" + x) for x in
        ("slow", "end", "have", "poll", "fail", "patch", "nopre", "fork", "cold")]
    FORKW, NXT = A.label("q_forkw"), A.label("q_nxt")
    MF = P.get("mfirst", 1)
    CE = [A.label("q_c0"), A.label("q_c1")]; WE = [A.label("q_w0"), A.label("q_w1")]
    def post(A, off, val):
        A(f"s_mov_b64 exec, 1\nbuffer_store_dword v{val}, off, {W}, s{off} sc1\ns_mov_b64 exec, -1")
    def post2(A):
        A(f"s_mov_b64 exec, 3\nbuffer_store_dword v{qFV}, v{qL16}, {W}, s{sPend} offen sc1\ns_mov_b64 exec, -1")
    def key_loads(A):
        A.append(("grp", [f"s_cmp_lt_u32 s{sNxt}, 64", f"s_cselect_b32 s{sTmp}, 2, 0"]))
        A(f"s_add_u32 s{sTmp}, s{sTmp}, s{sNxt}\ns_lshl_b32 s{sTmp}, s{sTmp}, {KSH+5}\ns_add_u32 s{sTmp}, s{sTmp}, {F_XN - 2*KSEG}")
        A.append(("grp", ["s_mov_b64 exec, 0xffffff", f"buffer_load_dword v{KEY}, v{qKA}, {W}, s{sTmp} offen sc1", "s_mov_b64 exec, -1"]))
    def key_eval(A):
        A(f"v_cmp_eq_u32 vcc, 0, v{KEY}\nv_max_u32_dpp v{KEY+1}, v{KEY}, v{KEY} quad_perm:[1,0,3,2] row_mask:0xf bank_mask:0xf")
        A.append(("grp", [f"s_and_b32 s{sPre}, vcc_lo, 0xffffff", f"s_cselect_b32 s{sPre}, 0, -1"]))
        A(f"v_max_u32_dpp v{KEY+1}, v{KEY+1}, v{KEY+1} quad_perm:[2,3,0,1] row_mask:0xf bank_mask:0xf\ns_nop 1")
        A(f"v_max_u32_dpp v{KEY+1}, v{KEY+1}, v{KEY+1} row_half_mirror row_mask:0xf bank_mask:0xf\nv_and_b32 v{KEY+1}, s{sPre}, v{KEY+1}")
    def vote_eval(A, V):
        A(f"v_min3_u32 v{V+4}, v{V}, v{V+1}, v{V+2}\nv_max3_u32 v{V}, v{V}, v{V+1}, v{V+2}\nv_min_u32 v{V+4}, v{V+4}, v{V+3}\nv_max_u32 v{V}, v{V}, v{V+3}")
        A(f"v_readfirstlane_b32 s{sGo}, v{V+4}")
        for i in range(3): A(f"v_readlane_b32 s{sTmp+2+i}, v{V}, {i}")
    def fold(A):
        for i in range(3):
            A(f"s_cmp_gt_u32 s{sTmp+2+i}, s{sRun}\ns_cselect_b32 s{sTmp}, s{sLead}, 0\ns_max_u32 s{sRun}, s{sRun}, s{sTmp+2+i}")
            if i == 2: A(f"s_add_u32 s{sN2}, s{sNxt}, s{sLead}\ns_add_u32 s{sI2}, s{sNxt}, 3\ns_sub_u32 s{sN2}, s{sN2}, 64")
            A(f"s_cmp_gt_u32 s{sTmp}, {P.get('lmin', 12)}")
            if i == 2: A(f"s_cselect_b32 s{sN2}, 64, s{sN2}")
            A(f"s_subb_u32 s{sLead}, s{sLead}, 0")
        A(f"s_cmp_lt_u32 s{sN2}, 64\ns_cselect_b32 s{sN2}, s{sN2}, s{sI2}\ns_cmp_lg_u32 s{sTmp}, 0")
    def dma(A, sid):
        A(f"s_and_b32 s{sSrc}, s{sid}, 127\ns_lshl_b32 s{sSrc}, s{sSrc}, 15\ns_xor_b32 s{sTmp+1}, s{sPar}, 32768")
        A(f"s_add_u32 m0, s{sTmp+1}, s{sDm}\ns_add_u32 s{sSrc}, s{sSrc}, s{sDm}\ns_add_u32 s{sSrc}, s{sSrc}, {XN}")
        for i in range(8):
            if i == 4: A(f"s_add_u32 m0, m0, 4096\ns_add_u32 s{sSrc}, s{sSrc}, 4096")
            A(f"buffer_load_dwordx4 v{qSRC+i}, {W}, s{sSrc} offen offset:{(i%4)*1024} sc1 lds")
    def advance(A):
        A.append(("grp", [f"s_add_u32 s{sN2}, s{sNxt}, 3", f"s_cmp_lt_u32 s{sN2}, {3 * N0}", f"s_cselect_b32 s{sN2}, s{sN2}, s{sI2}"]))
    def epi(a0, pk, base, off, scale):
        f = L()
        if scale:
            for r in range(16): f(f"v_mul_f32 v{a0+r}, s{sC}, v{a0+r}")
        for p in range(2):
            for d, r in enumerate((4*p, 4*p+2, 4*p+8, 4*p+10)): f(f"v_cvt_pk_bf16_f32 v{pk+4*p+d}, v{a0+r}, v{a0+r+1}")
            f(f"buffer_store_dwordx4 v[{pk+4*p}:{pk+4*p+3}], v{qST}, {W}, s{base} offen offset:{off+p*512} sc1")
        return f
    def emit(items):
        for x in items:
            if isinstance(x, str): A(x)
            else:
                for y in x[1]: A(y)
    NW_ = 3
    def rdtxt(i, par):
        k = i % 32
        r = XB + (i % 8) * 4
        return f"ds_read_b128 v[{r}:{r+3}], v{qRD+k%8} offset:{par*32768+(k//8)*256}"
    steps = [(m, k, k) for k in range(32) for m in "kv"] + [("q", k, 32 + k) for k in range(32)]
    last_use = {f: i for i, (_, _, f) in enumerate(steps)}
    def block(par):
        ld = Cnt(A, "lgkmcnt", 15)
        A(f"{CE[par]}:")
        tok = {}
        for i in range(NW_): tok[i] = ld.issue(rdtxt(i, par))
        A(f"{WE[par]}:")
        trace(A, 2, 10, sNxt)
        trace_clk(A, 10)
        f0 = L(); f0(f"s_mov_b32 s{sCur}, s{sNxt}\ns_mov_b32 s{sNxt}, s{sN2}")
        f0(f"s_lshl_b32 s{sOut}, s{sCur}, 7\ns_add_u32 s{sOut}, s{sOut}, s{sHW}\ns_lshl_b32 s{sB}, s{sOut}, 12\ns_add_u32 s{sB}, s{sB}, {KV}")
        f0 += epi(ACC + 32, PK, sQB, 0, False)
        f0(f"s_lshl_b32 s{sQB}, s{sOut}, 11\ns_add_u32 s{sQB}, s{sQB}, {QX}\ns_lshl_b32 s{sKF}, s{sOut}, 5\ns_add_u32 s{sKF}, s{sKF}, {F_KV}")
        f0(f"s_lshr_b32 s{sFk}, s{sNxt}, 7\ns_sub_u32 s{sTmp+1}, s{sNxt}, s{sRep}")
        f0.append(("grp", [f"s_cmp_eq_u32 s{sTmp+1}, {3*NPRE}", f"s_cselect_b32 s{sFk}, 1, s{sFk}"]))
        if hold: f0.append(("grp", [f"s_cmp_eq_u32 s{sTmp+1}, {3*P.get('hat', 1)}", f"s_cselect_b32 s{sFk}, 1, s{sFk}"]))
        advance(f0)
        fk = L(); key_loads(fk)
        f1 = L(); f1("s_waitcnt vmcnt(0)"); post2(f1); key_eval(f1)
        f1.append(("grp", [f"s_cmp_lg_u32 s{sPre}, 0", f"s_cselect_b32 s{sTmp+2}, s{sNxt}, s{sCur}"]))
        fd = L(); dma(fd, sTmp + 2)
        if P.get("oob"): fd.insert(6, ("grp", [f"s_cmp_lg_u32 s{sPre}, 0", f"s_cselect_b32 s{sSrc}, s{sSrc}, {WS_BYTES}", f"s_cselect_b32 m0, m0, 0x28000"]))
        f1 += fd
        f1(f"s_mov_b32 s{sPend}, s{sKF}")
        f1.append(("ds", f"ds_write_b32 v{qVT}, v{KEY+1} offset:{par*128}"))
        ek = epi(ACC, PK + 8, sB, 0, True)
        fills = {0: f0, P.get("p0", 12): fk, P.get("p1", 38): f1, 65: ek[:6] + epi(ACC + 16, PK, sB, 2048, False) + ek[6:]}
        q = []
        def fill(budget, vmok):
            while q and budget > 0:
                x = q[0]
                if not isinstance(x, str):
                    q.pop(0)
                    if x[0] == "ds": ld.issue(x[1]); budget -= 1
                    else:
                        for y in x[1]: A(y)
                        budget -= len(x[1])
                    continue
                if x.startswith("buffer_"):
                    if not vmok: break
                    vmok = False; budget -= 2
                budget -= 1
                A(q.pop(0))
                if x.startswith("s_mov_b64 exec, 3"):
                    A(q.pop(0)); A(q.pop(0)); budget -= 3
        nrd = NW_
        BAR = 90
        ve = L(); vote_eval(ve, PK)
        for i, (m, k, f) in enumerate(steps):
            a0 = ACC + 16 * "kvq".index(m)
            q += fills.get(i, [])
            if i == BAR:
                assert not q and nrd == 64
                A("s_waitcnt vmcnt(4) lgkmcnt(0)\ns_barrier"); ld.reset()
                tv = ld.issue(f"ds_read_b128 v[{PK}:{PK+3}], v{qVT+1} offset:{par*128}")
            elif i % 2 == 0 and i < BAR: ld.wait(tok[steps[i + 1][2]])
            x = XB + (f % 8) * 4
            cc = a0 if k else None
            A(mf32(a0, x, wop(m, k), cc) if m == "v" else mf32(a0, wop(m, k), x, cc))
            want = steps[min(95, i + 6 + max(0, i - 83))][2] + 1
            b = 6
            while nrd < want and (nrd < 8 or last_use[nrd - 8] <= i):
                tok[nrd] = ld.issue(rdtxt(nrd, par)); nrd += 1; b -= 1
            if BAR <= i < BAR + NW_: ld.issue(rdtxt(i - BAR, par ^ 1))
            if i == BAR + 1: A(f"s_xor_b32 s{sPar}, s{sPar}, 32768")
            if i == BAR + 3:
                ld.wait(tv); emit(ve[:5])
            if i == BAR + 4:
                emit(ve[5:]); A(f"s_cmp_gt_u32 s{sFk}, 0\ns_cselect_b32 s{sGo}, 0, s{sGo}")
            if i == P.get("pk", BAR + 2):
                LZ = A.label("q_lz")
                if P.get("lazy", 1): A(f"s_sub_u32 s{sTmp}, s{sCur}, 3\ns_cmp_lt_u32 s{sTmp}, 61\ns_cbranch_scc1 {LZ}")
                A("s_waitcnt vmcnt(0)"); post(A, sKF, qFV)
                A(f"{LZ}:")
            fill(b, i % 2 == 0 or i >= 64)
        A(f"s_cmp_eq_u32 s{sGo}, 0\ns_cbranch_scc1 {SLOW}\ns_cmp_lt_u32 s{sNxt}, 64\ns_cbranch_scc1 {WE[par ^ 1]}")
        fold(A)
        if MF: A(f"s_cbranch_scc0 {WE[par ^ 1]}\ns_branch {FORKW}")
        else: A(f"s_cselect_b32 s{sMode}, 1, 0\ns_branch {WE[par ^ 1]}")
    A(f"s_mov_b32 s{sPar}, 0\nv_mov_b32 v{qFV}, 1")
    A(f"{SLOW}:")
    trace(A, 1, 10)
    emit(epi(ACC + 32, PK, sQB, 0, False))
    A(f"""
    s_mov_b32 s{sQB}, {WS_BYTES}
    s_xor_b32 s{sPar}, s{sPar}, 32768
    {NXT}:
    s_cmp_ge_u32 s{sNxt}, 128
    s_cbranch_scc1 {END}
    s_cmp_lg_u32 s{sPre}, 0
    s_cbranch_scc1 {HAVE}
    s_mov_b32 s{sSpin}, 0
    {POLL}:
    """)
    f = L(); key_loads(f); emit(f)
    spin(A, FAIL)
    A("s_waitcnt vmcnt(0)")
    post2(A)
    A(f"s_mov_b32 s{sPend}, {WS_BYTES}\nv_cmp_eq_u32 vcc, 0, v{KEY}\ns_nop 0\ns_and_b32 s{sTmp}, vcc_lo, 0xffffff\ns_cbranch_scc1 {POLL}")
    dma(A, sNxt)
    f = L(); key_eval(f); emit(f)
    A(f"""
    {HAVE}:
    ds_write_b32 v{qVT}, v{KEY+1} offset:256
    s_xor_b32 s{sPar}, s{sPar}, 32768
    s_waitcnt lgkmcnt(0)
    s_barrier
    ds_read_b128 v[{PK+8}:{PK+11}], v{qVT+1} offset:256
    s_cmp_lt_u32 s{sNxt}, 64
    s_cbranch_scc1 {NOPRE}
    s_waitcnt lgkmcnt(0)
    """)
    vote_eval(A, PK + 8)
    fold(A)
    A((f"s_cbranch_scc1 {FORK}" if MF else f"s_cselect_b32 s{sMode}, 1, 0") + f"\n{NOPRE}:")
    if hold:
        NH = A.label("q_nh")
        A(f"s_sub_u32 s{sTmp}, s{sNxt}, s{sRep}\ns_cmp_lg_u32 s{sTmp}, {3*P.get('hat', 1)}\ns_cbranch_scc1 {NH}\ns_waitcnt vmcnt(0)")
        post2(A); A(f"s_mov_b32 s{sPend}, {WS_BYTES}")
        hold(); A(f"{NH}:")
    A(f"s_waitcnt vmcnt(0)\ns_sub_u32 s{sTmp}, s{sNxt}, s{sRep}\ns_cmp_lg_u32 s{sTmp}, {3*NPRE}\ns_cbranch_scc1 {COLD}")
    if before_mlp: before_mlp()
    mlp_preload(A)
    key_addr()
    A(f"{COLD}:\ns_waitcnt lgkmcnt(0)\ns_barrier\ns_cmp_lg_u32 s{sPar}, 0\ns_cbranch_scc1 {CE[1]}")
    block(0); block(1)
    sQ2 = 77
    def mini(lo, hi, cut=None, mid=None):
        ld = Cnt(A, "lgkmcnt", 15); tok = {}
        f0_ = steps[lo][2]; nrd = f0_
        for _ in range(4): tok[nrd] = ld.issue(rdtxt(nrd, 0)); nrd += 1
        for i in range(lo, hi):
            m, k, f = steps[i]
            a0 = ACC + 16 * "kvq".index(m)
            if i % 2 == 0: ld.wait(tok[steps[i + 1][2]])
            x = XB + (f % 8) * 4
            A(mf32(a0, x, wop(m, k), a0 if k else None) if m == "v" else mf32(a0, wop(m, k), x, a0 if k else None))
            want = steps[min(hi - 1, i + 6)][2] + 1
            while nrd < want: tok[nrd] = ld.issue(rdtxt(nrd, 0)); nrd += 1
    def both(vm, items, b1, b2):
        for x in items:
            if x.startswith("buffer_"): t = vm.issue(x); t = vm.issue(x.replace(f" s{b1} offen", f" s{b2} offen"))
            else: A(x)
        return t
    A(f"{FORKW}:")
    emit(epi(ACC + 32, PK, sQB, 0, False))
    A(f"s_mov_b32 s{sQB}, {WS_BYTES}\ns_waitcnt lgkmcnt(0)\n{FORK}:")
    A(f"s_mov_b32 s{sKey}, s{sRun}\ns_mov_b32 s{sCur}, s{sNxt}\ns_mov_b32 s{sNxt}, s{sN2}")
    f = L(); advance(f); emit(f)
    trace(A, 3, 10, sCur)
    def kv_part(vm):
        for cl in range(8): A(f"v_add_u32 v{qRD+cl}, s{sPar}, v{qRD+cl}")
        A(f"s_lshl_b32 s{sOut}, s{sCur}, 7\ns_add_u32 s{sOut}, s{sOut}, s{sHW}\ns_lshl_b32 s{sQ2}, s{sOut}, 12\ns_add_u32 s{sB}, s{sQ2}, {KV + 32*MB}\ns_add_u32 s{sQ2}, s{sQ2}, {KV}")
        A(f"s_lshl_b32 s{sKF}, s{sOut}, 5\ns_add_u32 s{sKF}, s{sKF}, {F_KV}\ns_waitcnt vmcnt({len(vm.q)})\ns_barrier")
        f = L(); post2(f); A(f[0]); vm.issue(f[1]); A(f[2])
        A(f"v_mov_b32 v{qFV}, 2\ns_mov_b32 s{sPend}, s{sKF}")
        mini(0, 64)
        e = epi(ACC, PK + 8, sQ2, 0, True) + epi(ACC + 16, PK, sQ2, 2048, False)
        for x in e:
            if x.startswith("buffer_"): t = vm.issue(x)
            else: A(x)
        for x in e:
            if x.startswith("buffer_"): vm.issue(x.replace(f" s{sQ2} offen", f" s{sB} offen"))
        return t
    def kv_flag(vm):
        f = L(); post(f, sKF, qFV); A(f[0]); vm.issue(f[1]); A(f[2])
        trace(A, 2, 10, sCur)
    mlp(A, FAIL, None, sCur, mid=kv_part, mid2=kv_flag)
    key_addr(); tile_addr(True)
    trace(A, 4, 10)
    def q_rest():
        mini(64, 96)
        A(f"s_lshl_b32 s{sTmp+2}, s{sOut}, 11\ns_add_u32 s{sQ2}, s{sTmp+2}, {QX + 16*MB}\ns_add_u32 s{sTmp+2}, s{sTmp+2}, {QX}\ns_add_u32 s{sKF}, s{sKF}, {256*KB}")
        for x in epi(ACC + 32, PK, 0, 0, False):
            if not x.startswith("buffer_"): A(x)
    def fin_fork(XF, PKr, TM):
        A(f"s_lshl_b32 s{sTmp+1}, s{sCur}, 5\ns_add_u32 s{sTmp+1}, s{sTmp+1}, s{sJ}\ns_lshl_b32 s{sTmp+1}, s{sTmp+1}, 10\ns_add_u32 s{sTmp+1}, s{sTmp+1}, {XM - 64*32768}")
        A(f"buffer_store_dwordx4 v[{PKr}:{PKr+3}], v{qL16}, {W}, s{sTmp+1} offen sc1")
        layernorm1(A, XF, None, TM + 12, TM)
        A(f"v_lshl_add_u32 v{qT1}, v{qL16}, 2, s{sPar}\nv_mov_b64 v[{TM}:{TM+1}], 0\nv_mov_b64 v[{TM+4}:{TM+5}], 0\nv_mov_b64 v[{TM+8}:{TM+9}], 0")
        for h in range(2):
            A(f"v_mov_b32 v{TM+2+4*h}, v{TM+12+h}\nv_mov_b32 v{TM+3+4*h}, v{TM+14+h}")
        for h in range(2):
            A(f"ds_write_b128 v{qT1}, v[{TM+2+4*h}:{TM+5+4*h}] offset:{4096+32*h}\nds_write_b128 v{qT1}, v[{TM+4*h}:{TM+3+4*h}] offset:{4096+32*h+16}")
    f = L(); key_loads(f); emit(f)
    def q_out():
        for b_ in (sQ2, sTmp + 2):
            for x in epi(ACC + 32, PK, b_, 0, False):
                if x.startswith("buffer_"): A(x)
    gather(A, FAIL, sCur, fin_fork, between=q_rest, after=q_out, probe=P.get('probe', 0))
    NB_ = A.label("q_nb")
    tile_addr()
    f = L(); key_eval(f); emit(f)
    A(f"s_cmp_eq_u32 s{sPre}, 0\ns_cbranch_scc1 {NB_}")
    dma(A, sNxt)
    A(f"{NB_}:")
    D, IX, XA_ = 20, 32, 36
    A(f"""
    v_lshrrev_b32 v{qT0}, 8, v{qL16}
    v_and_b32 v{qT1}, 48, v{qL16}
    v_lshl_add_u32 v{qT1}, v{qT0}, 6, v{qT1}
    v_add_u32 v{qT1}, s{sPar}, v{qT1}
    s_mov_b32 vcc_lo, 0xcccccccc
    s_mov_b32 vcc_hi, 0xcccccccc
    v_mov_b32 v{IX}, 0x4444
    v_mov_b32 v{IX+1}, 0xeeee
    v_cndmask_b32 v{IX}, v{IX}, v{IX+1}, vcc
    s_waitcnt lgkmcnt(0)
    s_barrier
    """)
    trace(A, 7, 10)
    ld = Cnt(A, "lgkmcnt", 15); tk = {}
    def rd(t): tk[t] = ld.issue(f"ds_read_b128 v[{XA_+4*t}:{XA_+4*t+3}], v{qT1} offset:{4096+t*256}")
    for t in range(8): rd(t)
    for r in range(D, D + 12, 2): A(f"v_mov_b64 v[{r}:{r+1}], 0")
    sal = L()
    sal(f"s_and_b32 s{sTmp}, s{sRow}, 16\ns_lshl_b32 s{sTmp+1}, s{sTmp}, 6\ns_and_b32 s{sTmp+2}, s{sRow}, 15\ns_lshl4_add_u32 s{sTmp+1}, s{sTmp+2}, s{sTmp+1}")
    sal(f"s_add_u32 s{sQ2}, s{sQ2}, s{sTmp+1}\ns_add_u32 s{sTmp+1}, s{sTmp+1}, s{sB}\ns_lshr_b32 s{sTmp}, s{sTmp}, 1\ns_and_b32 s{sTmp+2}, s{sRow}, 3")
    sal(f"s_lshl1_add_u32 s{sTmp}, s{sTmp+2}, s{sTmp}\ns_and_b32 s{sTmp+2}, s{sRow}, 12\ns_lshl_b32 s{sTmp+2}, s{sTmp+2}, 6\ns_add_u32 s{sTmp}, s{sTmp}, s{sTmp+2}")
    sal(f"s_add_u32 s{sTmp}, s{sTmp}, s{sB}\nv_and_b32 v{qT0}, 0xc0, v{qL16}\nv_and_b32 v{qT2}, 12, v{qL4}\nv_lshrrev_b32 v{qT2}, 1, v{qT2}\nv_lshl_add_u32 v{qT0}, v{qT0}, 2, v{qT2}")
    for t in range(16):
        ld.wait(tk[t])
        for i, m in enumerate("kvq"):
            A(f"v_smfmac_f32_16x16x64_bf16 {v(D+4*i,4)}, {v(XA_+4*t,4)}, {reg(wop(m, 2*t),8)}, v{IX}")
            if i == 0 and t + 8 < 16: rd(t + 8)
            elif sal: A(sal.pop(0))
    for i in range(3): A(f"v_add_f32 v{D+4*i}, v{D+4*i}, v{D+4*i+2}\nv_add_f32 v{D+4*i+1}, v{D+4*i+1}, v{D+4*i+3}")
    A(f"v_mul_f32 v{D}, s{sC}, v{D}\nv_mul_f32 v{D+1}, s{sC}, v{D+1}")
    for i in range(3): A(f"v_cvt_pk_bf16_f32 v{D+4*i}, v{D+4*i}, v{D+4*i+1}")
    A(f"""
    s_mov_b64 exec, 0xffff
    s_waitcnt vmcnt(0)
    buffer_store_short v{D}, v{qT0}, {W}, s{sTmp+1} offen sc1
    buffer_store_short_d16_hi v{D}, v{qT0}, {W}, s{sTmp+1} offen offset:8 sc1
    buffer_store_short v{D+4}, v{qL16}, {W}, s{sTmp} offen offset:2048 sc1
    buffer_store_short_d16_hi v{D+4}, v{qL16}, {W}, s{sTmp} offen offset:3072 sc1
    buffer_store_short v{D+8}, v{qT0}, {W}, s{sQ2} offen sc1
    buffer_store_short_d16_hi v{D+8}, v{qT0}, {W}, s{sQ2} offen offset:8 sc1
    s_mov_b64 exec, 3
    s_waitcnt vmcnt(0)
    buffer_store_dword v{qFV}, v{qL16}, {W}, s{sKF} offen sc1
    """)
    post2(A)
    A(f"s_mov_b32 s{sPend}, {WS_BYTES}\nv_mov_b32 v{qFV}, 1")
    trace(A, 8, 10)
    A(f"s_branch {NXT}")
    A(f"{END}:")
    A("s_waitcnt vmcnt(0)")
    post2(A)
    A(f"s_cmp_lg_u32 s{sRep}, 0\ns_cbranch_scc1 {FAIL}")
    if P.get("nofinal"): A(f"s_branch {FAIL}")
    A(f"s_load_dwordx2 s[{sO}:{sO+1}], s[0:1], {KA['out']}\ns_mov_b32 s{sO+2}, {2*MB}\ns_mov_b32 s{sO+3}, 0x20000")
    FIN, NX = A.label("k_fin"), A.label("k_nx")
    A(f"s_mov_b32 s{sKey}, 0\ns_cmp_eq_u32 s{sW}, 3\ns_cselect_b32 s{sPre}, 7, 15\n{FIN}:")
    def getkey():
        Lw, Lx, Lr = A.label("k_w"), A.label("k_x"), A.label("k_r")
        sM, sI = sTmp + 6, sTmp + 7
        A(f"s_andn2_b32 s{sTmp+2}, 0xfe0, s{sRun}\ns_lshl_b32 s{sTmp+2}, s{sTmp+2}, {KSH}\ns_mov_b32 s{sTmp+3}, {F_XN + 2*KST}\nv_mov_b32 v24, {KST}")
        A(f"s_mov_b32 s{sSpin}, 0\ns_mov_b32 s{sI}, 3\nv_mov_b32 v53, s{sKey}\ns_and_b32 s{sM}, s{sPre}, 15\ns_cbranch_scc0 {Lx}\n{Lw}:")
        A(f"s_add_u32 s{sI}, s{sI}, 1\ns_and_b32 s{sI}, s{sI}, 3\ns_bitcmp1_b32 s{sM}, s{sI}\ns_cbranch_scc0 {Lw}")
        A(f"s_lshl2_add_u32 s{sTmp}, s{sI}, s{sW}\ns_lshl_b32 s{sTmp}, s{sTmp}, {KSH+7}\ns_add_u32 s{sTmp+1}, s{sTmp}, {2*KSEG}")
        for i in range(2):
            A(f"v_add_u32 v{22+i}, s{sTmp+i}, v{qLK}\nv_cmp_le_u32 vcc, s{sTmp+2}, v{22+i}\nv_cndmask_b32 v25, 0, v24, vcc\nv_add_u32 v{22+i}, v{22+i}, v25")
            A(f"buffer_load_dword v{20+i}, v{22+i}, {W}, s{sTmp+3} offen sc1")
        spin(A, FAIL)
        A(f"s_waitcnt vmcnt(0)\nv_min_u32 v52, v20, v21\nv_max3_u32 v53, v20, v21, v53\nv_cmp_eq_u32 vcc, 0, v52")
        A(f"s_cbranch_vccnz {Lw}\ns_bitset0_b32 s{sM}, s{sI}\ns_cmp_lg_u32 s{sM}, 0\ns_cbranch_scc1 {Lw}")
        for rot in (8, 4, 2, 1): A(f"v_max_u32_dpp v53, v53, v53 row_ror:{rot} row_mask:0xf bank_mask:0xf")
        for sw in ("16", "32"): A(f"v_mov_b32 v52, v53\nv_permlane{sw}_swap_b32 v53, v52\nv_max_u32 v53, v53, v52")
        A(f"{Lx}:\nds_write_b32 v{qVT}, v53 offset:256\ns_waitcnt vmcnt(0) lgkmcnt(0)\ns_barrier\nds_read_b128 v[20:23], v{qVT+1} offset:256\ns_waitcnt lgkmcnt(0)")
        A(f"v_max3_u32 v20, v20, v21, v22\nv_max_u32 v20, v20, v23\nv_readfirstlane_b32 s{sTmp}, v20")
        trace(A, 5, 10)
        A(f"s_cmp_eq_u32 s{sTmp}, s{sKey}\ns_cbranch_scc1 {FAIL}\ns_cmp_eq_u32 s{sKey}, 0\ns_mov_b32 s{sKey}, s{sTmp}\ns_cbranch_scc1 {Lr}")
        A(f"s_cmp_lg_u32 s{sHW}, 0\ns_cbranch_scc1 {Lr}\ns_lshl_b32 s{sTmp}, s{sRow}, 10\nbuffer_store_dwordx4 a[0:3], v{qL16}, s[{sO}:{sO+3}], s{sTmp} offen sc1\n{Lr}:")
        A(f"s_andn2_b32 s{sTmp}, 0xfe0, s{sRun}\ns_andn2_b32 s{sTmp+1}, 0xfe0, s{sKey}\ns_cmp_lt_u32 s{sTmp+1}, s{sTmp}\ns_cselect_b32 s{sKind}, 1, 2")
    def fin_out(XF, PKr, TM):
        A(f"s_lshl_b32 s{sTmp}, s{sRow}, 10\nbuffer_store_dwordx4 v[{PKr}:{PKr+3}], v{qL16}, s[{sO}:{sO+3}], s{sTmp} offen sc1")
    mlp(A, FAIL, getkey, sNxt)
    A(f"s_cmp_lg_u32 s{sJ}, 0\ns_cbranch_scc1 {NX}\ns_barrier")
    gather(A, FAIL, sNxt, fin_out, keep=True)
    trace(A, 6, 10)
    A(f"{NX}:\ns_add_u32 s{sNxt}, s{sNxt}, 3\ns_xor_b32 s{sPre}, s{sPre}, 31")
    getkey()
    mlp(A, FAIL, None, sNxt)
    A(f"s_cmp_lg_u32 s{sJ}, 0\ns_cbranch_scc1 {FAIL}\ns_barrier")
    gather(A, FAIL, sNxt, fin_out)
    trace(A, 6, 10)
    A(f"{FAIL}:")
```

```python
from asmlib import *
from layout import *
from common import trace, trace_clk, w_src_regs, w_stage_dma
import math, struct
def f32bits(x): return struct.unpack("<I", struct.pack("<f", x))[0]

class Cnt:
    def __init__(self, A, name, mx):
        self.A, self.name, self.mx, self.q = A, name, mx, []
        self.n = 0
    def issue(self, txt):
        if self.mx == 63 and len(self.q) >= 62: self.wait(self.q[7])
        self.A(txt); self.n += 1; self.q.append(self.n); return self.n
    def wait(self, tok):
        if tok not in self.q: return
        after = len(self.q) - 1 - self.q.index(tok)
        self.A(f"s_waitcnt {self.name}({min(after, self.mx)})")
        self.q = self.q[self.q.index(tok) + 1:]
    def drain(self):
        self.A(f"s_waitcnt {self.name}(0)"); self.q = []
    def reset(self): self.q = []

def delay(A, cyc):
    n = cyc // 4
    while n > 0:
        k = min(n, 16); A(f"s_nop {k-1}"); n -= k

L_MEM, L_QK, L_PS, L_O, L_WO, L_W = 4096, 0, 12288, 4096, 16384, 65536
L_KV = 20480
vL16, vLW, vCQ, vCR, vPS, vAGS, vIDX, T0 = range(8)
vW16 = 8
vCRW = 12
T1, T2, T3 = 17, 18, 19
MEMA = 16
LAMPOS = {0: 0, 4: 1, 1: 2, 2: 3, 3: 4, 5: 5, 6: 6, 7: 7}
def mema(lam): return MEMA + 4 * LAMPOS[lam]
QA, KA_, VA = 48, 56, 64
ST = [72 + 8 * i for i in range(7)]
KXR, VX, SOP = 72, 80, 88
OWN = [("q", 0, 0), ("q", 1, 0), ("k", 0, 0), ("k", 1, 0), ("q", 0, 4), ("q", 1, 4), ("k", 0, 4), ("k", 1, 4),
       ("v", 0, 0), ("v", 1, 0), ("v", 0, 4), ("v", 1, 4)]
NE = 10
ESLOT = [MEMA + 8, MEMA + 16, MEMA + 24] + ST
WO_ORDER = [(T, ko) for T in range(8) for ko in range(2)]
WSLOT = [104, 112, 120, MEMA, SOP, SOP + 8]
NO_REG = 10
LOC = {}
for i, k in enumerate(OWN[:NE]): LOC[k] = ("l", i)
for i, (T, ko) in enumerate(WO_ORDER[NO_REG:]): LOC[("o", T, ko)] = ("l", NE + i)
_r = 504
for (T, ko) in WO_ORDER[:NO_REG]:
    LOC[("o", T, ko)] = ("r", _r); _r -= 8
for m in "qkv":
    for tau in range(2):
        for lam in range(8):
            if (m, tau, lam) not in LOC:
                LOC[(m, tau, lam)] = ("r", _r); _r -= 8
assert _r == 120
sWS = 4
sT = 8
sJ, sW = 16, 17
sHALF = 18
sONE = 14
sStep = 22
sKV = 23
sC = 24
sKM = 25
sTmp = 26
sIn = 40
sAG = 42
sLo, sHi = 44, 45
sCnt = 46
sBox = 38
sPar = 3
sFo = 20
sPk = 66
sIt = 21
sFm = 2
sChain, sLayer, sAgr, sFkv, sFkm, sRdy = 60, 61, 62, 63, 64, 65
sFg, sFgS, sG, sFork, sKVd, sMH = 92, 93, 94, 95, 96, 97
sSt = 66
sAcc = 48

def lane_consts(A):
    A(f"""
    v_lshrrev_b32 v{T2}, 6, v0
    v_and_b32 v{T3}, 63, v0
    v_readfirstlane_b32 s{sW}, v{T2}
    v_and_b32 v{T0}, 15, v{T3}
    v_lshrrev_b32 v{T1}, 4, v{T3}
    v_lshlrev_b32 v{vL16}, 4, v{T3}
    """)

def put(A, dst_loc, regidx, src_txt, tmp):
    raise NotImplementedError

def chain_prologue(A, sync):
    n, g = T0, T1
    sM = 56
    vm = Cnt(A, "vmcnt", 63)
    A(f"s_load_dwordx2 s[{sM}:{sM+1}], s[0:1], {KA['mem0']}")
    A(f"""
    s_mov_b32 s{sLo}, 0x05040100
    s_mov_b32 s{sHi}, 0x07060302
    s_mov_b32 s{sHALF}, 0xcccccccc
    s_mov_b32 s{sHALF+1}, 0xcccccccc
    s_mov_b32 s{sC}, {hex(f32bits(128 ** -0.5 * math.log2(math.e)))}
    s_lshl_b32 s{sTmp}, s{sW}, 10
    v_add_u32 v{vW16}, s{sTmp}, v{vL16}
    v_xor_b32 v{vW16+1}, 1024, v{vW16}
    v_xor_b32 v{vW16+2}, 2048, v{vW16}
    v_xor_b32 v{vW16+3}, 3072, v{vW16}
    s_mov_b32 s{sONE}, 0x3f803f80
    s_mov_b32 s{sONE+1}, 0x3f803f80
    s_mul_i32 s{sTmp+1}, s{sW}, 24576
    s_add_u32 s{sTmp+1}, s{sTmp+1}, {L_W}
    v_add_u32 v{vLW}, s{sTmp+1}, v{vL16}
    v_lshrrev_b32 v20, 2, v{n}
    v_xor_b32 v21, v{g}, v20
    v_lshlrev_b32 v22, 5, v{n}
    v_add_u32 v22, s{sTmp}, v22
    v_lshl_add_u32 v{vCQ}, v21, 3, v22
    v_and_b32 v21, 3, v{n}
    v_xor_b32 v21, v21, v{g}
    v_lshl_add_u32 v22, v{g}, 2, v20
    v_lshlrev_b32 v22, 5, v22
    v_lshl_add_u32 v{vCR}, v21, 3, v22
    v_add_u32 v{vCRW}, s{sTmp}, v{vCR}
    v_xor_b32 v{vCRW+1}, 1024, v{vCRW}
    v_xor_b32 v{vCRW+2}, 2048, v{vCRW}
    v_xor_b32 v{vCRW+3}, 3072, v{vCRW}
    ; partial store offset: consumer (8w + n/4)*8192 + j*256 + (4g + n%4)*16
    v_lshlrev_b32 v21, 13, v20
    v_and_b32 v22, 3, v{n}
    v_lshl_add_u32 v22, v{g}, 2, v22
    v_lshl_add_u32 v21, v22, 4, v21
    s_lshl_b32 s{sTmp+1}, s{sW}, 15
    s_lshl_b32 s{sTmp+2}, s{sJ}, 8
    s_add_u32 s{sTmp+1}, s{sTmp+1}, s{sTmp+2}
    v_add_u32 v{vPS}, s{sTmp+1}, v21
    v_and_b32 v21, 1, v{n}
    v_lshl_add_u32 v21, v{g}, 2, v21
    v_bfe_u32 v22, v{n}, 2, 1
    v_lshl_add_u32 v21, v22, 1, v21
    v_lshlrev_b32 v21, 4, v21
    v_bfe_u32 v22, v{n}, 1, 1
    v_lshl_add_u32 v21, v22, 3, v21
    v_add_u32 v{vAGS}, s{sTmp+2}, v21
    v_cmp_lt_u32 vcc, 7, v{n}
    v_mov_b32 v22, 0x7ff00000
    v_cndmask_b32 v{vAGS}, v{vAGS}, v22, vcc
    v_mov_b32 v21, 0x4444
    v_mov_b32 v22, 0xeeee
    v_cndmask_b32 v{vIDX}, v21, v22, s[{sHALF}:{sHALF+1}]
    """)
    A(f"s_lshl_b32 s{sIn}, s{sChain}, 20\ns_add_u32 s{sIn}, s{sIn}, {INBOX}\ns_add_u32 s{sIn+1}, s{sIn}, 131072")
    A(f"s_lshl_b32 s{sAgr}, s{sChain}, 16\ns_add_u32 s{sAgr}, s{sAgr}, {AGR}")
    A("v_mov_b32 v24, -1\nv_mov_b32 v25, -1\nv_mov_b32 v26, -1\nv_mov_b32 v27, -1\ns_waitcnt lgkmcnt(0)")
    for st in range(2):
        vm.issue(f"buffer_store_dwordx4 v[24:27], v{vPS}, s[{sWS}:{sWS+3}], s{sIn+st} offen sc1")
    for slot in range(4):
        A(f"s_add_u32 s{sTmp+1}, s{sAgr}, {slot * 8192}")
        vm.issue(f"buffer_store_dwordx2 v[24:25], v{vAGS}, s[{sWS}:{sWS+3}], s{sTmp+1} offen sc1")
    sync()
    trace(A, 10, 112)
    A(f"""
    s_mov_b32 s{sM+2}, 8192
    s_mov_b32 s{sM+3}, 0x20000
    v_and_b32 v21, 1, v{n}
    v_lshl_add_u32 v21, v{g}, 1, v21
    v_lshlrev_b32 v21, 10, v21
    v_bfe_u32 v22, v{n}, 1, 2
    v_lshl_add_u32 v21, v22, 1, v21
    s_and_b32 s{sTmp+1}, s{sJ}, 15
    s_lshl_b32 s{sTmp+1}, s{sTmp+1}, 6
    s_lshr_b32 s{sTmp+2}, s{sJ}, 4
    s_lshl_b32 s{sTmp+2}, s{sTmp+2}, 3
    s_add_u32 s{sTmp+1}, s{sTmp+1}, s{sTmp+2}
    s_waitcnt lgkmcnt(0)
    """)
    for i in range(4): tm = vm.issue(f"buffer_load_ushort v{28+i}, v21, s[{sM}:{sM+3}], s{sTmp+1} offen offset:{16*i}")
    def fin(vm):
        vm.wait(tm)
        A("v_lshl_or_b32 v28, v29, 16, v28\nv_lshl_or_b32 v29, v31, 16, v30\nv_min_u32 v28, -2, v28\nv_min_u32 v29, -2, v29")
        vm.issue(f"buffer_store_dwordx2 v[28:29], v{vAGS}, s[{sWS}:{sWS+3}], s{sAgr} offen sc1")
    return vm, fin

def emit_quad(A, loc, u, perms, tmp):
    kind, x = loc
    for rho, (s1, s0, sel) in enumerate(perms):
        if kind == "r" and x < 256:
            A(f"v_perm_b32 v{x+u*4+rho}, v{s1}, v{s0}, s{sel}")
        else:
            A(f"v_perm_b32 v{tmp+rho}, v{s1}, v{s0}, s{sel}")
    if kind == "r" and x >= 256:
        for rho in range(4): A(f"v_accvgpr_write_b32 a{x-256+u*4+rho}, v{tmp+rho}")
    if kind == "l":
        A(f"ds_write_b128 v{vW16}, v[{tmp}:{tmp+3}] offset:{L_WO+((x-NE)*2+u)*4096}\ns_waitcnt lgkmcnt(0)")

def chain_load_weights(A, vm0, fin, hooks, order="qkv", warm=None, early=0, depth=5):
    n, g = T0, T1
    vm = Cnt(A, "vmcnt", 63); vm.q = list(vm0.q); vm.n = vm0.n
    def warm_up():
        LW = A.label("c_nw")
        A(f"s_cmp_eq_u32 s{sChain}, 0\ns_cbranch_scc1 {LW}")
        A(f"s_lshl_b32 s{sTmp}, s{sChain}, 5\ns_add_u32 s{sTmp}, s{sTmp}, s{sJ}\ns_lshl_b32 s{sTmp}, s{sTmp}, 2\ns_add_u32 s{sTmp}, s{sTmp}, s{sW}")
        A(f"s_mul_i32 s{sTmp}, s{sTmp}, 7168\ns_sub_u32 s{sTmp}, s{sTmp}, {128*7168}\ns_add_u32 s{sTmp+1}, s{sTmp}, 4096\ns_mov_b32 s{sT+2}, {512*1792*2}")
        for m in ("wg", "wu", "wd"):
            A(f"s_load_dwordx2 s[{sT}:{sT+1}], s[0:1], {KA[m]}\ns_waitcnt lgkmcnt(0)")
            for i in range(7): A(f"buffer_load_dwordx4 v[116:119], v{vL16}, s[{sT}:{sT+3}], s{sTmp+i//4} offen offset:{(i%4)*1024} {warm}")
        if early: A(f"s_waitcnt vmcnt({early-1})")
        A(f"{LW}:")
    if -3 in hooks: hooks[-3]()
    if early: warm_up()
    if -2 in hooks: hooks[-2]()
    sK, sV = sTmp + 6, 48
    sQ = 52
    SRC, RD, HOLD, NS = 22, 104, 24, 5
    assert order[-1] == 'v'
    PARK = list(range(132, 132 + 96, 8))
    A(f"""
    s_load_dwordx2 s[{sT}:{sT+1}], s[0:1], {KA['wo']}
    s_load_dwordx2 s[{sQ}:{sQ+1}], s[0:1], {KA['wq']}
    s_load_dwordx2 s[{sK}:{sK+1}], s[0:1], {KA['wk']}
    s_load_dwordx2 s[{sV}:{sV+1}], s[0:1], {KA['wv']}
    s_mov_b32 s{sT+2}, {4*MB}
    s_mov_b32 s{sT+3}, 0x20000
    s_mov_b32 s{sQ+2}, {4*MB}
    s_mov_b32 s{sQ+3}, 0x20000
    s_mov_b32 s{sK+2}, {4*MB}
    s_mov_b32 s{sK+3}, 0x20000
    s_mov_b32 s{sV+2}, {4*MB}
    s_mov_b32 s{sV+3}, 0x20000
    v_and_b32 v20, 1, v{g}
    v_lshlrev_b32 v20, 5, v20
    v_lshrrev_b32 v21, 1, v{g}
    v_lshl_add_u32 v20, v21, 2, v20        ; 32*(g%2) + 4*(g/2)
    v_lshlrev_b32 v20, 10, v20
    v_lshl_add_u32 v20, v{n}, 4, v20
    s_lshl_b32 s{sTmp}, s{sJ}, 17
    s_lshl_b32 s{sTmp+1}, s{sW}, 8
    s_add_u32 s{sTmp}, s{sTmp}, s{sTmp+1}
    s_waitcnt lgkmcnt(0)
    """)
    toks = []
    for ko in range(2):
        for u in range(2):
            for sg in range(8):
                e = 64 * ko + 8 * u + 2 * (sg // 4) + sg % 2 + 16 * ((sg % 4) // 2)
                r = 128 + ((ko * 2 + u) * 8 + sg) * 4
                A(f"s_add_u32 s{sTmp+1}, s{sTmp}, {e * 1024}")
                tk = vm.issue(f"buffer_load_dwordx4 v[{r}:{r+3}], v20, s[{sT}:{sT+3}], s{sTmp+1} offen")
            toks.append(tk)
    if -1 in hooks:
        A(f"s_waitcnt vmcnt({len(vm.q)})"); hooks[-1]()
    w_src_regs(A, vL16, SRC, 20)
    A(f"""
    s_lshl_b32 s{sTmp}, s{sW}, 20
    s_lshl_b32 s{sTmp+1}, s{sJ}, 8
    s_add_u32 s{sTmp}, s{sTmp}, s{sTmp+1}
    s_lshl_b32 s{sTmp+2}, s{sW}, 13
    """)
    srd = dict(q=sQ, k=sK, v=sV)
    jobs = [(m, u, q) for m in order for u in range(2) for q in range(2)]
    tk = {}
    def issue(i):
        m, u, q = jobs[i]
        for h in range(2):
            A(f"s_add_u32 s{sTmp+1}, s{sTmp}, {(64 * u + 16 * q + 32 * h) * 8192}")
            tk[i] = w_stage_dma(A, vm, srd[m], SRC, sTmp + 1, sTmp + 2, ((i + 2) % NS) * 32768 + h * 4096, 4)
    for i in range(depth):
        if i == depth - 1: fin(vm)
        issue(i)
    A(f"""
    v_bfe_u32 v20, v{n}, 2, 1
    v_lshrrev_b32 v21, 3, v{n}
    v_and_b32 v{RD}, 1, v{g}
    v_lshl_add_u32 v21, v21, 1, v{RD}              ; row & 3
    v_lshl_add_u32 v{RD}, v20, 3, v21
    v_lshrrev_b32 v{RD+1}, 1, v{g}
    v_lshl_add_u32 v{RD}, v{RD+1}, 4, v{RD}
    v_lshl_add_u32 v20, v21, 1, v20                ; phi
    s_lshl_b32 s{sTmp+3}, s{sW}, 1
    v_xor_b32 v20, s{sTmp+3}, v20
    v_lshlrev_b32 v20, 5, v20
    v_lshl_add_u32 v20, v{RD}, 8, v20
    v_and_b32 v21, 3, v{n}
    v_lshl_add_u32 v20, v21, 3, v20
    s_lshl_b32 s{sTmp+3}, s{sW}, 13
    s_add_u32 s{sTmp+3}, s{sTmp+3}, 65536
    v_add_u32 v20, s{sTmp+3}, v20
    """)
    for x in range(4):
        for tau in range(2):
            A(f"v_xor_b32 v{RD+2*x+tau}, {x * 8192 + tau * 32}, v20")
    for ko in range(2):
        for u in range(2):
            vm.wait(toks[ko * 2 + u])
            for T in range(8):
                assert LOC[("o", T, ko)][0] == "l" or LOC[("o", T, ko)][1] >= 256
                b = 128 + (ko * 2 + u) * 32 + T // 2
                loc = LOC[("o", T, ko)]
                if loc[0] == "l": loc = ("r", HOLD + 8 * (loc[1] - NE))
                emit_quad(A, loc, u, [(b + 8 * rho + 4, b + 8 * rho, sHi if T % 2 else sLo) for rho in range(4)], 120 + 4 * (T % 2))
    for i, r in enumerate(PARK): A(f"v_mov_b64 v[{r}:{r+1}], v[{HOLD+4*i}:{HOLD+4*i+1}]\nv_mov_b64 v[{r+2}:{r+3}], v[{HOLD+4*i+2}:{HOLD+4*i+3}]")
    cur = 1
    trace(A, 11, 112)
    for i, (m, u, q) in enumerate(jobs):
        st = (i + 2) % NS
        if st // 2 != cur:
            for x in range(8): A(f"v_add_u32 v{RD+x}, {(st // 2 - cur) * 65536}, v{RD+x}")
            cur = st // 2
        if i == 10:
            for k, r in enumerate(PARK): A(f"ds_write_b128 v{vW16}, v[{r}:{r+3}] offset:{L_WO+k*4096}")
            A("s_waitcnt lgkmcnt(0)")
        vm.wait(tk[i])
        A("s_barrier")
        if i % 2 == 1: trace(A, 12 + i // 2, 112)
        if depth < NS and i + depth < len(jobs): issue(i + depth)
        if i in hooks: hooks[i]()
        for x in range(4):
            for tau in range(2):
                for lh in range(2):
                    kind, r = LOC[(m, tau, 4 * lh + x)]
                    if kind == "l": r = HOLD + 8 * r
                    A(f"ds_read_b64_tr_b16 {reg(r + 4*u + 2*q, 2)}, v{RD + 2*x + tau} offset:{(st % 2) * 32768 + lh * 1024}")
        if depth == NS or i == 9 or i == 11: A("s_waitcnt lgkmcnt(0)\ns_barrier")
        else: A("s_waitcnt lgkmcnt(0)")
        if depth == NS and i + NS < len(jobs): issue(i + NS)
    if 12 in hooks: hooks[12]()
    if warm is not None and not early: warm_up()
    A(f"s_lshl_b32 s{sTmp}, s{sJ}, 13\ns_add_u32 s{sTmp}, s{sTmp}, s{sIn}\ns_add_u32 s{sTmp+1}, s{sTmp}, 4096\ns_lshl_b32 s{sTmp+2}, s{sW}, 13\ns_add_u32 s{sTmp+2}, s{sTmp+2}, s{sAgr}")
    A(f"buffer_load_dwordx4 v[104:107], v{vW16}, s[{sWS}:{sWS+3}], s{sTmp} offen sc1\nbuffer_load_dwordx4 v[104:107], v{vW16}, s[{sWS}:{sWS+3}], s{sTmp+1} offen sc1")
    A(f"buffer_load_dwordx2 v[104:105], v{vAGS}, s[{sWS}:{sWS+3}], s{sTmp+2} offen sc1")
    for i in range(2 * NE): A(f"ds_write_b128 v{vLW}, v[{HOLD+4*i}:{HOLD+4*i+3}] offset:{i*1024}")
    A(f"s_mul_i32 s{sTmp+1}, s{sW}, 24576\ns_add_u32 m0, s{sTmp+1}, {L_W + L_KV}\ns_waitcnt lgkmcnt(0)")

def smf(acc, a, b, abid=False):
    return f"v_smfmac_f32_16x16x64_bf16 {v(acc,4)}, {v(a,4)}, {reg(b,8)}, v{vIDX}" + (" abid:1" if abid else "")
def mf(acc, a, b, c=None):
    return f"v_mfma_f32_16x16x32_bf16 {v(acc,4)}, {v(a,4)}, {v(b,4)}, {v(c,4) if c is not None else '0'}"

def xlane(A, op, r, t):
    A(f"{op}_dpp v{r}, v{r}, v{r} quad_perm:[2,3,0,1] row_mask:0xf bank_mask:0xf")
    A(f"v_mov_b32 v{t}, v{r}\nv_permlane16_swap_b32 v{r}, v{t}\n{op} v{r}, v{r}, v{t}")
    A(f"v_mov_b32 v{t}, v{r}\nv_permlane32_swap_b32 v{r}, v{t}\n{op} v{r}, v{r}, v{t}")

NOP16 = [""]
def mf16(acc, a, b, c):
    return NOP16[0] + f"v_mfma_f32_16x16x16_bf16 {v(acc,4)}, {v(a,2)}, {v(b,2)}, {v(c,4)}"
def z64(r): return f"v_mov_b64 v[{r}:{r+1}], 0"

def chain_loop(A, P):
    STF = P.get("st", "")
    stamps = P.get("stamps", False)
    NOP16[0] = P.get("nop16", "")
    W = f"s[{sWS}:{sWS+3}]"
    H = f"s[{sHALF}:{sHALF+1}]"
    LOOP, RETRY, GOT, HOP2, FB, FBR, FAIL = [A.label(x) for x in ("c_loop", "c_retry", "c_got", "c_hop2", "c_fb", "c_fbr", "c_fail")]
    def snap(i):
        if P.get("snap"): A(f"s_memrealtime s[{sSt+2*i}:{sSt+2*i+1}]")
    LAST = A.label("c_last")
    acc = dict(q=QA, k=KA_, v=VA)
    def M(m, tau, lam):
        kind, x = LOC[(m, tau, lam)]
        A(smf(acc[m] + 4 * tau, mema(lam), x if kind == "r" else ESLOT[x]))
    ld = Cnt(A, "lgkmcnt", 15); vm = Cnt(A, "vmcnt", 63)
    def stage(lo, hi):
        for i in range(lo, hi):
            A(f"ds_read_b128 v[{ESLOT[i]}:{ESLOT[i]+3}], v{vLW} offset:{i*2048}")
            A(f"ds_read_b128 v[{ESLOT[i]+4}:{ESLOT[i]+7}], v{vLW} offset:{i*2048+1024}")
    wo_tok = {}
    def wof(i, h):
        r = WSLOT[i] + 4 * h
        wo_tok[i] = ld.issue(f"ds_read_b128 v[{r}:{r+3}], v{vW16} offset:{L_WO+(2*i+h)*4096}")
    A(f"""
    s_mov_b32 s{sStep}, 0
    s_mov_b32 s{sIt}, 0
    s_mov_b32 s{sAG}, s{sAgr}
    s_add_u32 s{sAG+1}, s{sAgr}, 4096
    s_mov_b32 s{sCnt}, 0
    s_mov_b32 s{sCnt+1}, 0
    s_lshl_b32 s{sTmp}, s{sJ}, 2
    s_add_u32 s{sTmp}, s{sTmp}, s{sW}
    s_lshl_b32 s{sTmp+1}, s{sChain}, 13
    s_add_u32 s{sTmp+1}, s{sTmp+1}, s{sTmp}
    s_lshr_b32 s{sKM}, s{sTmp+1}, 2
    s_lshl_b32 s{sKM}, s{sKM}, 13
    s_add_u32 s{sKM}, s{sKM}, {KM}
    s_lshr_b32 s{sFkm}, s{sTmp+1}, 2
    s_lshl_b32 s{sFkm}, s{sFkm}, 6
    s_add_u32 s{sFkm}, s{sFkm}, {F_KM - 2048 + WS_BYTES}
    s_cmp_eq_u32 s{sW}, {P.get("fw", 3)}
    s_cselect_b32 s{sFm}, {WS_BYTES}, 0
    s_lshl_b32 s{sTmp+1}, s{sLayer}, 13
    s_add_u32 s{sTmp+1}, s{sTmp+1}, s{sTmp}
    s_lshl_b32 s{sKV}, s{sTmp+1}, 12
    s_add_u32 s{sKV}, s{sKV}, {KV}
    s_lshl_b32 s{sFkv}, s{sTmp+1}, 5
    s_add_u32 s{sFkv}, s{sFkv}, {F_KV}
    """)
    A(f"""
    s_mov_b32 s{sMH}, {WS_BYTES}
    s_cmp_eq_u32 s{sChain}, 2
    s_cselect_b32 s{sFo}, {256*KB}, s{sMH}
    s_cselect_b32 s{sFgS}, 1, 3
    s_lshl_b32 s{sTmp}, s{sW}, 2
    s_add_u32 s{sTmp}, s{sTmp}, s{sChain}
    s_cmp_eq_u32 s{sTmp}, {9 if P.get('nomh') else 1}
    s_cselect_b32 s{sMH}, {MEMH}, s{sMH}
    s_mov_b32 s{sFork}, 0
    s_mov_b32 s{sKVd}, s{sKV}
    """)
    FL = P.get("flags", 1)
    SK_ = P.get("skip", 1)
    def kv_dma(p):
        vm.issue(f"buffer_load_dwordx4 v{vL16}, {W}, s{sKVd} offen offset:{p*1024} {P.get('kvf','')} lds")
    KVS = 0 if P.get("samekv") else 32*16384
    def kv_wait(fork=False):
        L0, L, LX = A.label("c_gw"), A.label("c_kvw"), A.label("c_kvx")
        def poll(lab):
            A(f"{lab}:\nbuffer_load_dword v{T0}, off, {W}, s{sFg} sc1")
            A(f"s_add_u32 s{sTmp+3}, s{sTmp+3}, 1\ns_cmp_gt_u32 s{sTmp+3}, {SPIN_MAX}\ns_cbranch_scc1 {FAIL}")
            A(f"s_waitcnt vmcnt(0) lgkmcnt(0)\nv_readfirstlane_b32 s{sRdy}, v{T0}\ns_cmp_eq_u32 s{sRdy}, 0\ns_cbranch_scc1 {lab}")
        A(f"s_mov_b32 s{sTmp+3}, 0\ns_sub_u32 s{sFg}, s{sFkv}, 4096\ns_sub_u32 s{sKVd}, s{sKV}, {KVS}\ns_mov_b32 s{sFork}, 0")
        if not fork:
            poll(L0)
            A(f"s_and_b32 s{sRdy}, s{sRdy}, s{sFgS}\ns_cbranch_scc1 {LX}")
        A(f"s_mov_b32 s{sFork}, 1\ns_add_u32 s{sKVd}, s{sKVd}, {32*MB}\ns_add_u32 s{sFg}, s{sFg}, {256*KB}")
        poll(L)
        A(f"{LX}:\nbuffer_load_dword v{T0}, off, {W}, s{sFkv} sc1")
        for p in range(4): kv_dma(p)
        A(f"s_waitcnt vmcnt(4)\nv_readfirstlane_b32 s{sRdy}, v{T0}\ns_mov_b32 s{sG}, 0")
    A(f"s_add_u32 s{sKV}, s{sKV}, {KVS}\ns_add_u32 s{sFkv}, s{sFkv}, 4096")
    trace(A, 2, MEMA)
    if P.get("peek"):
        PK, PK2 = A.label("c_pk"), A.label("c_pk2")
        A(f"s_cmp_eq_u32 s{sPk}, 0\ns_cbranch_scc1 {PK}\ns_sub_u32 s{sKVd}, s{sKV}, {KVS}\ns_mov_b32 s{sRdy}, s{sPk+1}\ns_mov_b32 s{sG}, 0")
        for p in range(4): kv_dma(p)
        A(f"s_branch {PK2}\n{PK}:")
    kv_wait()
    if P.get("peek"): A(f"{PK2}:")
    trace(A, 3, MEMA)
    if stamps:
        for i in range(12): A(f"s_mov_b32 s{sAcc+i}, 0")
    vm.reset()
    A("s_waitcnt vmcnt(4)")
    stage(3, 10)
    for r in range(QA, QA + 24, 2): A(z64(r))
    A(f"s_lshl_b32 s{sBox}, s{sJ}, 13\ns_add_u32 s{sBox}, s{sBox}, s{sIn}\ns_add_u32 s{sBox+1}, s{sBox}, 4096")
    stage(0, 3)
    A("s_waitcnt lgkmcnt(0)")
    A(f"{LOOP}:")
    m0, m4 = mema(0), mema(4)
    def ag_loads():
        A(f"buffer_load_dwordx4 v[{m0}:{m0+3}], v{vW16}, {W}, s{sAG} offen sc1")
        A(f"buffer_load_dwordx4 v[{m4}:{m4+3}], v{vW16}, {W}, s{sAG+1} offen sc1")
    NSH = P.get("nsh", 2)
    W0A, W0B = A.label("c_w0a"), A.label("c_w0b")
    SP = P.get("split", 0)
    N1 = P.get('n1', 3)
    ZL = P.get("zl", 1); EK = P.get("ek", 1); NB = P.get("nb", 7); npo = 2 * (NSH - 2)
    XB, XR = A.label("c_xb"), A.label("c_xr")
    RETL, GOTL = A.label("c_retl"), A.label("c_gotl")
    tkv = {}; tm = {}
    order = [1, 2, 3, 5, 6, 7]
    def rdkv(p): tkv[p] = ld.issue(f"ds_read_b128 v[{KXR+4*p}:{KXR+4*p+3}], v{vLW} offset:{L_KV+p*1024}")
    def rdm(lam): tm[lam] = ld.issue(f"ds_read_b128 v[{mema(lam)}:{mema(lam)+3}], v{vW16+lam%4} offset:{L_MEM+(lam//4)*4096}")
    def agl(h): A(f"buffer_load_dwordx4 v[{(m0, m4)[h]}:{(m0, m4)[h]+3}], v{vW16}, {W}, s{sAG+h} offen sc1")
    def agc(h): A(f"v_max3_u32 v{T0}, v{(m0, m4)[h]}, v{(m0, m4)[h]+1}, v{(m0, m4)[h]+2}\nv_max_u32 v{T0}, v{T0}, v{(m0, m4)[h]+3}")
    def agw(h): A(f"ds_write_b128 v{vW16}, v[{(m0, m4)[h]}:{(m0, m4)[h]+3}] offset:{L_MEM+4096*h}")
    if SP:
        assert SK_ and EK and ZL and NSH == 2 and P.get("fp", 0) == 1
        ZE = P.get("ze", 6)
        zs = [z64(r) for r in range(QA, QA + 24, 2)]
        Z0, E2, SB = P.get("z0", 0), P.get("e2", 1), P.get("sb", 10 - N1)
        for x in zs[:Z0]: A(x)
        agl(0)
        if stamps and P.get("ref", 0) == 0: A(f"s_memtime s[{sSt}:{sSt+1}]")
        A(f"s_mov_b32 s{sTmp+2}, 0\ns_cmp_lg_u32 s{sW}, 0")
        for x in zs[Z0:ZE]: A(x)
        if not E2: agl(0)
        A(f"s_cbranch_scc1 {W0A}\ns_waitcnt vmcnt({2 if E2 else 3})")
        stage(0, SB)
        A(f"{W0A}:\ns_barrier")
        if E2 == 1: agl(0)
        agl(1)
        if E2 == 2: agl(0)
        if SB < 10 - N1:
            A(f"s_cbranch_scc1 {W0B}")
            stage(SB, 10 - N1)
            A(f"{W0B}:")
        for x in zs[ZE:]: A(x)
        delay(A, P.get("g2", 0))
        agl(1)
        A(f"s_waitcnt lgkmcnt(0)\ns_and_b32 s{sTmp+3}, s{sRdy}, s{sFgS}\ns_cbranch_scc0 {XB}\n{XR}:\ns_waitcnt vmcnt(3)")
        agc(0); agw(0); M("q", 0, 0)
        A(f"v_cmp_eq_u32 vcc, -1, v{T0}")
        M("q", 1, 0); M("k", 0, 0)
        A(f"s_cbranch_vccnz {RETRY}\n{GOT}:")
        M("k", 1, 0); rdkv(0); rdkv(1)
        ev = [("v", 0, 0), ("v", 1, 0)]
        for _ in range(P.get("a1", 0)): M(*ev.pop(0))
        A(f"s_and_b32 s{sRdy}, s{sRdy}, s{sFgS}\ns_cselect_b32 s{sKVd}, s{sKV}, {WS_BYTES}")
        A("s_waitcnt lgkmcnt(2)\ns_barrier")
        rdm(1); rdm(2)
        if ev: M(*ev.pop(0))
        rdm(3)
        while ev: M(*ev.pop(0))
        eq = [1, 2, 3]
        for _ in range(P.get("a2", 0)):
            ld.wait(tm[eq[0]]); M("q", 0, eq.pop(0))
        A(f"s_waitcnt vmcnt({2 if E2 == 2 else 1})")
        agc(1); tw = ld.issue(f"ds_write_b128 v{vW16}, v[{m4}:{m4+3}] offset:{L_MEM+4096}")
        ld.wait(tm[eq[0]]); M("q", 0, eq.pop(0))
        A(f"v_cmp_eq_u32 vcc, -1, v{T0}")
        ld.wait(tm[eq[0]]); M("q", 0, eq.pop(0))
        A(f"s_cbranch_vccnz {RETL}\n{GOTL}:")
        M("q", 0, 4); rdkv(2); A(f"v_mov_b32 v{T0}, 1")
        M("q", 1, 4); rdkv(3)
        lt = [("k", 0, 4), ("k", 1, 4), ("v", 0, 4)] + [("q", 0, x) for x in eq]
        for _ in range(P.get("a3", 0)): M(*lt.pop(0))
        ld.wait(tw); A("s_barrier")
        if stamps and P.get("ref", 0) == 1: A(f"s_memtime s[{sSt}:{sSt+1}]")
        if P.get("ftrace"): trace(A, 5, MEMA + 24)
        rdm(5); rdm(6)
        f = [lambda: (kv_dma(0), rdm(7)), lambda: kv_dma(1), lambda: wof(0, 0), lambda: wof(0, 1)]
        while lt:
            M(*lt.pop(0)); f.pop(0)()
        f = f + [lambda: kv_dma(2), lambda: None, lambda: None]
        for lam in (5, 6, 7):
            ld.wait(tm[lam]); M("q", 0, lam); f.pop(0)()
        while f: f.pop(0)()
        own = OWN[11:]
    else:
        ag_loads()
        snap(0)
        if stamps and P.get("ref", 0) == 0: A(f"s_memtime s[{sSt}:{sSt+1}]")
        A(f"s_mov_b32 s{sTmp+2}, 0")
        ZL = P.get("zl", 1)
        if ZL:
            for r in range(QA, QA + 24, 2): A(z64(r))
        for k in range(1, NSH):
            delay(A, P.get("g2", 0)); ag_loads()
        if not ZL: A(z64(VA))
        npo = 2 * (NSH - 2)
        A("s_waitcnt lgkmcnt(0)")
        if P.get("skip", 1): A(f"s_and_b32 s{sTmp+3}, s{sRdy}, s{sFgS}\ns_cbranch_scc0 {XB}\n{XR}:")
        A(f"s_waitcnt vmcnt({3+npo})")
        snap(1)
        A(f"v_max3_u32 v{T0}, v{m0}, v{m0+1}, v{m0+2}")
        A(f"v_max_u32 v{T0}, v{T0}, v{m0+3}")
        A(f"ds_write_b128 v{vW16}, v[{m0}:{m0+3}] offset:{L_MEM}")
        M(*OWN[0])
        A(f"s_waitcnt vmcnt({2+npo})")
        A(f"v_max3_u32 v{T0}, v{m4}, v{m4+1}, v{T0}")
        A(f"v_max3_u32 v{T0}, v{m4+2}, v{m4+3}, v{T0}")
        A(f"ds_write_b128 v{vW16}, v[{m4}:{m4+3}] offset:{L_MEM+4096}")
        M(*OWN[1])
        A(f"v_cmp_eq_u32 vcc, -1, v{T0}")
        M(*OWN[2])
        A(f"s_cbranch_vccnz {RETRY}\n{GOT}:")
        NB = P.get("nb", 7)
        KVW, KVR = A.label("c_kvs"), A.label("c_kvr")
        EK = P.get("ek", 1)
        for i in range(3, NB):
            M(*OWN[i])
            if EK:
                for p in {7: [[0], [1], [2], [3]], 6: [[0], [1, 2], [3]], 5: [[0, 1], [2, 3]]}[NB][i - 3]: rdkv(p)
            if i == 3: A(f"s_and_b32 s{sRdy}, s{sRdy}, s{sFgS}\ns_cselect_b32 s{sKVd}, s{sKV}, {WS_BYTES}")
            if SK_: pass
            elif i == 4: A(f"s_cselect_b32 s{sFork}, 0, s{sG}")
            elif i == 5: A(f"s_add_u32 s{sTmp+5}, s{sKV}, {32*MB}\ns_cmp_lg_u32 s{sFork}, 0")
            elif i == 6: A(f"s_cselect_b32 s{sKVd}, s{sTmp+5}, s{sKVd}")
            if i == 4 and FL: A(f"v_mov_b32 v{T0}, 1")
        A(f"s_waitcnt lgkmcnt({4 if EK else 0})\ns_barrier")
        if stamps and P.get("ref", 0) == 1: A(f"s_memtime s[{sSt}:{sSt+1}]")
        snap(2)
        if P.get("ftrace"): trace(A, 5, MEMA + 8)
        order = [1, 2, 3, 5, 6, 7]
        own = OWN[NB:]
        NA = 11 - NB
        rdm(order[0])
        for i in range(NA):
            if i < 5: rdm(order[1 + i])
            M(*own.pop(0))
        assert all(LOC[o][0] == "r" for o in own)
    def half_sum(a): return [f"v_add_f32 v{a}, v{a}, v{a+2}", f"v_add_f32 v{a+1}, v{a+1}, v{a+3}"]
    def kpost(a): return half_sum(a) + [f"v_cvt_pk_bf16_f32 v{a+2}, v{a}, v{a+1}"]
    def qwr(a, off): ld.issue(f"ds_write2_b32 v{vCQ}, v{a}, v{a} offset0:{off} offset1:{off+1}")
    X = QA
    PX, PM = KXR, KXR + 4
    if not SP and NA < 5: rdm(order[5])
    f = [lambda: rdkv(0), lambda: rdkv(1), lambda: rdkv(2), lambda: rdkv(3), lambda: wof(0, 0), lambda: wof(0, 1)]
    if EK: f = [lambda: kv_dma(0), lambda: wof(0, 0), lambda: kv_dma(1), lambda: wof(0, 1), lambda: kv_dma(2), lambda: None]
    FP = P.get("fp", 0)
    def kmflag(): A(f"s_mov_b64 exec, 1\nbuffer_store_dword v{T0}, off, {W}, s{sFkm} sc1\ns_mov_b64 exec, -1")
    if FP == 0: f = [kmflag] + f[:5]
    late = (lambda p: None) if EK else kv_dma
    for lam in ([] if SP else order):
        ld.wait(tm[lam]); M("q", 0, lam); f.pop(0)()
    qp = kpost(QA)
    M("q", 1, order[0])
    if EK: kv_dma(3)
    if FL and not EK: A(f"s_mov_b64 exec, 1\nbuffer_store_dword v{T0}, off, {W}, s{sFkm} sc1\ns_mov_b64 exec, -1")
    M("q", 1, order[1]); tmh = ld.issue(f"ds_read_b64 v[{SOP+12}:{SOP+13}], v{vAGS} offset:{L_MEM}"); A(qp.pop(0))
    M("q", 1, order[2]); wof(1, 0); A(qp.pop(0))
    M("q", 1, order[3]); wof(1, 1); A(qp.pop(0))
    M("q", 1, order[4]); qwr(QA + 2, 0)
    M("q", 1, order[5]); ld.issue(f"ds_read_b64_tr_b16 v[{SOP}:{SOP+1}], v{vCRW} offset:{L_QK}")
    qp = kpost(QA + 4)
    M("k", 0, order[0]); ld.wait(tkv[3]); late(0)
    if FP == 1: kmflag()
    M("k", 0, order[1]); wof(2, 0); A(qp.pop(0))
    M("k", 0, order[2]); wof(2, 1); A(qp.pop(0)); A(qp.pop(0))
    M("k", 0, order[3]); qwr(QA + 6, 128); tq = ld.issue(f"ds_read_b64_tr_b16 v[{SOP+2}:{SOP+3}], v{vCRW} offset:{L_QK+512}")
    M("k", 0, order[4]); late(1)
    M("k", 0, order[5]); ld.wait(tmh); vm.issue(f"buffer_store_dwordx2 v[{SOP+12}:{SOP+13}], v{vAGS}, {W}, s{sMH} offen sc1")
    kp = kpost(KA_)
    M("k", 1, order[0]); late(2)
    NK = P.get("nk", 2)
    for i in range(1, NK): M("k", 1, order[i])
    ld.wait(tq); A(kp.pop(0))
    A(mf(SOP + 4, KXR, SOP)); A(kp.pop(0)); A(kp.pop(0))
    A(mf(SOP + 8, KXR + 4, SOP)); ld.issue(f"ds_write_b32 v{vCQ}, v{KA_+2}")
    sel = [f"v_cndmask_b32 v{X+i}, v{SOP+4+i}, v{SOP+8+i}, {H}" for i in range(4)]
    Vq = [("k", 1, order[i]) for i in range(NK, 6)] + own + [("v", 0, lam) for lam in order] + [("v", 1, lam) for lam in order]
    def vq(n=1):
        for _ in range(n): M(*Vq.pop(0))
    vs = [lambda: (late(3), A(f"v_mov_b32 v{PM}, 0"))] + [(lambda x=x: A(x)) for x in sel]
    for _ in range(NK, 6):
        vq(); vs.pop(0)()
    vq()
    while vs: vs.pop(0)()
    kp = kpost(KA_ + 4)
    vq(); ld.issue(f"ds_write_b128 v{vW16}, v[{X}:{X+3}] offset:{L_PS}")
    for x in kp: A(x)
    vq(); tk = ld.issue(f"ds_write_b32 v{vCQ}, v{KA_+6} offset:512"); A(f"s_waitcnt vmcnt({6 if FL else 5})"); A(f"v_mov_b32 v{PM+3}, 0")
    SM, ONES = MEMA, MEMA + 4
    on = [f"v_mov_b64 v[{ONES}:{ONES+1}], s[{sONE}:{sONE+1}]", f"v_mov_b64 v[{ONES+2}:{ONES+3}], s[{sONE}:{sONE+1}]"]
    for i in range(P.get("vq1", 3)):
        vq()
        if on and i + 1 < P.get("vq1", 3): A(on.pop(0))
    ld.wait(tk)
    A("s_barrier")
    ts = []; tp = []
    def rd_s(c, h):
        t = ld.issue(f"ds_read_b64_tr_b16 v[{SOP+4*c+2*h}:{SOP+4*c+2*h+1}], v{vCRW+c} offset:{L_QK+h*512}")
        if h: ts.append(t)
    def rd_p(x): tp.append(ld.issue(f"ds_read_b128 v[{X+4*x}:{X+4*x+3}], v{vW16+x} offset:{L_PS}"))
    vp0 = half_sum(VA) + [f"v_cvt_pk_bf16_f32 v{VA+2}, v{VA}, v{VA+1}"]
    vp1 = half_sum(VA + 4) + [f"v_cvt_pk_bf16_f32 v{VA+3}, v{VA+4}, v{VA+5}"]
    fv = on
    rd_p(1); rd_p(2); vq(); rd_p(3)
    for c in range(4):
        vq(); rd_s(c, 0); rd_s(c, 1)
        if len(Vq) == 4: fv += vp0; vp0 = []
        if c == 3: ld.wait(tp[2])
        if fv: A(fv.pop(0))
    fv += vp0
    E = MEMA + 8; CK = T0
    adds = [f"v_add_f32 v{X+i}, v{X+i}, v{X+4+i}" for i in range(4)] + [f"v_add_f32 v{X+8+i}, v{X+8+i}, v{X+12+i}" for i in range(4)] + \
           [f"v_add_f32 v{X+i}, v{X+i}, v{X+8+i}" for i in range(4)]
    while Vq:
        vq()
        if not Vq:
            ld.wait(ts[1])
            if P.get("kearly") == 2: vm.issue(f"buffer_store_dwordx4 v[{SOP}:{SOP+3}], v{vW16}, {W}, s{sKM} offen sc1")
        A(adds.pop(0))
    PUB = P.get("pub", "sc1")
    def pub(txt):
        if PUB != "none": vm.issue(txt + " " + PUB)
    A(mf(SM, SOP, SOP))
    if P.get("kearly", 0) == 1: pub(f"buffer_store_dwordx4 v[{SOP}:{SOP+3}], v{vW16}, {W}, s{sKM} offen")
    A(adds.pop(0)); A(adds.pop(0))
    A(mf(SM, SOP + 4, SOP + 4, SM)); ld.wait(ts[3]); A(adds.pop(0)); A(adds.pop(0))
    A(mf(SM, SOP + 8, SOP + 8, SM)); A(adds.pop(0)); A(adds.pop(0))
    A(mf(SM, SOP + 12, SOP + 12, SM))
    while adds: A(adds.pop(0))
    PVA, ZA = X + 4, X + 12
    for i in range(4): A(f"v_exp_f32 v{E+i}, v{X+i}")
    A(f"v_cvt_pk_bf16_f32 v{E}, v{E}, v{E+1}\nv_mul_f32 v{SM}, s{sC}, v{SM}\nv_cvt_pk_bf16_f32 v{E+1}, v{E+2}, v{E+3}")
    def selp():
        A(f"v_cndmask_b32 v{PX}, v{E}, 0, {H}\nv_cndmask_b32 v{PX+1}, v{E+1}, 0, {H}")
        A(f"v_cndmask_b32 v{PX+2}, 0, v{E}, {H}\nv_cndmask_b32 v{PX+3}, 0, v{E+1}, {H}")
    selp()
    A(f"v_mul_f32 v{SM+1}, s{sC}, v{SM+1}\nv_exp_f32 v{E+4}, v{SM}")
    A(mf(ZA, PX, ONES))
    if not P.get("kearly", 0): pub(f"buffer_store_dwordx4 v[{SOP}:{SOP+3}], v{vW16}, {W}, s{sKM} offen")
    fv += vp1
    A(f"v_exp_f32 v{E+5}, v{SM+1}"); A(fv.pop(0))
    A(mf(PVA, PX, VX))
    A(f"s_add_u32 s{sTmp+4}, s{sKM}, 4096")
    A(f"v_cvt_pk_bf16_f32 v{E+4}, v{E+4}, v{E+5}"); A(fv.pop(0))
    A(mf(PVA + 4, PX, VX + 4))
    A(f"v_cndmask_b32 v{PM+1}, 0, v{E+4}, {H}\nv_cndmask_b32 v{PM+2}, 0, v{E+4}, {H}")
    for x in fv: A(x)
    A(f"v_lshrrev_b32 v{SOP+4}, 1, v{vW16}")
    A(mf16(ZA, PM, ONES, ZA))
    VE = P.get("vearly", 1)
    if VE: pub(f"buffer_store_dwordx2 v[{VA+2}:{VA+3}], v{SOP+4}, {W}, s{sTmp+4} offen")
    A(f"v_max3_f32 v{CK}, |v{X}|, |v{X+1}|, |v{X+2}|")
    A(f"v_max_f32 v{E+2}, |v{SM}|, |v{SM+1}|")
    A(mf16(PVA, PM + 2, VA + 2, PVA))
    A(f"v_cndmask_b32 v{E+2}, 0, v{E+2}, {H}")
    A(f"v_max3_f32 v{CK}, |v{X+3}|, v{E+2}, v{CK}")
    A(f"v_cmp_lt_f32 vcc, 0x42700000, v{CK}")
    A(mf16(PVA + 4, PM, VA + 2, PVA + 4))
    WA = [MEMA + 8 + 4 * i for i in range(6)][::-1] + [VX, VX + 4]
    zl = [r for a in WA for r in (a, a + 2)]
    A(f"s_cbranch_vccnz {FB}")
    A(f"{FBR}:")
    for x in half_sum(ZA): A(x)
    A(f"v_rcp_f32 v{ZA}, v{ZA}\nv_rcp_f32 v{ZA+1}, v{ZA+1}")
    A(f"v_pk_add_f32 v[{PVA}:{PVA+1}], v[{PVA}:{PVA+1}], v[{PVA+2}:{PVA+3}]")
    A(f"v_pk_add_f32 v[{PVA+4}:{PVA+5}], v[{PVA+4}:{PVA+5}], v[{PVA+6}:{PVA+7}]")
    A(f"v_pk_mul_f32 v[{PVA}:{PVA+1}], v[{PVA}:{PVA+1}], v[{ZA}:{ZA+1}]")
    A(f"v_pk_mul_f32 v[{PVA+4}:{PVA+5}], v[{PVA+4}:{PVA+5}], v[{ZA}:{ZA+1}]")
    A(f"v_cvt_pk_bf16_f32 v{PVA+2}, v{PVA}, v{PVA+1}")
    A(f"v_cvt_pk_bf16_f32 v{PVA+3}, v{PVA+4}, v{PVA+5}")
    two = ld.issue(f"ds_write_b64 v{vCQ}, v[{PVA+2}:{PVA+3}] offset:{L_O}")
    for _ in range(P.get("z1", 12)): A(z64(zl.pop(0)))
    ld.wait(two)
    A("s_barrier")
    OOP = KXR
    to = [ld.issue(f"ds_read_b64_tr_b16 v[{OOP+2*i}:{OOP+2*i+1}], v{vCR} offset:{L_O+i*1024}") for i in range(4)]
    pubs = [f"buffer_store_dwordx4 v[{SOP}:{SOP+3}], v{vW16}, {W}, s{sKM} offen",
            f"buffer_store_dwordx2 v[{VA+2}:{VA+3}], v{SOP+4}, {W}, s{sTmp+4} offen"]
    OUT = QA
    def post(T):
        a = WA[T]
        return half_sum(a) + [f"v_cvt_pk_bf16_f32 v{OUT+T}, v{a}, v{a+1}"] + ([f"v_and_or_b32 v{OUT+T}, v{OUT+T}, -2, s{sPar}"] if T % 4 == 0 else [])
    pend = [z64(r) for r in zl]
    fq = [(3, 0), (3, 1), (4, 0), (4, 1), (5, 0), (5, 1)]
    sal = [f"s_and_b32 s{sPar}, s{sIt}, 1", f"s_add_u32 s{sIt}, s{sIt}, 1",
           f"s_add_u32 s{sStep}, s{sStep}, 1", f"s_and_b32 s{sAG}, s{sIt}, 3", f"s_lshl_b32 s{sAG}, s{sAG}, 13"]
    for x in sal: A(x)
    if not VE: pub(pubs[1])
    A(f"s_cmp_eq_u32 s{sStep}, {NSEG}\ns_cbranch_scc1 {LAST}")
    done_st0 = False
    seq = list(WO_ORDER)
    if P.get("wsw", 1): seq[1], seq[2] = seq[2], seq[1]
    for i, (T, ko) in enumerate(seq):
        kind, x = LOC[("o", T, ko)]
        if i == 0: ld.wait(to[1])
        if kind == "l": ld.wait(wo_tok[x - NE])
        A(smf(WA[T], OOP + 4 * ko, x if kind == "r" else WSLOT[x - NE]))
        if i == P.get("wsw", 1): ld.wait(to[3])
        if i == 12: ld.wait(wo_tok[5])
        if not done_st0 and i >= 10 and not any(f"v{OUT+3}," in p for p in pend):
            vm.issue(f"buffer_store_dwordx4 v[{OUT}:{OUT+3}], v{vPS}, {W}, s{sIn} offen {STF}"); done_st0 = True
        if i >= 5 and i % 2 == 1: pend += post((i - 3) // 2)
        if i == 3 + P.get("wsw", 1): pend += post(0)
        if fq and i >= P.get("wf0", 0): wof(*fq.pop(0))
        n = 0
        while pend and n < (1 if i < 3 else 2): A(pend.pop(0)); n += 1
    for x in pend: A(x)
    assert done_st0
    RA, SEL = VA, VA + 4
    a = WA[7]
    A(f"v_pk_add_f32 v[{a}:{a+1}], v[{a}:{a+1}], v[{a+2}:{a+3}]\nv_cvt_pk_bf16_f32 v{OUT+7}, v{a}, v{a+1}")
    vm.issue(f"buffer_store_dwordx4 v[{OUT+4}:{OUT+7}], v{vPS}, {W}, s{sIn+1} offen {STF}")
    snap(3)
    A(f"""
    s_add_u32 s{sAG}, s{sAG}, s{sAgr}
    s_add_u32 s{sAG+1}, s{sAG}, 4096
    s_add_u32 s{sKV}, s{sKV}, {KVS}
    s_add_u32 s{sKM}, s{sKM}, {0 if P.get("samekm") else 32*8192}
    s_add_u32 s{sFkv}, s{sFkv}, 4096
    s_add_u32 s{sFkm}, s{sFkm}, 2048
    s_andn2_b32 s{sFkm}, s{sFkm}, s{sFm}
    """)
    A(f"s_add_u32 s{sMH}, s{sMH}, 8192\ns_add_u32 s{sFg}, s{sFkv}, s{sFo}")
    if not ZL:
        for r in range(QA + 8, QA + 16, 2): A(z64(r))
        for r in range(QA, QA + 8, 2): A(z64(r))
    SETS = [MEMA, ST[0]]
    def inbox_load(b, it):
        r = SETS[b] + 4 * it
        A(f"buffer_load_dwordx4 v[{r}:{r+3}], v{vL16}, {W}, s{sBox + it // 4} offen offset:{(it % 4) * 1024} sc1")
    OTH, P1R = A.label("c_oth"), A.label("c_p1r")
    A(f"s_cmp_lg_u32 s{sW}, 0\ns_cbranch_scc1 {OTH}")
    A(f"s_mov_b32 s{sTmp+2}, 0\ns_add_u32 s{sCnt}, s{sCnt}, 1")
    PZ = RA
    N1 = P.get('n1', 3)
    A(f"v_mov_b64 v[{PZ}:{PZ+1}], -1\ns_xor_b32 s{sTmp+8}, s{sAG}, {2 << 13}")
    A(f"buffer_store_dwordx2 v[{PZ}:{PZ+1}], v{vAGS}, {W}, s{sTmp+8} offen {STF}")
    A(f"s_mov_b32 vcc_lo, 0xaaaaaaaa\ns_mov_b32 vcc_hi, 0xaaaaaaaa\nv_mov_b32 v{T0}, 0x3f80\nv_cndmask_b32 v{T0}, v{T0}, 1.0, vcc")
    for r in range(4):
        A(f"s_mov_b32 vcc_lo, {hex(0x00030003 << (2*r))}\ns_mov_b32 vcc_hi, {hex(0x00030003 << (2*r))}\nv_cndmask_b32 v{SEL+r}, 0, v{T0}, vcc")
    l1s = {1: [(10 - N1, 10)], 2: [(10 - N1, 11 - N1), (11 - N1, 10)], 3: [(7, 8), (8, 9), (9, 10)]}[P.get("l1", 2)]
    EB = P.get("eb", 1) if SP else 9
    ERL, ERL2 = A.label("c_erl"), A.label("c_erl2")
    for n, (lo, hi) in enumerate(l1s):
        if n == EB: A(f"s_cmp_lt_u32 s{sJ}, 16\ns_cbranch_scc1 {ERL}")
        stage(lo, hi); A("s_waitcnt lgkmcnt(0)")
    A(f"{ERL}:")
    if P.get("w1") is not None: A(f"s_waitcnt vmcnt({P['w1']})")
    delay(A, P.get("d1", 0))
    snap(4)
    for it in range(8): inbox_load(0, it)
    snap(5)
    delay(A, P.get("g1", 0))
    ONE = P.get("one", 0)
    if not ONE:
        for it in range(8): inbox_load(1, it)
    A(f"s_buffer_load_dword s{sRdy}, {W}, s{sFkv}" + ("" if SK_ else f"\ns_buffer_load_dword s{sG}, {W}, s{sFg}"))
    def rpass(b, fail, first=False):
        for it in range(8):
            r = SETS[b] + 4 * it
            A(f"s_waitcnt vmcnt({15-it if first and not ONE else 7-it})")
            if first and it == 0: snap(6)
            if first and it == 7: snap(7)
            A(mf(RA, r, SEL, RA if it else None))
            if it == 0: A(f"v_xor_b32 v{T0}, s{sPar}, v{r}")
            else: A(f"v_bitop3_b32 v{T0}, v{T0}, v{r}, s{sPar} bitop3:0xf6")
        A(f"v_and_b32 v{T0}, 1, v{T0}\nv_cmp_ne_u32 vcc, 0, v{T0}")
        if first: A(f"v_mov_b32 v{T0}, 0\nv_mov_b32 v{T0}, 0\ns_cbranch_vccnz {fail}")
        else: A(f"s_add_u32 s{sCnt}, s{sCnt}, 1\ns_cbranch_vccz {fail}")
    rpass(0, P1R, True)
    PUBL = A.label("c_publ")
    A(f"{PUBL}:")
    A(f"v_cvt_pk_bf16_f32 v{RA}, v{RA}, v{RA+1}\nv_cvt_pk_bf16_f32 v{RA+1}, v{RA+2}, v{RA+3}")
    A(f"v_min_u32 v{RA}, -2, v{RA}\nv_min_u32 v{RA+1}, -2, v{RA+1}")
    A(f"buffer_store_dwordx2 v[{RA}:{RA+1}], v{vAGS}, {W}, s{sAG} offen {STF}")
    if SP:
        if P.get("hw", 1) == 1: A("s_waitcnt vmcnt(1)")
        A(f"s_cmp_lt_u32 s{sJ}, 16\ns_cbranch_scc0 {ERL2}")
        for lo, hi in l1s[EB:]:
            stage(lo, hi)
            if P.get("ew", 1): A("s_waitcnt lgkmcnt(0)")
        A(f"{ERL2}:")
        if P.get("hw", 1) == 2: A("s_waitcnt vmcnt(1)")
    else:
        if not ONE: A("s_waitcnt vmcnt(1)")
        stage(0, 10 - N1)
    if P.get("l2") is not None: A(f"s_waitcnt lgkmcnt({P['l2']})")
    for r in range(VA + 2, VA + 8 - 8 * ZL, 2): A(z64(r))
    if P.get("w2") is not None: A(f"s_waitcnt vmcnt({P['w2']})")
    A(f"{HOP2}:")
    snap(8)
    A("s_barrier")
    if P.get("ftrace"): trace(A, 4, MEMA)
    if P.get("snap"):
        SN = A.label("c_sn")
        A(f"s_cmp_lg_u32 s{sStep}, {P['snap']}\ns_cbranch_scc1 {SN}\ns_waitcnt lgkmcnt(0)")
        for i in range(9): A(f"s_mov_b32 s{sAcc+1+i}, s{sSt+2*i}")
        A(f"{SN}:")
    if stamps:
        A("s_waitcnt lgkmcnt(0)")
        A(f"s_cmp_gt_u32 s{sStep}, 16")
        i = 11
        A(f"s_cselect_b32 s{sTmp}, s{sSt+2*i}, s{sSt}\ns_sub_u32 s{sTmp}, s{sTmp}, s{sSt}\ns_add_u32 s{sAcc+i}, s{sAcc+i}, s{sTmp}")
    if P.get("steady", 1):
        SK = A.label("c_sk")
        A(f"s_cmp_lg_u32 s{sStep}, 16\ns_cbranch_scc1 {SK}\ns_memtime s[56:57]\ns_mov_b32 s{sCnt}, 0\ns_mov_b32 s{sCnt+1}, 0\n{SK}:")
    delay(A, P.get("d2", 0))
    FK0 = A.label("c_fk0")
    A(f"s_cmp_le_u32 s{sKVd}, s{sKV}\ns_cbranch_scc1 {LOOP}\ns_cmp_lg_u32 s{sKVd}, {WS_BYTES}\ns_cbranch_scc1 {FK0}")
    A(f"buffer_store_dwordx2 v[{RA}:{RA+1}], v{vAGS}, {W}, s{sMH} offen sc1")
    kv_wait()
    A(f"s_cmp_eq_u32 s{sFork}, 0\ns_cbranch_scc1 {LOOP}")
    FK = A.label("c_fk")
    A(f"{FK0}:")
    def ag_wait(lab):
        A(f"s_mov_b32 s{sTmp+3}, 0\n{lab}:")
        ag_loads()
        A(f"s_add_u32 s{sTmp+3}, s{sTmp+3}, 1\ns_cmp_gt_u32 s{sTmp+3}, {SPIN_MAX}\ns_cbranch_scc1 {FAIL}")
        A(f"s_waitcnt vmcnt(0)\nv_max3_u32 v{T0}, v{m0}, v{m0+1}, v{m0+2}\nv_max3_u32 v{T0}, v{m0+3}, v{m4}, v{T0}\nv_max3_u32 v{T0}, v{m4+1}, v{m4+2}, v{T0}\nv_max_u32 v{T0}, v{T0}, v{m4+3}")
        A(f"v_cmp_eq_u32 vcc, -1, v{T0}\ns_cbranch_vccnz {lab}")
    ag_wait(FK)
    FK1 = A.label("c_fk1")
    A(f"{FK1}:\ns_lshl_b32 s{sAG}, s{sStep}, 13\ns_add_u32 s{sAG}, s{sAG}, {MEMH}\ns_add_u32 s{sAG+1}, s{sAG}, 4096\ns_mov_b32 s{sFork}, 0")
    A(f"s_branch {LOOP}")
    if P.get("skip", 1):
        XP, XS = A.label("c_xp"), A.label("c_xs")
        A(f"{XB}:\ns_cmp_lg_u32 s{sFgS}, 1\ns_cbranch_scc1 {XR}\ns_cmp_ge_u32 s{sStep}, {NSEG-1}\ns_cbranch_scc1 {XR}\n{XP}:")
        A(f"s_cmp_lg_u32 s{sRdy}, 0\ns_cbranch_scc1 {XS}\nbuffer_load_dword v{T0}, off, {W}, s{sFkv} sc1")
        A(f"s_add_u32 s{sTmp+3}, s{sTmp+3}, 1\ns_cmp_gt_u32 s{sTmp+3}, {SPIN_MAX}\ns_cbranch_scc1 {FAIL}")
        A(f"s_waitcnt vmcnt(0)\nv_readfirstlane_b32 s{sRdy}, v{T0}\ns_branch {XP}\n{XS}:\ns_cmp_eq_u32 s{sRdy}, 1\ns_cbranch_scc1 {XR}")
        ag_wait(A.label("c_xw"))
        A(f"v_mov_b32 v{T0}, 1\ns_barrier\ns_mov_b64 exec, 1\nbuffer_store_dword v{T0}, off, {W}, s{sFkm} sc1\ns_mov_b64 exec, -1")
        A(f"s_add_u32 s{sStep}, s{sStep}, 1\ns_add_u32 s{sKV}, s{sKV}, {KVS}\ns_add_u32 s{sKM}, s{sKM}, {32*8192}\ns_add_u32 s{sFkv}, s{sFkv}, 4096")
        A(f"s_add_u32 s{sFkm}, s{sFkm}, 2048\ns_andn2_b32 s{sFkm}, s{sFkm}, s{sFm}")
        kv_wait(True)
        A(f"s_branch {FK1}")
    A(f"{LAST}:")
    if FL: A(f"s_add_u32 s{sFkm}, s{sFkm}, 2048\nv_mov_b32 v{T0}, 1\ns_waitcnt vmcnt(0)\ns_barrier\ns_mov_b64 exec, 1\nbuffer_store_dword v{T0}, off, {W}, s{sFkm} sc1\ns_mov_b64 exec, -1")
    A(f"s_branch {P.get('done', FAIL)}")
    A(f"{OTH}:")
    trace(A, 1, MEMA, sStep)
    trace_clk(A, MEMA)
    A(f"s_buffer_load_dword s{sRdy}, {W}, s{sFkv}" + ("" if SK_ else f"\ns_buffer_load_dword s{sG}, {W}, s{sFg}"))
    stage(0, 10)
    for r in range(VA + 2, VA + 8 - 8 * ZL, 2): A(z64(r))
    A(f"s_branch {HOP2}")
    A(f"{P1R}:")
    if ONE:
        for it in range(8): inbox_load(0, it)
        rpass(0, PUBL)
    else:
        rpass(1, PUBL)
        for it in range(8): inbox_load(1, it)
    A(f"s_add_u32 s{sTmp+2}, s{sTmp+2}, 1\ns_cmp_gt_u32 s{sTmp+2}, {SPIN_MAX}\ns_cbranch_scc0 {P1R}\ns_branch {FAIL}")
    RL = A.label("c_rl")
    A(f"{RETRY}:")
    for r in range(QA, QA + 12, 2): A(z64(r))
    if SP:
        for h, (R, G) in enumerate([(RL, GOT), (RETL, GOTL)]):
            R2, R3 = A.label("c_r2"), A.label("c_r3")
            A(f"{R}:\ns_waitcnt vmcnt({0 if h else 1 if E2 == 2 else 2})\ns_branch {R3}\n{R2}:")
            if h == 0: agl(0)
            agl(1)
            A(f"s_add_u32 s{sTmp+2}, s{sTmp+2}, 1\ns_cmp_gt_u32 s{sTmp+2}, {SPIN_MAX}\ns_cbranch_scc1 {FAIL}\ns_waitcnt vmcnt(0)\n{R3}:")
            A(f"s_add_u32 s{sCnt+1}, s{sCnt+1}, {1 << (16*h)}")
            agc(h)
            A(f"v_cmp_eq_u32 vcc, -1, v{T0}\ns_cbranch_vccnz {R2}")
            agw(h)
            if h == 0: M(*OWN[0]); M(*OWN[1]); M(*OWN[2])
            A(f"s_branch {G}")
    else:
        A(f"{RL}:")
        ag_loads()
        A(f"s_add_u32 s{sTmp+2}, s{sTmp+2}, 1\ns_add_u32 s{sCnt+1}, s{sCnt+1}, 1\ns_cmp_gt_u32 s{sTmp+2}, {SPIN_MAX}\ns_cbranch_scc1 {FAIL}")
        A(f"s_waitcnt vmcnt({2+npo})")
        A(f"v_max3_u32 v{T0}, v{m0}, v{m0+1}, v{m0+2}\nv_max3_u32 v{T0}, v{m0+3}, v{m4}, v{T0}\nv_max3_u32 v{T0}, v{m4+1}, v{m4+2}, v{T0}\nv_max_u32 v{T0}, v{T0}, v{m4+3}")
        A(f"v_cmp_eq_u32 vcc, -1, v{T0}\ns_cbranch_vccnz {RL}")
        A(f"ds_write_b128 v{vW16}, v[{m0}:{m0+3}] offset:{L_MEM}")
        M(*OWN[0])
        A(f"ds_write_b128 v{vW16}, v[{m4}:{m4+3}] offset:{L_MEM+4096}")
        M(*OWN[1]); M(*OWN[2])
        A(f"s_branch {GOT}")
    A(f"{FB}:")
    A(f"v_max3_f32 v{CK}, v{X}, v{X+1}, v{X+2}\nv_max_f32 v{CK}, v{X+3}, v{CK}")
    A(f"s_mov_b64 exec, {H}\nv_max3_f32 v{CK}, v{SM}, v{SM+1}, v{CK}\ns_mov_b64 exec, -1")
    xlane(A, "v_max_f32", CK, E)
    for i in range(4): A(f"v_sub_f32 v{E+i}, v{X+i}, v{CK}")
    for i in range(2): A(f"v_sub_f32 v{E+4+i}, v{SM+i}, v{CK}")
    for i in range(6): A(f"v_exp_f32 v{E+i}, v{E+i}")
    A(f"v_cvt_pk_bf16_f32 v{E}, v{E}, v{E+1}\nv_cvt_pk_bf16_f32 v{E+1}, v{E+2}, v{E+3}\nv_cvt_pk_bf16_f32 v{E+4}, v{E+4}, v{E+5}")
    selp()
    A(f"v_cndmask_b32 v{PM+1}, 0, v{E+4}, {H}\nv_cndmask_b32 v{PM+2}, 0, v{E+4}, {H}")
    A(mf(ZA, PX, ONES)); A(mf(PVA, PX, VX)); A(mf(PVA + 4, PX, VX + 4))
    A(mf16(ZA, PM, ONES, ZA)); A(mf16(PVA, PM + 2, VA + 2, PVA)); A(mf16(PVA + 4, PM, VA + 2, PVA + 4))
    A(f"s_branch {FBR}")
    A(f"{FAIL}:")
```

```python
import sys
from asmlib import *
from layout import *
import common
import chain as C, qkv as Q, orole as O
from chain import sWS, sT, sJ, sW, sTmp

NAME = "interleave_layers__memory_aug_recurrent_mem_tr__moe_arch_mod__prompt"
KN = NAME + "_kernel"
sDbg = 12
sSlot = 90
sXcd = 91
sReal = 89
D_GO = 128

def wait_go(A, team, nw, fail, vt=20):
    L = A.label("g_wt")
    A(f"v_mbcnt_lo_u32_b32 v{vt}, -1, 0\nv_and_b32 v{vt}, {nw-1}, v{vt}\nv_add_lshl_u32 v{vt}, v{vt}, {team}, 2")
    A(f"s_mov_b32 s{sTmp}, 0\n{L}:\nglobal_load_dword v{vt+1}, v{vt}, s[{sDbg}:{sDbg+1}] offset:{D_GO} sc1")
    A(f"s_add_u32 s{sTmp}, s{sTmp}, 1\ns_cmp_gt_u32 s{sTmp}, {SPIN_MAX}\ns_cbranch_scc1 {fail}\ns_waitcnt vmcnt(0)")
    A(f"v_cmp_eq_u32 vcc, 0, v{vt+1}\nv_readfirstlane_b32 s{sTmp+1}, v{vt+1}\ns_cbranch_vccnz {L}")

def arrive(A, team, vt=20, st=sTmp + 10):
    L = A.label("g_ar")
    A(f"s_cmp_lg_u32 s{sW}, 0\ns_cbranch_scc1 {L}\ns_lshl_b32 s{st}, s{sReal}, 3\ns_lshl_b64 s[{st}:{st+1}], 1, s{st}")
    A(f"v_lshlrev_b32 v{vt+4}, 3, {team}\nv_mov_b32 v{vt}, s{st}\nv_mov_b32 v{vt+1}, s{st+1}\ns_mov_b64 exec, 1")
    A(f"global_atomic_add_x2 v[{vt+2}:{vt+3}], v{vt+4}, v[{vt}:{vt+1}], s[{sDbg}:{sDbg+1}] sc0\ns_mov_b64 exec, -1\n{L}:")

def arrive_fin(A, n, vt=20, st=sTmp + 10):
    L = A.label("g_af")
    A(f"""
    s_cmp_lg_u32 s{sW}, 0
    s_cbranch_scc1 {L}
    v_readfirstlane_b32 s{st}, v{vt+2}
    v_readfirstlane_b32 s{st+1}, v{vt+3}
    s_add_u32 s{st+2}, s{st}, s{st+1}
    s_mul_i32 s{st+2}, s{st+2}, 0x01010101
    s_lshr_b32 s{st+2}, s{st+2}, 24
    s_cmp_lg_u32 s{st+2}, {n-1}
    s_cbranch_scc1 {L}
    s_lshl_b32 s{st+2}, s{sReal}, 3
    s_lshr_b64 s[{st}:{st+1}], s[{st}:{st+1}], s{st+2}
    s_and_b32 s{st}, s{st}, 0xff
    s_cmp_eq_u32 s{st}, {n-1}
    s_cselect_b32 s{st}, 1, 2
    v_mov_b32 v{vt}, s{st}
    v_lshrrev_b32 v{vt+4}, 1, v{vt+4}
    s_mov_b64 exec, 1
    global_store_dword v{vt+4}, v{vt}, s[{sDbg}:{sDbg+1}] offset:{D_GO} sc1
    s_mov_b64 exec, -1
    {L}:
    """)

def entry(A, P):
    A(f"""
    s_cmp_ge_u32 s2, 256
    s_cbranch_scc1 L_end
    s_mov_b32 s{sWS+2}, {WS_BYTES}
    s_mov_b32 s{sWS+3}, 0x20000
    s_mov_b32 s{sT+3}, 0x20000
    s_getreg_b32 s{sReal}, hwreg(HW_REG_XCC_ID)
    s_and_b32 s{sReal}, s{sReal}, 7
    v_lshrrev_b32 v1, 6, v0
    s_and_b32 s{sXcd}, s2, 7
    s_lshr_b32 s{sSlot}, s2, 3
    v_readfirstlane_b32 s{sW}, v1
    """)
    if P.get("gmap"):
        A(f"s_lshl_b32 s{sXcd}, s{sXcd}, 2\ns_lshr_b32 s{sXcd}, {hex(sum(g << (4*i) for i, g in enumerate(P['gmap'])))}, s{sXcd}\ns_and_b32 s{sXcd}, s{sXcd}, 7")
    if P.get("fake_xcc"): A(P["fake_xcc"])
    A(f"""
    s_lshl_b32 s100, s{sXcd}, 5
    s_add_u32 s100, s100, s{sSlot}
    s_lshl_b32 s100, s100, 2
    s_add_u32 s100, s100, s{sW}
    s_lshl_b32 s100, s100, 12
    s_add_u32 s100, s100, {TRACE}
    s_cmp_lt_u32 s{sXcd}, 3
    s_cbranch_scc1 L_chain
    s_cmp_eq_u32 s{sXcd}, 7
    s_cbranch_scc1 L_qkv
    s_bitcmp1_b32 s{sSlot}, 4
    s_cbranch_scc1 L_qkv
    s_branch L_o
    """)

def late_args(A):
    A(f"s_load_dwordx2 s[{sWS}:{sWS+1}], s[0:1], {KA['ws']}\ns_load_dwordx2 s[{sDbg}:{sDbg+1}], s[0:1], {KA['dbg']}")

def hold(A, head, vt, mask=-1):
    L = A.label("g_h")
    A(f"s_lshl_b32 s{sTmp+1}, s{head}, 6\ns_add_u32 s{sTmp+1}, s{sTmp+1}, {F_KM}\ns_mov_b32 s{sTmp}, 0\n{L}:\nbuffer_load_dwordx2 v[{vt}:{vt+1}], off, s[{sWS}:{sWS+3}], s{sTmp+1} sc1")
    A(f"s_add_u32 s{sTmp}, s{sTmp}, 1\ns_cmp_gt_u32 s{sTmp}, {SPIN_MAX}\ns_cbranch_scc1 L_end\ns_waitcnt vmcnt(0)")
    A(f"v_and_or_b32 v{vt}, v{vt+1}, {mask}, v{vt}\nv_cmp_eq_u32 vcc, 0, v{vt}\ns_cbranch_vccnz {L}")

def chain_role(A, P):
    A("L_chain:")
    if "a" in P.get("kill", ""): A(f"s_cmp_lg_u32 s{sXcd}, 0\ns_cbranch_scc1 L_end")
    late_args(A)
    A(f"s_mov_b32 s{sJ}, s{sSlot}\ns_mov_b32 s{C.sChain}, s{sXcd}\ns_min_u32 s{C.sLayer}, s{sXcd}, 1")
    C.lane_consts(A)
    def sync():
        common.trace(A, 0, 28)
        A(f"v_mov_b64 v[28:29], 0\nv_mov_b64 v[30:31], 0")
        A(f"s_lshl_b32 s{sTmp}, s{sJ}, 12\ns_cmp_eq_u32 s{sXcd}, 0\ns_cbranch_scc1 L_ch1\ns_cmp_eq_u32 s{sXcd}, 2\ns_cbranch_scc1 L_ch2")
        for base, n, r in ((FLAGS, 17, 28), (MEMH, 22, 24), (OBOX + 4*MB, 16, 28)):
            if r == 24: A("s_branch L_ch0\nL_ch2:")
            for i in range(n):
                A(f"s_add_u32 s{sTmp+1}, s{sTmp}, {base + i*128*KB}\nbuffer_store_dwordx4 v[{r}:{r+3}], v{C.vW16}, s[{sWS}:{sWS+3}], s{sTmp+1} offen sc1")
        A("L_ch0:\ns_waitcnt vmcnt(0)\ns_barrier")
        arrive(A, f"s{sXcd}", 120)
        A("s_waitcnt vmcnt(0)")
        arrive_fin(A, 32, 120)
        A("L_ch1:")
    assert MLPY == MEMH + 512*KB
    vm, fin = C.chain_prologue(A, sync)
    def only0(f):
        L = A.label("g_o0")
        A(f"s_cmp_lg_u32 s{sXcd}, 0\ns_cbranch_scc1 {L}"); f(); A(f"{L}:")
    hooks = {0: lambda: only0(lambda: arrive(A, 0, 120)), 4: lambda: only0(lambda: arrive_fin(A, 32, 120))}
    def sig():
        A(f"s_or_b32 s{sTmp+10}, s{sXcd}, s{sW}\ns_cbranch_scc1 L_sig\ns_lshl_b32 s{sTmp+10}, s{sJ}, 6\ns_add_u32 s{sTmp+10}, s{sTmp+10}, {F_KM + 4}\nv_mov_b32 v120, 1")
        A(f"s_mov_b64 exec, 1\nbuffer_store_dword v120, off, s[{sWS}:{sWS+3}], s{sTmp+10} sc1\ns_mov_b64 exec, -1\nL_sig:")
    if P.get("sig"): hooks[P["sig"]] = sig
    def peek1():
        A(f"v_mbcnt_lo_u32_b32 v116, -1, 0\nv_and_b32 v116, 1, v116\nv_lshlrev_b32 v118, 2, v116\nglobal_load_dword v117, v118, s[{sDbg}:{sDbg+1}] offset:{D_GO} sc1")
    def peek2():
        A(f"v_cmp_eq_u32 vcc, 0, v117\nv_lshlrev_b32 v116, 12, v116\ns_or_b32 s{C.sPk}, vcc_lo, s{sXcd}\ns_cselect_b32 s{C.sPk}, 0, 1")
        A(f"s_lshl2_add_u32 s{sTmp+10}, s{sJ}, s{sW}\ns_lshl_b32 s{sTmp+10}, s{sTmp+10}, 5\ns_add_u32 s{sTmp+10}, s{sTmp+10}, {F_KV}")
        A(f"buffer_load_dword v118, v116, s[{sWS}:{sWS+3}], s{sTmp+10} offen sc1")
    hooks[6] = peek1; hooks[10] = peek2; hooks[12] = lambda: A("s_waitcnt vmcnt(0)")
    assert P.get("cdep", 5) <= 3 and P.get("sig") not in (0, 4, 6, 10)
    def hold_a():
        A(f"s_cmp_eq_u32 s{sXcd}, 0\ns_cbranch_scc1 L_ha")
        wait_go(A, 1, 1, "L_end", 116)
        A(f"s_and_b32 s{sTmp+2}, s{sJ}, {P.get('hmask', 28)}\ns_or_b32 s{sTmp+2}, s{sTmp+2}, {1 if P.get('hmask', 28) == 28 else 0}")
        hold(A, sTmp + 2, 116, f's{sXcd}' if P.get('blate', 0) else -1)
        A("L_ha:")
    if "a" in P.get("hold", ""): hooks[-3] = hold_a
    if "b" in P.get("hold", ""): hooks[-2] = hold_a
    C.chain_load_weights(A, vm, fin, hooks, P.get("order", "kqv"), warm=P.get("warm", ""), early=P.get("early", 1), depth=P.get("cdep", 5))
    A(f"v_readlane_b32 s{C.sPk+1}, v118, 1\nv_readlane_b32 s{sTmp}, v118, 0\nv_mov_b32 v21, v117\ns_and_b32 s{C.sPk}, s{C.sPk}, s{sTmp}\ns_cbranch_scc1 L_pk")
    wait_go(A, f"s{C.sLayer}", 2, "L_end")
    A("L_pk:")
    A(f"s_lshr_b32 s{sTmp}, s{sXcd}, 1\ns_nop 3\nv_readlane_b32 s{sTmp+1}, v21, s{sTmp}")
    A(f"s_cmp_lg_u32 s{sTmp+1}, 1\ns_cbranch_scc1 L_chain_x")
    CP = dict(P.get("chain", {}), steady=0, done="L_chdone", peek=1)
    C.chain_loop(A, CP)
    A("s_endpgm\nL_chain_x:")
    C.chain_loop(A, dict(CP, st="sc1"))
    A("s_endpgm")
    A(f"L_chdone:\ns_cmp_lg_u32 s{sXcd}, {0 if P.get('help', 1) else 9}\ns_cbranch_scc1 L_end")
    A(f"s_lshr_b32 s{sXcd}, s{sSlot}, 4\ns_add_u32 s{sXcd}, s{sXcd}, 7\nv_lshrrev_b32 v0, 4, v{C.vL16}\ns_waitcnt vmcnt(0) lgkmcnt(0)")
    wait_go(A, 0, 4, "L_end")
    A(f"s_mov_b32 s{sReal}, s{sTmp+1}\ns_branch L_o")

def qkv_role(A, P):
    A("L_qkv:")
    if "q" in P.get("kill", ""): A("s_endpgm")
    A(f"""
    s_mul_i32 s{sTmp}, s{sXcd}, 15
    s_add_u32 s{sTmp}, s{sTmp}, s{sSlot}
    s_sub_u32 s{sTmp}, s{sTmp}, 61
    s_add_u32 s{sTmp+1}, s{sXcd}, 89
    s_cmp_eq_u32 s{sSlot}, 31
    s_cselect_b32 s{sTmp}, s{sTmp+1}, s{sTmp}
    s_add_u32 s{sTmp+1}, s{sSlot}, 60
    s_cmp_eq_u32 s{sXcd}, 7
    s_cselect_b32 s{sTmp}, s{sTmp+1}, s{sTmp}
    s_mul_i32 s{sJ}, s{sTmp}, 171
    s_lshr_b32 s{sJ}, s{sJ}, 9
    s_mul_i32 s{sTmp+1}, s{sJ}, 3
    s_sub_u32 s60, s{sTmp}, s{sTmp+1}
    s_add_u32 s{sJ}, s{sJ}, 4
    s_and_b32 s{sJ}, s{sJ}, 31
    """)
    Q.qkv_role(A, P.get("qkv", {}), {-1: lambda: late_args(A)}, after_weights=lambda: wait_go(A, 1, 1, "L_end"), before_mlp=lambda: wait_go(A, 2, 1, "L_end"),
               hold=(lambda: hold(A, sJ, 20)) if "q" in P.get("hold", "") else None)
    A("s_endpgm")

def o_body(A, P):
    LR = P.get("lr", 4)
    H1 = P.get("help", 1) and P.get("h1", 0)
    ROUND, TASK, NOFL, FL, PICK = [A.label("o_" + x) for x in ("round", "task", "nofl", "fl", "pick")]
    GA, GB, GD, NONE, NN, ADV = [A.label("o_" + x) for x in ("ga", "gb", "gd", "none", "nn", "adv")]
    sP, sBn, sBel, smA, smB, sSh, sAv, sLeft = 52, 53, 54, 55, 56, 57, 58, 59
    HELP, DL, DL1, DL2 = [A.label('o_' + x) for x in ('help', 'dl', 'dl1', 'dl2')]
    sD1 = 47
    sRec = 48
    sThr = 89
    t = sTmp
    KV_ = (3 << O.B_KIND) | (1 << O.B_VALID)
    A(f"""
    s_mov_b32 s{O.sTask}, 1
    s_mov_b32 s{O.sTag}, 0
    s_mov_b32 s{O.sNk}, 0
    s_mov_b32 s{O.sRun}, 0
    s_mov_b32 s{O.sPrev}, 0
    s_mov_b32 s{O.sPre}, 0
    s_mov_b32 s{O.sPreK}, 0
    s_mov_b32 s{smA}, 0
    s_mov_b32 s{sRec}, 0
    s_mov_b32 s{smB}, 0
    s_mov_b32 s{O.sKp}, {WS_BYTES}
    s_mov_b32 s{O.sBox}, s{O.cBX}
    s_mov_b32 s{O.sS}, s{O.sRep}
    s_mul_i32 s{O.sCur}, s{O.sS}, 257
    s_or_b32 s{O.sCur}, s{O.sCur}, {O.desc(0, 0, 1)}
    s_lshr_b32 s{sSh}, s{O.sRep}, 2
    s_cbranch_scc1 {HELP}
    {ROUND}:
    """)
    O.decide(A, "L_end")
    A(f"""
    s_lshr_b32 s{t+1}, s{O.sS}, 2
    s_andn2_b32 s{sP}, 0xfff, s{O.sRun}
    s_lshr_b32 s{sP}, s{sP}, 5
    s_min_u32 s{sP}, s{sP}, 64
    s_add_u32 s{t}, s{sP}, 3
    v_readlane_b32 s{sThr}, v{O.oTHR}, s{t+1}
    s_sub_u32 s{t}, s{t}, s{O.sRep}
    s_lshr_b32 s{t}, s{t}, 2
    s_bfm_b32 s{sBel}, s{t}, 0
    s_add_u32 s{sBn}, s{O.sCur}, {4*257}
    s_cmp_lt_u32 s{O.sS}, 60
    s_cselect_b32 s{sBn}, s{sBn}, 0
    s_cmp_lt_u32 s{O.sS}, 64
    s_cselect_b32 s{t}, {LR - 1}, 1
    s_sub_i32 s{t}, s{t+1}, s{t}
    s_max_i32 s{t}, s{t}, 0
    s_min_u32 s{t}, s{t}, 16
    s_bfm_b32 s{sAv}, s{t}, 0
    s_cmp_eq_u32 s{t+1}, 16
    s_cselect_b32 s{sLeft}, {P.get("b16", LR - 3 if H1 else LR - 2)}, 1
    s_cmp_eq_u32 s{t+1}, 17
    s_cselect_b32 s{sLeft}, {P.get("b17", 0)}, s{sLeft}
    s_cmp_eq_u32 s{t+1}, 18
    s_cselect_b32 s{sLeft}, 64, s{sLeft}
    s_cselect_b32 s{O.sFin}, 0, -1
    s_cselect_b32 s{sThr}, 0, s{sThr}
    s_cbranch_scc1 {DL}
    s_cmp_eq_u32 s{t+1}, 16
    s_cbranch_scc1 {DL}_a
    {PICK}:
    s_cmp_eq_u32 s{sLeft}, 0
    s_cbranch_scc1 {NONE}
    s_sub_u32 s{sLeft}, s{sLeft}, 1
    s_andn2_b32 s{t}, s{sAv}, s{smA}
    s_and_b32 s{t}, s{t}, s{sBel}
    s_cbranch_scc1 {GA}
    s_and_b32 s{t}, s{smA}, s{O.sFin}
    s_or_b32 s{t}, s{t}, s{smB}
    s_or_b32 s{t}, s{t}, s{sBel}
    s_andn2_b32 s{t}, s{sAv}, s{t}
    s_cbranch_scc0 {NONE}
    s_cmp_ge_u32 s{O.sRun}, s{sThr}
    s_cbranch_scc1 {GB}
    {GA}:
    s_ff1_i32_b32 s{t}, s{t}
    s_bitset1_b32 s{smA}, s{t}
    s_mov_b32 s{O.sNxt}, {O.desc(1, 1, 2)}
    s_mov_b32 s{t+1}, s{O.sNxt}
    s_branch {GD}
    {NONE}:
    s_cmp_lt_u32 s{O.sS}, 60
    s_cbranch_scc1 {NN}
    s_cmp_eq_u32 s{O.sFin}, 0
    s_cbranch_scc1 {NN}
    s_and_b32 s{t}, s{O.sCur}, {KV_}
    s_cmp_eq_u32 s{t}, {1 << O.B_VALID}
    s_cbranch_scc1 {NN}
    s_cmp_lt_u32 s{O.sS}, 64
    s_cbranch_scc1 {ADV}
    s_and_b32 s{t}, s{O.sPrev}, {KV_}
    s_cmp_lg_u32 s{t}, {1 << O.B_VALID}
    s_cbranch_scc1 {ADV}
    {NN}:
    s_mov_b32 s{O.sNxt}, s{sBn}
    s_mov_b32 s{O.sRet}, 0
    s_branch {TASK}
    {GB}:
    s_ff1_i32_b32 s{t}, s{t}
    s_bitset1_b32 s{smB}, s{t}
    s_andn2_b32 s{t+1}, 31, s{O.sRun}
    s_or_b32 s{t+1}, s{t+1}, 32
    s_lshl_b32 s{t+1}, s{t+1}, {O.B_ROW}
    s_or_b32 s{t+1}, s{t+1}, {O.desc(2, 2, 3)}
    s_mov_b32 s{O.sNxt}, {O.desc(1, 2, 3)}
    {GD}:
    s_lshl4_add_u32 s{sRec}, s{sRec}, s{t}
    s_and_b32 s{t+2}, s{t}, s{sSh}                 ; helpers hold two replicas' tasks interleaved
    s_lshr_b32 s{t}, s{t}, s{sSh}
    s_lshl2_add_u32 s{t}, s{t}, s{O.sRep}
    s_add_u32 s{t}, s{t}, s{t+2}
    s_cmp_eq_u32 s{t}, s{sP}
    s_cselect_b32 s{O.sNxt}, s{t+1}, s{O.sNxt}
    s_mul_i32 s{t}, s{t}, 257
    s_or_b32 s{O.sNxt}, s{O.sNxt}, s{t}
    s_mov_b32 s{O.sRet}, 1
    {TASK}:
    s_cmp_eq_u32 s{O.sCur}, 0
    s_cbranch_scc1 {NOFL}
    """)
    O.o_task(A, P, "L_end")
    A(f"s_cmp_lg_u32 s{O.sPreK}, 0\ns_cbranch_scc1 {NOFL}\ns_and_b32 s{t}, s{O.sCur}, {3 << O.B_KIND}\ns_cbranch_scc0 {FL}")
    A(f"s_and_b32 s{t}, s{O.sNxt}, {'s%d' % O.sFin if P.get('finfl', 1) else -1}\ns_cbranch_scc1 {NOFL}\n{FL}:")
    O.r_flush(A, P, "L_end")
    A(f"""
    {NOFL}:
    s_mov_b32 s{O.sCur}, s{O.sNxt}
    s_cmp_lg_u32 s{O.sRet}, 0
    s_cbranch_scc1 {PICK}
    s_cmp_eq_u32 s{O.sFin}, 0
    s_cbranch_scc1 {HELP}_n
    {ADV}:
    s_add_u32 s{O.sS}, s{O.sS}, 4
    s_branch {ROUND}
    {DL}_a:
    s_andn2_b32 s{t}, s{sAv}, s{smA}
    s_and_b32 s{t+3}, s{t}, s{sBel}
    s_bcnt1_i32_b32 s{t+1}, s{t+3}
    s_add_u32 s{t+1}, s{t+1}, {P.get('dl1', 2)}
    s_max_u32 s{t+1}, s{t+1}, 4
    s_andn2_b32 s{t}, s{t}, s{smB}
    s_and_b32 s{t}, s{t}, 0x3fff
    s_or_b32 s{t}, s{t}, s{t+3}
    s_cselect_b32 s{t+1}, s{t+1}, 0
    s_mul_i32 s{t+1}, s{t+1}, {74 if H1 else 0}
    s_cmp_ge_u32 s{O.sRun}, s{sThr}
    s_cselect_b32 s{t+4}, s{sBel}, -1
    s_mov_b32 s{t+5}, {F_DL}
    s_branch {DL}_b
    {DL}:
    s_and_b32 s{t}, s{smA}, s{sBel}
    s_andn2_b32 s{t+1}, s{smB}, s{sBel}
    s_or_b32 s{t}, s{t}, s{t+1}
    s_andn2_b32 s{t}, s{sAv}, s{t}
    s_bcnt1_i32_b32 s{t+1}, s{t}
    s_bcnt1_i32_b32 s{t+2}, s{sD1}
    s_mul_i32 s{t+2}, s{t+2}, {-P.get('dlk', 5)}
    s_lshl1_add_u32 s{t+1}, s{t+1}, s{t+2}
    s_add_i32 s{t+1}, s{t+1}, {P.get('dla', 1)}
    s_max_i32 s{t+1}, s{t+1}, 0
    s_mul_i32 s{t+1}, s{t+1}, {37 if P.get('help', 1) else 0}
    s_mov_b32 s{t+4}, s{sBel}
    s_mov_b32 s{t+5}, {F_DL + 8}
    s_and_b32 s{t+3}, s{t}, s{sD1}
    s_andn2_b32 s{t}, s{t}, s{t+3}
    s_branch {DL}_c
    {DL}_b:
    s_mov_b32 s{t+3}, 0
    {DL}_c:
    s_bfe_u32 s{t+2}, s{sRec}, 262144
    s_bitset0_b32 s{t}, s{t+2}
    s_bfe_u32 s{t+2}, s{sRec}, 262148
    s_bitset0_b32 s{t}, s{t+2}
    s_bfe_u32 s{t+2}, s{sRec}, 262152
    s_bitset0_b32 s{t}, s{t+2}
    s_bfe_u32 s{t+2}, s{sRec}, 262156
    s_bitset0_b32 s{t}, s{t+2}
    s_lshr_b32 s{t+1}, s{t+1}, 8
    {DL1}:
    s_cbranch_scc0 {DL2}
    s_ff1_i32_b32 s{t+2}, s{t}
    s_bitset0_b32 s{t}, s{t+2}
    s_bitset1_b32 s{t+3}, s{t+2}
    s_sub_u32 s{t+1}, s{t+1}, 1
    s_cmp_lg_u32 s{t+1}, 0
    s_branch {DL1}
    {DL2}:
    s_and_b32 s{sD1}, s{t+3}, 0xffff
    s_and_b32 s{t+4}, s{t+4}, s{sD1}
    s_or_b32 s{smA}, s{smA}, s{t+4}
    s_andn2_b32 s{t}, s{sD1}, s{t+4}
    s_or_b32 s{smB}, s{smB}, s{t}
    s_pack_ll_b32_b16 s{t}, s{sD1}, s{t+4}
    s_lshl_b32 s{t+1}, s{O.sRep}, 7
    s_add_u32 s{t+1}, s{t+1}, s{t+5}
    s_cmp_lg_u32 s{O.cTK}, 0
    s_cbranch_scc1 {PICK}
    v_mov_b32 v162, s{t}
    v_mov_b32 v163, s{O.sRun}
    s_mov_b64 exec, 1
    buffer_store_dwordx2 v[162:163], off, s[{sWS}:{sWS+3}], s{t+1} sc1
    s_mov_b64 exec, -1
    s_branch {PICK}
    {HELP}:
    s_lshl_b32 s{O.sRep}, s{O.sRep}, 1
    s_and_b32 s{O.sRep}, s{O.sRep}, 2
    s_lshl_b32 s{sD1}, s{O.sRep}, 7
    s_add_u32 s{sD1}, s{sD1}, {F_DL - 8}
    {HELP}_n:
    s_add_u32 s{sD1}, s{sD1}, 8
    s_lshr_b32 s{t}, s{sD1}, 4
    s_andn2_b32 s{t}, s{sSh}, s{t}
    s_cbranch_scc0 L_end
    s_mov_b32 s{O.sSpin}, 0
    {HELP}_w:
    buffer_load_dwordx2 v[162:163], off, s[{sWS}:{sWS+3}], s{sD1} sc1
    buffer_load_dwordx2 v[164:165], off, s[{sWS}:{sWS+3}], s{sD1} offset:128 sc1
    s_add_u32 s{O.sSpin}, s{O.sSpin}, 1
    s_cmp_gt_u32 s{O.sSpin}, {SPIN_MAX}
    s_cbranch_scc1 L_end
    s_waitcnt vmcnt(0)
    v_readfirstlane_b32 s{t+2}, v162
    v_readfirstlane_b32 s{t+4}, v164
    v_readfirstlane_b32 s{O.sRun}, v163
    v_readfirstlane_b32 s{t+1}, v165
    s_min_u32 s{t}, s{O.sRun}, s{t+1}
    s_cmp_eq_u32 s{t}, 0
    s_cbranch_scc1 {HELP}_w
    s_max_u32 s{O.sRun}, s{O.sRun}, s{t+1}
    s_bitreplicate_b64_b32 s[{t+2}:{t+3}], s{t+2}
    s_bitreplicate_b64_b32 s[{t+4}:{t+5}], s{t+4}
    s_mov_b32 s{t}, 0x55555555
    s_mov_b32 s{t+1}, 0x55555555
    s_and_b64 s[{t+2}:{t+3}], s[{t+2}:{t+3}], s[{t}:{t+1}]
    s_andn2_b64 s[{t+4}:{t+5}], s[{t+4}:{t+5}], s[{t}:{t+1}]
    s_or_b32 s{sAv}, s{t+2}, s{t+4}
    s_or_b32 s{sBel}, s{t+3}, s{t+5}
    s_andn2_b32 s{sP}, 0xfff, s{O.sRun}
    s_lshr_b32 s{sP}, s{sP}, 5
    s_mov_b32 s{sBn}, 0
    s_mov_b32 s{O.sCur}, 0
    s_mov_b32 s{O.sS}, 72
    s_mov_b32 s{sLeft}, 64
    s_mov_b32 s{O.sFin}, 0
    s_mov_b32 s{sThr}, 0
    s_branch {PICK}
    """)

def o_role(A, P):
    W = f"s[{sWS}:{sWS+3}]"
    A("L_o:")
    if "o" in P.get("kill", ""): A("s_endpgm")
    A(f"s_sub_u32 s{O.sRep}, s{sXcd}, 3\ns_and_b32 s{O.sU}, s{sSlot}, 15")
    O.o_prologue(A, lambda: late_args(A), lambda: wait_go(A, 1, 1, "L_end", 60), P.get("o", {}), (lambda: hold(A, O.sHd, 60)) if "o" in P.get("hold", "") else None)
    A(f"s_cmp_ge_u32 s{O.sRep}, 4\ns_cbranch_scc1 L_oh")
    arrive(A, f"s{sXcd}", 48)
    A("s_waitcnt vmcnt(0)")
    arrive_fin(A, 16, 48)
    if P.get("owarm"):
        A(f"s_lshr_b32 s{sTmp}, s{O.sRep}, 1\ns_cmp_lg_u32 s{sTmp}, 1\ns_cbranch_scc1 L_ow\ns_and_b32 s{sTmp+2}, s{O.sHd}, 28\ns_or_b32 s{sTmp+2}, s{sTmp+2}, 1")
        if P["owarm"] in (1, 3): hold(A, sTmp + 2, 60, -1 if P["owarm"] == 1 else 0)
        A(f"s_mov_b32 s{sT+2}, {512*1792*2}")
        for m in ("wg", "wu", "wd"):
            A(f"s_load_dwordx2 s[{sT}:{sT+1}], s[0:1], {KA[m]}\ns_mul_i32 s{sTmp}, s{O.sRow}, 14336\ns_sub_u32 s{sTmp}, s{sTmp}, {128*14336}\ns_waitcnt lgkmcnt(0)")
            for i in range(14):
                A(f"buffer_load_dwordx4 v[64:67], v{O.oL16}, s[{sT}:{sT+3}], s{sTmp} offen offset:{(i%4)*1024}")
                if i % 4 == 3: A(f"s_add_u32 s{sTmp}, s{sTmp}, 4096")
        A("L_ow:")
    wait_go(A, f"s{sXcd}", 1, "L_end", 60)
    A(f"s_mov_b32 s{sReal}, s{sTmp+1}\nL_oh:\ns_cmp_lg_u32 s{sReal}, 1\ns_cbranch_scc1 L_o_x")
    OP = dict(P.get("o", {}), help=P.get("help", 1))
    o_body(A, OP)
    A("L_o_x:")
    o_body(A, dict(OP, st="sc1"))

HEAD = open("cdna_kernels/" + NAME + ".s.ref").read().split("; Override launch")[0] if True else ""

def generate(P):
    common.TRACE_ON[0] = P.get("trace", 0)
    A = Asm()
    Q.SLP[0] = P.get('qslp', 0); O.SLP[0] = P.get('oslp', 0)
    entry(A, P)
    A("L_end:\ns_endpgm")
    chain_role(A, P); qkv_role(A, P); o_role(A, P)
    body = A.text(verbose=P.get("verbose", False))
    return (HEAD + "; @launch grid=(256,1,1) block=(256,1,1) lds=163840\n"
            + f'.amdgcn_target "amdgcn-amd-amdhsa--gfx950"\n.text\n.globl {KN}\n.p2align 8\n.type {KN},@function\n{KN}:\n'
            + body + f"""
.section .rodata,"a"
.p2align 6
.amdhsa_kernel {KN}
  .amdhsa_next_free_vgpr 512
  .amdhsa_next_free_sgpr 102
  .amdhsa_accum_offset 256
  .amdhsa_group_segment_fixed_size 0
  .amdhsa_kernarg_size 120
  .amdhsa_user_sgpr_count 2
  .amdhsa_user_sgpr_kernarg_segment_ptr 1
  .amdhsa_system_sgpr_workgroup_id_x 1
  .amdhsa_float_denorm_mode_32 3
.end_amdhsa_kernel
""")

DEFAULT = dict(chain=dict(kearly=1, fp=1, z1=15), cdep=3, early=0, warm=None, owarm=1, sig=8, hold='a', qkv=dict(dep=3, n0=6, npre=5, lmin=10), o=dict(dmaskip=3, lr=3))
if __name__ == "__main__":
    P = dict(DEFAULT)
    if len(sys.argv) > 2: P.update(eval(sys.argv[2]))
    out = sys.argv[1] if len(sys.argv) > 1 else "/code/" + NAME + ".s"
    txt = generate(P)
    open(out, "w").write(txt)
    print("wrote", out, len(txt), "bytes", txt.count("\n"), "lines")
```
